```python
import torch

def _softmax(x, axis=-1):
    return torch.softmax(x, dim=axis)
def _gelu(x):
    return torch.nn.functional.gelu(x, approximate="tanh")
def _silu(x):
    return torch.nn.functional.silu(x)
def _sigmoid(x):
    return torch.sigmoid(x)
def _layernorm(x, axis=-1, eps=1e-5):
    m = x.mean(dim=axis, keepdim=True)
    v = x.var(dim=axis, keepdim=True, unbiased=False)
    return (x - m) / torch.sqrt(v + eps)
def _scatter_add(tgt, idx, src, axis=0):
    return tgt.clone().index_add_(axis, idx, src)
def _segment_sum(src, seg, n):
    out = torch.zeros((n,) + src.shape[1:], dtype=src.dtype)
    return out.index_add_(0, seg, src)
def _pad(x, pw):
    flat = tuple(v for pair in reversed(pw) for v in pair)
    return torch.nn.functional.pad(x, flat)

kernel_name = 'concat_heads__gqa_block_cached__mha_block_cached__near_ridge'

def setup_inputs():

    _w = (lambda a: (lambda t: t.to(torch.bfloat16) if t.is_floating_point() else t)(torch.as_tensor(a)))
    def _A_setup():
        B, Sq, D = 8, 144, 448
        Hq, Hkv, Sk, Dh = 16, 8, 1024, 256
        assert Hq % Hkv == 0, (Hq, Hkv)
        return {
            "x": _w((lambda *s: torch.randn(*s, dtype=torch.bfloat16) * 0.8)(B, Sq, D)),
            "k_cache": _w((lambda *s: torch.randn(*s, dtype=torch.bfloat16) * 0.8)(B, Hkv, Sk, Dh)),
            "v_cache": _w((lambda *s: torch.randn(*s, dtype=torch.bfloat16) * 0.05)(B, Hkv, Sk, Dh)),
            "wq": _w((lambda *s: torch.randn(*s, dtype=torch.bfloat16) * 0.8)(D, Hq * Dh) * (D ** -0.5)),
            "wo": _w((lambda *s: torch.randn(*s, dtype=torch.bfloat16) * 0.05)(Hq * Dh, D) * ((Hq * Dh) ** -0.5)),
        }
    _A_in = _A_setup()

    def _B_setup():
        B, Sq, D = 8, 144, 448
        H, Sk, Dh = 16, 1024, 256
        return {
            "x": _w((lambda *s: torch.randn(*s, dtype=torch.bfloat16) * 0.8)(B, Sq, D)),
            "k_cache": _w((lambda *s: torch.randn(*s, dtype=torch.bfloat16) * 0.8)(B, H, Sk, Dh)),
            "v_cache": _w((lambda *s: torch.randn(*s, dtype=torch.bfloat16) * 0.05)(B, H, Sk, Dh)),
            "wq": _w((lambda *s: torch.randn(*s, dtype=torch.bfloat16) * 0.8)(D, H * Dh) * (D ** -0.5)),
            "wo": _w((lambda *s: torch.randn(*s, dtype=torch.bfloat16) * 0.05)(H * Dh, D) * ((H * Dh) ** -0.5)),
        }
    _B_in = _B_setup()

    return {
        "A_x": _A_in["x"],
        "A_k_cache": _A_in["k_cache"],
        "A_v_cache": _A_in["v_cache"],
        "A_wq": _A_in["wq"],
        "A_wo": _A_in["wo"],
        "B_x": _B_in["x"],
        "B_k_cache": _B_in["k_cache"],
        "B_v_cache": _B_in["v_cache"],
        "B_wq": _B_in["wq"],
        "B_wo": _B_in["wo"],
    }

def reference(A_x, A_k_cache, A_v_cache, A_wq, A_wo, B_x, B_k_cache, B_v_cache, B_wq, B_wo):
    def _A_ref(x, k_cache, v_cache, wq, wo):
        B, Sq, D = x.shape
        Hq, Dh = 16, 256
        Hkv = k_cache.shape[1]
        rep = Hq // Hkv
        q = (lambda x, *d: x.permute(*d))((x @ wq).reshape(B, Sq, Hq, Dh), 0, 2, 1, 3)
        k = (lambda x, n, axis: torch.repeat_interleave(x, n, dim=axis))(k_cache, rep, axis=1)
        v = (lambda x, n, axis: torch.repeat_interleave(x, n, dim=axis))(v_cache, rep, axis=1)
        scores = torch.einsum("bhqd,bhkd->bhqk", q, k) * (Dh ** -0.5)
        p = _softmax(scores, axis=-1)
        o = torch.einsum("bhqk,bhkd->bhqd", p, v)
        return (lambda x, *d: x.permute(*d))(o, 0, 2, 1, 3).reshape(B, Sq, Hq * Dh) @ wo

    def _B_ref(x, k_cache, v_cache, wq, wo):
        B, Sq, D = x.shape
        H, Dh = 16, 256
        q = (lambda x, *d: x.permute(*d))((x @ wq).reshape(B, Sq, H, Dh), 0, 2, 1, 3)
        scores = torch.einsum("bhqd,bhkd->bhqk", q, k_cache) * (Dh ** -0.5)
        p = _softmax(scores, axis=-1)
        o = torch.einsum("bhqk,bhkd->bhqd", p, v_cache)
        return (lambda x, *d: x.permute(*d))(o, 0, 2, 1, 3).reshape(B, Sq, H * Dh) @ wo

    a = _A_ref(A_x, A_k_cache, A_v_cache, A_wq, A_wo)
    b = _B_ref(B_x, B_k_cache, B_v_cache, B_wq, B_wo)
    return torch.concatenate([a, b], axis=-1)
```

```python
import re

REG_RE = re.compile(r"\b([vas])(?:\[(\d+):(\d+)\]|(\d+)\b)")


def regs_of(tok):
    tok = tok.strip()
    out = set()
    if tok in ("vcc",):
        return {("s", "vcc")}
    if tok == "exec":
        return {("s", "exec")}
    if tok == "m0":
        return {("s", "m0")}
    t = tok.lstrip("-")
    if t.startswith("abs(") or t.startswith("|"):
        t = t.replace("abs(", "").replace(")", "").replace("|", "")
    m = re.fullmatch(r"([vas])\[(\d+):(\d+)\]", t)
    if m:
        for n in range(int(m.group(2)), int(m.group(3)) + 1):
            out.add((m.group(1), n))
        return out
    m = re.fullmatch(r"([vas])(\d+)", t)
    if m:
        out.add((m.group(1), int(m.group(2))))
    return out


TRANS = ("v_exp_f32", "v_log_f32", "v_rcp_f32", "v_rsq_f32", "v_sqrt_f32")


class Ins:
    __slots__ = ("text", "op", "kind", "dst", "src", "srcC", "tag", "cost")

    def __init__(self, text, tag=None):
        self.text = text
        self.tag = tag
        body = text.split(";")[0].strip()
        self.op = body.split()[0] if body else ""
        rest = body[len(self.op):].strip()
        ops = [o.strip() for o in rest.split(",")] if rest else []
        if ops:
            last = ops[-1].split()
            ops[-1] = last[0] if last else ""
            mods = last[1:]
        else:
            mods = []
        self.dst = set()
        self.src = set()
        self.srcC = set()
        op = self.op
        self.cost = 1
        if op.endswith(":") or op == "" or op.startswith("."):
            self.kind = "label"
            self.cost = 0
        elif op.startswith("v_mfma"):
            self.kind = "mfma"
            self.dst = regs_of(ops[0])
            self.src = regs_of(ops[1]) | regs_of(ops[2]) | regs_of(ops[3])
            self.srcC = regs_of(ops[3])
            self.cost = 2
        elif op.startswith("ds_read") or op.startswith("ds_bpermute") or op.startswith("ds_swizzle"):
            self.kind = "dsr"
            self.dst = regs_of(ops[0])
            for o in ops[1:]:
                self.src |= regs_of(o)
        elif op.startswith("ds_write"):
            self.kind = "dsw"
            for o in ops:
                self.src |= regs_of(o)
        elif op.startswith("buffer_load") or op.startswith("global_load"):
            if "lds" in mods:
                self.kind = "dma"
                for o in ops:
                    self.src |= regs_of(o)
                self.src.add(("s", "m0"))
            else:
                self.kind = "vld"
                self.dst = regs_of(ops[0])
                for o in ops[1:]:
                    self.src |= regs_of(o)
        elif op.startswith("buffer_store") or op.startswith("global_store"):
            self.kind = "vst"
            for o in ops:
                self.src |= regs_of(o)
        elif op.startswith("buffer_atomic") or op.startswith("global_atomic"):
            self.kind = "vld" if "sc0" in mods else "vst"
            if op.startswith("buffer_atomic"):
                if "sc0" in mods:
                    self.dst = regs_of(ops[0])
                for o in ops:
                    self.src |= regs_of(o)
            else:
                if "sc0" in mods:
                    self.dst = regs_of(ops[0])
                    for o in ops[1:]:
                        self.src |= regs_of(o)
                else:
                    for o in ops:
                        self.src |= regs_of(o)
        elif op in ("buffer_wbl2", "buffer_inv"):
            self.kind = "vst"
        elif op == "s_waitcnt":
            self.kind = "wait"
        elif op == "s_barrier":
            self.kind = "barrier"
        elif op == "s_nop":
            self.kind = "nop"
            self.cost = int(ops[0], 0) + 1
        elif op.startswith("s_cbranch") or op in ("s_branch", "s_call_b64", "s_setpc_b64", "s_endpgm", "s_swappc_b64"):
            self.kind = "branch"
            if op == "s_call_b64":
                self.dst = regs_of(ops[0])
        elif op.startswith("s_load") or op in ("s_memtime", "s_memrealtime"):
            self.kind = "smem"
            self.dst = regs_of(ops[0])
            for o in ops[1:]:
                self.src |= regs_of(o)
        elif op.startswith("s_cmp") or op.startswith("s_bitcmp"):
            self.kind = "salu"
            for o in ops:
                self.src |= regs_of(o)
        elif op.startswith("s_"):
            self.kind = "salu"
            if ops:
                self.dst = regs_of(ops[0])
                for o in ops[1:]:
                    self.src |= regs_of(o)
            if "saveexec" in op:
                self.dst |= {("s", "exec")}
        elif op.startswith("v_"):
            base = op.replace("_e32", "").replace("_e64", "")
            self.kind = "trans" if base in TRANS else "valu"
            if self.kind == "trans":
                self.cost = 2
            self.dst = regs_of(ops[0])
            start = 1
            if base.startswith("v_add_co") or base.startswith("v_addc_co") or base.startswith("v_sub_co"):
                self.dst |= regs_of(ops[1])
                start = 2
            for o in ops[start:]:
                self.src |= regs_of(o)
            if base.startswith("v_permlane") and "swap" in base:
                self.dst |= regs_of(ops[1])
                self.src |= regs_of(ops[0])
            if base in ("v_fmac_f32", "v_dot2c_f32_bf16"):
                self.src |= regs_of(ops[0])
            if base.startswith("v_cndmask") and len(ops) == 3:
                self.src.add(("s", "vcc"))
        else:
            raise ValueError("unknown instruction: " + text)

    def states(self):
        if self.kind == "label":
            return 0
        if self.kind == "nop":
            return self.cost
        return 1


def parse_wait(text):
    vm = re.search(r"vmcnt\((\d+)\)", text)
    lg = re.search(r"lgkmcnt\((\d+)\)", text)
    return (int(vm.group(1)) if vm else None, int(lg.group(1)) if lg else None)


class Prog:
    def __init__(self):
        self.ins = []
        self.dsq = []
        self.vmq = []
        self.nwaits = 0

    def emit(self, text, tag=None, auto=True):
        for line in text.split("\n"):
            line = line.strip()
            if not line:
                continue
            self._emit1(Ins(line, tag), auto)

    def _need(self, q, regs):
        idx = -1
        for k, (_, d) in enumerate(q):
            if d & regs:
                idx = k
        return idx

    def _emit1(self, I, auto):
        touched = I.src | I.dst
        if I.kind not in ("label", "wait"):
            a = self._need(self.dsq, touched)
            b = self._need(self.vmq, touched)
            if a >= 0 or b >= 0:
                assert auto, "missing wait before " + I.text
                parts = []
                if b >= 0:
                    parts.append("vmcnt(%d)" % min(63, len(self.vmq) - 1 - b))
                if a >= 0:
                    parts.append("lgkmcnt(%d)" % min(15, len(self.dsq) - 1 - a))
                self._emit1(Ins("s_waitcnt " + " ".join(parts)), False)
        if I.kind == "wait":
            vm, lg = parse_wait(I.text)
            if vm is not None:
                while len(self.vmq) > vm:
                    self.vmq.pop(0)
            if lg is not None:
                while len(self.dsq) > lg:
                    self.dsq.pop(0)
            self.nwaits += 1
        if I.kind in ("dsr", "dsw"):
            if len(self.dsq) >= 15:
                self._emit1(Ins("s_waitcnt lgkmcnt(14)"), False)
            self.dsq.append((I.tag, set(I.dst)))
        if I.kind == "smem":
            self.dsq.append((I.tag, set(I.dst)))
            self.dsq.append((I.tag, set(I.dst)))
        if I.kind in ("vld", "vst", "dma"):
            self.vmq.append((I.tag, set(I.dst)))
        self.ins.append(I)

    def wait_ds_regs(self, regs):
        a = self._need(self.dsq, regs)
        if a >= 0:
            self.emit("s_waitcnt lgkmcnt(%d)" % min(15, len(self.dsq) - 1 - a))

    def vm_count_after(self, tags):
        idx = -1
        for k, (t, _) in enumerate(self.vmq):
            if t in tags:
                idx = k
        if idx < 0:
            return None
        return len(self.vmq) - 1 - idx

    def text(self):
        return "\n".join(("" if i.kind == "label" else "    ") + i.text for i in self.ins)


def mfma_passes(op):
    if "32x32x16" in op:
        return 8
    if "16x16x32" in op:
        return 4
    raise ValueError(op)


def pad_hazards(ins, report=None):
    out = []

    def dist_back(pred, limit):
        d = 0
        for J in reversed(out):
            if pred(J):
                return d
            d += J.states()
            if d >= limit:
                return None
        return None

    for I in ins:
        need = 0

        def req(pred, n, why):
            nonlocal need
            d = dist_back(pred, n)
            if d is not None and d < n:
                if n - d > need:
                    need = n - d
                if report is not None:
                    report.append((why, n - d, I.text))

        isv = I.kind in ("valu", "trans")
        vsrc = {r for r in I.src if r[0] in "va"}
        vdst = {r for r in I.dst if r[0] in "va"}
        ssrc = {r for r in I.src if r[0] == "s"}
        if I.kind == "mfma":
            req(lambda J: J.kind in ("valu", "trans") and J.dst & vsrc, 2, "valu->mfma")
            ab = I.src - I.srcC if I.srcC != I.src else I.src
            for p, n_ab, n_c in ((4, 8, 6), (8, 12, 10)):
                req(lambda J: J.kind == "mfma" and mfma_passes(J.op) == p and (J.dst & (I.src - I.srcC)), n_ab, "mfmaD->AB")
                req(lambda J: J.kind == "mfma" and mfma_passes(J.op) == p and (J.dst & I.srcC)
                    and not (J.dst == I.srcC and mfma_passes(I.op) == p), n_c, "mfmaD->Cpartial")
                req(lambda J: J.kind == "mfma" and mfma_passes(J.op) == p and (J.dst & I.dst)
                    and not (J.dst == I.srcC), n_c, "mfmaD->Dwaw")
            req(lambda J: J.kind in ("valu", "trans") and ("s", "exec") in J.dst, 4, "exec->mfma")
        if isv or I.kind in ("dsr", "dsw", "vld", "vst", "dma"):
            touch = vsrc | vdst
            for p, n in ((4, 8), (8, 12)):
                req(lambda J: J.kind == "mfma" and mfma_passes(J.op) == p and (J.dst & touch), n, "mfmaD->valu/mem")
        if isv:
            for p, n in ((4, 3), (8, 7)):
                req(lambda J: J.kind == "mfma" and mfma_passes(J.op) == p and (J.srcC & vdst), n, "mfmaC war")
            if I.kind == "valu":
                req(lambda J: J.kind == "trans" and (J.dst & vsrc), 1, "trans->valu")
            req(lambda J: J.kind in ("valu", "trans") and (J.dst & ssrc), 2, "valu sgpr->valu")
            req(lambda J: J.kind == "vst" and ("x4" in J.op or "x3" in J.op) and (J.src & vdst), 2, "store war")
            if I.op.startswith("v_readfirstlane") or I.op.startswith("v_readlane"):
                req(lambda J: J.kind in ("valu", "trans") and (J.dst & vsrc), 1, "valu->readlane")
            if I.op.startswith("v_permlane") or "dpp" in I.op:
                req(lambda J: J.kind in ("valu", "trans") and (J.dst & vsrc), 2, "valu->permlane/dpp")
        if I.kind in ("dsr", "vld"):
            req(lambda J: J.kind == "vst" and ("x4" in J.op or "x3" in J.op) and (J.src & vdst), 2, "store war(load)")
        if I.kind in ("vld", "vst", "dma"):
            req(lambda J: J.kind in ("valu", "trans") and (J.dst & ssrc), 5, "valu sgpr->vmem")
        if I.kind == "dma":
            req(lambda J: J.kind == "salu" and ("s", "m0") in J.dst, 1, "m0->dma")
        if I.kind == "salu":
            req(lambda J: J.kind in ("valu", "trans") and (J.dst & ssrc), 2, "valu sgpr->salu(pad)")
        while need > 0:
            k = min(need, 16)
            out.append(Ins("s_nop %d" % (k - 1)))
            need -= k
        out.append(I)
    return out
```

```python
import sys, struct, math
sys.path.insert(0, "work")
from asmlib import *

OPT = dict(a.split("=") for a in sys.argv[1:] if "=" in a)
NT = OPT.get("nt", "nt")
WNT = OPT.get("wnt", "")
STP = OPT.get("st", "")
STAMP = int(OPT.get("stamp", "0"))
NT = NT.replace("_", " ")
WNT = WNT.replace("_", " ")
STP = STP.replace("_", " ")

KN = "concat_heads__gqa_block_cached__mha_block_cached__near_ridge_kernel"
NSLOT = 9
SLOT = 16384
RING = NSLOT * SLOT
LDS_P9 = RING
LDS_MB = RING + 2048
LDS_O9 = RING + 3072
LDS_TOTAL = RING + 3072 + 8192
TOFF = 7.0
CSCALE = math.log2(math.e) / 16.0


def fbits(x):
    return "0x%08x" % struct.unpack("<I", struct.pack("<f", x))[0]


def vr(n, k=4):
    return "v[%d:%d]" % (n, n + k - 1)


def ar(n, k=4):
    return "a[%d:%d]" % (n, n + k - 1)


SRD_X, SRD_WQ, SRD_K, SRD_V, SRD_WO, SRD_WS = 4, 8, 12, 16, 20, 24
sW, sW4K = 28, 29
sOffK, sOffV, sTmpO, sLoop = 31, 32, 33, 34
sPVa, sPVb, sKa, sKb, sVa, sVb = 35, 36, 37, 38, 39, 40
sNKa, sNKb, sNVa, sNVb = 41, 42, 43, 50
sD0, sD1, sD2, sD3, sD4 = 51, 52, 53, 54, 55
sForce = 44
sFloor = 46
sFirst = 47
sRet = 48
sMask = 56
sT0, sT1, sT2, sT3 = 57, 58, 59, 60
sWhi = 61
sStamp = 64
sWSB = 62

vK = 20
vK9 = 24
vV = 28
vDKV, vDWQ, vDWO = 36, 37, 38
vLane16 = 39
vX0, vX9 = 40, 41
vChk = 42
vP9W = 43
vTmp = 44
vNegM = 52
vP = 64
vP9o = 80
vP9 = 84
vS = 92
vS9 = 124
vO = 128
aQ = 0
aO9 = 96
aL = 112
aOnes = 124
aBUF = 128

srd = lambda n: "s[%d:%d]" % (n, n + 3)

P = Prog()
E = P.emit
stubs = []
nstamp = [0]


def stamp():
    if STAMP:
        E("s_memrealtime s[%d:%d]" % (sStamp + 2 * nstamp[0], sStamp + 2 * nstamp[0] + 1))
        E("s_waitcnt lgkmcnt(0)")
        nstamp[0] += 1


class Item:
    def __init__(self, text, earliest=-1, deadline=10 ** 6, tag=None):
        self.text, self.earliest, self.deadline, self.tag = text, earliest, deadline, tag
        self.cost = sum(Ins(l.strip()).cost for l in text.split("\n") if l.strip())


def run_phase(mf, queues, pre_budget=10 ** 6, budget=2):
    qs = [list(q) for q in queues]

    def fill(g, bud):
        used = 0
        while True:
            best = None
            for qi, q in enumerate(qs):
                if q and q[0].earliest <= g:
                    forced = any(it.deadline <= g for it in q[:1])
                    key = (0 if forced else 1, q[0].deadline, qi)
                    if forced or used + q[0].cost <= bud:
                        if best is None or key < best[0]:
                            best = (key, qi)
            if best is None:
                break
            it = qs[best[1]].pop(0)
            E(it.text, tag=it.tag)
            used += it.cost

    fill(-1, pre_budget)
    for g, m in enumerate(mf):
        for t in m.get("pre", []):
            if callable(t):
                t()
            else:
                E(t)
        if m.get("waitfor"):
            same = P._need(P.dsq, Ins(m["text"]).src) >= 0
            if same:
                P.wait_ds_regs(m["waitfor"] | Ins(m["text"]).src)
        E(m["text"])
        fill(g, budget)
    for q in qs:
        for it in q:
            E(it.text, tag=it.tag)


def areg_set(n, k=4):
    return {("a", n + i) for i in range(k)}


def mfma(d, a, b, c):
    return "v_mfma_f32_16x16x32_bf16 %s, %s, %s, %s" % (d, a, b, c)


def dma_kv(which, slot, tag):
    s_srd, s_off = (SRD_K, sOffK) if which == "K" else (SRD_V, sOffV)
    it = []
    if isinstance(slot, tuple):
        it.append("s_add_u32 m0, s%d, %d" % (sW4K, slot[1]))
    else:
        it.append("s_add_u32 m0, s%d, s%d" % (sW4K, slot))
    first = True
    res = []
    for m in range(4):
        t = "buffer_load_dwordx4 v%d, %s, s%d offen offset:%d %s lds" % (vDKV, srd(s_srd), s_off, m * 1024, NT)
        if first:
            res.append(it[0] + "\ns_nop 0\n" + t)
            first = False
        else:
            res.append(t)
    res.append("s_add_u32 s%d, s%d, %d" % (s_off, s_off, SLOT))
    return [(r, tag) for r in res]


def dma_wq(s, slot_const, tag):
    res = []
    for m in range(4):
        so = (32 * s + 16 * (m & 1) + 4 * (m >> 1)) * 8192 - m * 1024
        t = ""
        if m == 0:
            t += "s_add_u32 m0, s%d, %d\n" % (sW4K, slot_const)
        t += "s_mov_b32 s%d, %d\n" % (sTmpO, so)
        t += "buffer_load_dwordx4 v%d, %s, s%d offen offset:%d %s lds" % (vDWQ, srd(SRD_WQ), sTmpO, m * 1024, WNT)
        res.append((t, tag))
    return res


def dma_wo(q, slot, tag):
    H, s = q >> 3, q & 7
    res = []
    for m in range(4):
        so = (32 * s + 8 * m) * 896 + H * 512 - m * 1024
        t = ""
        if m == 0:
            if isinstance(slot, tuple):
                t += "s_add_u32 m0, s%d, %d\n" % (sW4K, slot[1])
            else:
                t += "s_add_u32 m0, s%d, s%d\n" % (sW4K, slot)
        t += "s_mov_b32 s%d, %d\n" % (sTmpO, so)
        t += "buffer_load_dwordx4 v%d, %s, s%d offen offset:%d %s lds" % (vDWO, srd(SRD_WO), sTmpO, m * 1024, WNT)
        res.append((t, tag))
    return res


def inc_slot(dst, src):
    return "s_add_u32 s%d, s%d, %d\ns_cmp_eq_u32 s%d, %d\ns_cselect_b32 s%d, 0, s%d" % (dst, src, SLOT, dst, RING, dst, dst)


def softmax_items(regs_S, regs_P, earliest, deadline, bank):
    t = vTmp + 4 * bank
    its = []
    for r in range(4):
        its.append(Item("v_exp_f32 v%d, v%d" % (t + r, regs_S + r), earliest, deadline))
    its.append(Item("v_cvt_pk_bf16_f32 v%d, v%d, v%d" % (regs_P, t, t + 1), earliest, deadline))
    its.append(Item("v_cvt_pk_bf16_f32 v%d, v%d, v%d" % (regs_P + 1, t + 2, t + 3), earliest, deadline))
    return its


def check_items(base, earliest, deadline):
    x = vChk
    return [Item("v_or3_b32 v%d, v%d, v%d, v%d" % (x, base, base + 1, base + 2), earliest, deadline),
            Item("v_or3_b32 v%d, v%d, v%d, v%d" % (x, x, base + 3, base + 4), earliest, deadline),
            Item("v_or3_b32 v%d, v%d, v%d, v%d" % (x, x, base + 5, base + 6), earliest, deadline),
            Item("v_bitop3_b32 v%d, v%d, v%d, s%d bitop3:0xa8" % (x, x, base + 7, sMask), earliest, deadline),
            Item("v_cmp_ne_u32 vcc, 0, v%d" % x, earliest, deadline)]


nchk = [0]


def check_branch(sub, force):
    k = nchk[0]
    nchk[0] += 1
    t = ""
    if force:
        t += "s_or_b64 vcc, vcc, s[%d:%d]\n" % (sForce, sForce + 1)
    t += "s_cbranch_vccnz L_rare%d\nL_back%d:" % (k, k)
    stubs.append("L_rare%d:\ns_call_b64 s[%d:%d], %s\ns_branch L_back%d" % (k, sRet, sRet + 1, sub, k))
    return t


S_ = lambda kt, T: vS + 8 * kt + 4 * T
P_ = lambda s, T: vP + 8 * s + 4 * T
Q_ = lambda T, s: aQ + 32 * T + 4 * s
O_ = lambda T, t: vO + 64 * T + 4 * t
SPECIAL = {6: 0, 7: 1, 14: 2, 15: 3}
LEAD_B128 = 8
LEAD_TR = 6


cyc = [0]
def cstamp(on):
    if STAMP and on:
        E("s_memtime s[%d:%d]" % (80 + 2 * cyc[0], 81 + 2 * cyc[0]))
        E("s_waitcnt lgkmcnt(0)")
        cyc[0] += 1

def block(site1, site2, vm1, vm2, last=False, cs=False):
    cstamp(cs)
    E("s_waitcnt vmcnt(%d)" % vm1)
    E("s_barrier")
    cstamp(cs)
    frags = []
    mf = []
    first_use = []
    nb = [0]

    def newfrag(areg, off):
        b = aBUF + 4 * (nb[0] % 32)
        nb[0] += 1
        frags.append((b, areg, off))
        first_use.append(len(mf))
        return b

    for s in range(8):
        b9 = newfrag(vK9 + (s & 3), (s >> 2) * 256)
        mf.append(dict(text=mfma(vr(vS9), ar(b9), ar(Q_(2, s)), vr(vNegM + 8) if s == 0 else vr(vS9))))
        b = newfrag(vK + (s & 3), (s >> 2) * 256)
        for T in range(2):
            mf.append(dict(text=mfma(vr(S_(0, T)), ar(b), ar(Q_(T, s)), vr(vNegM + 4 * T) if s == 0 else vr(S_(0, T)))))
    end_kt = {0: len(mf) - 1}
    for kt in range(1, 4):
        for s in range(8):
            b = newfrag(vK + (s & 3), (kt & 1) * 2048 + (s >> 2) * 256)
            for T in range(2):
                mf.append(dict(text=mfma(vr(S_(kt, T)), ar(b), ar(Q_(T, s)), vr(vNegM + 4 * T) if s == 0 else vr(S_(kt, T)))))
        end_kt[kt] = len(mf) - 1
    for f in range(0, len(frags) - 1, 2):
        mf[first_use[f]]["waitfor"] = areg_set(frags[f + 1][0])
    rq = []
    for f, (b, areg, off) in enumerate(frags):
        e = -1 if f < LEAD_B128 else first_use[f - LEAD_B128]
        d = -1 if f < LEAD_B128 else first_use[f - LEAD_B128 + 2]
        rq.append(Item("ds_read_b128 %s, v%d offset:%d" % (ar(b), areg, off), e, d))
        if f < 16 and (f & 1) == 0 and (f // 2) >= 4:
            rq.append(Item("v_add_u32 v%d, s%d, v%d" % (areg, sD2, areg), e, d + 4))
        if f >= 16:
            kt, s = 1 + (f - 16) // 8, (f - 16) % 8
            if kt == 1 and s >= 4:
                rq.append(Item("v_add_u32 v%d, s%d, v%d" % (areg, sD0, areg), e, d))
            if kt == 3 and s >= 4:
                rq.append(Item("v_add_u32 v%d, s%d, v%d" % (areg, sD1, areg), e, d + 4))
    sc = [inc_slot(sNKa, sVb), inc_slot(sNKb, sNKa), inc_slot(sNVa, sNKb), inc_slot(sNVb, sNVa),
          "s_sub_u32 s%d, s%d, s%d" % (sD0, sKb, sKa),
          "s_sub_u32 s%d, s%d, s%d" % (sD1, sNKa, sKb),
          "s_sub_u32 s%d, s%d, s%d\ns_sub_u32 s%d, s%d, s%d\ns_cmp_eq_u32 s%d, 0\ns_cselect_b32 s%d, s%d, s%d"
          % (sT0, sNKa, sKa, sT1, sNKb, sKb, sWhi, sD2, sT0, sT1),
          "s_sub_u32 s%d, s%d, s%d" % (sD3, sVb, sVa),
          "s_sub_u32 s%d, s%d, s%d" % (sD4, sNVa, sVb)]
    sq = [Item(t, -1, -1) for t in sc]
    dq = [Item(t, -1, -1, tag) for (t, tag) in site1]
    vq = []
    e9 = 21 + 4
    vq += softmax_items(vS9, vP9o, e9, 10 ** 6, 0)
    vq.append(Item("ds_write_b64 v%d, v[%d:%d]" % (vP9W, vP9o, vP9o + 1), e9, 10 ** 6))
    bank = 1
    for kt in range(3):
        for T in range(2):
            vq += softmax_items(S_(kt, T), P_(kt >> 1, T) + 2 * (kt & 1), end_kt[kt] + 4, 10 ** 6, bank)
            bank ^= 1
        if kt == 1:
            vq += check_items(vP, end_kt[kt] + 4, 10 ** 6)
    run_phase(mf, [rq[:LEAD_B128 + 0], ], 10 ** 6) if False else None
    for it in rq[:LEAD_B128]:
        E(it.text)
    for it in sq:
        E(it.text)
    for it in dq:
        E(it.text, tag=it.tag)
    run_phase(mf, [rq[LEAD_B128:], vq])
    E(check_branch("L_fix", True))
    cstamp(cs)
    E("s_waitcnt vmcnt(%d) lgkmcnt(0)" % vm2)
    E("s_barrier")
    cstamp(cs)
    frags, mf, first_use = [], [], []
    nb[0] = 0
    chk9_at = None
    s1_at = None
    for s in range(2):
        if s == 1:
            s1_at = len(mf)
        for T in range(2):
            mf.append(dict(text=mfma(ar(aL + 4 * T), ar(aOnes), vr(P_(s, T)), ar(aL + 4 * T))))
        for t in range(16):
            b = newfrag(vV + (t & 7), (t >> 3) * 256)
            for T in range(2):
                mf.append(dict(text=mfma(vr(O_(T, t)), ar(b), vr(P_(s, T)), vr(O_(T, t)))))
            if t in SPECIAL:
                if chk9_at is None:
                    chk9_at = len(mf)
                o9 = aO9 + 4 * SPECIAL[t]
                mf.append(dict(text=mfma(ar(o9), ar(b), vr(vP9 + 4 * s), ar(o9))))
            if t == 8:
                mf.append(dict(text=mfma(ar(aL + 8), ar(aOnes), vr(vP9 + 4 * s), ar(aL + 8))))
    for f in range(0, len(frags) - 1, 2):
        mf[first_use[f]]["waitfor"] = areg_set(frags[f + 1][0])
    mf[chk9_at]["pre"] = [lambda: E(check_branch("L_fix9", True))]
    mf[s1_at]["pre"] = [lambda: E(check_branch("L_fix", False))]
    rq = []
    for f, (b, areg, off) in enumerate(frags):
        e = -1 if f < LEAD_TR else first_use[f - LEAD_TR]
        d = -1 if f < LEAD_TR else first_use[f - LEAD_TR + 2]
        rq.append(Item("ds_read_b64_tr_b16 %s, v%d offset:%d" % (ar(b, 2), areg, off), e, d))
        rq.append(Item("ds_read_b64_tr_b16 %s, v%d offset:%d" % (ar(b + 2, 2), areg, off + 2048), e, d))
        s, t = f // 16, f % 16
        if t >= 8:
            rq.append(Item("v_add_u32 v%d, s%d, v%d" % (areg, sD3 if s == 0 else sD4, areg), e, d if s == 0 else d + 4))
    vq = []
    vq += check_items(vP9, 2, chk9_at - 2)
    bank = 0
    for T in range(2):
        vq += softmax_items(S_(3, T), P_(1, T) + 2, 0, s1_at - 8, bank)
        bank ^= 1
    vq += check_items(vP + 8, chk9_at, s1_at - 2)
    sc = ["s_mov_b32 s%d, s%d" % (a, b_) for a, b_ in
          ((sPVa, sVa), (sPVb, sVb), (sKa, sNKa), (sKb, sNKb), (sVa, sNVa), (sVb, sNVb))]
    sc.append("s_mov_b64 s[%d:%d], 0\ns_mov_b32 s%d, 0\ns_mov_b32 s%d, 0" % (sForce, sForce + 1, sFloor, sFirst))
    sq = [Item(t, s1_at + 1, 10 ** 6) for t in sc]
    E("ds_read_b128 %s, v%d offset:%d" % (vr(vP9), vLane16, LDS_P9 - 131072))
    E("ds_read_b128 %s, v%d offset:%d" % (vr(vP9 + 4), vLane16, LDS_P9 - 131072 + 1024))
    n0 = 2 * LEAD_TR
    for it in rq[:n0]:
        E(it.text)
    for (t, tag) in site2:
        E(t, tag=tag)
    run_phase(mf, [rq[n0:], vq, sq])
    cstamp(cs)


E("%s:" % KN)
E("s_cmp_ge_u32 s2, 256\ns_cbranch_scc1 L_end")
stamp()
E("s_and_b32 s%d, s2, 7" % sT0)
E("s_lshr_b32 s%d, s2, 3" % sT1)
E("s_lshr_b32 s96, s%d, 4" % sT1)
E("s_lshr_b32 s97, s%d, 1\ns_and_b32 s97, s97, 7" % sT1)
E("s_and_b32 s98, s%d, 1\ns_lshl_b32 s99, s%d, 1\ns_add_u32 s98, s98, s99" % (sT1, sT0))
E("s_mul_i32 s99, s96, 40")
E("s_add_u32 s0, s0, s99\ns_addc_u32 s1, s1, 0")
E("s_load_dwordx2 s[4:5], s[0:1], 0")
E("s_load_dwordx2 s[12:13], s[0:1], 8")
E("s_load_dwordx2 s[16:17], s[0:1], 16")
E("s_load_dwordx2 s[8:9], s[0:1], 24")
E("s_load_dwordx2 s[20:21], s[0:1], 32")
E("s_sub_u32 s0, s0, s99\ns_subb_u32 s1, s1, 0")
E("s_load_dwordx2 s[24:25], s[0:1], 96")
E("v_lshrrev_b32 v1, 6, v0")
E("v_and_b32 v2, 63, v0")
E("v_readfirstlane_b32 s%d, v1" % sW)
E("v_lshrrev_b32 v3, 5, v2")
E("v_and_b32 v4, 31, v2")
E("v_lshl_add_u32 v5, v1, 1, v3")
E("v_lshlrev_b32 v6, 1, v5\nv_xor_b32 v6, v6, v4\nv_lshlrev_b32 v6, 4, v6")
E("v_lshl_add_u32 v7, v1, 3, v3")
E("v_lshl_add_u32 v%d, v7, 9, v6" % vDKV)
E("v_and_b32 v7, 2, v1\nv_lshlrev_b32 v7, 2, v7")
E("v_and_b32 v8, 1, v1\nv_lshl_add_u32 v7, v8, 1, v7\nv_add_u32 v7, v7, v3")
E("v_lshl_add_u32 v%d, v7, 13, v6" % vDWQ)
E("v_mul_u32_u24 v7, 896, v5\nv_add_u32 v%d, v7, v6" % vDWO)
E("s_lshl_b32 s%d, s%d, 12" % (sW4K, sW))
E("s_lshr_b32 s%d, s%d, 1" % (sWhi, sW))
E("v_and_b32 v8, 15, v2")
E("v_lshrrev_b32 v9, 4, v2")
E("v_lshl_add_u32 v10, v1, 5, v8\nv_mul_u32_u24 v10, 896, v10\nv_lshl_add_u32 v%d, v9, 4, v10" % vX0)
E("v_add_u32 v10, 128, v8\nv_mul_u32_u24 v10, 896, v10\nv_lshl_add_u32 v%d, v9, 4, v10" % vX9)
E("s_waitcnt lgkmcnt(0)")
E("s_mul_i32 s99, s97, 129024")
E("s_add_u32 s4, s4, s99\ns_addc_u32 s5, s5, 0\ns_mov_b32 s6, 129024\ns_mov_b32 s7, 0x20000")
E("s_lshl_b32 s99, s98, 9")
E("s_add_u32 s8, s8, s99\ns_addc_u32 s9, s9, 0\ns_sub_u32 s10, %d, s99\ns_mov_b32 s11, 0x20000" % (448 * 8192))
E("s_lshl_b32 s99, s97, 4\ns_add_u32 s99, s99, s98")
E("s_xor_b32 s100, s96, 1\ns_lshr_b32 s99, s99, s100")
E("s_lshl_b32 s99, s99, 19")
E("s_add_u32 s12, s12, s99\ns_addc_u32 s13, s13, 0\ns_mov_b32 s14, 0x80000\ns_mov_b32 s15, 0x20000")
E("s_add_u32 s16, s16, s99\ns_addc_u32 s17, s17, 0\ns_mov_b32 s18, 0x80000\ns_mov_b32 s19, 0x20000")
E("s_mul_i32 s99, s98, %d" % (256 * 896))
E("s_add_u32 s20, s20, s99\ns_addc_u32 s21, s21, 0\ns_sub_u32 s22, %d, s99\ns_mov_b32 s23, 0x20000" % (4096 * 896))
if STAMP:
    E("s_lshl_b32 s99, s2, 8\ns_add_u32 s99, s99, 0x4000000\ns_add_u32 s%d, s24, s99\ns_addc_u32 s%d, s25, 0" % (sWSB, sWSB + 1))
E("s_lshl_b32 s99, s96, 3\ns_add_u32 s99, s99, s97\ns_lshl_b32 s99, s99, 4\ns_add_u32 s99, s99, s98")
E("s_mul_i32 s99, s99, 129024")
E("s_add_u32 s24, s24, s99\ns_addc_u32 s25, s25, 0\ns_mov_b32 s26, 129024\ns_mov_b32 s27, 0x20000")
E("s_mov_b32 s%d, 14336" % sT3)


def xload(s):
    for T in range(3):
        v = vX9 if T == 2 else vX0
        so = "s%d" % sT3 if T == 1 else "0"
        E("buffer_load_dwordx4 %s, v%d, %s, %s offen offset:%d %s" % (ar(56 * T + 4 * s), v, srd(SRD_X), so, s * 64, WNT), tag=("x", s))


seq_slot = lambda N: (N % NSLOT) * SLOT
for p in range(5):
    xload(2 * p)
    xload(2 * p + 1)
    for N in (2 * p, 2 * p + 1):
        if N < 9:
            for (t, tag) in dma_wq(N, seq_slot(N), ("N", N)):
                E(t, tag=tag)
for s in range(10, 14):
    xload(s)
E("s_mov_b32 s%d, 0\ns_mov_b32 s%d, 0" % (sOffK, sOffV))
def rho(dst, i, t1):
    E("v_lshrrev_b32 v%d, 1, v%d\nv_and_b32 v%d, 3, v%d\nv_lshlrev_b32 v%d, 3, v%d" % (dst, i, dst, dst, dst, dst))
    E("v_lshrrev_b32 v%d, 3, v%d\nv_lshl_add_u32 v%d, v%d, 1, v%d" % (t1, i, dst, t1, dst))
    E("v_and_b32 v%d, 1, v%d\nv_add_u32 v%d, v%d, v%d" % (t1, i, dst, dst, t1))

KV0 = 14
rho(10, 8, 11)
E("v_and_b32 v11, 7, v8\nv_lshlrev_b32 v11, 1, v11")
for b in range(4):
    E("v_or_b32 v12, %d, v9\nv_xor_b32 v12, v12, v11\nv_lshlrev_b32 v12, 4, v12" % (4 * b))
    E("v_lshl_add_u32 v12, v10, 9, v12")
    E("v_add_u32 v%d, %d, v12" % (vK + b, seq_slot(KV0)))
E("s_and_b32 s99, s%d, 1\ns_lshl_b32 s99, s99, 11" % sW)
E("s_mul_i32 s100, s%d, %d\ns_add_u32 s99, s99, s100" % (sWhi, seq_slot(KV0 + 1) - seq_slot(KV0)))
for b in range(4):
    E("v_add_u32 v%d, s99, v%d" % (vK9 + b, vK + b))
E("v_lshrrev_b32 v13, 2, v2")
rho(10, 13, 11)
E("v_and_b32 v11, 7, v13")
E("v_and_b32 v14, 3, v2")
E("v_lshlrev_b32 v15, 1, v1\nv_xor_b32 v15, v15, v11")
for b in range(8):
    E("v_xor_b32 v12, %d, v15\nv_lshlrev_b32 v12, 5, v12\nv_lshl_add_u32 v12, v14, 3, v12" % b)
    E("v_lshl_add_u32 v12, v10, 9, v12")
    E("v_add_u32 v%d, %d, v12" % (vV + b, seq_slot(KV0 + 2)))
vW = 16
E("v_lshlrev_b32 v11, 1, v11")
for b in range(4):
    E("v_or_b32 v12, %d, v14\nv_xor_b32 v12, v12, v11\nv_lshlrev_b32 v12, 4, v12" % (4 * b))
    E("v_lshl_add_u32 v%d, v10, 9, v12" % (vW + b))
E("v_lshlrev_b32 v%d, 4, v2\nv_add_u32 v%d, 131072, v%d" % (vLane16, vLane16, vLane16))
E("s_lshl_b32 s99, s%d, 10\ns_and_b32 s100, s%d, 1\ns_lshl_b32 s100, s100, 3\ns_add_u32 s99, s99, s100\ns_add_u32 s99, s99, %d"
  % (sWhi, sW, LDS_P9 - 131072))
E("v_add_u32 v%d, s99, v%d" % (vP9W, vLane16))
E("s_mov_b32 s%d, 0x40004000" % sMask)
stamp()

QA = lambda T, sd, v: (vO + 64 * T if T < 2 else 64) + 4 * (2 * sd + v)
X_ = lambda T, s: 56 * T + 4 * s
WB0, WBN = 168, 22
cur_w_slot = 0
for p in range(7):
    need = [("N", 2 * p + 1), ("x", 2 * p + 1)]
    c = P.vm_count_after(need)
    E("s_waitcnt vmcnt(%d)" % min(63, c))
    E("s_barrier")
    frags, mf, first_use = [], [], []
    nb = 0
    for s in (2 * p, 2 * p + 1):
        for sd in range(8):
            for v in range(2):
                b = WB0 + 4 * (nb % WBN)
                nb += 1
                frags.append((b, vW + (sd & 3), (sd >> 2) * 256 + 8 * v, s, sd, v))
                first_use.append(len(mf))
                for T in range(3):
                    mf.append(dict(text=mfma(vr(QA(T, sd, v)), ar(b), ar(X_(T, s)), "0" if s == 0 else vr(QA(T, sd, v)))))
    for f in range(0, len(frags) - 1, 2):
        mf[first_use[f]]["waitfor"] = areg_set(frags[f + 1][0])
    rq = []
    for f, (b, areg, off, s, sd, v) in enumerate(frags):
        e = -1 if f < LEAD_TR else first_use[f - LEAD_TR]
        d = -1 if f < LEAD_TR else first_use[f - LEAD_TR + 2]
        rq.append(Item("ds_read_b64_tr_b16 %s, v%d offset:%d" % (ar(b, 2), areg, off), e, d))
        rq.append(Item("ds_read_b64_tr_b16 %s, v%d offset:%d" % (ar(b + 2, 2), areg, off + 2048), e, d))
        if sd >= 4 and v == 1 and s < 13:
            delta = (seq_slot(s + 1) - seq_slot(s)) & 0xffffffff
            rq.append(Item("v_add_u32 v%d, 0x%x, v%d" % (areg, delta, areg), e, d))
    n0 = 2 * LEAD_TR
    for it in rq[:n0]:
        E(it.text)
    if p >= 1:
        for N in (2 * p + 7, 2 * p + 8):
            if N < KV0:
                pieces = dma_wq(N, seq_slot(N), ("N", N))
            else:
                n = N - KV0
                pieces = dma_kv("K" if (n & 3) < 2 else "V", ("c", seq_slot(N)), ("N", N))
            for (t, tag) in pieces:
                E(t, tag=tag)
    run_phase(mf, [rq[n0:]])
stamp()
E("s_mov_b32 s100, %s\ns_mov_b32 s101, %s" % (fbits(CSCALE), fbits(CSCALE)))
for T in (2, 0, 1):
    for sd in range(8):
        for v in range(2):
            a = QA(T, sd, v)
            E("v_pk_mul_f32 %s, %s, s[100:101]" % (vr(a, 2), vr(a, 2)))
            E("v_pk_mul_f32 %s, %s, s[100:101]" % (vr(a + 2, 2), vr(a + 2, 2)))
        a = QA(T, sd, 0)
        for j in range(4):
            E("v_cvt_pk_bf16_f32 v%d, v%d, v%d" % (vTmp + j, a + 2 * j, a + 2 * j + 1))
        for j in range(4):
            E("v_accvgpr_write_b32 a%d, v%d" % (Q_(T, sd) + j, vTmp + j))
        if T < 2:
            for j in range(8):
                E("v_mov_b32 v%d, 0" % (a + j))
for j in range(aO9, aL + 12):
    E("v_accvgpr_write_b32 a%d, 0" % j)
E("v_mov_b32 v%d, 0x3f803f80" % vTmp)
for j in range(4):
    E("v_accvgpr_write_b32 a%d, v%d" % (aOnes + j, vTmp))
for j in range(12):
    E("v_mov_b32 v%d, 0" % (vNegM + j))
E("s_mov_b64 s[%d:%d], -1\ns_mov_b32 s%d, 0xff800000\ns_mov_b32 s%d, 1" % (sForce, sForce + 1, sFloor, sFirst))
for r, N in ((sPVa, KV0 - 2), (sPVb, KV0 - 1), (sKa, KV0), (sKb, KV0 + 1), (sVa, KV0 + 2), (sVb, KV0 + 3)):
    E("s_mov_b32 s%d, %d" % (r, seq_slot(N)))
E("s_mov_b32 s%d, 0" % sLoop)
stamp()

E("L_loop:")
block(dma_kv("V", sPVa, "a") + dma_kv("K", sPVb, "b"), dma_kv("K", sKa, "c") + dma_kv("V", sKb, "d"), 20, 20)
E("s_add_u32 s%d, s%d, 1\ns_cmp_lt_u32 s%d, 14\ns_cbranch_scc1 L_loop" % (sLoop, sLoop, sLoop))
block(dma_kv("V", sPVa, "e") + dma_wo(0, sPVb, ("W", 0)), dma_wo(1, sKa, ("W", 1)) + dma_wo(2, sKb, ("W", 2)), 20, 20, cs=(STAMP == 2))
block(dma_wo(3, sPVa, ("W", 3)) + dma_wo(4, sPVb, ("W", 4)), dma_wo(5, sKa, ("W", 5)) + dma_wo(6, sKb, ("W", 6)), 20, 20)
stamp()

vOF = 64
OF_ = lambda T, s: vOF + 32 * T + 4 * s
aOF9 = 0
E("s_nop 7")
for T in range(3):
    E("v_accvgpr_read_b32 v%d, a%d" % (2 + 2 * T, aL + 4 * T))
for T in range(3):
    E("v_rcp_f32 v%d, v%d" % (2 + 2 * T, 2 + 2 * T))
for T in range(3):
    E("v_mov_b32 v%d, v%d" % (3 + 2 * T, 2 + 2 * T))
for k in range(16):
    E("v_accvgpr_read_b32 v%d, a%d" % (vNegM - 8 + k, aO9 + k))
for k in range(8):
    E("v_pk_mul_f32 %s, %s, v[6:7]" % (vr(44 + 2 * k, 2), vr(44 + 2 * k, 2)))
for k in range(8):
    E("v_cvt_pk_bf16_f32 v%d, v%d, v%d" % (8 + k, 44 + 2 * k, 45 + 2 * k))
E("s_xor_b32 s99, s%d, 3\ns_lshl_b32 s99, s99, 10\ns_add_u32 s99, s99, %d" % (sW, LDS_O9 - 131072))
E("v_add_u32 v16, s99, v%d" % vLane16)
E("ds_write_b128 v16, v[8:11]")
E("ds_write_b128 v16, v[12:15] offset:4096")
for T in range(2):
    for s in range(8):
        a = O_(T, 2 * s)
        for j in range(4):
            E("v_pk_mul_f32 %s, %s, v[%d:%d]" % (vr(a + 2 * j, 2), vr(a + 2 * j, 2), 2 + 2 * T, 3 + 2 * T))
        for j in range(4):
            E("v_cvt_pk_bf16_f32 v%d, v%d, v%d" % (OF_(T, s) + j, a + 2 * j, a + 2 * j + 1))
for b in range(8):
    E("v_subrev_u32 v%d, s%d, v%d" % (vV + b, sVa, vV + b))
E("v_add_u32 v17, -131072 & 0xffffffff, v%d" % vLane16 if False else "v_subrev_u32 v17, 0x20000, v%d" % vLane16)
E("s_mul_i32 s100, s%d, %d" % (sW, 2 * 14336))
for b in range(4):
    E("s_xor_b32 s99, s%d, %d\ns_lshl_b32 s99, s99, 10\ns_add_u32 s99, s99, s100" % (sW, b))
    E("v_add_u32 v%d, s99, v17" % (20 + b))
E("s_xor_b32 s99, s%d, 3\ns_lshl_b32 s99, s99, 10\ns_add_u32 s99, s99, %d" % (sW, 8 * 14336))
E("v_add_u32 v24, s99, v17")
for b in range(2):
    E("s_and_b32 s99, s%d, 1\ns_xor_b32 s99, s99, %d\ns_lshl_b32 s99, s99, 10\ns_add_u32 s99, s99, s100" % (sW, b))
    E("v_add_u32 v%d, s99, v17" % (25 + b))
E("s_and_b32 s99, s%d, 1\ns_xor_b32 s99, s99, 1\ns_lshl_b32 s99, s99, 10\ns_add_u32 s99, s99, %d" % (sW, 8 * 14336))
E("v_add_u32 v27, s99, v17")
vWA = 44
vWL = 52
E("s_lshl_b32 s99, s%d, 7" % sWhi)
for b in range(4):
    E("v_xor_b32 v%d, s99, v%d" % (56 + b, vV + b))
WO0 = KV0 + 64
acc_ = lambda T, t: vO + 64 * T + 4 * t
vA9 = 4


def wo_slot_sgpr(dst, a, b):
    base = (WO0 + 4 * a) % NSLOT
    t = "s_xor_b32 s%d, s%d, %d\ns_add_u32 s%d, s%d, %d\n" % (dst, sW, b, dst, dst, base)
    t += "s_cmp_ge_u32 s%d, %d\ns_cselect_b32 s%d, %d, 0\ns_sub_u32 s%d, s%d, s%d\n" % (dst, NSLOT, sT3, NSLOT, dst, dst, sT3)
    t += "s_lshl_b32 s%d, s%d, 14" % (dst, dst)
    return t


issue_plan = {0: [7, 8], 1: [9, 10, 11, 12], 2: [13, 14, 15], 3: []}
for ph in range(4):
    H, a = ph >> 1, ph & 1
    c = P.vm_count_after([("W", 4 * ph + 3)])
    if c is None:
        E("s_waitcnt lgkmcnt(0)")
    else:
        E("s_waitcnt vmcnt(%d) lgkmcnt(0)" % min(63, c))
    E("s_barrier")
    if ph == 0:
        for b in range(4):
            E("s_xor_b32 s99, s%d, %d\ns_lshl_b32 s99, s99, 10\ns_add_u32 s99, s99, %d" % (sW, b, LDS_O9 - 131072))
            E("v_add_u32 v16, s99, v%d" % vLane16)
            E("ds_read_b128 %s, v16" % ar(aOF9 + 4 * b))
            E("ds_read_b128 %s, v16 offset:4096" % ar(aOF9 + 16 + 4 * b))
    ntile = 16 if H == 0 else 12
    frags, mf, first_use = [], [], []
    nb = 0
    for b in range(4):
        sl = 4 * a + b
        for t in range(ntile):
            bb = aBUF + 4 * (nb % 32)
            nb += 1
            if H == 1 and t >= 8:
                areg = vWL + (t - 8)
            else:
                areg = vWA + (t & 7)
            frags.append((bb, areg, (t >> 3) * 256, b, t))
            first_use.append(len(mf))
            for T in range(2):
                mf.append(dict(text=mfma(vr(acc_(T, t)), ar(bb), vr(OF_(T, sl)), "0" if sl == 0 else vr(acc_(T, t)))))
            sp = SPECIAL.get(t) if (H == 0 or t < 8) else {10: 2, 11: 3}.get(t)
            if sp is not None:
                mf.append(dict(text=mfma(vr(vA9 + 4 * sp), ar(bb), ar(aOF9 + 4 * sl), "0" if sl == 0 else vr(vA9 + 4 * sp))))
    for f in range(0, len(frags) - 1, 2):
        mf[first_use[f]]["waitfor"] = areg_set(frags[f + 1][0])
    rq = []

    def setbases(b, e, d):
        its = [Item(wo_slot_sgpr(sT0, ph, b), e, d)]
        return its

    for f, (bb, areg, off, b, t) in enumerate(frags):
        e = -1 if f < LEAD_TR else first_use[f - LEAD_TR]
        d = -1 if f < LEAD_TR else first_use[f - LEAD_TR + 2]
        if t == 0:
            rq.append(Item(wo_slot_sgpr(sT0, ph, b), e, d))
        if t < 8:
            rq.append(Item("v_add_u32 v%d, s%d, v%d" % (areg, sT0, vV + t), e, d))
        elif H == 1:
            rq.append(Item("v_add_u32 v%d, s%d, v%d" % (areg, sT0, 56 + t - 8), e, d))
        rq.append(Item("ds_read_b64_tr_b16 %s, v%d offset:%d" % (ar(bb, 2), areg, off), e, d))
        rq.append(Item("ds_read_b64_tr_b16 %s, v%d offset:%d" % (ar(bb + 2, 2), areg, off + 2048), e, d))
    n0 = 1 + 3 * LEAD_TR
    for it in rq[:n0]:
        E(it.text)
    for q in issue_plan[ph]:
        for (t, tag) in dma_wo(q, ("c", seq_slot(WO0 + q)), ("W", q)):
            E(t, tag=tag)
    run_phase(mf, [rq[n0:]])
    if a == 1:
        E("s_nop 7")
        npair = ntile // 2
        k = 0
        for T in range(2):
            for kp in range(npair):
                a0 = acc_(T, 2 * kp)
                d0 = a0
                E("v_cvt_pk_bf16_f32 v%d, v%d, v%d" % (d0, a0, a0 + 1))
                E("v_cvt_pk_bf16_f32 v%d, v%d, v%d" % (d0 + 1, a0 + 2, a0 + 3))
                E("v_cvt_pk_bf16_f32 v%d, v%d, v%d" % (d0 + 2, a0 + 4, a0 + 5))
                E("v_cvt_pk_bf16_f32 v%d, v%d, v%d" % (d0 + 3, a0 + 6, a0 + 7))
                if H == 1 and kp >= 4:
                    vb, so = 25 + (kp - 4), (8 * H + 4) * 1024 + T * 14336
                else:
                    vb, so = 20 + (kp & 3), (8 * H + (kp & 4)) * 1024 + T * 14336
                E("s_mov_b32 s%d, %d" % (sTmpO, so))
                E("buffer_store_dwordx4 %s, v%d, %s, s%d offen %s" % (vr(d0), vb, srd(SRD_WS), sTmpO, STP), tag="st")
        for k in range(2):
            a0 = vA9 + 8 * k
            for j in range(4):
                E("v_cvt_pk_bf16_f32 v%d, v%d, v%d" % (a0 + j, a0 + 2 * j, a0 + 2 * j + 1))
            if H == 1 and k == 1:
                vb, so = 27, 12 * 1024
            else:
                vb, so = 24, (8 * H + 4 * k) * 1024
            E("s_mov_b32 s%d, %d" % (sTmpO, so))
            E("buffer_store_dwordx4 %s, v%d, %s, s%d offen %s" % (vr(a0), vb, srd(SRD_WS), sTmpO, STP), tag="st")
        E("s_nop 1")
    if ph == 1:
        stamp()
if STAMP:
    stamp()
    E("s_waitcnt vmcnt(0)")
    stamp()
    E("v_mov_b32 v1, 0")
    E("v_cmp_eq_u32 vcc, 0, v0\ns_and_saveexec_b64 s[96:97], vcc\ns_cbranch_execz L_end")
    for k in range(16):
        E("v_mov_b32 v2, s%d\nv_mov_b32 v3, s%d" % (sStamp + 2 * k, sStamp + 2 * k + 1))
        E("global_store_dwordx2 v1, v[2:3], s[%d:%d] offset:%d" % (sWSB, sWSB + 1, 8 * k))
        E("s_nop 1")
E("L_end:\ns_endpgm")
main_ins = P.ins

R = Prog()
F = R.emit
for s in stubs:
    F(s)


def xlane_max(F, reg, t1, t2):
    F("v_mbcnt_lo_u32_b32 v%d, -1, 0\nv_mbcnt_hi_u32_b32 v%d, -1, v%d" % (t1, t1, t1))
    for x in (16, 32):
        F("v_xor_b32 v%d, %d, v%d\nv_lshlrev_b32 v%d, 2, v%d" % (t2, x, t1, t2, t2))
        F("ds_bpermute_b32 v%d, v%d, v%d" % (t2, t2, reg))
        F("s_waitcnt lgkmcnt(0)")
        F("v_max_f32 v%d, v%d, v%d" % (reg, reg, t2))


F("L_fix:")
F("s_nop 15\ns_waitcnt lgkmcnt(0)")
F("s_mov_b32 s%d, %s" % (sT2, fbits(TOFF)))
for T in range(2):
    m = 2 + T
    regs = [S_(kt, T) + r for kt in range(4) for r in range(4)]
    F("v_max3_f32 v%d, v%d, v%d, v%d" % (m, regs[0], regs[1], regs[2]))
    for k in range(3, 15, 2):
        F("v_max3_f32 v%d, v%d, v%d, v%d" % (m, m, regs[k], regs[k + 1]))
    F("v_max_f32 v%d, v%d, v%d" % (m, m, regs[15]))
    xlane_max(F, m, 4, 5)
    F("v_add_f32 v%d, s%d, v%d" % (m, sT2, m))
    F("v_max_f32 v%d, s%d, v%d" % (m, sFloor, m))
    for j in range(4):
        F("v_sub_f32 v%d, v%d, v%d" % (vNegM + 4 * T + j, vNegM + 4 * T + j, m))
    for r in regs:
        F("v_sub_f32 v%d, v%d, v%d" % (r, r, m))
F("s_cmp_eq_u32 s%d, 1\ns_cbranch_scc1 L_fix_p" % sFirst)
for T in range(2):
    F("v_sub_f32 v4, 0, v%d\nv_exp_f32 v4, v4\ns_nop 0" % (2 + T))
    for j in range(64):
        F("v_mul_f32 v%d, v4, v%d" % (vO + 64 * T + j, vO + 64 * T + j))
    for j in range(4):
        F("v_accvgpr_read_b32 v5, a%d\nv_mul_f32 v5, v4, v5\nv_accvgpr_write_b32 a%d, v5" % (aL + 4 * T + j, aL + 4 * T + j))
F("L_fix_p:")
for kt in range(4):
    for T in range(2):
        for r in range(4):
            F("v_exp_f32 v%d, v%d" % (6 + r, S_(kt, T) + r))
        d = P_(kt >> 1, T) + 2 * (kt & 1)
        F("v_cvt_pk_bf16_f32 v%d, v6, v7\nv_cvt_pk_bf16_f32 v%d, v8, v9" % (d, d + 1))
F("s_nop 3\ns_setpc_b64 s[%d:%d]" % (sRet, sRet + 1))

F("L_fix9:")
F("s_nop 15\ns_waitcnt lgkmcnt(0)")
F("s_mov_b32 s%d, %s" % (sT2, fbits(TOFF)))
F("v_max3_f32 v2, v%d, v%d, v%d\nv_max_f32 v2, v2, v%d" % (vS9, vS9 + 1, vS9 + 2, vS9 + 3))
xlane_max(F, 2, 4, 5)
F("v_lshlrev_b32 v4, 2, v4\nv_add_u32 v4, %d, v4" % LDS_MB)
F("s_lshl_b32 s%d, s%d, 8\nv_add_u32 v5, s%d, v4" % (sT1, sW, sT1))
F("ds_write_b32 v5, v2\ns_waitcnt lgkmcnt(0)\ns_barrier")
for w in range(4):
    F("ds_read_b32 v%d, v4 offset:%d" % (6 + w, 256 * w))
F("s_waitcnt lgkmcnt(0)")
F("v_max3_f32 v2, v6, v7, v8\nv_max_f32 v2, v2, v9")
F("v_add_f32 v2, s%d, v2\nv_max_f32 v2, s%d, v2" % (sT2, sFloor))
for j in range(4):
    F("v_sub_f32 v%d, v%d, v2" % (vNegM + 8 + j, vNegM + 8 + j))
    F("v_sub_f32 v%d, v%d, v2" % (vS9 + j, vS9 + j))
F("s_cmp_eq_u32 s%d, 1\ns_cbranch_scc1 L_fix9_p" % sFirst)
F("v_sub_f32 v4, 0, v2\nv_exp_f32 v4, v4\ns_nop 0")
for j in list(range(aO9, aO9 + 16)) + list(range(aL + 8, aL + 12)):
    F("v_accvgpr_read_b32 v5, a%d\nv_mul_f32 v5, v4, v5\nv_accvgpr_write_b32 a%d, v5" % (j, j))
F("L_fix9_p:")
for r in range(4):
    F("v_exp_f32 v%d, v%d" % (6 + r, vS9 + r))
F("v_cvt_pk_bf16_f32 v%d, v6, v7\nv_cvt_pk_bf16_f32 v%d, v8, v9" % (vP9o, vP9o + 1))
F("ds_write_b64 v%d, v[%d:%d]\ns_waitcnt lgkmcnt(0)\ns_barrier" % (vP9W, vP9o, vP9o + 1))
F("ds_read_b128 %s, v%d offset:%d" % (vr(vP9), vLane16, LDS_P9 - 131072))
F("ds_read_b128 %s, v%d offset:%d" % (vr(vP9 + 4), vLane16, LDS_P9 - 131072 + 1024))
F("s_waitcnt lgkmcnt(0)\ns_nop 3\ns_setpc_b64 s[%d:%d]" % (sRet, sRet + 1))

Z = Prog()
G = Z.emit
G("reduce_kernel:")
G("s_cmp_ge_u32 s2, 504\ns_cbranch_scc1 L_rend")
G("s_load_dwordx2 s[4:5], s[0:1], 96\ns_load_dwordx2 s[8:9], s[0:1], 80")
G("v_lshrrev_b32 v1, 6, v0\nv_and_b32 v2, 63, v0\ns_nop 0\nv_readfirstlane_b32 s3, v1")
G("s_lshl_b32 s12, s2, 2\ns_add_u32 s12, s12, s3")
G("s_mul_hi_u32 s13, s12, %d" % ((2 ** 32 + 125) // 126))
G("s_mul_i32 s14, s13, 126\ns_sub_u32 s14, s12, s14")
G("s_mul_hi_u32 s15, s14, %d" % ((2 ** 32 + 13) // 14))
G("s_mul_i32 s16, s15, 14\ns_sub_u32 s16, s14, s16")
G("s_mul_i32 s17, s13, %d\ns_lshl_b32 s18, s14, 10\ns_add_u32 s17, s17, s18" % (16 * 129024))
G("v_lshlrev_b32 v3, 4, v2")
G("s_waitcnt lgkmcnt(0)")
G("s_mov_b32 s6, %d\ns_mov_b32 s7, 0x20000" % (256 * 129024))
G("s_mov_b32 s10, %d\ns_mov_b32 s11, 0x20000" % (8 * 144 * 896 * 2))
for h in range(16):
    G("buffer_load_dwordx4 %s, v3, s[4:7], s17 offen" % vr(16 + 4 * h))
    G("s_add_u32 s17, s17, 129024")
G("s_and_b32 s18, s13, 7\ns_mul_i32 s18, s18, 144\ns_lshl_b32 s19, s15, 4\ns_add_u32 s18, s18, s19\ns_mul_i32 s18, s18, 1792")
G("s_lshr_b32 s19, s13, 3\ns_mul_i32 s19, s19, 896\ns_add_u32 s18, s18, s19\ns_lshl_b32 s19, s16, 6\ns_add_u32 s18, s18, s19")
G("v_and_b32 v4, 15, v2\nv_mul_u32_u24 v4, 1792, v4\nv_lshrrev_b32 v5, 4, v2\nv_lshl_add_u32 v4, v5, 3, v4")
for h in range(16):
    for j in range(4):
        r = 16 + 4 * h + j
        if h == 0:
            G("v_lshlrev_b32 v%d, 16, v%d\nv_and_b32 v%d, 0xffff0000, v%d" % (8 + 2 * j - 0, r, 9 + 2 * j, r))
        else:
            G("v_lshlrev_b32 v6, 16, v%d\nv_and_b32 v7, 0xffff0000, v%d" % (r, r))
            G("v_add_f32 v%d, v%d, v6\nv_add_f32 v%d, v%d, v7" % (8 + 2 * j, 8 + 2 * j, 9 + 2 * j, 9 + 2 * j))
for j in range(4):
    G("v_cvt_pk_bf16_f32 v%d, v%d, v%d" % (16 + j, 8 + 2 * j, 9 + 2 * j))
G("buffer_store_dwordx2 v[16:17], v4, s[8:11], s18 offen")
G("buffer_store_dwordx2 v[18:19], v4, s[8:11], s18 offen offset:32")
G("L_rend:\ns_endpgm")

rep = []
main_ins = pad_hazards(main_ins, rep)
rare_ins = pad_hazards(R.ins, None)
red_ins = pad_hazards(Z.ins, None)
from collections import Counter
cnt = Counter(r[0] for r in rep)
sys.stderr.write("hazard pads (main): %s\n" % dict(cnt))
if OPT.get("v"):
    for r in rep:
        sys.stderr.write("  %s\n" % (r,))


def txt(ins):
    return "\n".join(("" if i.kind == "label" else "    ") + i.text for i in ins)


hdr = open("concat_heads__gqa_block_cached__mha_block_cached__near_ridge.s.ref").read().split("; Override launch")[0]
print(hdr.rstrip())
print("; @launch kernel=%s grid=(256,1,1) block=(256,1,1) lds=%d" % (KN, LDS_TOTAL))
print("; @launch kernel=reduce_kernel grid=(504,1,1) block=(256,1,1) lds=0")
print('.amdgcn_target "amdgcn-amd-amdhsa--gfx950"')
print(".text")
print(".globl %s\n.p2align 8\n.type %s,@function" % (KN, KN))
print(txt(main_ins))
print(txt(rare_ins))
print(".globl reduce_kernel\n.p2align 8\n.type reduce_kernel,@function")
print(txt(red_ins))
print('.section .rodata,"a"')
for name, nv, acc in ((KN, 512, 256), ("reduce_kernel", 80, 80)):
    print(""".p2align 6
.amdhsa_kernel %s
  .amdhsa_next_free_vgpr %d
  .amdhsa_next_free_sgpr 102
  .amdhsa_accum_offset %d
  .amdhsa_group_segment_fixed_size 0
  .amdhsa_kernarg_size 104
  .amdhsa_user_sgpr_count 2
  .amdhsa_user_sgpr_kernarg_segment_ptr 1
  .amdhsa_system_sgpr_workgroup_id_x 1
.end_amdhsa_kernel""" % (name, nv, acc))
```

```python
import sys, struct, math
sys.path.insert(0, "work")
from asmlib import *

OPT = dict(a.split("=") for a in sys.argv[1:] if "=" in a)
NT = OPT.get("nt", "").replace("_", " ")
NTK = OPT.get("ntk", NT).replace("_", " ")
NTV = OPT.get("ntv", NT).replace("_", " ")
WNT = OPT.get("wnt", "").replace("_", " ")
STP = OPT.get("st", "").replace("_", " ")
STAMP = int(OPT.get("stamp", "0"))
LEAD_K = int(OPT.get("lk", "6"))
LEAD_V = int(OPT.get("lv", "5"))
CAP = int(OPT.get("cap", "4"))
VMX = int(OPT.get("vmx", "12"))

KN = "concat_heads__gqa_block_cached__mha_block_cached__near_ridge_kernel"
NSLOT = 9
SLOT = 16384
RING = NSLOT * SLOT
LDS_P9 = RING
LDS_MB = RING + 2048
LDS_O9 = RING + 3072
LDS_XB = 7 * SLOT
LDS_TOTAL = 163840
LB = 131072
TOFF = 7.0
CSCALE = math.log2(math.e) / 16.0
BIG = 10 ** 6


def fbits(x):
    return "0x%08x" % struct.unpack("<I", struct.pack("<f", x))[0]


vr = lambda n, k=4: "v[%d:%d]" % (n, n + k - 1)
ar = lambda n, k=4: "a[%d:%d]" % (n, n + k - 1)
srd = lambda n: "s[%d:%d]" % (n, n + 3)

SRD_X, SRD_WQ, SRD_K, SRD_V, SRD_WO, SRD_WS = 4, 8, 12, 16, 20, 24
sW, sW4K, sXw = 28, 29, 30
sOffK, sOffV, sTmpO, sLoop = 31, 32, 33, 34
sPVa, sPVb, sKa, sKb, sVa, sVb = 35, 36, 37, 38, 39, 40
sNKa, sNKb, sNVa, sNVb = 41, 42, 43, 50
sD0, sD1, sD2, sD3, sD4 = 51, 52, 53, 54, 55
sForce, sFloor, sFirst, sRet = 44, 46, 47, 48
sMask = 56
sT0, sT1, sT2, sT3 = 57, 58, 59, 60
sWhi = 61
sWSB = 62
sStamp = 64
sXB = 96

vK, vK9, vV = 20, 24, 28
vDKV, vDWQ, vDWO = 36, 37, 38
vLane16 = 39
vDX = 40
vChk = 42
vP9W = 43
vTmp = 44
vNegM = 52
vP = 64
vP9o = 80
vP9 = 84
vS = 92
vS9 = 124
vO = 128
vW = 16
vXR = 14
aQ = 0
aO9 = 96
aL = 112
aOnes = 124
aKB, NKB = 128, 10
aVB, NVB = 168, 16

P = Prog()
E = P.emit
stubs = []
nstamp = [0]
cyc = [0]


def stamp(cond=True):
    if STAMP and cond and nstamp[0] < 8:
        E("s_memrealtime s[%d:%d]" % (sStamp + 2 * nstamp[0], sStamp + 2 * nstamp[0] + 1))
        E("s_waitcnt lgkmcnt(0)")
        nstamp[0] += 1


def cstamp(on):
    if STAMP and on:
        E("s_memtime s[%d:%d]" % (80 + 2 * cyc[0], 81 + 2 * cyc[0]))
        E("s_waitcnt lgkmcnt(0)")
        cyc[0] += 1


class Item:
    def __init__(self, text, earliest=-1, deadline=BIG, tag=None, cost=None):
        self.text, self.earliest, self.deadline, self.tag = text, earliest, deadline, tag
        if callable(text):
            self.cost = cost or 1
        else:
            self.cost = cost if cost is not None else sum(Ins(l.strip()).cost for l in text.split("\n") if l.strip())

    def emit(self):
        if callable(self.text):
            self.text()
        else:
            E(self.text, tag=self.tag)


def run_phase(mf, queues, name=""):
    qs = [list(q) for q in queues]
    tokens = [0]
    over = [0]

    def fill(g):
        while True:
            best = None
            for qi, q in enumerate(qs):
                if q and q[0].earliest <= g:
                    forced = q[0].deadline <= g
                    if forced or q[0].cost <= tokens[0]:
                        key = (0 if forced else 1, q[0].deadline, qi)
                        if best is None or key < best[0]:
                            best = (key, qi)
            if best is None:
                break
            it = qs[best[1]].pop(0)
            w0 = P.nwaits
            it.emit()
            tokens[0] -= it.cost + (P.nwaits - w0)

    tokens[0] = 0
    fill(-1)
    tokens[0] = 0
    for g, m in enumerate(mf):
        w0 = P.nwaits
        for t in m.get("pre", []):
            t() if callable(t) else E(t)
        if m.get("waitfor") and P._need(P.dsq, Ins(m["text"]).src) >= 0:
            P.wait_ds_regs(m["waitfor"] | Ins(m["text"]).src)
        E(m["text"])
        tokens[0] = min(CAP, tokens[0] + 2 - (P.nwaits - w0))
        if tokens[0] < -2:
            over[0] += -2 - tokens[0]
            tokens[0] = -2
        fill(g)
    left = sum(it.cost for q in qs for it in q)
    for q in qs:
        for it in q:
            it.emit()
    if OPT.get("v"):
        sys.stderr.write("phase %s: %d mfma, overflow %d, leftover %d units\n" % (name, len(mf), over[0], left))


areg_set = lambda n, k=4: {("a", n + i) for i in range(k)}
mfma = lambda d, a, b, c: "v_mfma_f32_16x16x32_bf16 %s, %s, %s, %s" % (d, a, b, c)


class Frags:
    def __init__(self, pool, npool, tr, lead):
        self.pool, self.n, self.tr, self.lead = pool, npool, tr, lead
        self.fr = []
        self.first = []

    def new(self, mf, areg, off, before=(), after=()):
        b = self.pool + 4 * (len(self.fr) % self.n)
        self.fr.append((b, areg, off, list(before), list(after)))
        self.first.append(len(mf))
        return b

    def texts(self, f):
        b, areg, off, before, after = self.fr[f]
        t = list(before)
        if self.tr:
            t.append("ds_read_b64_tr_b16 %s, v%d offset:%d" % (ar(b, 2), areg, off))
            t.append("ds_read_b64_tr_b16 %s, v%d offset:%d" % (ar(b + 2, 2), areg, off + 2048))
        else:
            t.append("ds_read_b128 %s, v%d offset:%d" % (ar(b), areg, off))
        return t + after

    def pair_waits(self, mf):
        for f in range(0, len(self.fr) - 1, 2):
            mf[self.first[f]]["waitfor"] = areg_set(self.fr[f + 1][0])

    def items(self, skip):
        out = []
        for f in range(skip, len(self.fr)):
            e = -1 if f < self.lead else self.first[f - self.lead]
            d = -1 if f < self.lead else self.first[min(f - self.lead + 2, f)]
            for t in self.texts(f):
                out.append(Item(t, e, d))
        return out

    def head_items(self, nmf, step, earliest_min=-1):
        out = []
        for f in range(self.lead):
            e = max(earliest_min, nmf - 1 - (self.lead - f) * step)
            for t in self.texts(f):
                out.append(Item(t, e, min(nmf - 1, e + 2 * step)))
        return out


def m0set(slot):
    if isinstance(slot, tuple):
        return "s_add_u32 m0, s%d, %d" % (sW4K, slot[1])
    return "s_add_u32 m0, s%d, s%d" % (sW4K, slot)


def dma_kv(which, slot, tag):
    s_srd, s_off = (SRD_K, sOffK) if which == "K" else (SRD_V, sOffV)
    res = [m0set(slot)]
    for m in range(4):
        res.append("buffer_load_dwordx4 v%d, %s, s%d offen offset:%d %s lds" % (vDKV, srd(s_srd), s_off, m * 1024, NTK if which == "K" else NTV))
    res.append("s_add_u32 s%d, s%d, %d" % (s_off, s_off, SLOT))
    return [(r, tag) for r in res]


def dma_wq(s, slot, tag):
    res = [(m0set(slot), tag)]
    for m in range(4):
        so = (32 * s + 16 * (m & 1) + 4 * (m >> 1)) * 8192 - m * 1024
        res.append(("s_mov_b32 s%d, %d\nbuffer_load_dwordx4 v%d, %s, s%d offen offset:%d %s lds"
                    % (sTmpO, so, vDWQ, srd(SRD_WQ), sTmpO, m * 1024, WNT), tag))
    return res


def dma_wo(q, slot, tag):
    H, s = q >> 3, q & 7
    res = [(m0set(slot), tag)]
    for m in range(4):
        so = (32 * s + 8 * m) * 896 + H * 512 - m * 1024
        res.append(("s_mov_b32 s%d, %d\nbuffer_load_dwordx4 v%d, %s, s%d offen offset:%d %s lds"
                    % (sTmpO, so, vDWO, srd(SRD_WO), sTmpO, m * 1024, WNT), tag))
    return res


def dma_x(p, tag):
    res = []
    buf = (p & 1) * 6144
    for n in range(6):
        t = ""
        if n == 0:
            t += "s_add_u32 m0, s%d, %d\n" % (sXB, buf)
        if n == 4:
            t += "s_add_u32 m0, s%d, %d\n" % (sXB, buf + 4096)
        if n < 4:
            t += "s_add_u32 s%d, s%d, %d\n" % (sTmpO, sXw, 8 * n * 896 + 128 * p - 1024 * n)
            imm = 1024 * n
        else:
            t += "s_mov_b32 s%d, %d\n" % (sTmpO, (128 + 8 * (n - 4)) * 896 + 128 * p - 1024 * (n - 4))
            imm = 1024 * (n - 4)
        t += "buffer_load_dwordx4 v%d, %s, s%d offen offset:%d %s lds" % (vDX + (n & 1), srd(SRD_X), sTmpO, imm, WNT)
        res.append((t, tag))
    return res


def spread(pieces, start, step):
    out = []
    k = 0
    for (t, tag) in pieces:
        e = start + k * step
        out.append(Item(t, e, e + step, tag))
        if "buffer_load" in t:
            k += 1
    return out


def inc_slot(dst, src):
    return "s_add_u32 s%d, s%d, %d\ns_cmp_eq_u32 s%d, %d\ns_cselect_b32 s%d, 0, s%d" % (dst, src, SLOT, dst, RING, dst, dst)


def softmax_items(regs_S, regs_P, earliest, deadline, bank):
    t = vTmp + 4 * bank
    its = [Item("v_exp_f32 v%d, v%d" % (t + r, regs_S + r), earliest, deadline) for r in range(4)]
    its.append(Item("v_cvt_pk_bf16_f32 v%d, v%d, v%d" % (regs_P, t, t + 1), earliest, deadline))
    its.append(Item("v_cvt_pk_bf16_f32 v%d, v%d, v%d" % (regs_P + 1, t + 2, t + 3), earliest, deadline))
    return its


def check_items(base, earliest, deadline):
    x = vChk
    return [Item("v_or3_b32 v%d, v%d, v%d, v%d" % (x, base, base + 1, base + 2), earliest, deadline),
            Item("v_or3_b32 v%d, v%d, v%d, v%d" % (x, x, base + 3, base + 4), earliest, deadline),
            Item("v_or3_b32 v%d, v%d, v%d, v%d" % (x, x, base + 5, base + 6), earliest, deadline),
            Item("v_bitop3_b32 v%d, v%d, v%d, s%d bitop3:0xa8" % (x, x, base + 7, sMask), earliest, deadline),
            Item("v_cmp_ne_u32 vcc, 0, v%d" % x, earliest, deadline)]


nchk = [0]


def check_branch(sub, force):
    k = nchk[0]
    nchk[0] += 1
    t = ""
    if force:
        t += "s_or_b64 vcc, vcc, s[%d:%d]\n" % (sForce, sForce + 1)
    t += "s_cbranch_vccnz L_rare%d\nL_back%d:" % (k, k)
    stubs.append("L_rare%d:\ns_call_b64 s[%d:%d], %s\ns_branch L_back%d" % (k, sRet, sRet + 1, sub, k))
    return t


S_ = lambda kt, T: vS + 8 * kt + 4 * T
P_ = lambda s, T: vP + 8 * s + 4 * T
Q_ = lambda T, s: aQ + 32 * T + 4 * s
O_ = lambda T, t: vO + 64 * T + 4 * t
SPECIAL = {6: 0, 7: 1, 14: 2, 15: 3}
vadd = lambda r, s: "v_add_u32 v%d, s%d, v%d" % (r, s, r)


def build_qk():
    fr = Frags(aKB, NKB, False, LEAD_K)
    mf = []
    for s in range(8):
        b9 = fr.new(mf, vK9 + (s & 3), (s >> 2) * 256, after=[vadd(vK9 + (s & 3), sD2)] if s >= 4 else [])
        mf.append(dict(text=mfma(vr(vS9), ar(b9), ar(Q_(2, s)), vr(vNegM + 8) if s == 0 else vr(vS9))))
        b = fr.new(mf, vK + (s & 3), (s >> 2) * 256)
        for T in range(2):
            mf.append(dict(text=mfma(vr(S_(0, T)), ar(b), ar(Q_(T, s)), vr(vNegM + 4 * T) if s == 0 else vr(S_(0, T)))))
    end_kt = {0: len(mf) - 1}
    for kt in range(1, 4):
        for s in range(8):
            aft = []
            if s >= 4 and kt == 1:
                aft = [vadd(vK + (s & 3), sD0)]
            if s >= 4 and kt == 3:
                aft = [vadd(vK + (s & 3), sD1)]
            b = fr.new(mf, vK + (s & 3), (kt & 1) * 2048 + (s >> 2) * 256, after=aft)
            for T in range(2):
                mf.append(dict(text=mfma(vr(S_(kt, T)), ar(b), ar(Q_(T, s)), vr(vNegM + 4 * T) if s == 0 else vr(S_(kt, T)))))
        end_kt[kt] = len(mf) - 1
    fr.pair_waits(mf)
    return fr, mf, end_kt


def build_pv():
    fr = Frags(aVB, NVB, True, LEAD_V)
    mf = []
    chk9_at = s1_at = None
    for s in range(2):
        if s == 1:
            s1_at = len(mf)
        for T in range(2):
            mf.append(dict(text=mfma(ar(aL + 4 * T), ar(aOnes), vr(P_(s, T)), ar(aL + 4 * T))))
        for t in range(16):
            aft = [vadd(vV + (t & 7), sD3 if s == 0 else sD4)] if t >= 8 else []
            b = fr.new(mf, vV + (t & 7), (t >> 3) * 256, after=aft)
            for T in range(2):
                mf.append(dict(text=mfma(vr(O_(T, t)), ar(b), vr(P_(s, T)), vr(O_(T, t)))))
            if t in SPECIAL:
                if chk9_at is None:
                    chk9_at = len(mf)
                o9 = aO9 + 4 * SPECIAL[t]
                mf.append(dict(text=mfma(ar(o9), ar(b), vr(vP9 + 4 * s), ar(o9))))
            if t == 8:
                mf.append(dict(text=mfma(ar(aL + 8), ar(aOnes), vr(vP9 + 4 * s), ar(aL + 8))))
    fr.pair_waits(mf)
    return fr, mf, chk9_at, s1_at


def scalar_next():
    return [inc_slot(sNKa, sVb), inc_slot(sNKb, sNKa),
            "s_sub_u32 s%d, s%d, s%d\ns_sub_u32 s%d, s%d, s%d" % (sT0, sNKa, sKa, sT1, sNKb, sKb),
            "s_cmp_eq_u32 s%d, 0\ns_cselect_b32 s%d, s%d, s%d" % (sWhi, sD2, sT0, sT1),
            "s_sub_u32 s%d, s%d, s%d" % (sD0, sKb, sKa),
            "s_sub_u32 s%d, s%d, s%d" % (sD1, sNKa, sKb),
            inc_slot(sNVa, sNKb), inc_slot(sNVb, sNVa),
            "s_sub_u32 s%d, s%d, s%d" % (sD3, sVb, sVa),
            "s_sub_u32 s%d, s%d, s%d" % (sD4, sNVa, sVb)]


def block(site1, site2, vm1, vm2, last=False, cs=False):
    cstamp(cs)
    E("s_waitcnt vmcnt(%d)" % vm1)
    E("s_barrier")
    cstamp(cs)
    fr, mf, end_kt = build_qk()
    pv_fr, pv_mf, chk9_at, s1_at = build_pv()
    n = len(mf)
    rq = fr.items(LEAD_K) + pv_fr.head_items(n, 2, fr.first[-1] - 2 * LEAD_K + 2)
    dq = spread(site1, 0, 4)
    vq = []
    e9 = 21 + 4
    vq += softmax_items(vS9, vP9o, e9, BIG, 0)
    vq.append(Item("ds_write_b64 v%d, v[%d:%d]" % (vP9W, vP9o, vP9o + 1), e9, BIG))
    bank = 1
    for kt in range(3):
        for T in range(2):
            vq += softmax_items(S_(kt, T), P_(kt >> 1, T) + 2 * (kt & 1), end_kt[kt] + 4, BIG, bank)
            bank ^= 1
        if kt == 1:
            vq += check_items(vP, end_kt[kt] + 4, BIG)
    run_phase(mf, [rq, dq, vq], "qk")
    E(check_branch("L_fix", True))
    cstamp(cs)
    E("s_waitcnt vmcnt(%d)" % vm2)
    assert not any(d == set() for (_, d) in P.dsq), "P9 write must have retired"
    E("s_barrier")
    cstamp(cs)
    mf = pv_mf
    n = len(mf)
    mf[chk9_at]["pre"] = [lambda: E(check_branch("L_fix9", True))]
    mf[s1_at]["pre"] = [lambda: E(check_branch("L_fix", False))]
    rq = [Item("ds_read_b128 %s, v%d offset:%d" % (vr(vP9), vLane16, LDS_P9 - LB), -1, -1),
          Item("ds_read_b128 %s, v%d offset:%d" % (vr(vP9 + 4), vLane16, LDS_P9 - LB + 1024), -1, -1)]
    rq += pv_fr.items(LEAD_V)
    if not last:
        nfr, _, _ = build_qk()
        rq += nfr.head_items(n, 2, pv_fr.first[-1] - 2 * LEAD_V + 2)
    dq = spread(site2, 0, 4)
    vq = check_items(vP9, 5, chk9_at - 2)
    bank = 0
    for T in range(2):
        vq += softmax_items(S_(3, T), P_(1, T) + 2, 0, s1_at - 8, bank)
        bank ^= 1
    vq += check_items(vP + 8, chk9_at, s1_at - 2)
    sc = ["s_mov_b32 s%d, s%d" % (a, b_) for a, b_ in
          ((sPVa, sVa), (sPVb, sVb), (sKa, sNKa), (sKb, sNKb), (sVa, sNVa), (sVb, sNVb))]
    sc.append("s_mov_b64 s[%d:%d], 0\ns_mov_b32 s%d, 0\ns_mov_b32 s%d, 0" % (sForce, sForce + 1, sFloor, sFirst))
    nx = scalar_next()
    lastadd = pv_fr.first[len(pv_fr.fr) - 1 - LEAD_V + 2]
    sq = [Item(t, max(s1_at + 1, 34), BIG) for t in sc + nx[:8]] + [Item(t, lastadd + 1, BIG) for t in nx[8:]]
    run_phase(mf, [rq, dq, vq, sq], "pv")
    cstamp(cs)


E("%s:" % KN)
E("s_cmp_ge_u32 s2, 256\ns_cbranch_scc1 L_end")
stamp()
E("s_and_b32 s%d, s2, 7" % sT0)
E("s_lshr_b32 s%d, s2, 3" % sT1)
E("s_lshr_b32 s96, s%d, 4" % sT1)
E("s_lshr_b32 s97, s%d, 1\ns_and_b32 s97, s97, 7" % sT1)
E("s_and_b32 s98, s%d, 1\ns_lshl_b32 s99, s%d, 1\ns_add_u32 s98, s98, s99" % (sT1, sT0))
E("s_mul_i32 s99, s96, 40")
E("s_add_u32 s0, s0, s99\ns_addc_u32 s1, s1, 0")
E("s_load_dwordx2 s[4:5], s[0:1], 0")
E("s_load_dwordx2 s[8:9], s[0:1], 24")
E("s_load_dwordx2 s[12:13], s[0:1], 8")
E("s_load_dwordx2 s[16:17], s[0:1], 16")
E("s_load_dwordx2 s[20:21], s[0:1], 32")
E("s_sub_u32 s0, s0, s99\ns_subb_u32 s1, s1, 0")
E("s_load_dwordx2 s[24:25], s[0:1], 96")
E("v_lshrrev_b32 v1, 6, v0")
E("v_and_b32 v2, 63, v0")
E("v_readfirstlane_b32 s%d, v1" % sW)
E("v_lshrrev_b32 v3, 5, v2")
E("v_and_b32 v4, 31, v2")
E("v_lshl_add_u32 v5, v1, 1, v3")
E("v_lshlrev_b32 v6, 1, v5\nv_xor_b32 v6, v6, v4\nv_lshlrev_b32 v6, 4, v6")
E("v_lshl_add_u32 v7, v1, 3, v3")
E("v_lshl_add_u32 v%d, v7, 9, v6" % vDKV)
E("v_and_b32 v7, 2, v1\nv_lshlrev_b32 v7, 2, v7")
E("v_and_b32 v8, 1, v1\nv_lshl_add_u32 v7, v8, 1, v7\nv_add_u32 v7, v7, v3")
E("v_lshl_add_u32 v%d, v7, 13, v6" % vDWQ)
E("v_mul_u32_u24 v7, 896, v5\nv_add_u32 v%d, v7, v6" % vDWO)
E("v_and_b32 v8, 15, v2")
E("v_lshrrev_b32 v9, 4, v2")
E("v_lshrrev_b32 v10, 3, v2\nv_mul_u32_u24 v10, 896, v10\nv_and_b32 v11, 7, v2\nv_xor_b32 v11, v11, v9")
E("v_lshl_add_u32 v%d, v11, 4, v10\nv_xor_b32 v11, 4, v11\nv_lshl_add_u32 v%d, v11, 4, v10" % (vDX, vDX + 1))
E("s_lshl_b32 s%d, s%d, 12" % (sW4K, sW))
E("s_lshr_b32 s%d, s%d, 1" % (sWhi, sW))
E("s_mul_i32 s%d, s%d, %d" % (sXw, sW, 32 * 896))
E("s_mul_i32 s100, s97, 129024")
E("s_lshl_b32 s101, s98, 9")
E("s_waitcnt lgkmcnt(0)")
E("s_add_u32 s4, s4, s100\ns_addc_u32 s5, s5, 0\ns_mov_b32 s6, 129024\ns_mov_b32 s7, 0x20000")
E("s_add_u32 s8, s8, s101\ns_addc_u32 s9, s9, 0\ns_sub_u32 s10, %d, s101\ns_mov_b32 s11, 0x20000" % (448 * 8192))
E("s_lshl_b32 s99, s97, 4\ns_add_u32 s99, s99, s98")
E("s_xor_b32 s100, s96, 1\ns_lshr_b32 s99, s99, s100")
E("s_lshl_b32 s99, s99, 19")
E("s_add_u32 s12, s12, s99\ns_addc_u32 s13, s13, 0\ns_mov_b32 s14, 0x80000\ns_mov_b32 s15, 0x20000")
E("s_add_u32 s16, s16, s99\ns_addc_u32 s17, s17, 0\ns_mov_b32 s18, 0x80000\ns_mov_b32 s19, 0x20000")
E("s_mul_i32 s99, s98, %d" % (256 * 896))
E("s_add_u32 s20, s20, s99\ns_addc_u32 s21, s21, 0\ns_sub_u32 s22, %d, s99\ns_mov_b32 s23, 0x20000" % (4096 * 896))
if STAMP:
    E("s_lshl_b32 s99, s2, 8\ns_add_u32 s99, s99, 0x4000000\ns_add_u32 s%d, s24, s99\ns_addc_u32 s%d, s25, 0" % (sWSB, sWSB + 1))
E("s_lshl_b32 s99, s96, 3\ns_add_u32 s99, s99, s97\ns_lshl_b32 s99, s99, 4\ns_add_u32 s99, s99, s98")
E("s_mul_i32 s99, s99, 129024")
E("s_add_u32 s24, s24, s99\ns_addc_u32 s25, s25, 0\ns_mov_b32 s26, 129024\ns_mov_b32 s27, 0x20000")
E("s_mul_i32 s%d, s%d, 12288\ns_add_u32 s%d, s%d, %d" % (sXB, sW, sXB, sXB, LDS_XB))

wslot = lambda N: (N % 7) * SLOT
kvslot = lambda n: (n % NSLOT) * SLOT


def emit_pieces(pieces):
    for (t, tag) in pieces:
        E(t, tag=tag)


emit_pieces(dma_x(0, ("X", 0)))
emit_pieces(dma_wq(0, ("c", wslot(0)), ("W", 0)))
emit_pieces(dma_wq(1, ("c", wslot(1)), ("W", 1)))
emit_pieces(dma_x(1, ("X", 1)))
emit_pieces(dma_wq(2, ("c", wslot(2)), ("W", 2)))
emit_pieces(dma_wq(3, ("c", wslot(3)), ("W", 3)))
E("s_mov_b32 s%d, 0\ns_mov_b32 s%d, 0" % (sOffK, sOffV))


def rho(dst, i, t1):
    E("v_lshrrev_b32 v%d, 1, v%d\nv_and_b32 v%d, 3, v%d\nv_lshlrev_b32 v%d, 3, v%d" % (dst, i, dst, dst, dst, dst))
    E("v_lshrrev_b32 v%d, 3, v%d\nv_lshl_add_u32 v%d, v%d, 1, v%d" % (t1, i, dst, t1, dst))
    E("v_and_b32 v%d, 1, v%d\nv_add_u32 v%d, v%d, v%d" % (t1, i, dst, dst, t1))


E("v_lshrrev_b32 v10, 1, v8\nv_xor_b32 v10, v10, v9\nv_lshlrev_b32 v11, 7, v8\nv_add_u32 v11, s%d, v11" % sXB)
E("v_lshl_add_u32 v%d, v10, 4, v11\nv_xor_b32 v10, 4, v10\nv_lshl_add_u32 v%d, v10, 4, v11" % (vXR, vXR + 1))
E("v_lshrrev_b32 v13, 2, v2")
rho(10, 13, 11)
E("v_and_b32 v11, 7, v13")
E("v_and_b32 v12, 3, v2")
E("v_lshlrev_b32 v3, 1, v11\nv_lshlrev_b32 v4, 2, v1\nv_xor_b32 v3, v3, v4\nv_xor_b32 v3, v3, v12")
for b in range(4):
    E("v_xor_b32 v4, %d, v3\nv_lshlrev_b32 v4, 4, v4\nv_lshl_add_u32 v%d, v10, 9, v4" % (4 * b, vW + b))
E("v_lshlrev_b32 v3, 1, v1\nv_xor_b32 v3, v3, v11")
for b in range(8):
    E("v_xor_b32 v4, %d, v3\nv_lshlrev_b32 v4, 5, v4\nv_lshl_add_u32 v4, v12, 3, v4" % b)
    E("v_lshl_add_u32 v4, v10, 9, v4\nv_add_u32 v%d, %d, v4" % (vV + b, kvslot(2)))
rho(10, 8, 11)
E("v_and_b32 v11, 7, v8\nv_lshlrev_b32 v11, 1, v11\nv_lshlrev_b32 v4, 2, v1\nv_xor_b32 v11, v11, v4\nv_xor_b32 v11, v11, v9")
for b in range(4):
    E("v_xor_b32 v4, %d, v11\nv_lshlrev_b32 v4, 4, v4\nv_lshl_add_u32 v%d, v10, 9, v4" % (4 * b, vK + b))
E("s_and_b32 s99, s%d, 1\ns_lshl_b32 s99, s99, 11" % sW)
E("s_lshl_b32 s100, s%d, 14\ns_add_u32 s99, s99, s100" % sWhi)
for b in range(4):
    E("v_add_u32 v%d, s99, v%d" % (vK9 + b, vK + b))
E("v_lshlrev_b32 v%d, 4, v2\nv_add_u32 v%d, %d, v%d" % (vLane16, vLane16, LB, vLane16))
E("s_lshl_b32 s99, s%d, 10\ns_and_b32 s100, s%d, 1\ns_lshl_b32 s100, s100, 3\ns_add_u32 s99, s99, s100\ns_add_u32 s99, s99, %d"
  % (sWhi, sW, LDS_P9 - LB))
E("v_add_u32 v%d, s99, v%d" % (vP9W, vLane16))
E("s_mov_b32 s%d, 0x40004000" % sMask)
for N in (4, 5, 6):
    emit_pieces(dma_wq(N, ("c", wslot(N)), ("W", N)))
stamp()

QA = lambda T, sd, v: (64, 128)[T] + 4 * (2 * sd + v)
QA9 = lambda sd, v: 48 + 4 * (2 * (sd >> 2) + v)
X_ = lambda T, s: 56 * T + 4 * s


def xread_texts(p):
    out = []
    for s in (2 * p, 2 * p + 1):
        for T in range(3):
            out.append("ds_read_b128 %s, v%d offset:%d" % (ar(X_(T, s)), vXR + (s & 1), (p & 1) * 6144 + T * 2048))
    return out


def vmwait(tags):
    c = P.vm_count_after(tags)
    if c is not None:
        E("s_waitcnt vmcnt(%d)" % min(63, c))


def build_qp(p):
    fr = Frags(aVB, NVB, True, LEAD_V)
    mf = []
    last = {}
    for s in (2 * p, 2 * p + 1):
        for sd in range(8):
            for v in range(2):
                aft = []
                if sd >= 4 and v == 1 and s < 13:
                    aft = ["v_add_u32 v%d, 0x%x, v%d" % (vW + (sd & 3), (wslot(s + 1) - wslot(s)) & 0xffffffff, vW + (sd & 3))]
                b = fr.new(mf, vW + (sd & 3), (sd >> 2) * 256 + 8 * v, after=aft)
                for T in range(2):
                    mf.append(dict(text=mfma(vr(QA(T, sd, v)), ar(b), ar(X_(T, s)), "0" if s == 0 else vr(QA(T, sd, v)))))
                if (sd & 3) == 3:
                    mf.append(dict(text=mfma(vr(QA9(sd, v)), ar(b), ar(X_(2, s)), "0" if s == 0 else vr(QA9(sd, v)))))
                last[(sd, v)] = len(mf) - 1
    fr.pair_waits(mf)
    return fr, mf, last


stream = [("W", N) for N in range(7, 14)] + [("KV", n) for n in range(7)]


def stream_pieces(k):
    kind, n = stream[k]
    if kind == "W":
        return dma_wq(n, ("c", wslot(n)), ("W", n))
    return dma_kv("K" if (n & 3) < 2 else "V", ("c", kvslot(n)), ("KV", n))


vmwait([("X", 0)])
for t in xread_texts(0):
    E(t)
vmwait([("W", 3)])
E("s_barrier")
zero_q = ["v_mov_b32 v%d, 0" % r for r in range(192, 256)] + \
         ["v_mov_b32 v%d, 0" % vChk]
for p in range(7):
    fr, mf, last = build_qp(p)
    n = len(mf)
    if p > 0:
        vmwait([("W", min(2 * p + 3, 13))] + ([("KV", 1)] if p == 6 and False else []))
        E("s_barrier")
    rq = fr.items(0 if p == 0 else LEAD_V)
    if p < 6:
        nfr, _, _ = build_qp(p + 1)
        rq += nfr.head_items(n, 2, fr.first[-1] - 2 * LEAD_V + 2)
    dq = []
    xq = []
    if p == 0:
        xq += [Item(lambda: P.wait_ds_regs(areg_set(X_(2, 1))), 0, 0)]
        xq += spread(dma_x(2, ("X", 2)), 1, 3)
    else:
        dq += spread(stream_pieces(2 * p - 2) + stream_pieces(2 * p - 1), 0, 4)
    if p + 1 < 7:
        y = 34
        xq += [Item(lambda p=p: vmwait([("X", p + 1)]), y, y)]
        xq += [Item(t, y, y + 8) for t in xread_texts(p + 1)]
        if p + 3 < 7:
            xq += [Item(lambda p=p: P.wait_ds_regs(areg_set(X_(2, 2 * p + 3))), y + 14, y + 14)]
            xq += spread(dma_x(p + 3, ("X", p + 3)), y + 15, 3)
    zq = []
    if p in (1, 2, 3, 4):
        zq = [Item(t, 0, BIG) for t in zero_q[16 * (p - 1):16 * p]]
    run_phase(mf, [rq, dq, xq, zq], "qp%d" % p)
stamp()
E("s_mov_b32 s100, %s\ns_mov_b32 s101, %s" % (fbits(CSCALE), fbits(CSCALE)))
E("s_xor_b32 s99, s%d, 3\ns_lshl_b32 s99, s99, 10\ns_add_u32 s99, s99, %d" % (sW, LDS_O9 - LB))
E("v_add_u32 v2, s99, v%d" % vLane16)
for k in range(8):
    E("v_pk_mul_f32 %s, %s, s[100:101]" % (vr(48 + 2 * k, 2), vr(48 + 2 * k, 2)))
for k in range(8):
    E("v_cvt_pk_bf16_f32 v%d, v%d, v%d" % (4 + k, 48 + 2 * k, 49 + 2 * k))
E("ds_write_b128 v2, v[4:7]")
E("ds_write_b128 v2, v[8:11] offset:4096")
vmwait([("KV", 1)])
E("s_waitcnt lgkmcnt(0)")
E("s_barrier")
emit_pieces(stream_pieces(12))
for b in range(4):
    E("s_xor_b32 s99, s%d, %d\ns_lshl_b32 s99, s99, 10\ns_add_u32 s99, s99, %d" % (sW, b, LDS_O9 - LB))
    E("v_add_u32 v2, s99, v%d" % vLane16)
    E("ds_read_b128 %s, v2" % ar(Q_(2, b)))
    E("ds_read_b128 %s, v2 offset:4096" % ar(Q_(2, 4 + b)))
emit_pieces(stream_pieces(13))
for T in range(2):
    for sd in range(8):
        a = QA(T, sd, 0)
        for j in range(4):
            E("v_pk_mul_f32 %s, %s, s[100:101]" % (vr(a + 2 * j, 2), vr(a + 2 * j, 2)))
        for j in range(4):
            E("v_cvt_pk_bf16_f32 v%d, v%d, v%d" % (vTmp + j, a + 2 * j, a + 2 * j + 1))
        for j in range(4):
            E("v_accvgpr_write_b32 a%d, v%d" % (Q_(T, sd) + j, vTmp + j))
        if T == 1:
            for j in range(8):
                E("v_mov_b32 v%d, 0" % (a + j))
for j in range(aO9, aL + 12):
    E("v_accvgpr_write_b32 a%d, 0" % j)
E("v_mov_b32 v%d, 0x3f803f80" % vTmp)
for j in range(4):
    E("v_accvgpr_write_b32 a%d, v%d" % (aOnes + j, vTmp))
for j in range(12):
    E("v_mov_b32 v%d, 0" % (vNegM + j))
E("s_mov_b64 s[%d:%d], -1\ns_mov_b32 s%d, 0xff800000\ns_mov_b32 s%d, 1" % (sForce, sForce + 1, sFloor, sFirst))
for r, n in ((sPVa, 7), (sPVb, 8), (sKa, 0), (sKb, 1), (sVa, 2), (sVb, 3)):
    E("s_mov_b32 s%d, %d" % (r, kvslot(n)))
for t in scalar_next():
    E(t)
E("s_mov_b32 s%d, 0" % sLoop)
E("s_waitcnt lgkmcnt(0)")
stamp()
fr0, _, _ = build_qk()
for f in range(LEAD_K):
    for t in fr0.texts(f):
        E(t)

entry_q = [set(d) for (_, d) in P.dsq]
E("L_loop:")
block(dma_kv("V", sPVa, "a") + dma_kv("K", sPVb, "b"), dma_kv("K", sKa, "c") + dma_kv("V", sKb, "d"), VMX, VMX)
assert [set(d) for (_, d) in P.dsq][-len(entry_q):] == entry_q and len(P.dsq) == len(entry_q), (P.dsq, entry_q)
E("s_add_u32 s%d, s%d, 1\ns_cmp_lt_u32 s%d, 14\ns_cbranch_scc1 L_loop" % (sLoop, sLoop, sLoop))
block(dma_kv("V", sPVa, "e") + dma_wo(0, sPVb, ("O", 0)), dma_wo(1, sKa, ("O", 1)) + dma_wo(2, sKb, ("O", 2)), 12, 12,
      cs=(STAMP == 2))
block(dma_wo(3, sPVa, ("O", 3)) + dma_wo(4, sPVb, ("O", 4)), dma_wo(5, sKa, ("O", 5)) + dma_wo(6, sKb, ("O", 6)), 12, 20,
      last=True)
stamp()

vOF = 64
OF_ = lambda T, s: vOF + 32 * T + 4 * s
aOF9 = 0
aA9 = 32
vRI = 2
vST = 8
vREL = vV
vABS = {0: 16, 1: 40, 2: 48, 3: 56}
vT9 = 24
acc_ = lambda T, t: vO + 64 * T + 4 * t
E("s_nop 7")
for T in range(3):
    E("v_accvgpr_read_b32 v%d, a%d" % (vRI + T, aL + 4 * T))
for k in range(16):
    E("v_accvgpr_read_b32 v%d, a%d" % (44 + k, aO9 + k))
for T in range(3):
    E("v_rcp_f32 v%d, v%d" % (vRI + T, vRI + T))
E("s_xor_b32 s99, s%d, 3\ns_lshl_b32 s99, s99, 10\ns_add_u32 s99, s99, %d" % (sW, LDS_O9 - LB))
E("v_add_u32 v5, s99, v%d" % vLane16)
for k in range(16):
    E("v_mul_f32 v%d, v%d, v%d" % (44 + k, vRI + 2, 44 + k))
for k in range(8):
    E("v_cvt_pk_bf16_f32 v%d, v%d, v%d" % (8 + k, 44 + 2 * k, 45 + 2 * k))
E("ds_write_b128 v5, v[8:11]")
E("ds_write_b128 v5, v[12:15] offset:4096")
for b in range(8):
    E("v_subrev_u32 v%d, s%d, v%d" % (vREL + b, sVa, vREL + b))


def conv_items(s, e=-1, d=BIG):
    its = []
    for T in range(2):
        a = O_(T, 2 * s)
        for j in range(8):
            its.append(Item("v_mul_f32 v%d, v%d, v%d" % (a + j, vRI + T, a + j), e, d))
        for j in range(4):
            its.append(Item("v_cvt_pk_bf16_f32 v%d, v%d, v%d" % (OF_(T, s) + j, a + 2 * j, a + 2 * j + 1), e, d))
    return its


woslot = lambda q: ((64 + q) % NSLOT) * SLOT


def wo_slot_sgpr(dst, ph, b):
    base = (64 + 4 * ph) % NSLOT
    t = "s_xor_b32 s%d, s%d, %d\ns_add_u32 s%d, s%d, %d\n" % (dst, sW, b, dst, dst, base)
    t += "s_cmp_ge_u32 s%d, %d\ns_cselect_b32 s%d, %d, 0\ns_sub_u32 s%d, s%d, s%d\n" % (dst, NSLOT, sT3, NSLOT, dst, dst, sT3)
    t += "s_lshl_b32 s%d, s%d, 14" % (dst, dst)
    return t


issue_plan = {0: [7, 8], 1: [9, 10, 11, 12], 2: [13, 14, 15], 3: []}
sSL = [41, 42, 43, 50]
for ph in range(4):
    H, a = ph >> 1, ph & 1
    ntile = 16 if H == 0 else 12
    pre = [wo_slot_sgpr(sSL[b], ph, b) for b in range(4)]
    for t in pre:
        E(t)
    c = P.vm_count_after([("O", 4 * ph + 3)])
    E("s_waitcnt lgkmcnt(0)" if c is None else "s_waitcnt vmcnt(%d) lgkmcnt(0)" % min(63, c))
    E("s_barrier")
    fr = Frags(aVB, NVB, True, LEAD_V)
    mf = []
    done_pair = {}
    order = [(b, t) for b in range(4) for t in range(ntile)] if a == 0 else \
            [(b, t) for kp in range(ntile // 2) for t in (2 * kp, 2 * kp + 1) for b in range(4)]
    seen = set()
    first_of_k = {}
    for (b, t) in order:
        sl = 4 * a + b
        areg = vABS[b] + (t & 7)
        bef = []
        if t < 8:
            bef = ["v_add_u32 v%d, s%d, v%d" % (areg, sSL[b], vREL + t)]
        elif H == 1:
            bef = ["v_xor_b32 v%d, s%d, v%d" % (areg, sT2, areg)]
        bb = fr.new(mf, areg, (t >> 3) * 256, before=bef)
        first_of_k.setdefault(b, len(mf))
        for T in range(2):
            mf.append(dict(text=mfma(vr(acc_(T, t)), ar(bb), vr(OF_(T, sl)), "0" if sl == 0 else vr(acc_(T, t)))))
        sp = SPECIAL.get(t) if (H == 0 or t < 8) else {10: 2, 11: 3}.get(t)
        if sp is not None:
            mf.append(dict(text=mfma(ar(aA9 + 4 * sp), ar(bb), ar(aOF9 + 4 * sl), "0" if sl == 0 else ar(aA9 + 4 * sp))))
        if a == 1 and b == 3 and (t & 1):
            done_pair[t >> 1] = len(mf) - 1
    fr.pair_waits(mf)
    n = len(mf)
    rq = fr.items(0)
    dq = []
    for q in issue_plan[ph]:
        dq += dma_wo(q, ("c", woslot(q)), ("O", q))
    dq = spread(dq, 0, 4)
    cq = []
    if ph == 0:
        nfirst = 3 * LEAD_V
        for it in rq[:nfirst]:
            it.emit()
        rq = rq[nfirst:]
        for b in range(4):
            E("s_xor_b32 s99, s%d, %d\ns_lshl_b32 s99, s99, 10\ns_add_u32 s99, s99, %d" % (sW, b, LDS_O9 - LB))
            E("v_add_u32 v5, s99, v%d" % vLane16)
            E("ds_read_b128 %s, v5" % ar(aOF9 + 4 * b))
            if b < 2:
                E("ds_read_b128 %s, v5 offset:4096" % ar(aOF9 + 16 + 4 * b))
            else:
                cq.append(b)
        for s in range(8):
            for it in conv_items(s):
                it.emit()
        for b in cq:
            E("s_xor_b32 s99, s%d, %d\ns_lshl_b32 s99, s99, 10\ns_add_u32 s99, s99, %d" % (sW, b, LDS_O9 - LB))
            E("v_add_u32 v5, s99, v%d" % vLane16)
            E("ds_read_b128 %s, v5 offset:4096" % ar(aOF9 + 16 + 4 * b))
        cq = []
        st = ["v_subrev_u32 v6, %d, v%d" % (LB, vLane16), "s_mul_i32 s100, s%d, %d" % (sW, 2 * 14336)]
        for b in range(4):
            st.append("s_xor_b32 s99, s%d, %d\ns_lshl_b32 s99, s99, 10\ns_add_u32 s99, s99, s100" % (sW, b))
            st.append("v_add_u32 v%d, s99, v6" % (vST + b))
        st.append("s_xor_b32 s99, s%d, 3\ns_lshl_b32 s99, s99, 10\ns_add_u32 s99, s99, %d" % (sW, 8 * 14336))
        st.append("v_add_u32 v%d, s99, v6" % (vST + 4))
        for b in range(2):
            st.append("s_and_b32 s99, s%d, 1\ns_xor_b32 s99, s99, %d\ns_lshl_b32 s99, s99, 10\ns_add_u32 s99, s99, s100" % (sW, b))
            st.append("v_add_u32 v%d, s99, v6" % (vST + 5 + b))
        st.append("s_and_b32 s99, s%d, 1\ns_xor_b32 s99, s99, 1\ns_lshl_b32 s99, s99, 10\ns_add_u32 s99, s99, %d" % (sW, 8 * 14336))
        st.append("s_lshl_b32 s100, s%d, 20\ns_add_u32 s99, s99, s100" % sWhi)
        st.append("v_add_u32 v%d, s99, v6" % (vST + 7))
        st.append("s_lshl_b32 s%d, s%d, 7" % (sT2, sWhi))
        cq = [Item(t, 40, BIG) for t in st]
    if a == 1:
        for kp in range(ntile // 2):
            e = done_pair[kp] + 5
            for T in range(2):
                a0 = acc_(T, 2 * kp)
                for j in range(4):
                    cq.append(Item("v_cvt_pk_bf16_f32 v%d, v%d, v%d" % (a0 + j, a0 + 2 * j, a0 + 2 * j + 1), e, BIG))
                if H == 1 and kp >= 4:
                    vb, so = vST + 5 + (kp - 4), (8 * H + 4) * 1024 + T * 14336
                else:
                    vb, so = vST + (kp & 3), (8 * H + (kp & 4)) * 1024 + T * 14336
                cq.append(Item("s_mov_b32 s%d, %d\nbuffer_store_dwordx4 %s, v%d, %s, s%d offen %s"
                               % (sT1, so, vr(a0), vb, srd(SRD_WS), sT1, STP), e, BIG, "st"))
            k9 = {3: 0, 7: 1}.get(kp) if H == 0 else {3: 0, 5: 1}.get(kp)
            if k9 is not None:
                stg = vT9
                for j in range(4):
                    cq.append(Item("v_accvgpr_read_b32 v6, a%d\nv_accvgpr_read_b32 v7, a%d\nv_cvt_pk_bf16_f32 v%d, v6, v7"
                                   % (aA9 + 8 * k9 + 2 * j, aA9 + 8 * k9 + 2 * j + 1, stg + j), e, BIG))
                if H == 1 and k9 == 1:
                    vb, so = vST + 7, 12 * 1024
                else:
                    vb, so = vST + 4, (8 * H + 4 * k9) * 1024
                cq.append(Item("s_mov_b32 s%d, %d\nbuffer_store_dwordx4 %s, v%d, %s, s%d offen %s"
                               % (sT1, so, vr(stg), vb, srd(SRD_WS), sT1, STP), e, BIG, "st"))
    run_phase(mf, [rq, dq, cq], "op%d" % ph)
    stamp(ph == 1)
if STAMP:
    stamp()
    E("s_waitcnt vmcnt(0)")
    stamp()
    E("v_mov_b32 v1, 0")
    E("v_cmp_eq_u32 vcc, 0, v0\ns_and_saveexec_b64 s[96:97], vcc\ns_cbranch_execz L_end")
    for k in range(16):
        E("v_mov_b32 v2, s%d\nv_mov_b32 v3, s%d" % (sStamp + 2 * k, sStamp + 2 * k + 1))
        E("global_store_dwordx2 v1, v[2:3], s[%d:%d] offset:%d" % (sWSB, sWSB + 1, 8 * k))
        E("s_nop 1")
E("L_end:\ns_endpgm")
main_ins = P.ins

R = Prog()
F = R.emit
for s in stubs:
    F(s)


def xlane_max(F, reg, t1, t2):
    F("v_mbcnt_lo_u32_b32 v%d, -1, 0\nv_mbcnt_hi_u32_b32 v%d, -1, v%d" % (t1, t1, t1))
    for x in (16, 32):
        F("v_xor_b32 v%d, %d, v%d\nv_lshlrev_b32 v%d, 2, v%d" % (t2, x, t1, t2, t2))
        F("ds_bpermute_b32 v%d, v%d, v%d" % (t2, t2, reg))
        F("s_waitcnt lgkmcnt(0)")
        F("v_max_f32 v%d, v%d, v%d" % (reg, reg, t2))


F("L_fix:")
F("s_nop 15\ns_waitcnt lgkmcnt(0)")
F("s_mov_b32 s%d, %s" % (sT2, fbits(TOFF)))
for T in range(2):
    m = 2 + T
    regs = [S_(kt, T) + r for kt in range(4) for r in range(4)]
    F("v_max3_f32 v%d, v%d, v%d, v%d" % (m, regs[0], regs[1], regs[2]))
    for k in range(3, 15, 2):
        F("v_max3_f32 v%d, v%d, v%d, v%d" % (m, m, regs[k], regs[k + 1]))
    F("v_max_f32 v%d, v%d, v%d" % (m, m, regs[15]))
    xlane_max(F, m, 4, 5)
    F("v_add_f32 v%d, s%d, v%d" % (m, sT2, m))
    F("v_max_f32 v%d, s%d, v%d" % (m, sFloor, m))
    for j in range(4):
        F("v_sub_f32 v%d, v%d, v%d" % (vNegM + 4 * T + j, vNegM + 4 * T + j, m))
    for r in regs:
        F("v_sub_f32 v%d, v%d, v%d" % (r, r, m))
F("s_cmp_eq_u32 s%d, 1\ns_cbranch_scc1 L_fix_p" % sFirst)
for T in range(2):
    F("v_sub_f32 v4, 0, v%d\nv_exp_f32 v4, v4\ns_nop 0" % (2 + T))
    for j in range(64):
        F("v_mul_f32 v%d, v4, v%d" % (vO + 64 * T + j, vO + 64 * T + j))
    for j in range(4):
        F("v_accvgpr_read_b32 v5, a%d\nv_mul_f32 v5, v4, v5\nv_accvgpr_write_b32 a%d, v5" % (aL + 4 * T + j, aL + 4 * T + j))
F("L_fix_p:")
for kt in range(4):
    for T in range(2):
        for r in range(4):
            F("v_exp_f32 v%d, v%d" % (6 + r, S_(kt, T) + r))
        d = P_(kt >> 1, T) + 2 * (kt & 1)
        F("v_cvt_pk_bf16_f32 v%d, v6, v7\nv_cvt_pk_bf16_f32 v%d, v8, v9" % (d, d + 1))
F("s_nop 3\ns_setpc_b64 s[%d:%d]" % (sRet, sRet + 1))

F("L_fix9:")
F("s_nop 15\ns_waitcnt lgkmcnt(0)")
F("s_mov_b32 s%d, %s" % (sT2, fbits(TOFF)))
F("v_max3_f32 v2, v%d, v%d, v%d\nv_max_f32 v2, v2, v%d" % (vS9, vS9 + 1, vS9 + 2, vS9 + 3))
xlane_max(F, 2, 4, 5)
F("v_lshlrev_b32 v4, 2, v4\nv_add_u32 v4, %d, v4" % LDS_MB)
F("s_lshl_b32 s%d, s%d, 8\nv_add_u32 v5, s%d, v4" % (sT2 + 1, sW, sT2 + 1))
F("ds_write_b32 v5, v2\ns_waitcnt lgkmcnt(0)\ns_barrier")
for w in range(4):
    F("ds_read_b32 v%d, v4 offset:%d" % (6 + w, 256 * w))
F("s_waitcnt lgkmcnt(0)")
F("v_max3_f32 v2, v6, v7, v8\nv_max_f32 v2, v2, v9")
F("v_add_f32 v2, s%d, v2\nv_max_f32 v2, s%d, v2" % (sT2, sFloor))
for j in range(4):
    F("v_sub_f32 v%d, v%d, v2" % (vNegM + 8 + j, vNegM + 8 + j))
    F("v_sub_f32 v%d, v%d, v2" % (vS9 + j, vS9 + j))
F("s_cmp_eq_u32 s%d, 1\ns_cbranch_scc1 L_fix9_p" % sFirst)
F("v_sub_f32 v4, 0, v2\nv_exp_f32 v4, v4\ns_nop 0")
for j in list(range(aO9, aO9 + 16)) + list(range(aL + 8, aL + 12)):
    F("v_accvgpr_read_b32 v5, a%d\nv_mul_f32 v5, v4, v5\nv_accvgpr_write_b32 a%d, v5" % (j, j))
F("L_fix9_p:")
for r in range(4):
    F("v_exp_f32 v%d, v%d" % (6 + r, vS9 + r))
F("v_cvt_pk_bf16_f32 v%d, v6, v7\nv_cvt_pk_bf16_f32 v%d, v8, v9" % (vP9o, vP9o + 1))
F("ds_write_b64 v%d, v[%d:%d]\ns_waitcnt lgkmcnt(0)\ns_barrier" % (vP9W, vP9o, vP9o + 1))
F("ds_read_b128 %s, v%d offset:%d" % (vr(vP9), vLane16, LDS_P9 - LB))
F("ds_read_b128 %s, v%d offset:%d" % (vr(vP9 + 4), vLane16, LDS_P9 - LB + 1024))
F("s_waitcnt lgkmcnt(0)\ns_nop 3\ns_setpc_b64 s[%d:%d]" % (sRet, sRet + 1))

Z = Prog()
G = Z.emit
G("reduce_kernel:")
G("s_cmp_ge_u32 s2, 504\ns_cbranch_scc1 L_rend")
G("s_load_dwordx2 s[4:5], s[0:1], 96\ns_load_dwordx2 s[8:9], s[0:1], 80")
G("v_lshrrev_b32 v1, 6, v0\nv_and_b32 v2, 63, v0\ns_nop 0\nv_readfirstlane_b32 s3, v1")
G("s_lshl_b32 s12, s2, 2\ns_add_u32 s12, s12, s3")
G("s_mul_hi_u32 s13, s12, %d" % ((2 ** 32 + 125) // 126))
G("s_mul_i32 s14, s13, 126\ns_sub_u32 s14, s12, s14")
G("s_mul_hi_u32 s15, s14, %d" % ((2 ** 32 + 13) // 14))
G("s_mul_i32 s16, s15, 14\ns_sub_u32 s16, s14, s16")
G("s_mul_i32 s17, s13, %d\ns_lshl_b32 s18, s14, 10\ns_add_u32 s17, s17, s18" % (16 * 129024))
G("v_lshlrev_b32 v3, 4, v2")
G("s_waitcnt lgkmcnt(0)")
G("s_mov_b32 s6, %d\ns_mov_b32 s7, 0x20000" % (256 * 129024))
G("s_mov_b32 s10, %d\ns_mov_b32 s11, 0x20000" % (8 * 144 * 896 * 2))
for h in range(16):
    G("buffer_load_dwordx4 %s, v3, s[4:7], s17 offen" % vr(16 + 4 * h))
    G("s_add_u32 s17, s17, 129024")
G("s_and_b32 s18, s13, 7\ns_mul_i32 s18, s18, 144\ns_lshl_b32 s19, s15, 4\ns_add_u32 s18, s18, s19\ns_mul_i32 s18, s18, 1792")
G("s_lshr_b32 s19, s13, 3\ns_mul_i32 s19, s19, 896\ns_add_u32 s18, s18, s19\ns_lshl_b32 s19, s16, 6\ns_add_u32 s18, s18, s19")
G("v_and_b32 v4, 15, v2\nv_mul_u32_u24 v4, 1792, v4\nv_lshrrev_b32 v5, 4, v2\nv_lshl_add_u32 v4, v5, 3, v4")
for h in range(16):
    for j in range(4):
        r = 16 + 4 * h + j
        if h == 0:
            G("v_lshlrev_b32 v%d, 16, v%d\nv_and_b32 v%d, 0xffff0000, v%d" % (8 + 2 * j, r, 9 + 2 * j, r))
        else:
            G("v_lshlrev_b32 v6, 16, v%d\nv_and_b32 v7, 0xffff0000, v%d" % (r, r))
            G("v_add_f32 v%d, v%d, v6\nv_add_f32 v%d, v%d, v7" % (8 + 2 * j, 8 + 2 * j, 9 + 2 * j, 9 + 2 * j))
for j in range(4):
    G("v_cvt_pk_bf16_f32 v%d, v%d, v%d" % (16 + j, 8 + 2 * j, 9 + 2 * j))
G("buffer_store_dwordx2 v[16:17], v4, s[8:11], s18 offen")
G("buffer_store_dwordx2 v[18:19], v4, s[8:11], s18 offen offset:32")
G("L_rend:\ns_endpgm")

rep = []
main_ins = pad_hazards(main_ins, rep)
rare_ins = pad_hazards(R.ins, None)
red_ins = pad_hazards(Z.ins, None)
from collections import Counter
sys.stderr.write("hazard pads (main): %s\n" % dict(Counter(r[0] for r in rep)))
if OPT.get("v"):
    for r in rep:
        sys.stderr.write("  %s\n" % (r,))

txt = lambda ins: "\n".join(("" if i.kind == "label" else "    ") + i.text for i in ins)
hdr = open("concat_heads__gqa_block_cached__mha_block_cached__near_ridge.s.ref").read().split("; Override launch")[0]
print(hdr.rstrip())
print("; @launch kernel=%s grid=(256,1,1) block=(256,1,1) lds=%d" % (KN, LDS_TOTAL))
print("; @launch kernel=reduce_kernel grid=(504,1,1) block=(256,1,1) lds=0")
print('.amdgcn_target "amdgcn-amd-amdhsa--gfx950"')
print(".text")
print(".globl %s\n.p2align 8\n.type %s,@function" % (KN, KN))
print(txt(main_ins))
print(txt(rare_ins))
print(".globl reduce_kernel\n.p2align 8\n.type reduce_kernel,@function")
print(txt(red_ins))
print('.section .rodata,"a"')
for name, nv, acc in ((KN, 512, 256), ("reduce_kernel", 80, 80)):
    print(""".p2align 6
.amdhsa_kernel %s
  .amdhsa_next_free_vgpr %d
  .amdhsa_next_free_sgpr 102
  .amdhsa_accum_offset %d
  .amdhsa_group_segment_fixed_size 0
  .amdhsa_kernarg_size 104
  .amdhsa_user_sgpr_count 2
  .amdhsa_user_sgpr_kernarg_segment_ptr 1
  .amdhsa_system_sgpr_workgroup_id_x 1
.end_amdhsa_kernel""" % (name, nv, acc))
```

```python
import sys, struct, math
sys.path.insert(0, "work")
from asmlib import *

OPT = dict(a.split("=") for a in sys.argv[1:] if "=" in a)
NT = OPT.get("nt", "").replace("_", " ")
NTK = OPT.get("ntk", NT).replace("_", " ")
NTV = OPT.get("ntv", NT).replace("_", " ")
WNT = OPT.get("wnt", "").replace("_", " ")
STP = OPT.get("st", "").replace("_", " ")
STAMP = int(OPT.get("stamp", "0"))
LEAD_K = int(OPT.get("lk", "6"))
LEAD_V = int(OPT.get("lv", "5"))
CAP = int(OPT.get("cap", "4"))
VMX = int(OPT.get("vmx", "12"))

KN = "concat_heads__gqa_block_cached__mha_block_cached__near_ridge_kernel"
NSLOT = 9
SLOT = 16384
RING = NSLOT * SLOT
LDS_P9 = RING
LDS_MB = RING + 2048
LDS_O9 = RING + 3072
LDS_XB = 7 * SLOT
LDS_TOTAL = 163840
LB = 131072
TOFF = 7.0
CSCALE = math.log2(math.e) / 16.0
BIG = 10 ** 6


def fbits(x):
    return "0x%08x" % struct.unpack("<I", struct.pack("<f", x))[0]


vr = lambda n, k=4: "v[%d:%d]" % (n, n + k - 1)
ar = lambda n, k=4: "a[%d:%d]" % (n, n + k - 1)
srd = lambda n: "s[%d:%d]" % (n, n + 3)

SRD_X, SRD_WQ, SRD_K, SRD_V, SRD_WO, SRD_WS = 4, 8, 12, 16, 20, 24
sW, sW4K, sXw = 28, 29, 30
sOffK, sOffV, sTmpO, sLoop = 31, 32, 33, 34
sPVa, sPVb, sKa, sKb, sVa, sVb = 35, 36, 37, 38, 39, 40
sNKa, sNKb, sNVa, sNVb = 41, 42, 43, 50
sD0, sD1, sD2, sD3, sD4 = 51, 52, 53, 54, 55
sForce, sFloor, sFirst, sRet = 44, 46, 47, 48
sMask = 56
sT0, sT1, sT2, sT3 = 57, 58, 59, 60
sWhi = 61
sWSB = 62
sStamp = 64
sXB = 96

vK, vK9, vV = 20, 24, 28
vDKV, vDWQ, vDWO = 36, 37, 38
vLane16 = 39
vDX = 40
vChk = 42
vP9W = 43
vTmp = 44
vNegM = 52
vP = 64
vP9o = 80
vP9 = 84
vS = 92
vS9 = 124
vO = 128
vW = 16
vXR = 14
aQ = 0
aO9 = 96
aL = 112
aOnes = 124
aKB, NKB = 128, 10
aVB, NVB = 168, 16

P = Prog()
E = P.emit
stubs = []
nstamp = [0]
cyc = [0]


def stamp(cond=True):
    if STAMP and cond and nstamp[0] < 8:
        E("s_memrealtime s[%d:%d]" % (sStamp + 2 * nstamp[0], sStamp + 2 * nstamp[0] + 1))
        E("s_waitcnt lgkmcnt(0)")
        nstamp[0] += 1


def cstamp(on):
    if STAMP and on:
        E("s_memtime s[%d:%d]" % (80 + 2 * cyc[0], 81 + 2 * cyc[0]))
        E("s_waitcnt lgkmcnt(0)")
        cyc[0] += 1


class Item:
    def __init__(self, text, earliest=-1, deadline=BIG, tag=None, cost=None):
        self.text, self.earliest, self.deadline, self.tag = text, earliest, deadline, tag
        if callable(text):
            self.cost = cost or 1
        else:
            self.cost = cost if cost is not None else sum(Ins(l.strip()).cost for l in text.split("\n") if l.strip())

    def emit(self):
        if callable(self.text):
            self.text()
        else:
            E(self.text, tag=self.tag)


def run_phase(mf, queues, name=""):
    qs = [list(q) for q in queues]
    tokens = [0]
    over = [0]

    def fill(g):
        while True:
            best = None
            for qi, q in enumerate(qs):
                if q and q[0].earliest <= g:
                    forced = q[0].deadline <= g
                    if forced or q[0].cost <= tokens[0]:
                        key = (0 if forced else 1, q[0].deadline, qi)
                        if best is None or key < best[0]:
                            best = (key, qi)
            if best is None:
                break
            it = qs[best[1]].pop(0)
            w0 = P.nwaits
            it.emit()
            tokens[0] -= it.cost + (P.nwaits - w0)

    tokens[0] = 0
    fill(-1)
    tokens[0] = 0
    for g, m in enumerate(mf):
        w0 = P.nwaits
        for t in m.get("pre", []):
            t() if callable(t) else E(t)
        if m.get("waitfor") and P._need(P.dsq, Ins(m["text"]).src) >= 0:
            P.wait_ds_regs(m["waitfor"] | Ins(m["text"]).src)
        E(m["text"])
        tokens[0] = min(CAP, tokens[0] + 2 - (P.nwaits - w0))
        if tokens[0] < -2:
            over[0] += -2 - tokens[0]
            tokens[0] = -2
        fill(g)
    left = sum(it.cost for q in qs for it in q)
    for q in qs:
        for it in q:
            it.emit()
    if OPT.get("v"):
        sys.stderr.write("phase %s: %d mfma, overflow %d, leftover %d units\n" % (name, len(mf), over[0], left))


areg_set = lambda n, k=4: {("a", n + i) for i in range(k)}
mfma = lambda d, a, b, c: "v_mfma_f32_16x16x32_bf16 %s, %s, %s, %s" % (d, a, b, c)


class Frags:
    def __init__(self, pool, npool, tr, lead):
        self.pool, self.n, self.tr, self.lead = pool, npool, tr, lead
        self.fr = []
        self.first = []

    def new(self, mf, areg, off, before=(), after=()):
        b = self.pool + 4 * (len(self.fr) % self.n)
        self.fr.append((b, areg, off, list(before), list(after)))
        self.first.append(len(mf))
        return b

    def texts(self, f):
        b, areg, off, before, after = self.fr[f]
        t = list(before)
        if self.tr:
            t.append("ds_read_b64_tr_b16 %s, v%d offset:%d" % (ar(b, 2), areg, off))
            t.append("ds_read_b64_tr_b16 %s, v%d offset:%d" % (ar(b + 2, 2), areg, off + 2048))
        else:
            t.append("ds_read_b128 %s, v%d offset:%d" % (ar(b), areg, off))
        return t + after

    def pair_waits(self, mf):
        for f in range(0, len(self.fr) - 1, 2):
            mf[self.first[f]]["waitfor"] = areg_set(self.fr[f + 1][0])

    def items(self, skip):
        out = []
        for f in range(skip, len(self.fr)):
            e = -1 if f < self.lead else self.first[f - self.lead]
            d = -1 if f < self.lead else self.first[min(f - self.lead + 2, f)]
            for t in self.texts(f):
                out.append(Item(t, e, d))
        return out

    def head_items(self, nmf, step, earliest_min=-1):
        out = []
        for f in range(self.lead):
            e = max(earliest_min, nmf - 1 - (self.lead - f) * step)
            for t in self.texts(f):
                out.append(Item(t, e, min(nmf - 1, e + 2 * step)))
        return out


def m0set(slot):
    if isinstance(slot, tuple):
        return "s_add_u32 m0, s%d, %d" % (sW4K, slot[1])
    return "s_add_u32 m0, s%d, s%d" % (sW4K, slot)


def dma_kv(which, slot, tag):
    s_srd, s_off = (SRD_K, sOffK) if which == "K" else (SRD_V, sOffV)
    res = [m0set(slot)]
    for m in range(4):
        res.append("buffer_load_dwordx4 v%d, %s, s%d offen offset:%d %s lds" % (vDKV, srd(s_srd), s_off, m * 1024, NTK if which == "K" else NTV))
    res.append("s_add_u32 s%d, s%d, %d" % (s_off, s_off, SLOT))
    return [(r, tag) for r in res]


def dma_wq(s, slot, tag):
    res = [(m0set(slot), tag)]
    for m in range(4):
        so = (32 * s + 16 * (m & 1) + 4 * (m >> 1)) * 8192 - m * 1024
        res.append(("s_mov_b32 s%d, %d\nbuffer_load_dwordx4 v%d, %s, s%d offen offset:%d %s lds"
                    % (sTmpO, so, vDWQ, srd(SRD_WQ), sTmpO, m * 1024, WNT), tag))
    return res


def dma_wo(q, slot, tag):
    H, s = q >> 3, q & 7
    res = [(m0set(slot), tag)]
    for m in range(4):
        so = (32 * s + 8 * m) * 896 + H * 512 - m * 1024
        res.append(("s_mov_b32 s%d, %d\nbuffer_load_dwordx4 v%d, %s, s%d offen offset:%d %s lds"
                    % (sTmpO, so, vDWO, srd(SRD_WO), sTmpO, m * 1024, WNT), tag))
    return res


def dma_x(p, tag):
    res = []
    buf = (p & 1) * 6144
    for n in range(6):
        t = ""
        if n == 0:
            t += "s_add_u32 m0, s%d, %d\n" % (sXB, buf)
        if n == 4:
            t += "s_add_u32 m0, s%d, %d\n" % (sXB, buf + 4096)
        if n < 4:
            t += "s_add_u32 s%d, s%d, %d\n" % (sTmpO, sXw, 8 * n * 896 + 128 * p - 1024 * n)
            imm = 1024 * n
        else:
            t += "s_mov_b32 s%d, %d\n" % (sTmpO, (128 + 8 * (n - 4)) * 896 + 128 * p - 1024 * (n - 4))
            imm = 1024 * (n - 4)
        t += "buffer_load_dwordx4 v%d, %s, s%d offen offset:%d %s lds" % (vDX + (n & 1), srd(SRD_X), sTmpO, imm, WNT)
        res.append((t, tag))
    return res


def spread(pieces, start, step):
    out = []
    k = 0
    for (t, tag) in pieces:
        e = start + k * step
        out.append(Item(t, e, e + step, tag))
        if "buffer_load" in t:
            k += 1
    return out


def inc_slot(dst, src):
    return "s_add_u32 s%d, s%d, %d\ns_cmp_eq_u32 s%d, %d\ns_cselect_b32 s%d, 0, s%d" % (dst, src, SLOT, dst, RING, dst, dst)


def softmax_items(regs_S, regs_P, earliest, deadline, bank):
    t = vTmp + 4 * bank
    its = [Item("v_exp_f32 v%d, v%d" % (t + r, regs_S + r), earliest, deadline) for r in range(4)]
    its.append(Item("v_cvt_pk_bf16_f32 v%d, v%d, v%d" % (regs_P, t, t + 1), earliest, deadline))
    its.append(Item("v_cvt_pk_bf16_f32 v%d, v%d, v%d" % (regs_P + 1, t + 2, t + 3), earliest, deadline))
    return its


def check_items(base, earliest, deadline):
    x = vChk
    return [Item("v_or3_b32 v%d, v%d, v%d, v%d" % (x, base, base + 1, base + 2), earliest, deadline),
            Item("v_or3_b32 v%d, v%d, v%d, v%d" % (x, x, base + 3, base + 4), earliest, deadline),
            Item("v_or3_b32 v%d, v%d, v%d, v%d" % (x, x, base + 5, base + 6), earliest, deadline),
            Item("v_bitop3_b32 v%d, v%d, v%d, s%d bitop3:0xa8" % (x, x, base + 7, sMask), earliest, deadline),
            Item("v_cmp_ne_u32 vcc, 0, v%d" % x, earliest, deadline)]


nchk = [0]


def check_branch(sub, force):
    k = nchk[0]
    nchk[0] += 1
    t = ""
    if force:
        t += "s_or_b64 vcc, vcc, s[%d:%d]\n" % (sForce, sForce + 1)
    t += "s_cbranch_vccnz L_rare%d\nL_back%d:" % (k, k)
    stubs.append("L_rare%d:\ns_call_b64 s[%d:%d], %s\ns_branch L_back%d" % (k, sRet, sRet + 1, sub, k))
    return t


S_ = lambda kt, T: vS + 8 * kt + 4 * T
P_ = lambda s, T: vP + 8 * s + 4 * T
Q_ = lambda T, s: aQ + 32 * T + 4 * s
O_ = lambda T, t: vO + 64 * T + 4 * t
SPECIAL = {6: 0, 7: 1, 14: 2, 15: 3}
vadd = lambda r, s: "v_add_u32 v%d, s%d, v%d" % (r, s, r)


def build_qk():
    fr = Frags(aKB, NKB, False, LEAD_K)
    mf = []
    for s in range(8):
        b9 = fr.new(mf, vK9 + (s & 3), (s >> 2) * 256, after=[vadd(vK9 + (s & 3), sD2)] if s >= 4 else [])
        mf.append(dict(text=mfma(vr(vS9), ar(b9), ar(Q_(2, s)), vr(vNegM + 8) if s == 0 else vr(vS9))))
        b = fr.new(mf, vK + (s & 3), (s >> 2) * 256)
        for T in range(2):
            mf.append(dict(text=mfma(vr(S_(0, T)), ar(b), ar(Q_(T, s)), vr(vNegM + 4 * T) if s == 0 else vr(S_(0, T)))))
    end_kt = {0: len(mf) - 1}
    for kt in range(1, 4):
        for s in range(8):
            aft = []
            if s >= 4 and kt == 1:
                aft = [vadd(vK + (s & 3), sD0)]
            if s >= 4 and kt == 3:
                aft = [vadd(vK + (s & 3), sD1)]
            b = fr.new(mf, vK + (s & 3), (kt & 1) * 2048 + (s >> 2) * 256, after=aft)
            for T in range(2):
                mf.append(dict(text=mfma(vr(S_(kt, T)), ar(b), ar(Q_(T, s)), vr(vNegM + 4 * T) if s == 0 else vr(S_(kt, T)))))
        end_kt[kt] = len(mf) - 1
    fr.pair_waits(mf)
    return fr, mf, end_kt


def build_pv():
    fr = Frags(aVB, NVB, True, LEAD_V)
    mf = []
    chk9_at = s1_at = None
    for s in range(2):
        if s == 1:
            s1_at = len(mf)
        for T in range(2):
            mf.append(dict(text=mfma(ar(aL + 4 * T), ar(aOnes), vr(P_(s, T)), ar(aL + 4 * T))))
        for t in range(16):
            aft = [vadd(vV + (t & 7), sD3 if s == 0 else sD4)] if t >= 8 else []
            b = fr.new(mf, vV + (t & 7), (t >> 3) * 256, after=aft)
            for T in range(2):
                mf.append(dict(text=mfma(vr(O_(T, t)), ar(b), vr(P_(s, T)), vr(O_(T, t)))))
            if t in SPECIAL:
                if chk9_at is None:
                    chk9_at = len(mf)
                o9 = aO9 + 4 * SPECIAL[t]
                mf.append(dict(text=mfma(ar(o9), ar(b), vr(vP9 + 4 * s), ar(o9))))
            if t == 8:
                mf.append(dict(text=mfma(ar(aL + 8), ar(aOnes), vr(vP9 + 4 * s), ar(aL + 8))))
    fr.pair_waits(mf)
    return fr, mf, chk9_at, s1_at


def scalar_next():
    return [inc_slot(sNKa, sVb), inc_slot(sNKb, sNKa),
            "s_sub_u32 s%d, s%d, s%d\ns_sub_u32 s%d, s%d, s%d" % (sT0, sNKa, sKa, sT1, sNKb, sKb),
            "s_cmp_eq_u32 s%d, 0\ns_cselect_b32 s%d, s%d, s%d" % (sWhi, sD2, sT0, sT1),
            "s_sub_u32 s%d, s%d, s%d" % (sD0, sKb, sKa),
            "s_sub_u32 s%d, s%d, s%d" % (sD1, sNKa, sKb),
            inc_slot(sNVa, sNKb), inc_slot(sNVb, sNVa),
            "s_sub_u32 s%d, s%d, s%d" % (sD3, sVb, sVa),
            "s_sub_u32 s%d, s%d, s%d" % (sD4, sNVa, sVb)]


def block(site1, site2, vm1, vm2, last=False, cs=False):
    cstamp(cs)
    E("s_waitcnt vmcnt(%d)" % vm1)
    E("s_barrier")
    cstamp(cs)
    fr, mf, end_kt = build_qk()
    pv_fr, pv_mf, chk9_at, s1_at = build_pv()
    n = len(mf)
    rq = fr.items(LEAD_K) + pv_fr.head_items(n, 2, fr.first[-1] - 2 * LEAD_K + 2)
    dq = spread(site1, 0, 4)
    vq = []
    e9 = 21 + 4
    vq += softmax_items(vS9, vP9o, e9, BIG, 0)
    vq.append(Item("ds_write_b64 v%d, v[%d:%d]" % (vP9W, vP9o, vP9o + 1), e9, BIG))
    bank = 1
    for kt in range(3):
        for T in range(2):
            vq += softmax_items(S_(kt, T), P_(kt >> 1, T) + 2 * (kt & 1), end_kt[kt] + 4, BIG, bank)
            bank ^= 1
        if kt == 1:
            vq += check_items(vP, end_kt[kt] + 4, BIG)
    run_phase(mf, [rq, dq, vq], "qk")
    E(check_branch("L_fix", True))
    cstamp(cs)
    E("s_waitcnt vmcnt(%d)" % vm2)
    assert not any(d == set() for (_, d) in P.dsq), "P9 write must have retired"
    E("s_barrier")
    cstamp(cs)
    mf = pv_mf
    n = len(mf)
    mf[chk9_at]["pre"] = [lambda: E(check_branch("L_fix9", True))]
    mf[s1_at]["pre"] = [lambda: E(check_branch("L_fix", False))]
    rq = [Item("ds_read_b128 %s, v%d offset:%d" % (vr(vP9), vLane16, LDS_P9 - LB), -1, -1),
          Item("ds_read_b128 %s, v%d offset:%d" % (vr(vP9 + 4), vLane16, LDS_P9 - LB + 1024), -1, -1)]
    rq += pv_fr.items(LEAD_V)
    if not last:
        nfr, _, _ = build_qk()
        rq += nfr.head_items(n, 2, pv_fr.first[-1] - 2 * LEAD_V + 2)
    dq = spread(site2, 0, 4)
    vq = check_items(vP9, 5, chk9_at - 2)
    bank = 0
    for T in range(2):
        vq += softmax_items(S_(3, T), P_(1, T) + 2, 0, s1_at - 8, bank)
        bank ^= 1
    vq += check_items(vP + 8, chk9_at, s1_at - 2)
    sc = ["s_mov_b32 s%d, s%d" % (a, b_) for a, b_ in
          ((sPVa, sVa), (sPVb, sVb), (sKa, sNKa), (sKb, sNKb), (sVa, sNVa), (sVb, sNVb))]
    sc.append("s_mov_b64 s[%d:%d], 0\ns_mov_b32 s%d, 0\ns_mov_b32 s%d, 0" % (sForce, sForce + 1, sFloor, sFirst))
    nx = scalar_next()
    lastadd = pv_fr.first[len(pv_fr.fr) - 1 - LEAD_V + 2]
    sq = [Item(t, max(s1_at + 1, 34), BIG) for t in sc + nx[:8]] + [Item(t, lastadd + 1, BIG) for t in nx[8:]]
    run_phase(mf, [rq, dq, vq, sq], "pv")
    cstamp(cs)


E("%s:" % KN)
E("s_cmp_ge_u32 s2, 256\ns_cbranch_scc1 L_end")
stamp()
E("s_and_b32 s%d, s2, 7" % sT0)
E("s_lshr_b32 s%d, s2, 3" % sT1)
E("s_lshr_b32 s96, s%d, 4" % sT1)
E("s_lshr_b32 s97, s%d, 1\ns_and_b32 s97, s97, 7" % sT1)
E("s_and_b32 s98, s%d, 1\ns_lshl_b32 s99, s%d, 1\ns_add_u32 s98, s98, s99" % (sT1, sT0))
E("s_mul_i32 s99, s96, 40")
E("s_add_u32 s0, s0, s99\ns_addc_u32 s1, s1, 0")
E("s_load_dwordx2 s[4:5], s[0:1], 0")
E("s_load_dwordx2 s[8:9], s[0:1], 24")
E("s_load_dwordx2 s[12:13], s[0:1], 8")
E("s_load_dwordx2 s[16:17], s[0:1], 16")
E("s_load_dwordx2 s[20:21], s[0:1], 32")
E("s_sub_u32 s0, s0, s99\ns_subb_u32 s1, s1, 0")
E("s_load_dwordx2 s[24:25], s[0:1], 96")
E("v_lshrrev_b32 v1, 6, v0")
E("v_and_b32 v2, 63, v0")
E("v_readfirstlane_b32 s%d, v1" % sW)
E("v_lshrrev_b32 v3, 5, v2")
E("v_and_b32 v4, 31, v2")
E("v_lshl_add_u32 v5, v1, 1, v3")
E("v_lshlrev_b32 v6, 1, v5\nv_xor_b32 v6, v6, v4\nv_lshlrev_b32 v6, 4, v6")
E("v_lshl_add_u32 v7, v1, 3, v3")
E("v_lshl_add_u32 v%d, v7, 9, v6" % vDKV)
E("v_and_b32 v7, 2, v1\nv_lshlrev_b32 v7, 2, v7")
E("v_and_b32 v8, 1, v1\nv_lshl_add_u32 v7, v8, 1, v7\nv_add_u32 v7, v7, v3")
E("v_lshl_add_u32 v%d, v7, 13, v6" % vDWQ)
E("v_mul_u32_u24 v7, 896, v5\nv_add_u32 v%d, v7, v6" % vDWO)
E("v_and_b32 v8, 15, v2")
E("v_lshrrev_b32 v9, 4, v2")
E("v_lshrrev_b32 v10, 3, v2\nv_mul_u32_u24 v10, 896, v10\nv_and_b32 v11, 7, v2\nv_xor_b32 v11, v11, v9")
E("v_lshl_add_u32 v%d, v11, 4, v10\nv_xor_b32 v11, 4, v11\nv_lshl_add_u32 v%d, v11, 4, v10" % (vDX, vDX + 1))
E("s_lshl_b32 s%d, s%d, 12" % (sW4K, sW))
E("s_lshr_b32 s%d, s%d, 1" % (sWhi, sW))
E("s_mul_i32 s%d, s%d, %d" % (sXw, sW, 32 * 896))
E("s_mul_i32 s100, s97, 129024")
E("s_lshl_b32 s101, s98, 9")
E("s_waitcnt lgkmcnt(0)")
E("s_add_u32 s4, s4, s100\ns_addc_u32 s5, s5, 0\ns_mov_b32 s6, 129024\ns_mov_b32 s7, 0x20000")
E("s_add_u32 s8, s8, s101\ns_addc_u32 s9, s9, 0\ns_sub_u32 s10, %d, s101\ns_mov_b32 s11, 0x20000" % (448 * 8192))
E("s_lshl_b32 s99, s97, 4\ns_add_u32 s99, s99, s98")
E("s_xor_b32 s100, s96, 1\ns_lshr_b32 s99, s99, s100")
E("s_lshl_b32 s99, s99, 19")
E("s_add_u32 s12, s12, s99\ns_addc_u32 s13, s13, 0\ns_mov_b32 s14, 0x80000\ns_mov_b32 s15, 0x20000")
E("s_add_u32 s16, s16, s99\ns_addc_u32 s17, s17, 0\ns_mov_b32 s18, 0x80000\ns_mov_b32 s19, 0x20000")
E("s_mul_i32 s99, s98, %d" % (256 * 896))
E("s_add_u32 s20, s20, s99\ns_addc_u32 s21, s21, 0\ns_sub_u32 s22, %d, s99\ns_mov_b32 s23, 0x20000" % (4096 * 896))
if STAMP:
    E("s_lshl_b32 s99, s2, 8\ns_add_u32 s99, s99, 0x4000000\ns_add_u32 s%d, s24, s99\ns_addc_u32 s%d, s25, 0" % (sWSB, sWSB + 1))
E("s_lshl_b32 s99, s96, 3\ns_add_u32 s99, s99, s97\ns_lshl_b32 s99, s99, 4\ns_add_u32 s99, s99, s98")
E("s_mul_i32 s99, s99, 129024")
E("s_add_u32 s24, s24, s99\ns_addc_u32 s25, s25, 0\ns_mov_b32 s26, 129024\ns_mov_b32 s27, 0x20000")
E("s_mul_i32 s%d, s%d, 12288\ns_add_u32 s%d, s%d, %d" % (sXB, sW, sXB, sXB, LDS_XB))

wslot = lambda N: (N % 7) * SLOT
kvslot = lambda n: (n % NSLOT) * SLOT


def emit_pieces(pieces):
    for (t, tag) in pieces:
        E(t, tag=tag)


emit_pieces(dma_x(0, ("X", 0)))
emit_pieces(dma_wq(0, ("c", wslot(0)), ("W", 0)))
emit_pieces(dma_wq(1, ("c", wslot(1)), ("W", 1)))
emit_pieces(dma_x(1, ("X", 1)))
emit_pieces(dma_wq(2, ("c", wslot(2)), ("W", 2)))
emit_pieces(dma_wq(3, ("c", wslot(3)), ("W", 3)))
E("s_mov_b32 s%d, 0\ns_mov_b32 s%d, 0" % (sOffK, sOffV))


def rho(dst, i, t1):
    E("v_lshrrev_b32 v%d, 1, v%d\nv_and_b32 v%d, 3, v%d\nv_lshlrev_b32 v%d, 3, v%d" % (dst, i, dst, dst, dst, dst))
    E("v_lshrrev_b32 v%d, 3, v%d\nv_lshl_add_u32 v%d, v%d, 1, v%d" % (t1, i, dst, t1, dst))
    E("v_and_b32 v%d, 1, v%d\nv_add_u32 v%d, v%d, v%d" % (t1, i, dst, dst, t1))


E("v_lshrrev_b32 v10, 1, v8\nv_xor_b32 v10, v10, v9\nv_lshlrev_b32 v11, 7, v8\nv_add_u32 v11, s%d, v11" % sXB)
E("v_lshl_add_u32 v%d, v10, 4, v11\nv_xor_b32 v10, 4, v10\nv_lshl_add_u32 v%d, v10, 4, v11" % (vXR, vXR + 1))
E("v_lshrrev_b32 v13, 2, v2")
rho(10, 13, 11)
E("v_and_b32 v11, 7, v13")
E("v_and_b32 v12, 3, v2")
E("v_lshlrev_b32 v3, 1, v11\nv_lshlrev_b32 v4, 2, v1\nv_xor_b32 v3, v3, v4\nv_xor_b32 v3, v3, v12")
for b in range(4):
    E("v_xor_b32 v4, %d, v3\nv_lshlrev_b32 v4, 4, v4\nv_lshl_add_u32 v%d, v10, 9, v4" % (4 * b, vW + b))
E("v_lshlrev_b32 v3, 1, v1\nv_xor_b32 v3, v3, v11")
for b in range(8):
    E("v_xor_b32 v4, %d, v3\nv_lshlrev_b32 v4, 5, v4\nv_lshl_add_u32 v4, v12, 3, v4" % b)
    E("v_lshl_add_u32 v4, v10, 9, v4\nv_add_u32 v%d, %d, v4" % (vV + b, kvslot(2)))
rho(10, 8, 11)
E("v_and_b32 v11, 7, v8\nv_lshlrev_b32 v11, 1, v11\nv_lshlrev_b32 v4, 2, v1\nv_xor_b32 v11, v11, v4\nv_xor_b32 v11, v11, v9")
for b in range(4):
    E("v_xor_b32 v4, %d, v11\nv_lshlrev_b32 v4, 4, v4\nv_lshl_add_u32 v%d, v10, 9, v4" % (4 * b, vK + b))
E("s_and_b32 s99, s%d, 1\ns_lshl_b32 s99, s99, 11" % sW)
E("s_lshl_b32 s100, s%d, 14\ns_add_u32 s99, s99, s100" % sWhi)
for b in range(4):
    E("v_add_u32 v%d, s99, v%d" % (vK9 + b, vK + b))
E("v_lshlrev_b32 v%d, 4, v2\nv_add_u32 v%d, %d, v%d" % (vLane16, vLane16, LB, vLane16))
E("s_lshl_b32 s99, s%d, 10\ns_and_b32 s100, s%d, 1\ns_lshl_b32 s100, s100, 3\ns_add_u32 s99, s99, s100\ns_add_u32 s99, s99, %d"
  % (sWhi, sW, LDS_P9 - LB))
E("v_add_u32 v%d, s99, v%d" % (vP9W, vLane16))
E("s_mov_b32 s%d, 0x40004000" % sMask)
for N in (4, 5, 6):
    emit_pieces(dma_wq(N, ("c", wslot(N)), ("W", N)))
stamp()

QA = lambda T, sd, v: (64, 128)[T] + 4 * (2 * sd + v)
QA9 = lambda sd, v: 48 + 4 * (2 * (sd >> 2) + v)
X_ = lambda T, s: 56 * T + 4 * s


def xread_texts(p):
    out = []
    for s in (2 * p, 2 * p + 1):
        for T in range(3):
            out.append("ds_read_b128 %s, v%d offset:%d" % (ar(X_(T, s)), vXR + (s & 1), (p & 1) * 6144 + T * 2048))
    return out


def vmwait(tags):
    c = P.vm_count_after(tags)
    if c is not None:
        E("s_waitcnt vmcnt(%d)" % min(63, c))


def build_qp(p):
    fr = Frags(aVB, NVB, True, LEAD_V)
    mf = []
    last = {}
    for s in (2 * p, 2 * p + 1):
        for sd in range(8):
            for v in range(2):
                aft = []
                if sd >= 4 and v == 1 and s < 13:
                    aft = ["v_add_u32 v%d, 0x%x, v%d" % (vW + (sd & 3), (wslot(s + 1) - wslot(s)) & 0xffffffff, vW + (sd & 3))]
                b = fr.new(mf, vW + (sd & 3), (sd >> 2) * 256 + 8 * v, after=aft)
                for T in range(2):
                    mf.append(dict(text=mfma(vr(QA(T, sd, v)), ar(b), ar(X_(T, s)), "0" if s == 0 else vr(QA(T, sd, v)))))
                if (sd & 3) == 3:
                    mf.append(dict(text=mfma(vr(QA9(sd, v)), ar(b), ar(X_(2, s)), "0" if s == 0 else vr(QA9(sd, v)))))
                last[(sd, v)] = len(mf) - 1
    fr.pair_waits(mf)
    return fr, mf, last


stream = [("W", N) for N in range(7, 14)] + [("KV", n) for n in range(7)]


def stream_pieces(k):
    kind, n = stream[k]
    if kind == "W":
        return dma_wq(n, ("c", wslot(n)), ("W", n))
    return dma_kv("K" if (n & 3) < 2 else "V", ("c", kvslot(n)), ("KV", n))


vmwait([("X", 0)])
for t in xread_texts(0):
    E(t)
vmwait([("W", 3)])
E("s_barrier")
zero_q = ["v_mov_b32 v%d, 0" % r for r in range(192, 256)] + \
         ["v_mov_b32 v%d, 0" % vChk]
for p in range(7):
    fr, mf, last = build_qp(p)
    n = len(mf)
    if p > 0:
        vmwait([("W", min(2 * p + 3, 13))] + ([("KV", 1)] if p == 6 and False else []))
        E("s_barrier")
    rq = fr.items(0 if p == 0 else LEAD_V)
    if p < 6:
        nfr, _, _ = build_qp(p + 1)
        rq += nfr.head_items(n, 2, fr.first[-1] - 2 * LEAD_V + 2)
    dq = []
    xq = []
    if p == 0:
        xq += [Item(lambda: P.wait_ds_regs(areg_set(X_(2, 1))), 0, 0)]
        xq += spread(dma_x(2, ("X", 2)), 1, 3)
    else:
        dq += spread(stream_pieces(2 * p - 2) + stream_pieces(2 * p - 1), 0, 4)
    if p + 1 < 7:
        y = 34
        xq += [Item(lambda p=p: vmwait([("X", p + 1)]), y, y)]
        xq += [Item(t, y, y + 8) for t in xread_texts(p + 1)]
        if p + 3 < 7:
            xq += [Item(lambda p=p: P.wait_ds_regs(areg_set(X_(2, 2 * p + 3))), y + 14, y + 14)]
            xq += spread(dma_x(p + 3, ("X", p + 3)), y + 15, 3)
    zq = []
    if p in (1, 2, 3, 4):
        zq = [Item(t, 0, BIG) for t in zero_q[16 * (p - 1):16 * p]]
    run_phase(mf, [rq, dq, xq, zq], "qp%d" % p)
stamp()
E("s_mov_b32 s100, %s\ns_mov_b32 s101, %s" % (fbits(CSCALE), fbits(CSCALE)))
E("s_xor_b32 s99, s%d, 3\ns_lshl_b32 s99, s99, 10\ns_add_u32 s99, s99, %d" % (sW, LDS_O9 - LB))
E("v_add_u32 v2, s99, v%d" % vLane16)
for k in range(8):
    E("v_pk_mul_f32 %s, %s, s[100:101]" % (vr(48 + 2 * k, 2), vr(48 + 2 * k, 2)))
for k in range(8):
    E("v_cvt_pk_bf16_f32 v%d, v%d, v%d" % (4 + k, 48 + 2 * k, 49 + 2 * k))
E("ds_write_b128 v2, v[4:7]")
E("ds_write_b128 v2, v[8:11] offset:4096")
vmwait([("KV", 1)])
E("s_waitcnt lgkmcnt(0)")
E("s_barrier")
emit_pieces(stream_pieces(12))
for b in range(4):
    E("s_xor_b32 s99, s%d, %d\ns_lshl_b32 s99, s99, 10\ns_add_u32 s99, s99, %d" % (sW, b, LDS_O9 - LB))
    E("v_add_u32 v2, s99, v%d" % vLane16)
    E("ds_read_b128 %s, v2" % ar(Q_(2, b)))
    E("ds_read_b128 %s, v2 offset:4096" % ar(Q_(2, 4 + b)))
emit_pieces(stream_pieces(13))
for T in range(2):
    for sd in range(8):
        a = QA(T, sd, 0)
        for j in range(4):
            E("v_pk_mul_f32 %s, %s, s[100:101]" % (vr(a + 2 * j, 2), vr(a + 2 * j, 2)))
        for j in range(4):
            E("v_cvt_pk_bf16_f32 v%d, v%d, v%d" % (vTmp + j, a + 2 * j, a + 2 * j + 1))
        for j in range(4):
            E("v_accvgpr_write_b32 a%d, v%d" % (Q_(T, sd) + j, vTmp + j))
        if T == 1:
            for j in range(8):
                E("v_mov_b32 v%d, 0" % (a + j))
for j in range(aO9, aL + 12):
    E("v_accvgpr_write_b32 a%d, 0" % j)
E("v_mov_b32 v%d, 0x3f803f80" % vTmp)
for j in range(4):
    E("v_accvgpr_write_b32 a%d, v%d" % (aOnes + j, vTmp))
for j in range(12):
    E("v_mov_b32 v%d, 0" % (vNegM + j))
E("s_mov_b64 s[%d:%d], -1\ns_mov_b32 s%d, 0xff800000\ns_mov_b32 s%d, 1" % (sForce, sForce + 1, sFloor, sFirst))
for r, n in ((sPVa, 7), (sPVb, 8), (sKa, 0), (sKb, 1), (sVa, 2), (sVb, 3)):
    E("s_mov_b32 s%d, %d" % (r, kvslot(n)))
for t in scalar_next():
    E(t)
E("s_mov_b32 s%d, 0" % sLoop)
E("s_waitcnt lgkmcnt(0)")
stamp()
fr0, _, _ = build_qk()
for f in range(LEAD_K):
    for t in fr0.texts(f):
        E(t)

entry_q = [set(d) for (_, d) in P.dsq]
E("L_loop:")
block(dma_kv("V", sPVa, "a") + dma_kv("K", sPVb, "b"), dma_kv("K", sKa, "c") + dma_kv("V", sKb, "d"), VMX, VMX)
assert [set(d) for (_, d) in P.dsq][-len(entry_q):] == entry_q and len(P.dsq) == len(entry_q), (P.dsq, entry_q)
E("s_add_u32 s%d, s%d, 1\ns_cmp_lt_u32 s%d, 14\ns_cbranch_scc1 L_loop" % (sLoop, sLoop, sLoop))
block(dma_kv("V", sPVa, "e") + dma_wo(0, sPVb, ("O", 0)), dma_wo(1, sKa, ("O", 1)) + dma_wo(2, sKb, ("O", 2)), 12, 12,
      cs=(STAMP == 2))
block(dma_wo(3, sPVa, ("O", 3)) + dma_wo(4, sPVb, ("O", 4)), dma_wo(5, sKa, ("O", 5)) + dma_wo(6, sKb, ("O", 6)), 12, 20,
      last=True)
stamp()

vOF = 64
OF_ = lambda T, s: vOF + 32 * T + 4 * s
aOF9 = 0
aA9 = 32
vRI = 2
vST = 8
vREL = vV
vABS = {0: 16, 1: 40, 2: 48, 3: 56}
vT9 = 24
acc_ = lambda T, t: vO + 64 * T + 4 * t
E("s_nop 7")
for T in range(3):
    E("v_accvgpr_read_b32 v%d, a%d" % (vRI + T, aL + 4 * T))
for k in range(16):
    E("v_accvgpr_read_b32 v%d, a%d" % (44 + k, aO9 + k))
for T in range(3):
    E("v_rcp_f32 v%d, v%d" % (vRI + T, vRI + T))
E("s_xor_b32 s99, s%d, 3\ns_lshl_b32 s99, s99, 10\ns_add_u32 s99, s99, %d" % (sW, LDS_O9 - LB))
E("v_add_u32 v5, s99, v%d" % vLane16)
for k in range(16):
    E("v_mul_f32 v%d, v%d, v%d" % (44 + k, vRI + 2, 44 + k))
for k in range(8):
    E("v_cvt_pk_bf16_f32 v%d, v%d, v%d" % (8 + k, 44 + 2 * k, 45 + 2 * k))
E("ds_write_b128 v5, v[8:11]")
E("ds_write_b128 v5, v[12:15] offset:4096")
for b in range(8):
    E("v_subrev_u32 v%d, s%d, v%d" % (vREL + b, sVa, vREL + b))


def conv_items(s, e=-1, d=BIG):
    its = []
    for T in range(2):
        a = O_(T, 2 * s)
        for j in range(8):
            its.append(Item("v_mul_f32 v%d, v%d, v%d" % (a + j, vRI + T, a + j), e, d))
        for j in range(4):
            its.append(Item("v_cvt_pk_bf16_f32 v%d, v%d, v%d" % (OF_(T, s) + j, a + 2 * j, a + 2 * j + 1), e, d))
    return its


woslot = lambda q: ((64 + q) % NSLOT) * SLOT


def wo_slot_sgpr(dst, ph, b):
    base = (64 + 4 * ph) % NSLOT
    t = "s_xor_b32 s%d, s%d, %d\ns_add_u32 s%d, s%d, %d\n" % (dst, sW, b, dst, dst, base)
    t += "s_cmp_ge_u32 s%d, %d\ns_cselect_b32 s%d, %d, 0\ns_sub_u32 s%d, s%d, s%d\n" % (dst, NSLOT, sT3, NSLOT, dst, dst, sT3)
    t += "s_lshl_b32 s%d, s%d, 14" % (dst, dst)
    return t


issue_plan = {0: [7, 8], 1: [9, 10, 11, 12], 2: [13, 14, 15], 3: []}
sSL = [41, 42, 43, 50]
for ph in range(4):
    H, a = ph >> 1, ph & 1
    ntile = 16 if H == 0 else 12
    pre = [wo_slot_sgpr(sSL[b], ph, b) for b in range(4)]
    for t in pre:
        E(t)
    c = P.vm_count_after([("O", 4 * ph + 3)])
    E("s_waitcnt lgkmcnt(0)" if c is None else "s_waitcnt vmcnt(%d) lgkmcnt(0)" % min(63, c))
    E("s_barrier")
    fr = Frags(aVB, NVB, True, LEAD_V)
    mf = []
    done_pair = {}
    order = [(b, t) for b in range(4) for t in range(ntile)] if a == 0 else \
            [(b, t) for kp in range(ntile // 2) for t in (2 * kp, 2 * kp + 1) for b in range(4)]
    seen = set()
    first_of_k = {}
    for (b, t) in order:
        sl = 4 * a + b
        areg = vABS[b] + (t & 7)
        bef = []
        if t < 8:
            bef = ["v_add_u32 v%d, s%d, v%d" % (areg, sSL[b], vREL + t)]
        elif H == 1:
            bef = ["v_xor_b32 v%d, s%d, v%d" % (areg, sT2, areg)]
        bb = fr.new(mf, areg, (t >> 3) * 256, before=bef)
        first_of_k.setdefault(b, len(mf))
        for T in range(2):
            mf.append(dict(text=mfma(vr(acc_(T, t)), ar(bb), vr(OF_(T, sl)), "0" if sl == 0 else vr(acc_(T, t)))))
        sp = SPECIAL.get(t) if (H == 0 or t < 8) else {10: 2, 11: 3}.get(t)
        if sp is not None:
            mf.append(dict(text=mfma(ar(aA9 + 4 * sp), ar(bb), ar(aOF9 + 4 * sl), "0" if sl == 0 else ar(aA9 + 4 * sp))))
        if a == 1 and b == 3 and (t & 1):
            done_pair[t >> 1] = len(mf) - 1
    fr.pair_waits(mf)
    n = len(mf)
    rq = fr.items(0)
    dq = []
    for q in issue_plan[ph]:
        dq += dma_wo(q, ("c", woslot(q)), ("O", q))
    dq = spread(dq, 0, 4)
    cq = []
    if ph == 0:
        nfirst = 3 * LEAD_V
        for it in rq[:nfirst]:
            it.emit()
        rq = rq[nfirst:]
        for b in range(4):
            E("s_xor_b32 s99, s%d, %d\ns_lshl_b32 s99, s99, 10\ns_add_u32 s99, s99, %d" % (sW, b, LDS_O9 - LB))
            E("v_add_u32 v5, s99, v%d" % vLane16)
            E("ds_read_b128 %s, v5" % ar(aOF9 + 4 * b))
            if b < 2:
                E("ds_read_b128 %s, v5 offset:4096" % ar(aOF9 + 16 + 4 * b))
            else:
                cq.append(b)
        for s in range(8):
            for it in conv_items(s):
                it.emit()
        for b in cq:
            E("s_xor_b32 s99, s%d, %d\ns_lshl_b32 s99, s99, 10\ns_add_u32 s99, s99, %d" % (sW, b, LDS_O9 - LB))
            E("v_add_u32 v5, s99, v%d" % vLane16)
            E("ds_read_b128 %s, v5 offset:4096" % ar(aOF9 + 16 + 4 * b))
        cq = []
        st = ["v_subrev_u32 v6, %d, v%d" % (LB, vLane16), "s_mul_i32 s100, s%d, %d" % (sW, 2 * 14336)]
        for b in range(4):
            st.append("s_xor_b32 s99, s%d, %d\ns_lshl_b32 s99, s99, 10\ns_add_u32 s99, s99, s100" % (sW, b))
            st.append("v_add_u32 v%d, s99, v6" % (vST + b))
        st.append("s_xor_b32 s99, s%d, 3\ns_lshl_b32 s99, s99, 10\ns_add_u32 s99, s99, %d" % (sW, 8 * 14336))
        st.append("v_add_u32 v%d, s99, v6" % (vST + 4))
        for b in range(2):
            st.append("s_and_b32 s99, s%d, 1\ns_xor_b32 s99, s99, %d\ns_lshl_b32 s99, s99, 10\ns_add_u32 s99, s99, s100" % (sW, b))
            st.append("v_add_u32 v%d, s99, v6" % (vST + 5 + b))
        st.append("s_and_b32 s99, s%d, 1\ns_xor_b32 s99, s99, 1\ns_lshl_b32 s99, s99, 10\ns_add_u32 s99, s99, %d" % (sW, 8 * 14336))
        st.append("s_lshl_b32 s100, s%d, 20\ns_add_u32 s99, s99, s100" % sWhi)
        st.append("v_add_u32 v%d, s99, v6" % (vST + 7))
        st.append("s_lshl_b32 s%d, s%d, 7" % (sT2, sWhi))
        cq = [Item(t, 40, BIG) for t in st]
    if a == 1:
        for kp in range(ntile // 2):
            e = done_pair[kp] + 5
            for T in range(2):
                a0 = acc_(T, 2 * kp)
                for j in range(4):
                    cq.append(Item("v_cvt_pk_bf16_f32 v%d, v%d, v%d" % (a0 + j, a0 + 2 * j, a0 + 2 * j + 1), e, BIG))
                if H == 1 and kp >= 4:
                    vb, so = vST + 5 + (kp - 4), (8 * H + 4) * 1024 + T * 14336
                else:
                    vb, so = vST + (kp & 3), (8 * H + (kp & 4)) * 1024 + T * 14336
                cq.append(Item("s_mov_b32 s%d, %d\nbuffer_store_dwordx4 %s, v%d, %s, s%d offen %s"
                               % (sT1, so, vr(a0), vb, srd(SRD_WS), sT1, STP), e, BIG, "st"))
            k9 = {3: 0, 7: 1}.get(kp) if H == 0 else {3: 0, 5: 1}.get(kp)
            if k9 is not None:
                stg = vT9
                for j in range(4):
                    cq.append(Item("v_accvgpr_read_b32 v6, a%d\nv_accvgpr_read_b32 v7, a%d\nv_cvt_pk_bf16_f32 v%d, v6, v7"
                                   % (aA9 + 8 * k9 + 2 * j, aA9 + 8 * k9 + 2 * j + 1, stg + j), e, BIG))
                if H == 1 and k9 == 1:
                    vb, so = vST + 7, 12 * 1024
                else:
                    vb, so = vST + 4, (8 * H + 4 * k9) * 1024
                cq.append(Item("s_mov_b32 s%d, %d\nbuffer_store_dwordx4 %s, v%d, %s, s%d offen %s"
                               % (sT1, so, vr(stg), vb, srd(SRD_WS), sT1, STP), e, BIG, "st"))
    run_phase(mf, [rq, dq, cq], "op%d" % ph)
    stamp(ph == 1)
if STAMP:
    stamp()
    E("s_waitcnt vmcnt(0)")
    stamp()
    E("v_mov_b32 v1, 0")
    E("v_cmp_eq_u32 vcc, 0, v0\ns_and_saveexec_b64 s[96:97], vcc\ns_cbranch_execz L_end")
    if STAMP == 4:
        E("s_load_dwordx2 s[98:99], s[0:1], 88\ns_waitcnt lgkmcnt(0)")
        E("s_not_b32 s100, s%d\nv_mov_b32 v2, s100\nglobal_atomic_umax v1, v2, s[98:99]" % sStamp)
        for k in range(8):
            E("v_mov_b32 v2, s%d\nglobal_atomic_umax v1, v2, s[98:99] offset:%d" % (sStamp + 2 * k, 4 + 4 * k))
        E("s_cmp_lg_u32 s2, 200\ns_cbranch_scc1 L_end")
        for k in range(7):
            E("s_sub_u32 s100, s%d, s%d\nv_mov_b32 v2, s100\nglobal_store_dword v1, v2, s[98:99] offset:%d" % (sStamp + 2 * k + 2, sStamp, 36 + 4 * k))
        E("s_branch L_end")
    for k in range(16):
        E("v_mov_b32 v2, s%d\nv_mov_b32 v3, s%d" % (sStamp + 2 * k, sStamp + 2 * k + 1))
        E("global_store_dwordx2 v1, v[2:3], s[%d:%d] offset:%d" % (sWSB, sWSB + 1, 8 * k))
        E("s_nop 1")
E("L_end:\ns_endpgm")
main_ins = P.ins

R = Prog()
F = R.emit
for s in stubs:
    F(s)


def xlane_max(F, reg, t1, t2):
    F("v_mbcnt_lo_u32_b32 v%d, -1, 0\nv_mbcnt_hi_u32_b32 v%d, -1, v%d" % (t1, t1, t1))
    for x in (16, 32):
        F("v_xor_b32 v%d, %d, v%d\nv_lshlrev_b32 v%d, 2, v%d" % (t2, x, t1, t2, t2))
        F("ds_bpermute_b32 v%d, v%d, v%d" % (t2, t2, reg))
        F("s_waitcnt lgkmcnt(0)")
        F("v_max_f32 v%d, v%d, v%d" % (reg, reg, t2))


F("L_fix:")
F("s_nop 15\ns_waitcnt lgkmcnt(0)")
F("s_mov_b32 s%d, %s" % (sT2, fbits(TOFF)))
for T in range(2):
    m = 2 + T
    regs = [S_(kt, T) + r for kt in range(4) for r in range(4)]
    F("v_max3_f32 v%d, v%d, v%d, v%d" % (m, regs[0], regs[1], regs[2]))
    for k in range(3, 15, 2):
        F("v_max3_f32 v%d, v%d, v%d, v%d" % (m, m, regs[k], regs[k + 1]))
    F("v_max_f32 v%d, v%d, v%d" % (m, m, regs[15]))
    xlane_max(F, m, 4, 5)
    F("v_add_f32 v%d, s%d, v%d" % (m, sT2, m))
    F("v_max_f32 v%d, s%d, v%d" % (m, sFloor, m))
    for j in range(4):
        F("v_sub_f32 v%d, v%d, v%d" % (vNegM + 4 * T + j, vNegM + 4 * T + j, m))
    for r in regs:
        F("v_sub_f32 v%d, v%d, v%d" % (r, r, m))
F("s_cmp_eq_u32 s%d, 1\ns_cbranch_scc1 L_fix_p" % sFirst)
for T in range(2):
    F("v_sub_f32 v4, 0, v%d\nv_exp_f32 v4, v4\ns_nop 0" % (2 + T))
    for j in range(64):
        F("v_mul_f32 v%d, v4, v%d" % (vO + 64 * T + j, vO + 64 * T + j))
    for j in range(4):
        F("v_accvgpr_read_b32 v5, a%d\nv_mul_f32 v5, v4, v5\nv_accvgpr_write_b32 a%d, v5" % (aL + 4 * T + j, aL + 4 * T + j))
F("L_fix_p:")
for kt in range(4):
    for T in range(2):
        for r in range(4):
            F("v_exp_f32 v%d, v%d" % (6 + r, S_(kt, T) + r))
        d = P_(kt >> 1, T) + 2 * (kt & 1)
        F("v_cvt_pk_bf16_f32 v%d, v6, v7\nv_cvt_pk_bf16_f32 v%d, v8, v9" % (d, d + 1))
F("s_nop 3\ns_setpc_b64 s[%d:%d]" % (sRet, sRet + 1))

F("L_fix9:")
F("s_nop 15\ns_waitcnt lgkmcnt(0)")
F("s_mov_b32 s%d, %s" % (sT2, fbits(TOFF)))
F("v_max3_f32 v2, v%d, v%d, v%d\nv_max_f32 v2, v2, v%d" % (vS9, vS9 + 1, vS9 + 2, vS9 + 3))
xlane_max(F, 2, 4, 5)
F("v_lshlrev_b32 v4, 2, v4\nv_add_u32 v4, %d, v4" % LDS_MB)
F("s_lshl_b32 s%d, s%d, 8\nv_add_u32 v5, s%d, v4" % (sT2 + 1, sW, sT2 + 1))
F("ds_write_b32 v5, v2\ns_waitcnt lgkmcnt(0)\ns_barrier")
for w in range(4):
    F("ds_read_b32 v%d, v4 offset:%d" % (6 + w, 256 * w))
F("s_waitcnt lgkmcnt(0)")
F("v_max3_f32 v2, v6, v7, v8\nv_max_f32 v2, v2, v9")
F("v_add_f32 v2, s%d, v2\nv_max_f32 v2, s%d, v2" % (sT2, sFloor))
for j in range(4):
    F("v_sub_f32 v%d, v%d, v2" % (vNegM + 8 + j, vNegM + 8 + j))
    F("v_sub_f32 v%d, v%d, v2" % (vS9 + j, vS9 + j))
F("s_cmp_eq_u32 s%d, 1\ns_cbranch_scc1 L_fix9_p" % sFirst)
F("v_sub_f32 v4, 0, v2\nv_exp_f32 v4, v4\ns_nop 0")
for j in list(range(aO9, aO9 + 16)) + list(range(aL + 8, aL + 12)):
    F("v_accvgpr_read_b32 v5, a%d\nv_mul_f32 v5, v4, v5\nv_accvgpr_write_b32 a%d, v5" % (j, j))
F("L_fix9_p:")
for r in range(4):
    F("v_exp_f32 v%d, v%d" % (6 + r, vS9 + r))
F("v_cvt_pk_bf16_f32 v%d, v6, v7\nv_cvt_pk_bf16_f32 v%d, v8, v9" % (vP9o, vP9o + 1))
F("ds_write_b64 v%d, v[%d:%d]\ns_waitcnt lgkmcnt(0)\ns_barrier" % (vP9W, vP9o, vP9o + 1))
F("ds_read_b128 %s, v%d offset:%d" % (vr(vP9), vLane16, LDS_P9 - LB))
F("ds_read_b128 %s, v%d offset:%d" % (vr(vP9 + 4), vLane16, LDS_P9 - LB + 1024))
F("s_waitcnt lgkmcnt(0)\ns_nop 3\ns_setpc_b64 s[%d:%d]" % (sRet, sRet + 1))

Z = Prog()
G = Z.emit
G("reduce_kernel:")
G("s_cmp_ge_u32 s2, 504\ns_cbranch_scc1 L_rend")
G("s_load_dwordx2 s[4:5], s[0:1], 96\ns_load_dwordx2 s[8:9], s[0:1], 80")
G("v_lshrrev_b32 v1, 6, v0\nv_and_b32 v2, 63, v0\ns_nop 0\nv_readfirstlane_b32 s3, v1")
G("s_lshl_b32 s12, s2, 2\ns_add_u32 s12, s12, s3")
G("s_mul_hi_u32 s13, s12, %d" % ((2 ** 32 + 125) // 126))
G("s_mul_i32 s14, s13, 126\ns_sub_u32 s14, s12, s14")
G("s_mul_hi_u32 s15, s14, %d" % ((2 ** 32 + 13) // 14))
G("s_mul_i32 s16, s15, 14\ns_sub_u32 s16, s14, s16")
G("s_mul_i32 s17, s13, %d\ns_lshl_b32 s18, s14, 10\ns_add_u32 s17, s17, s18" % (16 * 129024))
G("v_lshlrev_b32 v3, 4, v2")
G("s_waitcnt lgkmcnt(0)")
G("s_mov_b32 s6, %d\ns_mov_b32 s7, 0x20000" % (256 * 129024))
G("s_mov_b32 s10, %d\ns_mov_b32 s11, 0x20000" % (8 * 144 * 896 * 2))
for h in range(16):
    G("buffer_load_dwordx4 %s, v3, s[4:7], s17 offen" % vr(16 + 4 * h))
    G("s_add_u32 s17, s17, 129024")
G("s_and_b32 s18, s13, 7\ns_mul_i32 s18, s18, 144\ns_lshl_b32 s19, s15, 4\ns_add_u32 s18, s18, s19\ns_mul_i32 s18, s18, 1792")
G("s_lshr_b32 s19, s13, 3\ns_mul_i32 s19, s19, 896\ns_add_u32 s18, s18, s19\ns_lshl_b32 s19, s16, 6\ns_add_u32 s18, s18, s19")
G("v_and_b32 v4, 15, v2\nv_mul_u32_u24 v4, 1792, v4\nv_lshrrev_b32 v5, 4, v2\nv_lshl_add_u32 v4, v5, 3, v4")
for h in range(16):
    for j in range(4):
        r = 16 + 4 * h + j
        if h == 0:
            G("v_lshlrev_b32 v%d, 16, v%d\nv_and_b32 v%d, 0xffff0000, v%d" % (8 + 2 * j, r, 9 + 2 * j, r))
        else:
            G("v_lshlrev_b32 v6, 16, v%d\nv_and_b32 v7, 0xffff0000, v%d" % (r, r))
            G("v_add_f32 v%d, v%d, v6\nv_add_f32 v%d, v%d, v7" % (8 + 2 * j, 8 + 2 * j, 9 + 2 * j, 9 + 2 * j))
for j in range(4):
    G("v_cvt_pk_bf16_f32 v%d, v%d, v%d" % (16 + j, 8 + 2 * j, 9 + 2 * j))
G("buffer_store_dwordx2 v[16:17], v4, s[8:11], s18 offen")
G("buffer_store_dwordx2 v[18:19], v4, s[8:11], s18 offen offset:32")
G("L_rend:\ns_endpgm")

rep = []
main_ins = pad_hazards(main_ins, rep)
rare_ins = pad_hazards(R.ins, None)
red_ins = pad_hazards(Z.ins, None)
from collections import Counter
sys.stderr.write("hazard pads (main): %s\n" % dict(Counter(r[0] for r in rep)))
if OPT.get("v"):
    for r in rep:
        sys.stderr.write("  %s\n" % (r,))

txt = lambda ins: "\n".join(("" if i.kind == "label" else "    ") + i.text for i in ins)
hdr = open("concat_heads__gqa_block_cached__mha_block_cached__near_ridge.s.ref").read().split("; Override launch")[0]
print(hdr.rstrip())
print("; @launch kernel=%s grid=(256,1,1) block=(256,1,1) lds=%d" % (KN, LDS_TOTAL))
print("; @launch kernel=reduce_kernel grid=(504,1,1) block=(256,1,1) lds=0")
print('.amdgcn_target "amdgcn-amd-amdhsa--gfx950"')
print(".text")
print(".globl %s\n.p2align 8\n.type %s,@function" % (KN, KN))
print(txt(main_ins))
print(txt(rare_ins))
print(".globl reduce_kernel\n.p2align 8\n.type reduce_kernel,@function")
print(txt(red_ins))
print('.section .rodata,"a"')
for name, nv, acc in ((KN, 512, 256), ("reduce_kernel", 80, 80)):
    print(""".p2align 6
.amdhsa_kernel %s
  .amdhsa_next_free_vgpr %d
  .amdhsa_next_free_sgpr 102
  .amdhsa_accum_offset %d
  .amdhsa_group_segment_fixed_size 0
  .amdhsa_kernarg_size 104
  .amdhsa_user_sgpr_count 2
  .amdhsa_user_sgpr_kernarg_segment_ptr 1
  .amdhsa_system_sgpr_workgroup_id_x 1
.end_amdhsa_kernel""" % (name, nv, acc))
```

```python
import sys, struct, math
sys.path.insert(0, "work")
from asmlib import *

OPT = dict(a.split("=") for a in sys.argv[1:] if "=" in a)
NT = OPT.get("nt", "").replace("_", " ")
NTK = OPT.get("ntk", NT).replace("_", " ")
NTV = OPT.get("ntv", NT).replace("_", " ")
WNT = OPT.get("wnt", "").replace("_", " ")
STP = OPT.get("st", "").replace("_", " ")
STAMP = int(OPT.get("stamp", "0"))
LEAD_K = int(OPT.get("lk", "6"))
LEAD_V = int(OPT.get("lv", "5"))
CAP = int(OPT.get("cap", "4"))
FUSE = int(OPT.get("fuse", "1"))
if FUSE and "st" not in OPT:
    STP = "sc1"
VMX = int(OPT.get("vmx", "12"))

KN = "concat_heads__gqa_block_cached__mha_block_cached__near_ridge_kernel"
NSLOT = 9
SLOT = 16384
RING = NSLOT * SLOT
LDS_P9 = RING
LDS_MB = RING + 2048
LDS_O9 = RING + 3072
LDS_XB = 7 * SLOT
LDS_TOTAL = 163840
LB = 131072
TOFF = 7.0
CSCALE = math.log2(math.e) / 16.0
BIG = 10 ** 6


def fbits(x):
    return "0x%08x" % struct.unpack("<I", struct.pack("<f", x))[0]


vr = lambda n, k=4: "v[%d:%d]" % (n, n + k - 1)
ar = lambda n, k=4: "a[%d:%d]" % (n, n + k - 1)
srd = lambda n: "s[%d:%d]" % (n, n + 3)

SRD_X, SRD_WQ, SRD_K, SRD_V, SRD_WO, SRD_WS = 4, 8, 12, 16, 20, 24
sW, sW4K, sXw = 28, 29, 30
sOffK, sOffV, sTmpO, sLoop = 31, 32, 33, 34
sPVa, sPVb, sKa, sKb, sVa, sVb = 35, 36, 37, 38, 39, 40
sNKa, sNKb, sNVa, sNVb = 41, 42, 43, 50
sD0, sD1, sD2, sD3, sD4 = 51, 52, 53, 54, 55
sForce, sFloor, sFirst, sRet = 44, 46, 47, 48
sMask = 56
sT0, sT1, sT2, sT3 = 57, 58, 59, 60
sWhi = 61
sWSB = 62
sStamp = 64
sXB = 96

vK, vK9, vV = 20, 24, 28
vDKV, vDWQ, vDWO = 36, 37, 38
vLane16 = 39
vDX = 40
vChk = 42
vP9W = 43
vTmp = 44
vNegM = 52
vP = 64
vP9o = 80
vP9 = 84
vS = 92
vS9 = 124
vO = 128
vW = 16
vXR = 14
aQ = 0
aO9 = 96
aL = 112
aOnes = 124
aKB, NKB = 128, 10
aVB, NVB = 168, 16

P = Prog()
E = P.emit
stubs = []
nstamp = [0]
cyc = [0]


def stamp(cond=True):
    if STAMP and cond and nstamp[0] < 8:
        E("s_memrealtime s[%d:%d]" % (sStamp + 2 * nstamp[0], sStamp + 2 * nstamp[0] + 1))
        E("s_waitcnt lgkmcnt(0)")
        nstamp[0] += 1


def cstamp(on):
    if STAMP and on:
        E("s_memtime s[%d:%d]" % (80 + 2 * cyc[0], 81 + 2 * cyc[0]))
        E("s_waitcnt lgkmcnt(0)")
        cyc[0] += 1


class Item:
    def __init__(self, text, earliest=-1, deadline=BIG, tag=None, cost=None):
        self.text, self.earliest, self.deadline, self.tag = text, earliest, deadline, tag
        if callable(text):
            self.cost = cost or 1
        else:
            self.cost = cost if cost is not None else sum(Ins(l.strip()).cost for l in text.split("\n") if l.strip())

    def emit(self):
        if callable(self.text):
            self.text()
        else:
            E(self.text, tag=self.tag)


def run_phase(mf, queues, name=""):
    qs = [list(q) for q in queues]
    tokens = [0]
    over = [0]

    def fill(g):
        while True:
            best = None
            for qi, q in enumerate(qs):
                if q and q[0].earliest <= g:
                    forced = q[0].deadline <= g
                    if forced or q[0].cost <= tokens[0]:
                        key = (0 if forced else 1, q[0].deadline, qi)
                        if best is None or key < best[0]:
                            best = (key, qi)
            if best is None:
                break
            it = qs[best[1]].pop(0)
            w0 = P.nwaits
            it.emit()
            tokens[0] -= it.cost + (P.nwaits - w0)

    tokens[0] = 0
    fill(-1)
    tokens[0] = 0
    for g, m in enumerate(mf):
        w0 = P.nwaits
        for t in m.get("pre", []):
            t() if callable(t) else E(t)
        if m.get("waitfor") and P._need(P.dsq, Ins(m["text"]).src) >= 0:
            P.wait_ds_regs(m["waitfor"] | Ins(m["text"]).src)
        E(m["text"])
        tokens[0] = min(CAP, tokens[0] + 2 - (P.nwaits - w0))
        if tokens[0] < -2:
            over[0] += -2 - tokens[0]
            tokens[0] = -2
        fill(g)
    left = sum(it.cost for q in qs for it in q)
    for q in qs:
        for it in q:
            it.emit()
    if OPT.get("v"):
        sys.stderr.write("phase %s: %d mfma, overflow %d, leftover %d units\n" % (name, len(mf), over[0], left))


areg_set = lambda n, k=4: {("a", n + i) for i in range(k)}
mfma = lambda d, a, b, c: "v_mfma_f32_16x16x32_bf16 %s, %s, %s, %s" % (d, a, b, c)


class Frags:
    def __init__(self, pool, npool, tr, lead):
        self.pool, self.n, self.tr, self.lead = pool, npool, tr, lead
        self.fr = []
        self.first = []

    def new(self, mf, areg, off, before=(), after=()):
        b = self.pool + 4 * (len(self.fr) % self.n)
        self.fr.append((b, areg, off, list(before), list(after)))
        self.first.append(len(mf))
        return b

    def texts(self, f):
        b, areg, off, before, after = self.fr[f]
        t = list(before)
        if self.tr:
            t.append("ds_read_b64_tr_b16 %s, v%d offset:%d" % (ar(b, 2), areg, off))
            t.append("ds_read_b64_tr_b16 %s, v%d offset:%d" % (ar(b + 2, 2), areg, off + 2048))
        else:
            t.append("ds_read_b128 %s, v%d offset:%d" % (ar(b), areg, off))
        return t + after

    def pair_waits(self, mf):
        for f in range(0, len(self.fr) - 1, 2):
            mf[self.first[f]]["waitfor"] = areg_set(self.fr[f + 1][0])

    def items(self, skip):
        out = []
        for f in range(skip, len(self.fr)):
            e = -1 if f < self.lead else self.first[f - self.lead]
            d = -1 if f < self.lead else self.first[min(f - self.lead + 2, f)]
            for t in self.texts(f):
                out.append(Item(t, e, d))
        return out

    def head_items(self, nmf, step, earliest_min=-1):
        out = []
        for f in range(self.lead):
            e = max(earliest_min, nmf - 1 - (self.lead - f) * step)
            for t in self.texts(f):
                out.append(Item(t, e, min(nmf - 1, e + 2 * step)))
        return out


def m0set(slot):
    if isinstance(slot, tuple):
        return "s_add_u32 m0, s%d, %d" % (sW4K, slot[1])
    return "s_add_u32 m0, s%d, s%d" % (sW4K, slot)


def dma_kv(which, slot, tag):
    s_srd, s_off = (SRD_K, sOffK) if which == "K" else (SRD_V, sOffV)
    res = [m0set(slot)]
    for m in range(4):
        res.append("buffer_load_dwordx4 v%d, %s, s%d offen offset:%d %s lds" % (vDKV, srd(s_srd), s_off, m * 1024, NTK if which == "K" else NTV))
    res.append("s_add_u32 s%d, s%d, %d" % (s_off, s_off, SLOT))
    return [(r, tag) for r in res]


def dma_wq(s, slot, tag):
    res = [(m0set(slot), tag)]
    for m in range(4):
        so = (32 * s + 16 * (m & 1) + 4 * (m >> 1)) * 8192 - m * 1024
        res.append(("s_mov_b32 s%d, %d\nbuffer_load_dwordx4 v%d, %s, s%d offen offset:%d %s lds"
                    % (sTmpO, so, vDWQ, srd(SRD_WQ), sTmpO, m * 1024, WNT), tag))
    return res


def dma_wo(q, slot, tag):
    H, s = q >> 3, q & 7
    res = [(m0set(slot), tag)]
    for m in range(4):
        so = (32 * s + 8 * m) * 896 + H * 512 - m * 1024
        res.append(("s_mov_b32 s%d, %d\nbuffer_load_dwordx4 v%d, %s, s%d offen offset:%d %s lds"
                    % (sTmpO, so, vDWO, srd(SRD_WO), sTmpO, m * 1024, WNT), tag))
    return res


def dma_x(p, tag):
    res = []
    buf = (p & 1) * 6144
    for n in range(6):
        t = ""
        if n == 0:
            t += "s_add_u32 m0, s%d, %d\n" % (sXB, buf)
        if n == 4:
            t += "s_add_u32 m0, s%d, %d\n" % (sXB, buf + 4096)
        if n < 4:
            t += "s_add_u32 s%d, s%d, %d\n" % (sTmpO, sXw, 8 * n * 896 + 128 * p - 1024 * n)
            imm = 1024 * n
        else:
            t += "s_mov_b32 s%d, %d\n" % (sTmpO, (128 + 8 * (n - 4)) * 896 + 128 * p - 1024 * (n - 4))
            imm = 1024 * (n - 4)
        t += "buffer_load_dwordx4 v%d, %s, s%d offen offset:%d %s lds" % (vDX + (n & 1), srd(SRD_X), sTmpO, imm, WNT)
        res.append((t, tag))
    return res


def spread(pieces, start, step):
    out = []
    k = 0
    for (t, tag) in pieces:
        e = start + k * step
        out.append(Item(t, e, e + step, tag))
        if "buffer_load" in t:
            k += 1
    return out


def inc_slot(dst, src):
    return "s_add_u32 s%d, s%d, %d\ns_cmp_eq_u32 s%d, %d\ns_cselect_b32 s%d, 0, s%d" % (dst, src, SLOT, dst, RING, dst, dst)


def softmax_items(regs_S, regs_P, earliest, deadline, bank):
    t = vTmp + 4 * bank
    its = [Item("v_exp_f32 v%d, v%d" % (t + r, regs_S + r), earliest, deadline) for r in range(4)]
    its.append(Item("v_cvt_pk_bf16_f32 v%d, v%d, v%d" % (regs_P, t, t + 1), earliest, deadline))
    its.append(Item("v_cvt_pk_bf16_f32 v%d, v%d, v%d" % (regs_P + 1, t + 2, t + 3), earliest, deadline))
    return its


def check_items(base, earliest, deadline):
    x = vChk
    return [Item("v_or3_b32 v%d, v%d, v%d, v%d" % (x, base, base + 1, base + 2), earliest, deadline),
            Item("v_or3_b32 v%d, v%d, v%d, v%d" % (x, x, base + 3, base + 4), earliest, deadline),
            Item("v_or3_b32 v%d, v%d, v%d, v%d" % (x, x, base + 5, base + 6), earliest, deadline),
            Item("v_bitop3_b32 v%d, v%d, v%d, s%d bitop3:0xa8" % (x, x, base + 7, sMask), earliest, deadline),
            Item("v_cmp_ne_u32 vcc, 0, v%d" % x, earliest, deadline)]


nchk = [0]


def check_branch(sub, force):
    k = nchk[0]
    nchk[0] += 1
    t = ""
    if force:
        t += "s_or_b64 vcc, vcc, s[%d:%d]\n" % (sForce, sForce + 1)
    t += "s_cbranch_vccnz L_rare%d\nL_back%d:" % (k, k)
    stubs.append("L_rare%d:\ns_call_b64 s[%d:%d], %s\ns_branch L_back%d" % (k, sRet, sRet + 1, sub, k))
    return t


S_ = lambda kt, T: vS + 8 * kt + 4 * T
P_ = lambda s, T: vP + 8 * s + 4 * T
Q_ = lambda T, s: aQ + 32 * T + 4 * s
O_ = lambda T, t: vO + 64 * T + 4 * t
SPECIAL = {6: 0, 7: 1, 14: 2, 15: 3}
vadd = lambda r, s: "v_add_u32 v%d, s%d, v%d" % (r, s, r)


def build_qk():
    fr = Frags(aKB, NKB, False, LEAD_K)
    mf = []
    for s in range(8):
        b9 = fr.new(mf, vK9 + (s & 3), (s >> 2) * 256, after=[vadd(vK9 + (s & 3), sD2)] if s >= 4 else [])
        mf.append(dict(text=mfma(vr(vS9), ar(b9), ar(Q_(2, s)), vr(vNegM + 8) if s == 0 else vr(vS9))))
        b = fr.new(mf, vK + (s & 3), (s >> 2) * 256)
        for T in range(2):
            mf.append(dict(text=mfma(vr(S_(0, T)), ar(b), ar(Q_(T, s)), vr(vNegM + 4 * T) if s == 0 else vr(S_(0, T)))))
    end_kt = {0: len(mf) - 1}
    for kt in range(1, 4):
        for s in range(8):
            aft = []
            if s >= 4 and kt == 1:
                aft = [vadd(vK + (s & 3), sD0)]
            if s >= 4 and kt == 3:
                aft = [vadd(vK + (s & 3), sD1)]
            b = fr.new(mf, vK + (s & 3), (kt & 1) * 2048 + (s >> 2) * 256, after=aft)
            for T in range(2):
                mf.append(dict(text=mfma(vr(S_(kt, T)), ar(b), ar(Q_(T, s)), vr(vNegM + 4 * T) if s == 0 else vr(S_(kt, T)))))
        end_kt[kt] = len(mf) - 1
    fr.pair_waits(mf)
    return fr, mf, end_kt


def build_pv():
    fr = Frags(aVB, NVB, True, LEAD_V)
    mf = []
    chk9_at = s1_at = None
    for s in range(2):
        if s == 1:
            s1_at = len(mf)
        for T in range(2):
            mf.append(dict(text=mfma(ar(aL + 4 * T), ar(aOnes), vr(P_(s, T)), ar(aL + 4 * T))))
        for t in range(16):
            aft = [vadd(vV + (t & 7), sD3 if s == 0 else sD4)] if t >= 8 else []
            b = fr.new(mf, vV + (t & 7), (t >> 3) * 256, after=aft)
            for T in range(2):
                mf.append(dict(text=mfma(vr(O_(T, t)), ar(b), vr(P_(s, T)), vr(O_(T, t)))))
            if t in SPECIAL:
                if chk9_at is None:
                    chk9_at = len(mf)
                o9 = aO9 + 4 * SPECIAL[t]
                mf.append(dict(text=mfma(ar(o9), ar(b), vr(vP9 + 4 * s), ar(o9))))
            if t == 8:
                mf.append(dict(text=mfma(ar(aL + 8), ar(aOnes), vr(vP9 + 4 * s), ar(aL + 8))))
    fr.pair_waits(mf)
    return fr, mf, chk9_at, s1_at


def scalar_next():
    return [inc_slot(sNKa, sVb), inc_slot(sNKb, sNKa),
            "s_sub_u32 s%d, s%d, s%d\ns_sub_u32 s%d, s%d, s%d" % (sT0, sNKa, sKa, sT1, sNKb, sKb),
            "s_cmp_eq_u32 s%d, 0\ns_cselect_b32 s%d, s%d, s%d" % (sWhi, sD2, sT0, sT1),
            "s_sub_u32 s%d, s%d, s%d" % (sD0, sKb, sKa),
            "s_sub_u32 s%d, s%d, s%d" % (sD1, sNKa, sKb),
            inc_slot(sNVa, sNKb), inc_slot(sNVb, sNVa),
            "s_sub_u32 s%d, s%d, s%d" % (sD3, sVb, sVa),
            "s_sub_u32 s%d, s%d, s%d" % (sD4, sNVa, sVb)]


def block(site1, site2, vm1, vm2, last=False, cs=False):
    cstamp(cs)
    E("s_waitcnt vmcnt(%d)" % vm1)
    E("s_barrier")
    cstamp(cs)
    fr, mf, end_kt = build_qk()
    pv_fr, pv_mf, chk9_at, s1_at = build_pv()
    n = len(mf)
    rq = fr.items(LEAD_K) + pv_fr.head_items(n, 2, fr.first[-1] - 2 * LEAD_K + 2)
    dq = spread(site1, 0, 4)
    vq = []
    e9 = 21 + 4
    vq += softmax_items(vS9, vP9o, e9, BIG, 0)
    vq.append(Item("ds_write_b64 v%d, v[%d:%d]" % (vP9W, vP9o, vP9o + 1), e9, BIG))
    bank = 1
    for kt in range(3):
        for T in range(2):
            vq += softmax_items(S_(kt, T), P_(kt >> 1, T) + 2 * (kt & 1), end_kt[kt] + 4, BIG, bank)
            bank ^= 1
        if kt == 1:
            vq += check_items(vP, end_kt[kt] + 4, BIG)
    run_phase(mf, [rq, dq, vq], "qk")
    E(check_branch("L_fix", True))
    cstamp(cs)
    E("s_waitcnt vmcnt(%d)" % vm2)
    assert not any(d == set() for (_, d) in P.dsq), "P9 write must have retired"
    E("s_barrier")
    cstamp(cs)
    mf = pv_mf
    n = len(mf)
    mf[chk9_at]["pre"] = [lambda: E(check_branch("L_fix9", True))]
    mf[s1_at]["pre"] = [lambda: E(check_branch("L_fix", False))]
    rq = [Item("ds_read_b128 %s, v%d offset:%d" % (vr(vP9), vLane16, LDS_P9 - LB), -1, -1),
          Item("ds_read_b128 %s, v%d offset:%d" % (vr(vP9 + 4), vLane16, LDS_P9 - LB + 1024), -1, -1)]
    rq += pv_fr.items(LEAD_V)
    if not last:
        nfr, _, _ = build_qk()
        rq += nfr.head_items(n, 2, pv_fr.first[-1] - 2 * LEAD_V + 2)
    dq = spread(site2, 0, 4)
    vq = check_items(vP9, 5, chk9_at - 2)
    bank = 0
    for T in range(2):
        vq += softmax_items(S_(3, T), P_(1, T) + 2, 0, s1_at - 8, bank)
        bank ^= 1
    vq += check_items(vP + 8, chk9_at, s1_at - 2)
    sc = ["s_mov_b32 s%d, s%d" % (a, b_) for a, b_ in
          ((sPVa, sVa), (sPVb, sVb), (sKa, sNKa), (sKb, sNKb), (sVa, sNVa), (sVb, sNVb))]
    sc.append("s_mov_b64 s[%d:%d], 0\ns_mov_b32 s%d, 0\ns_mov_b32 s%d, 0" % (sForce, sForce + 1, sFloor, sFirst))
    nx = scalar_next()
    lastadd = pv_fr.first[len(pv_fr.fr) - 1 - LEAD_V + 2]
    sq = [Item(t, max(s1_at + 1, 34), BIG) for t in sc + nx[:8]] + [Item(t, lastadd + 1, BIG) for t in nx[8:]]
    run_phase(mf, [rq, dq, vq, sq], "pv")
    cstamp(cs)


E("%s:" % KN)
E("s_cmp_ge_u32 s2, 256\ns_cbranch_scc1 L_end")
stamp()
E("s_and_b32 s%d, s2, 7" % sT0)
E("s_lshr_b32 s%d, s2, 3" % sT1)
E("s_lshr_b32 s96, s%d, 4" % sT1)
E("s_lshr_b32 s97, s%d, 1\ns_and_b32 s97, s97, 7" % sT1)
E("s_and_b32 s98, s%d, 1\ns_lshl_b32 s99, s%d, 1\ns_add_u32 s98, s98, s99" % (sT1, sT0))
E("s_mul_i32 s99, s96, 40")
E("s_add_u32 s0, s0, s99\ns_addc_u32 s1, s1, 0")
E("s_load_dwordx2 s[4:5], s[0:1], 0")
E("s_load_dwordx2 s[8:9], s[0:1], 24")
E("s_load_dwordx2 s[12:13], s[0:1], 8")
E("s_load_dwordx2 s[16:17], s[0:1], 16")
E("s_load_dwordx2 s[20:21], s[0:1], 32")
E("s_sub_u32 s0, s0, s99\ns_subb_u32 s1, s1, 0")
E("s_load_dwordx2 s[24:25], s[0:1], 96")
E("v_lshrrev_b32 v1, 6, v0")
E("v_and_b32 v2, 63, v0")
E("v_readfirstlane_b32 s%d, v1" % sW)
E("v_lshrrev_b32 v3, 5, v2")
E("v_and_b32 v4, 31, v2")
E("v_lshl_add_u32 v5, v1, 1, v3")
E("v_lshlrev_b32 v6, 1, v5\nv_xor_b32 v6, v6, v4\nv_lshlrev_b32 v6, 4, v6")
E("v_lshl_add_u32 v7, v1, 3, v3")
E("v_lshl_add_u32 v%d, v7, 9, v6" % vDKV)
E("v_and_b32 v7, 2, v1\nv_lshlrev_b32 v7, 2, v7")
E("v_and_b32 v8, 1, v1\nv_lshl_add_u32 v7, v8, 1, v7\nv_add_u32 v7, v7, v3")
E("v_lshl_add_u32 v%d, v7, 13, v6" % vDWQ)
E("v_mul_u32_u24 v7, 896, v5\nv_add_u32 v%d, v7, v6" % vDWO)
E("v_and_b32 v8, 15, v2")
E("v_lshrrev_b32 v9, 4, v2")
E("v_lshrrev_b32 v10, 3, v2\nv_mul_u32_u24 v10, 896, v10\nv_and_b32 v11, 7, v2\nv_xor_b32 v11, v11, v9")
E("v_lshl_add_u32 v%d, v11, 4, v10\nv_xor_b32 v11, 4, v11\nv_lshl_add_u32 v%d, v11, 4, v10" % (vDX, vDX + 1))
E("s_lshl_b32 s%d, s%d, 12" % (sW4K, sW))
E("s_lshr_b32 s%d, s%d, 1" % (sWhi, sW))
E("s_mul_i32 s%d, s%d, %d" % (sXw, sW, 32 * 896))
E("s_mul_i32 s100, s97, 129024")
E("s_lshl_b32 s101, s98, 9")
E("s_waitcnt lgkmcnt(0)")
E("s_add_u32 s4, s4, s100\ns_addc_u32 s5, s5, 0\ns_mov_b32 s6, 129024\ns_mov_b32 s7, 0x20000")
E("s_add_u32 s8, s8, s101\ns_addc_u32 s9, s9, 0\ns_sub_u32 s10, %d, s101\ns_mov_b32 s11, 0x20000" % (448 * 8192))
E("s_lshl_b32 s99, s97, 4\ns_add_u32 s99, s99, s98")
E("s_xor_b32 s100, s96, 1\ns_lshr_b32 s99, s99, s100")
E("s_lshl_b32 s99, s99, 19")
E("s_add_u32 s12, s12, s99\ns_addc_u32 s13, s13, 0\ns_mov_b32 s14, 0x80000\ns_mov_b32 s15, 0x20000")
E("s_add_u32 s16, s16, s99\ns_addc_u32 s17, s17, 0\ns_mov_b32 s18, 0x80000\ns_mov_b32 s19, 0x20000")
E("s_mul_i32 s99, s98, %d" % (256 * 896))
E("s_add_u32 s20, s20, s99\ns_addc_u32 s21, s21, 0\ns_sub_u32 s22, %d, s99\ns_mov_b32 s23, 0x20000" % (4096 * 896))
if STAMP:
    E("s_lshl_b32 s99, s2, 8\ns_add_u32 s99, s99, 0x4000000\ns_add_u32 s%d, s24, s99\ns_addc_u32 s%d, s25, 0" % (sWSB, sWSB + 1))
E("s_lshl_b32 s99, s96, 3\ns_add_u32 s99, s99, s97\ns_lshl_b32 s99, s99, 4\ns_add_u32 s99, s99, s98")
E("s_mov_b32 s3, s99")
E("s_mul_i32 s99, s99, 129024")
E("s_add_u32 s24, s24, s99\ns_addc_u32 s25, s25, 0\ns_mov_b32 s26, 129024\ns_mov_b32 s27, 0x20000")
E("s_mul_i32 s%d, s%d, 12288\ns_add_u32 s%d, s%d, %d" % (sXB, sW, sXB, sXB, LDS_XB))

wslot = lambda N: (N % 7) * SLOT
kvslot = lambda n: (n % NSLOT) * SLOT


def emit_pieces(pieces):
    for (t, tag) in pieces:
        E(t, tag=tag)


emit_pieces(dma_x(0, ("X", 0)))
emit_pieces(dma_wq(0, ("c", wslot(0)), ("W", 0)))
emit_pieces(dma_wq(1, ("c", wslot(1)), ("W", 1)))
emit_pieces(dma_x(1, ("X", 1)))
emit_pieces(dma_wq(2, ("c", wslot(2)), ("W", 2)))
emit_pieces(dma_wq(3, ("c", wslot(3)), ("W", 3)))
E("s_mov_b32 s%d, 0\ns_mov_b32 s%d, 0" % (sOffK, sOffV))


def rho(dst, i, t1):
    E("v_lshrrev_b32 v%d, 1, v%d\nv_and_b32 v%d, 3, v%d\nv_lshlrev_b32 v%d, 3, v%d" % (dst, i, dst, dst, dst, dst))
    E("v_lshrrev_b32 v%d, 3, v%d\nv_lshl_add_u32 v%d, v%d, 1, v%d" % (t1, i, dst, t1, dst))
    E("v_and_b32 v%d, 1, v%d\nv_add_u32 v%d, v%d, v%d" % (t1, i, dst, dst, t1))


E("v_lshrrev_b32 v10, 1, v8\nv_xor_b32 v10, v10, v9\nv_lshlrev_b32 v11, 7, v8\nv_add_u32 v11, s%d, v11" % sXB)
E("v_lshl_add_u32 v%d, v10, 4, v11\nv_xor_b32 v10, 4, v10\nv_lshl_add_u32 v%d, v10, 4, v11" % (vXR, vXR + 1))
E("v_lshrrev_b32 v13, 2, v2")
rho(10, 13, 11)
E("v_and_b32 v11, 7, v13")
E("v_and_b32 v12, 3, v2")
E("v_lshlrev_b32 v3, 1, v11\nv_lshlrev_b32 v4, 2, v1\nv_xor_b32 v3, v3, v4\nv_xor_b32 v3, v3, v12")
for b in range(4):
    E("v_xor_b32 v4, %d, v3\nv_lshlrev_b32 v4, 4, v4\nv_lshl_add_u32 v%d, v10, 9, v4" % (4 * b, vW + b))
E("v_lshlrev_b32 v3, 1, v1\nv_xor_b32 v3, v3, v11")
for b in range(8):
    E("v_xor_b32 v4, %d, v3\nv_lshlrev_b32 v4, 5, v4\nv_lshl_add_u32 v4, v12, 3, v4" % b)
    E("v_lshl_add_u32 v4, v10, 9, v4\nv_add_u32 v%d, %d, v4" % (vV + b, kvslot(2)))
rho(10, 8, 11)
E("v_and_b32 v11, 7, v8\nv_lshlrev_b32 v11, 1, v11\nv_lshlrev_b32 v4, 2, v1\nv_xor_b32 v11, v11, v4\nv_xor_b32 v11, v11, v9")
for b in range(4):
    E("v_xor_b32 v4, %d, v11\nv_lshlrev_b32 v4, 4, v4\nv_lshl_add_u32 v%d, v10, 9, v4" % (4 * b, vK + b))
E("s_and_b32 s99, s%d, 1\ns_lshl_b32 s99, s99, 11" % sW)
E("s_lshl_b32 s100, s%d, 14\ns_add_u32 s99, s99, s100" % sWhi)
for b in range(4):
    E("v_add_u32 v%d, s99, v%d" % (vK9 + b, vK + b))
E("v_lshlrev_b32 v%d, 4, v2\nv_add_u32 v%d, %d, v%d" % (vLane16, vLane16, LB, vLane16))
E("s_lshl_b32 s99, s%d, 10\ns_and_b32 s100, s%d, 1\ns_lshl_b32 s100, s100, 3\ns_add_u32 s99, s99, s100\ns_add_u32 s99, s99, %d"
  % (sWhi, sW, LDS_P9 - LB))
E("v_add_u32 v%d, s99, v%d" % (vP9W, vLane16))
E("s_mov_b32 s%d, 0x40004000" % sMask)
for N in (4, 5, 6):
    emit_pieces(dma_wq(N, ("c", wslot(N)), ("W", N)))
stamp(not FUSE)

QA = lambda T, sd, v: (64, 128)[T] + 4 * (2 * sd + v)
QA9 = lambda sd, v: 48 + 4 * (2 * (sd >> 2) + v)
X_ = lambda T, s: 56 * T + 4 * s


def xread_texts(p):
    out = []
    for s in (2 * p, 2 * p + 1):
        for T in range(3):
            out.append("ds_read_b128 %s, v%d offset:%d" % (ar(X_(T, s)), vXR + (s & 1), (p & 1) * 6144 + T * 2048))
    return out


def vmwait(tags):
    c = P.vm_count_after(tags)
    if c is not None:
        E("s_waitcnt vmcnt(%d)" % min(63, c))


def build_qp(p):
    fr = Frags(aVB, NVB, True, LEAD_V)
    mf = []
    last = {}
    for s in (2 * p, 2 * p + 1):
        for sd in range(8):
            for v in range(2):
                aft = []
                if sd >= 4 and v == 1 and s < 13:
                    aft = ["v_add_u32 v%d, 0x%x, v%d" % (vW + (sd & 3), (wslot(s + 1) - wslot(s)) & 0xffffffff, vW + (sd & 3))]
                b = fr.new(mf, vW + (sd & 3), (sd >> 2) * 256 + 8 * v, after=aft)
                for T in range(2):
                    mf.append(dict(text=mfma(vr(QA(T, sd, v)), ar(b), ar(X_(T, s)), "0" if s == 0 else vr(QA(T, sd, v)))))
                if (sd & 3) == 3:
                    mf.append(dict(text=mfma(vr(QA9(sd, v)), ar(b), ar(X_(2, s)), "0" if s == 0 else vr(QA9(sd, v)))))
                last[(sd, v)] = len(mf) - 1
    fr.pair_waits(mf)
    return fr, mf, last


stream = [("W", N) for N in range(7, 14)] + [("KV", n) for n in range(7)]


def stream_pieces(k):
    kind, n = stream[k]
    if kind == "W":
        return dma_wq(n, ("c", wslot(n)), ("W", n))
    return dma_kv("K" if (n & 3) < 2 else "V", ("c", kvslot(n)), ("KV", n))


vmwait([("X", 0)])
for t in xread_texts(0):
    E(t)
vmwait([("W", 3)])
E("s_barrier")
zero_q = ["v_mov_b32 v%d, 0" % r for r in range(192, 256)] + \
         ["v_mov_b32 v%d, 0" % vChk]
for p in range(7):
    fr, mf, last = build_qp(p)
    n = len(mf)
    if p > 0:
        vmwait([("W", min(2 * p + 3, 13))] + ([("KV", 1)] if p == 6 and False else []))
        E("s_barrier")
    rq = fr.items(0 if p == 0 else LEAD_V)
    if p < 6:
        nfr, _, _ = build_qp(p + 1)
        rq += nfr.head_items(n, 2, fr.first[-1] - 2 * LEAD_V + 2)
    dq = []
    xq = []
    if p == 0:
        xq += [Item(lambda: P.wait_ds_regs(areg_set(X_(2, 1))), 0, 0)]
        xq += spread(dma_x(2, ("X", 2)), 1, 3)
    else:
        dq += spread(stream_pieces(2 * p - 2) + stream_pieces(2 * p - 1), 0, 4)
    if p + 1 < 7:
        y = 34
        xq += [Item(lambda p=p: vmwait([("X", p + 1)]), y, y)]
        xq += [Item(t, y, y + 8) for t in xread_texts(p + 1)]
        if p + 3 < 7:
            xq += [Item(lambda p=p: P.wait_ds_regs(areg_set(X_(2, 2 * p + 3))), y + 14, y + 14)]
            xq += spread(dma_x(p + 3, ("X", p + 3)), y + 15, 3)
    zq = []
    if p in (1, 2, 3, 4):
        zq = [Item(t, 0, BIG) for t in zero_q[16 * (p - 1):16 * p]]
    run_phase(mf, [rq, dq, xq, zq], "qp%d" % p)
stamp()
E("s_mov_b32 s100, %s\ns_mov_b32 s101, %s" % (fbits(CSCALE), fbits(CSCALE)))
E("s_xor_b32 s99, s%d, 3\ns_lshl_b32 s99, s99, 10\ns_add_u32 s99, s99, %d" % (sW, LDS_O9 - LB))
E("v_add_u32 v2, s99, v%d" % vLane16)
for k in range(8):
    E("v_pk_mul_f32 %s, %s, s[100:101]" % (vr(48 + 2 * k, 2), vr(48 + 2 * k, 2)))
for k in range(8):
    E("v_cvt_pk_bf16_f32 v%d, v%d, v%d" % (4 + k, 48 + 2 * k, 49 + 2 * k))
E("ds_write_b128 v2, v[4:7]")
E("ds_write_b128 v2, v[8:11] offset:4096")
vmwait([("KV", 1)])
E("s_waitcnt lgkmcnt(0)")
E("s_barrier")
emit_pieces(stream_pieces(12))
for b in range(4):
    E("s_xor_b32 s99, s%d, %d\ns_lshl_b32 s99, s99, 10\ns_add_u32 s99, s99, %d" % (sW, b, LDS_O9 - LB))
    E("v_add_u32 v2, s99, v%d" % vLane16)
    E("ds_read_b128 %s, v2" % ar(Q_(2, b)))
    E("ds_read_b128 %s, v2 offset:4096" % ar(Q_(2, 4 + b)))
emit_pieces(stream_pieces(13))
for T in range(2):
    for sd in range(8):
        a = QA(T, sd, 0)
        for j in range(4):
            E("v_pk_mul_f32 %s, %s, s[100:101]" % (vr(a + 2 * j, 2), vr(a + 2 * j, 2)))
        for j in range(4):
            E("v_cvt_pk_bf16_f32 v%d, v%d, v%d" % (vTmp + j, a + 2 * j, a + 2 * j + 1))
        for j in range(4):
            E("v_accvgpr_write_b32 a%d, v%d" % (Q_(T, sd) + j, vTmp + j))
        if T == 1:
            for j in range(8):
                E("v_mov_b32 v%d, 0" % (a + j))
for j in range(aO9, aL + 12):
    E("v_accvgpr_write_b32 a%d, 0" % j)
E("v_mov_b32 v%d, 0x3f803f80" % vTmp)
for j in range(4):
    E("v_accvgpr_write_b32 a%d, v%d" % (aOnes + j, vTmp))
for j in range(12):
    E("v_mov_b32 v%d, 0" % (vNegM + j))
E("s_mov_b64 s[%d:%d], -1\ns_mov_b32 s%d, 0xff800000\ns_mov_b32 s%d, 1" % (sForce, sForce + 1, sFloor, sFirst))
for r, n in ((sPVa, 7), (sPVb, 8), (sKa, 0), (sKb, 1), (sVa, 2), (sVb, 3)):
    E("s_mov_b32 s%d, %d" % (r, kvslot(n)))
for t in scalar_next():
    E(t)
E("s_mov_b32 s%d, 0" % sLoop)
E("s_waitcnt lgkmcnt(0)")
stamp()
fr0, _, _ = build_qk()
for f in range(LEAD_K):
    for t in fr0.texts(f):
        E(t)

entry_q = [set(d) for (_, d) in P.dsq]
E("L_loop:")
block(dma_kv("V", sPVa, "a") + dma_kv("K", sPVb, "b"), dma_kv("K", sKa, "c") + dma_kv("V", sKb, "d"), VMX, VMX)
assert [set(d) for (_, d) in P.dsq][-len(entry_q):] == entry_q and len(P.dsq) == len(entry_q), (P.dsq, entry_q)
E("s_add_u32 s%d, s%d, 1\ns_cmp_lt_u32 s%d, 14\ns_cbranch_scc1 L_loop" % (sLoop, sLoop, sLoop))
block(dma_kv("V", sPVa, "e") + dma_wo(0, sPVb, ("O", 0)), dma_wo(1, sKa, ("O", 1)) + dma_wo(2, sKb, ("O", 2)), 12, 12,
      cs=(STAMP == 2))
block(dma_wo(3, sPVa, ("O", 3)) + dma_wo(4, sPVb, ("O", 4)), dma_wo(5, sKa, ("O", 5)) + dma_wo(6, sKb, ("O", 6)), 12, 20,
      last=True)
stamp()

vOF = 64
OF_ = lambda T, s: vOF + 32 * T + 4 * s
aOF9 = 0
aA9 = 32
vRI = 2
vST = 8
vREL = vV
vABS = {0: 16, 1: 40, 2: 48, 3: 56}
vT9 = 24
acc_ = lambda T, t: vO + 64 * T + 4 * t
E("s_nop 7")
for T in range(3):
    E("v_accvgpr_read_b32 v%d, a%d" % (vRI + T, aL + 4 * T))
for k in range(16):
    E("v_accvgpr_read_b32 v%d, a%d" % (44 + k, aO9 + k))
for T in range(3):
    E("v_rcp_f32 v%d, v%d" % (vRI + T, vRI + T))
E("s_xor_b32 s99, s%d, 3\ns_lshl_b32 s99, s99, 10\ns_add_u32 s99, s99, %d" % (sW, LDS_O9 - LB))
E("v_add_u32 v5, s99, v%d" % vLane16)
for k in range(16):
    E("v_mul_f32 v%d, v%d, v%d" % (44 + k, vRI + 2, 44 + k))
for k in range(8):
    E("v_cvt_pk_bf16_f32 v%d, v%d, v%d" % (8 + k, 44 + 2 * k, 45 + 2 * k))
E("ds_write_b128 v5, v[8:11]")
E("ds_write_b128 v5, v[12:15] offset:4096")
for b in range(8):
    E("v_subrev_u32 v%d, s%d, v%d" % (vREL + b, sVa, vREL + b))


def conv_items(s, e=-1, d=BIG):
    its = []
    for T in range(2):
        a = O_(T, 2 * s)
        for j in range(8):
            its.append(Item("v_mul_f32 v%d, v%d, v%d" % (a + j, vRI + T, a + j), e, d))
        for j in range(4):
            its.append(Item("v_cvt_pk_bf16_f32 v%d, v%d, v%d" % (OF_(T, s) + j, a + 2 * j, a + 2 * j + 1), e, d))
    return its


woslot = lambda q: ((64 + q) % NSLOT) * SLOT


def wo_slot_sgpr(dst, ph, b):
    base = (64 + 4 * ph) % NSLOT
    t = "s_xor_b32 s%d, s%d, %d\ns_add_u32 s%d, s%d, %d\n" % (dst, sW, b, dst, dst, base)
    t += "s_cmp_ge_u32 s%d, %d\ns_cselect_b32 s%d, %d, 0\ns_sub_u32 s%d, s%d, s%d\n" % (dst, NSLOT, sT3, NSLOT, dst, dst, sT3)
    t += "s_lshl_b32 s%d, s%d, 14" % (dst, dst)
    return t


issue_plan = {0: [7, 8], 1: [9, 10, 11, 12], 2: [13, 14, 15], 3: []}
sSL = [41, 42, 43, 50]
for ph in range(4):
    H, a = ph >> 1, ph & 1
    ntile = 16 if H == 0 else 12
    pre = [wo_slot_sgpr(sSL[b], ph, b) for b in range(4)]
    for t in pre:
        E(t)
    c = P.vm_count_after([("O", 4 * ph + 3)])
    E("s_waitcnt lgkmcnt(0)" if c is None else "s_waitcnt vmcnt(%d) lgkmcnt(0)" % min(63, c))
    E("s_barrier")
    fr = Frags(aVB, NVB, True, LEAD_V)
    mf = []
    done_pair = {}
    order = [(b, t) for b in range(4) for t in range(ntile)] if a == 0 else \
            [(b, t) for kp in range(ntile // 2) for t in (2 * kp, 2 * kp + 1) for b in range(4)]
    seen = set()
    first_of_k = {}
    for (b, t) in order:
        sl = 4 * a + b
        areg = vABS[b] + (t & 7)
        bef = []
        if t < 8:
            bef = ["v_add_u32 v%d, s%d, v%d" % (areg, sSL[b], vREL + t)]
        elif H == 1:
            bef = ["v_xor_b32 v%d, s%d, v%d" % (areg, sT2, areg)]
        bb = fr.new(mf, areg, (t >> 3) * 256, before=bef)
        first_of_k.setdefault(b, len(mf))
        for T in range(2):
            mf.append(dict(text=mfma(vr(acc_(T, t)), ar(bb), vr(OF_(T, sl)), "0" if sl == 0 else vr(acc_(T, t)))))
        sp = SPECIAL.get(t) if (H == 0 or t < 8) else {10: 2, 11: 3}.get(t)
        if sp is not None:
            mf.append(dict(text=mfma(ar(aA9 + 4 * sp), ar(bb), ar(aOF9 + 4 * sl), "0" if sl == 0 else ar(aA9 + 4 * sp))))
        if a == 1 and b == 3 and (t & 1):
            done_pair[t >> 1] = len(mf) - 1
    fr.pair_waits(mf)
    n = len(mf)
    rq = fr.items(0)
    dq = []
    for q in issue_plan[ph]:
        dq += dma_wo(q, ("c", woslot(q)), ("O", q))
    dq = spread(dq, 0, 4)
    cq = []
    if ph == 0:
        nfirst = 3 * LEAD_V
        for it in rq[:nfirst]:
            it.emit()
        rq = rq[nfirst:]
        for b in range(4):
            E("s_xor_b32 s99, s%d, %d\ns_lshl_b32 s99, s99, 10\ns_add_u32 s99, s99, %d" % (sW, b, LDS_O9 - LB))
            E("v_add_u32 v5, s99, v%d" % vLane16)
            E("ds_read_b128 %s, v5" % ar(aOF9 + 4 * b))
            if b < 2:
                E("ds_read_b128 %s, v5 offset:4096" % ar(aOF9 + 16 + 4 * b))
            else:
                cq.append(b)
        for s in range(8):
            for it in conv_items(s):
                it.emit()
        for b in cq:
            E("s_xor_b32 s99, s%d, %d\ns_lshl_b32 s99, s99, 10\ns_add_u32 s99, s99, %d" % (sW, b, LDS_O9 - LB))
            E("v_add_u32 v5, s99, v%d" % vLane16)
            E("ds_read_b128 %s, v5 offset:4096" % ar(aOF9 + 16 + 4 * b))
        cq = []
        st = ["v_subrev_u32 v6, %d, v%d" % (LB, vLane16), "s_mul_i32 s100, s%d, %d" % (sW, 2 * 14336)]
        for b in range(4):
            st.append("s_xor_b32 s99, s%d, %d\ns_lshl_b32 s99, s99, 10\ns_add_u32 s99, s99, s100" % (sW, b))
            st.append("v_add_u32 v%d, s99, v6" % (vST + b))
        st.append("s_xor_b32 s99, s%d, 3\ns_lshl_b32 s99, s99, 10\ns_add_u32 s99, s99, %d" % (sW, 8 * 14336))
        st.append("v_add_u32 v%d, s99, v6" % (vST + 4))
        for b in range(2):
            st.append("s_and_b32 s99, s%d, 1\ns_xor_b32 s99, s99, %d\ns_lshl_b32 s99, s99, 10\ns_add_u32 s99, s99, s100" % (sW, b))
            st.append("v_add_u32 v%d, s99, v6" % (vST + 5 + b))
        st.append("s_and_b32 s99, s%d, 1\ns_xor_b32 s99, s99, 1\ns_lshl_b32 s99, s99, 10\ns_add_u32 s99, s99, %d" % (sW, 8 * 14336))
        st.append("s_lshl_b32 s100, s%d, 20\ns_add_u32 s99, s99, s100" % sWhi)
        st.append("v_add_u32 v%d, s99, v6" % (vST + 7))
        st.append("s_lshl_b32 s%d, s%d, 7" % (sT2, sWhi))
        cq = [Item(t, 40, BIG) for t in st]
    if a == 1:
        for kp in range(ntile // 2):
            e = done_pair[kp] + 5
            for T in range(2):
                a0 = acc_(T, 2 * kp)
                for j in range(4):
                    cq.append(Item("v_cvt_pk_bf16_f32 v%d, v%d, v%d" % (a0 + j, a0 + 2 * j, a0 + 2 * j + 1), e, BIG))
                if H == 1 and kp >= 4:
                    vb, so = vST + 5 + (kp - 4), (8 * H + 4) * 1024 + T * 14336
                else:
                    vb, so = vST + (kp & 3), (8 * H + (kp & 4)) * 1024 + T * 14336
                cq.append(Item("s_mov_b32 s%d, %d\nbuffer_store_dwordx4 %s, v%d, %s, s%d offen %s"
                               % (sT1, so, vr(a0), vb, srd(SRD_WS), sT1, STP), e, BIG, "st"))
            k9 = {3: 0, 7: 1}.get(kp) if H == 0 else {3: 0, 5: 1}.get(kp)
            if k9 is not None:
                stg = vT9
                for j in range(4):
                    cq.append(Item("v_accvgpr_read_b32 v6, a%d\nv_accvgpr_read_b32 v7, a%d\nv_cvt_pk_bf16_f32 v%d, v6, v7"
                                   % (aA9 + 8 * k9 + 2 * j, aA9 + 8 * k9 + 2 * j + 1, stg + j), e, BIG))
                if H == 1 and k9 == 1:
                    vb, so = vST + 7, 12 * 1024
                else:
                    vb, so = vST + 4, (8 * H + 4 * k9) * 1024
                cq.append(Item("s_mov_b32 s%d, %d\nbuffer_store_dwordx4 %s, v%d, %s, s%d offen %s"
                               % (sT1, so, vr(stg), vb, srd(SRD_WS), sT1, STP), e, BIG, "st"))
    run_phase(mf, [rq, dq, cq], "op%d" % ph)
    stamp(ph == (3 if FUSE else 1))

if FUSE:
    E("s_load_dwordx2 s[4:5], s[0:1], 96\ns_load_dwordx2 s[8:9], s[0:1], 80\ns_load_dwordx2 s[12:13], s[0:1], 88")
    E("v_mbcnt_lo_u32_b32 v2, -1, 0\nv_mbcnt_hi_u32_b32 v2, -1, v2")
    E("v_and_b32 v4, 15, v2\nv_lshrrev_b32 v5, 4, v2")
    E("s_mov_b32 s99, 129024\nv_mul_lo_u32 v16, s99, v5\nv_lshl_add_u32 v16, v4, 4, v16")
    E("v_mul_u32_u24 v17, 1792, v4\nv_and_b32 v6, 1, v5\nv_lshl_add_u32 v17, v6, 5, v17\nv_lshrrev_b32 v6, 1, v5\nv_lshl_add_u32 v17, v6, 3, v17")
    E("v_and_b32 v6, 1, v4\nv_lshlrev_b32 v6, 4, v6\nv_mov_b32 v7, 0x3f80\nv_lshlrev_b32 v7, v6, v7\nv_lshrrev_b32 v6, 1, v4")
    for r in range(4):
        E("v_cmp_eq_u32 vcc, %d, v6\nv_cndmask_b32 v%d, 0, v7, vcc" % (r, 20 + r))
        E("v_cmp_eq_u32 vcc, %d, v6\nv_cndmask_b32 v%d, 0, v7, vcc" % (4 + r, 40 + r))
    E("s_lshr_b32 s14, s3, 4\ns_and_b32 s15, s3, 15")
    E("s_waitcnt lgkmcnt(0)")
    E("s_mul_i32 s99, s14, %d\ns_add_u32 s4, s4, s99\ns_addc_u32 s5, s5, 0\ns_mov_b32 s6, %d\ns_mov_b32 s7, 0x20000" % (16 * 129024, 16 * 129024))
    E("s_mov_b32 s10, %d\ns_mov_b32 s11, 0x20000" % (8 * 144 * 896 * 2))
    E("s_and_b32 s16, s14, 7\ns_mul_i32 s16, s16, %d\ns_lshr_b32 s17, s14, 3\ns_mul_i32 s17, s17, 896\ns_add_u32 s16, s16, s17" % (144 * 1792))
    E("v_mov_b32 v18, %d" % LDS_MB)
    E("s_waitcnt vmcnt(0)")
    stamp()
    E("s_barrier")
    E("s_cmp_lg_u32 s%d, 0\ns_cbranch_scc1 L_join" % sW)
    E("s_mov_b64 exec, 1")
    E("s_lshl_b32 s17, s14, 4\nv_mov_b32 v8, s17\nv_mov_b32 v9, 1")
    E("global_atomic_add v10, v8, v9, s[12:13] sc0")
    E("s_lshl_b32 s18, 1, s15")
    E("s_waitcnt vmcnt(0)")
    E("v_readfirstlane_b32 s19, v10")
    E("s_and_b32 s20, s19, 0xffff\ns_cmp_eq_u32 s20, 15\ns_cbranch_scc0 L_spin0")
    E("s_lshr_b32 s19, s19, 16\ns_or_b32 s18, s18, s19\ns_branch L_pub")
    E("L_spin0:\ns_mov_b32 s21, 0")
    E("L_spin:")
    E("global_load_dword v10, v8, s[12:13] sc1")
    E("s_waitcnt vmcnt(0)")
    E("v_readfirstlane_b32 s19, v10")
    E("s_and_b32 s20, s19, 0xffff\ns_cmp_eq_u32 s20, 16\ns_cbranch_scc1 L_pub")
    E("s_add_u32 s21, s21, 1\ns_cmp_lt_u32 s21, 4000\ns_cbranch_scc1 L_spin")
    E("s_lshl_b32 s19, s18, 16\nv_mov_b32 v9, s19")
    E("global_atomic_or v10, v8, v9, s[12:13] sc0")
    E("s_waitcnt vmcnt(0)")
    E("v_readfirstlane_b32 s19, v10")
    E("s_and_b32 s20, s19, 0xffff\ns_cmp_eq_u32 s20, 16\ns_cselect_b32 s18, s18, 0")
    E("L_pub:")
    E("v_mov_b32 v9, s18\nds_write_b32 v18, v9\ns_waitcnt lgkmcnt(0)")
    E("s_mov_b64 exec, -1")
    E("L_join:")
    E("s_barrier")
    E("ds_read_b32 v9, v18\ns_waitcnt lgkmcnt(0)")
    E("v_readfirstlane_b32 s18, v9")
    stamp()
    E("L_slice:")
    E("s_cmp_eq_u32 s18, 0\ns_cbranch_scc1 L_done")
    E("s_ff1_i32_b32 s19, s18\ns_sub_u32 s20, s18, 1\ns_and_b32 s18, s18, s20")
    E("s_lshl_b32 s19, s19, 2\ns_add_u32 s19, s19, s%d\ns_lshl_b32 s19, s19, 1" % sW)
    E("s_cmp_ge_u32 s19, 126\ns_cbranch_scc1 L_slice")
    E("s_lshl_b32 s20, s19, 10")
    for p in range(4):
        for u in range(2):
            for pc in range(4):
                E("buffer_load_dwordx4 %s, v16, s[4:7], s20 offen offset:%d sc1" % (vr(128 + 32 * p + 16 * u + 4 * pc), 1024 * u + 256 * pc))
        if p < 3:
            E("s_add_u32 s20, s20, %d" % (4 * 129024))
    for u in range(2):
        E("s_add_u32 s21, s19, %d\ns_mul_hi_u32 s22, s21, %d\ns_mul_i32 s23, s22, 14\ns_sub_u32 s23, s21, s23" % (u, (2 ** 32 + 13) // 14))
        E("s_mul_i32 s22, s22, %d\ns_lshl_b32 s23, s23, 6\ns_add_u32 s22, s22, s23\ns_add_u32 s%d, s22, s16" % (16 * 1792, 30 + u))
    for p in range(4):
        for u in range(2):
            for pc in range(4):
                d = 48 + 8 * u + 4 * (pc >> 1)
                E(mfma(vr(d), vr(20 if (pc & 1) == 0 else 40), vr(128 + 32 * p + 16 * u + 4 * pc), "0" if (p == 0 and (pc & 1) == 0) else vr(d)))
    for u in range(2):
        for k in range(2):
            d = 48 + 8 * u + 4 * k
            E("v_cvt_pk_bf16_f32 v%d, v%d, v%d\nv_cvt_pk_bf16_f32 v%d, v%d, v%d" % (d, d, d + 1, d + 1, d + 2, d + 3))
            E("buffer_store_dwordx2 v[%d:%d], v17, s[8:11], s%d offen offset:%d" % (d, d + 1, 30 + u, 16 * k))
    E("s_nop 1\ns_branch L_slice")
    E("L_done:")
if STAMP:
    stamp(not FUSE)
    E("s_waitcnt vmcnt(0)")
    stamp()
    E("v_mov_b32 v1, 0")
    E("v_cmp_eq_u32 vcc, 0, v0\ns_and_saveexec_b64 s[96:97], vcc\ns_cbranch_execz L_end")
    if STAMP == 4:
        E("s_load_dwordx2 s[98:99], s[0:1], 88\ns_waitcnt lgkmcnt(0)")
        E("s_not_b32 s100, s%d\nv_mov_b32 v2, s100\nglobal_atomic_umax v1, v2, s[98:99]" % sStamp)
        for k in range(8):
            E("v_mov_b32 v2, s%d\nglobal_atomic_umax v1, v2, s[98:99] offset:%d" % (sStamp + 2 * k, 4 + 4 * k))
        E("s_cmp_lg_u32 s2, 200\ns_cbranch_scc1 L_end")
        for k in range(7):
            E("s_sub_u32 s100, s%d, s%d\nv_mov_b32 v2, s100\nglobal_store_dword v1, v2, s[98:99] offset:%d" % (sStamp + 2 * k + 2, sStamp, 36 + 4 * k))
        E("s_branch L_end")
    for k in range(16):
        E("v_mov_b32 v2, s%d\nv_mov_b32 v3, s%d" % (sStamp + 2 * k, sStamp + 2 * k + 1))
        E("global_store_dwordx2 v1, v[2:3], s[%d:%d] offset:%d" % (sWSB, sWSB + 1, 8 * k))
        E("s_nop 1")
E("L_end:\ns_endpgm")
main_ins = P.ins

R = Prog()
F = R.emit
for s in stubs:
    F(s)


def xlane_max(F, reg, t1, t2):
    F("v_mbcnt_lo_u32_b32 v%d, -1, 0\nv_mbcnt_hi_u32_b32 v%d, -1, v%d" % (t1, t1, t1))
    for x in (16, 32):
        F("v_xor_b32 v%d, %d, v%d\nv_lshlrev_b32 v%d, 2, v%d" % (t2, x, t1, t2, t2))
        F("ds_bpermute_b32 v%d, v%d, v%d" % (t2, t2, reg))
        F("s_waitcnt lgkmcnt(0)")
        F("v_max_f32 v%d, v%d, v%d" % (reg, reg, t2))


F("L_fix:")
F("s_nop 15\ns_waitcnt lgkmcnt(0)")
F("s_mov_b32 s%d, %s" % (sT2, fbits(TOFF)))
for T in range(2):
    m = 2 + T
    regs = [S_(kt, T) + r for kt in range(4) for r in range(4)]
    F("v_max3_f32 v%d, v%d, v%d, v%d" % (m, regs[0], regs[1], regs[2]))
    for k in range(3, 15, 2):
        F("v_max3_f32 v%d, v%d, v%d, v%d" % (m, m, regs[k], regs[k + 1]))
    F("v_max_f32 v%d, v%d, v%d" % (m, m, regs[15]))
    xlane_max(F, m, 4, 5)
    F("v_add_f32 v%d, s%d, v%d" % (m, sT2, m))
    F("v_max_f32 v%d, s%d, v%d" % (m, sFloor, m))
    for j in range(4):
        F("v_sub_f32 v%d, v%d, v%d" % (vNegM + 4 * T + j, vNegM + 4 * T + j, m))
    for r in regs:
        F("v_sub_f32 v%d, v%d, v%d" % (r, r, m))
F("s_cmp_eq_u32 s%d, 1\ns_cbranch_scc1 L_fix_p" % sFirst)
for T in range(2):
    F("v_sub_f32 v4, 0, v%d\nv_exp_f32 v4, v4\ns_nop 0" % (2 + T))
    for j in range(64):
        F("v_mul_f32 v%d, v4, v%d" % (vO + 64 * T + j, vO + 64 * T + j))
    for j in range(4):
        F("v_accvgpr_read_b32 v5, a%d\nv_mul_f32 v5, v4, v5\nv_accvgpr_write_b32 a%d, v5" % (aL + 4 * T + j, aL + 4 * T + j))
F("L_fix_p:")
for kt in range(4):
    for T in range(2):
        for r in range(4):
            F("v_exp_f32 v%d, v%d" % (6 + r, S_(kt, T) + r))
        d = P_(kt >> 1, T) + 2 * (kt & 1)
        F("v_cvt_pk_bf16_f32 v%d, v6, v7\nv_cvt_pk_bf16_f32 v%d, v8, v9" % (d, d + 1))
F("s_nop 3\ns_setpc_b64 s[%d:%d]" % (sRet, sRet + 1))

F("L_fix9:")
F("s_nop 15\ns_waitcnt lgkmcnt(0)")
F("s_mov_b32 s%d, %s" % (sT2, fbits(TOFF)))
F("v_max3_f32 v2, v%d, v%d, v%d\nv_max_f32 v2, v2, v%d" % (vS9, vS9 + 1, vS9 + 2, vS9 + 3))
xlane_max(F, 2, 4, 5)
F("v_lshlrev_b32 v4, 2, v4\nv_add_u32 v4, %d, v4" % LDS_MB)
F("s_lshl_b32 s%d, s%d, 8\nv_add_u32 v5, s%d, v4" % (sT2 + 1, sW, sT2 + 1))
F("ds_write_b32 v5, v2\ns_waitcnt lgkmcnt(0)\ns_barrier")
for w in range(4):
    F("ds_read_b32 v%d, v4 offset:%d" % (6 + w, 256 * w))
F("s_waitcnt lgkmcnt(0)")
F("v_max3_f32 v2, v6, v7, v8\nv_max_f32 v2, v2, v9")
F("v_add_f32 v2, s%d, v2\nv_max_f32 v2, s%d, v2" % (sT2, sFloor))
for j in range(4):
    F("v_sub_f32 v%d, v%d, v2" % (vNegM + 8 + j, vNegM + 8 + j))
    F("v_sub_f32 v%d, v%d, v2" % (vS9 + j, vS9 + j))
F("s_cmp_eq_u32 s%d, 1\ns_cbranch_scc1 L_fix9_p" % sFirst)
F("v_sub_f32 v4, 0, v2\nv_exp_f32 v4, v4\ns_nop 0")
for j in list(range(aO9, aO9 + 16)) + list(range(aL + 8, aL + 12)):
    F("v_accvgpr_read_b32 v5, a%d\nv_mul_f32 v5, v4, v5\nv_accvgpr_write_b32 a%d, v5" % (j, j))
F("L_fix9_p:")
for r in range(4):
    F("v_exp_f32 v%d, v%d" % (6 + r, vS9 + r))
F("v_cvt_pk_bf16_f32 v%d, v6, v7\nv_cvt_pk_bf16_f32 v%d, v8, v9" % (vP9o, vP9o + 1))
F("ds_write_b64 v%d, v[%d:%d]\ns_waitcnt lgkmcnt(0)\ns_barrier" % (vP9W, vP9o, vP9o + 1))
F("ds_read_b128 %s, v%d offset:%d" % (vr(vP9), vLane16, LDS_P9 - LB))
F("ds_read_b128 %s, v%d offset:%d" % (vr(vP9 + 4), vLane16, LDS_P9 - LB + 1024))
F("s_waitcnt lgkmcnt(0)\ns_nop 3\ns_setpc_b64 s[%d:%d]" % (sRet, sRet + 1))

Z = Prog()
G = Z.emit
G("reduce_kernel:")
G("s_cmp_ge_u32 s2, 504\ns_cbranch_scc1 L_rend")
G("s_load_dwordx2 s[4:5], s[0:1], 96\ns_load_dwordx2 s[8:9], s[0:1], 80")
G("v_lshrrev_b32 v1, 6, v0\nv_and_b32 v2, 63, v0\ns_nop 0\nv_readfirstlane_b32 s3, v1")
G("s_lshl_b32 s12, s2, 2\ns_add_u32 s12, s12, s3")
G("s_mul_hi_u32 s13, s12, %d" % ((2 ** 32 + 125) // 126))
G("s_mul_i32 s14, s13, 126\ns_sub_u32 s14, s12, s14")
G("s_mul_hi_u32 s15, s14, %d" % ((2 ** 32 + 13) // 14))
G("s_mul_i32 s16, s15, 14\ns_sub_u32 s16, s14, s16")
G("s_mul_i32 s17, s13, %d\ns_lshl_b32 s18, s14, 10\ns_add_u32 s17, s17, s18" % (16 * 129024))
G("v_lshlrev_b32 v3, 4, v2")
G("s_waitcnt lgkmcnt(0)")
G("s_mov_b32 s6, %d\ns_mov_b32 s7, 0x20000" % (256 * 129024))
G("s_mov_b32 s10, %d\ns_mov_b32 s11, 0x20000" % (8 * 144 * 896 * 2))
for h in range(16):
    G("buffer_load_dwordx4 %s, v3, s[4:7], s17 offen" % vr(16 + 4 * h))
    G("s_add_u32 s17, s17, 129024")
G("s_and_b32 s18, s13, 7\ns_mul_i32 s18, s18, 144\ns_lshl_b32 s19, s15, 4\ns_add_u32 s18, s18, s19\ns_mul_i32 s18, s18, 1792")
G("s_lshr_b32 s19, s13, 3\ns_mul_i32 s19, s19, 896\ns_add_u32 s18, s18, s19\ns_lshl_b32 s19, s16, 6\ns_add_u32 s18, s18, s19")
G("v_and_b32 v4, 15, v2\nv_mul_u32_u24 v4, 1792, v4\nv_lshrrev_b32 v5, 4, v2\nv_lshl_add_u32 v4, v5, 3, v4")
for h in range(16):
    for j in range(4):
        r = 16 + 4 * h + j
        if h == 0:
            G("v_lshlrev_b32 v%d, 16, v%d\nv_and_b32 v%d, 0xffff0000, v%d" % (8 + 2 * j, r, 9 + 2 * j, r))
        else:
            G("v_lshlrev_b32 v6, 16, v%d\nv_and_b32 v7, 0xffff0000, v%d" % (r, r))
            G("v_add_f32 v%d, v%d, v6\nv_add_f32 v%d, v%d, v7" % (8 + 2 * j, 8 + 2 * j, 9 + 2 * j, 9 + 2 * j))
for j in range(4):
    G("v_cvt_pk_bf16_f32 v%d, v%d, v%d" % (16 + j, 8 + 2 * j, 9 + 2 * j))
G("buffer_store_dwordx2 v[16:17], v4, s[8:11], s18 offen")
G("buffer_store_dwordx2 v[18:19], v4, s[8:11], s18 offen offset:32")
G("L_rend:\ns_endpgm")

rep = []
main_ins = pad_hazards(main_ins, rep)
rare_ins = pad_hazards(R.ins, None)
red_ins = pad_hazards(Z.ins, None)
from collections import Counter
sys.stderr.write("hazard pads (main): %s\n" % dict(Counter(r[0] for r in rep)))
if OPT.get("v"):
    for r in rep:
        sys.stderr.write("  %s\n" % (r,))

txt = lambda ins: "\n".join(("" if i.kind == "label" else "    ") + i.text for i in ins)
hdr = open("concat_heads__gqa_block_cached__mha_block_cached__near_ridge.s.ref").read().split("; Override launch")[0]
print(hdr.rstrip())
if FUSE:
    print("; @launch grid=(256,1,1) block=(256,1,1) lds=%d" % LDS_TOTAL)
else:
    print("; @launch kernel=%s grid=(256,1,1) block=(256,1,1) lds=%d" % (KN, LDS_TOTAL))
    print("; @launch kernel=reduce_kernel grid=(504,1,1) block=(256,1,1) lds=0")
print('.amdgcn_target "amdgcn-amd-amdhsa--gfx950"')
print(".text")
print(".globl %s\n.p2align 8\n.type %s,@function" % (KN, KN))
print(txt(main_ins))
print(txt(rare_ins))
if not FUSE:
    print(".globl reduce_kernel\n.p2align 8\n.type reduce_kernel,@function")
    print(txt(red_ins))
print('.section .rodata,"a"')
for name, nv, acc in ((KN, 512, 256), ("reduce_kernel", 80, 80))[:1 if FUSE else 2]:
    print(""".p2align 6
.amdhsa_kernel %s
  .amdhsa_next_free_vgpr %d
  .amdhsa_next_free_sgpr 102
  .amdhsa_accum_offset %d
  .amdhsa_group_segment_fixed_size 0
  .amdhsa_kernarg_size 104
  .amdhsa_user_sgpr_count 2
  .amdhsa_user_sgpr_kernarg_segment_ptr 1
  .amdhsa_system_sgpr_workgroup_id_x 1
.end_amdhsa_kernel""" % (name, nv, acc))
```

```python
import sys, struct, math
sys.path.insert(0, "work")
from asmlib import *

OPT = dict(a.split("=") for a in sys.argv[1:] if "=" in a)
NT = OPT.get("nt", "").replace("_", " ")
NTK = OPT.get("ntk", NT).replace("_", " ")
NTV = OPT.get("ntv", NT).replace("_", " ")
WNT = OPT.get("wnt", "").replace("_", " ")
STP = OPT.get("st", "").replace("_", " ")
STAMP = int(OPT.get("stamp", "0"))
LEAD_K = int(OPT.get("lk", "6"))
LEAD_V = int(OPT.get("lv", "5"))
CAP = int(OPT.get("cap", "4"))
FUSE = int(OPT.get("fuse", "1"))
if FUSE and "st" not in OPT:
    STP = "sc1"
VMX = int(OPT.get("vmx", "12"))

KN = "concat_heads__gqa_block_cached__mha_block_cached__near_ridge_kernel"
NSLOT = 9
SLOT = 16384
RING = NSLOT * SLOT
LDS_P9 = RING
LDS_MB = RING + 2048
LDS_O9 = RING + 3072
LDS_XB = 7 * SLOT
LDS_TOTAL = 163840
LB = 131072
TOFF = 7.0
CSCALE = math.log2(math.e) / 16.0
BIG = 10 ** 6


def fbits(x):
    return "0x%08x" % struct.unpack("<I", struct.pack("<f", x))[0]


vr = lambda n, k=4: "v[%d:%d]" % (n, n + k - 1)
ar = lambda n, k=4: "a[%d:%d]" % (n, n + k - 1)
srd = lambda n: "s[%d:%d]" % (n, n + 3)

SRD_X, SRD_WQ, SRD_K, SRD_V, SRD_WO, SRD_WS = 4, 8, 12, 16, 20, 24
sW, sW4K, sXw = 28, 29, 30
sOffK, sOffV, sTmpO, sLoop = 31, 32, 33, 34
sPVa, sPVb, sKa, sKb, sVa, sVb = 35, 36, 37, 38, 39, 40
sNKa, sNKb, sNVa, sNVb = 41, 42, 43, 50
sD0, sD1, sD2, sD3, sD4 = 51, 52, 53, 54, 55
sForce, sFloor, sFirst, sRet = 44, 46, 47, 48
sMask = 56
sT0, sT1, sT2, sT3 = 57, 58, 59, 60
sWhi = 61
sWSB = 62
sStamp = 64
sXB = 96

vK, vK9, vV = 20, 24, 28
vDKV, vDWQ, vDWO = 36, 37, 38
vLane16 = 39
vDX = 40
vChk = 42
vP9W = 43
vTmp = 44
vNegM = 52
vP = 64
vP9o = 80
vP9 = 84
vS = 92
vS9 = 124
vO = 128
vW = 16
vXR = 14
aQ = 0
aO9 = 96
aL = 112
aOnes = 124
aKB, NKB = 128, 10
aVB, NVB = 168, 16

P = Prog()
E = P.emit
stubs = []
nstamp = [0]
cyc = [0]


def stamp(cond=True):
    if STAMP and cond and nstamp[0] < 8:
        E("s_memrealtime s[%d:%d]" % (sStamp + 2 * nstamp[0], sStamp + 2 * nstamp[0] + 1))
        E("s_waitcnt lgkmcnt(0)")
        nstamp[0] += 1


def cstamp(on):
    if STAMP and on:
        E("s_memtime s[%d:%d]" % (80 + 2 * cyc[0], 81 + 2 * cyc[0]))
        E("s_waitcnt lgkmcnt(0)")
        cyc[0] += 1


class Item:
    def __init__(self, text, earliest=-1, deadline=BIG, tag=None, cost=None):
        self.text, self.earliest, self.deadline, self.tag = text, earliest, deadline, tag
        if callable(text):
            self.cost = cost or 1
        else:
            self.cost = cost if cost is not None else sum(Ins(l.strip()).cost for l in text.split("\n") if l.strip())

    def emit(self):
        if callable(self.text):
            self.text()
        else:
            E(self.text, tag=self.tag)


def run_phase(mf, queues, name=""):
    qs = [list(q) for q in queues]
    tokens = [0]
    over = [0]

    def fill(g):
        while True:
            best = None
            for qi, q in enumerate(qs):
                if q and q[0].earliest <= g:
                    forced = q[0].deadline <= g
                    if forced or q[0].cost <= tokens[0]:
                        key = (0 if forced else 1, q[0].deadline, qi)
                        if best is None or key < best[0]:
                            best = (key, qi)
            if best is None:
                break
            it = qs[best[1]].pop(0)
            w0 = P.nwaits
            it.emit()
            tokens[0] -= it.cost + (P.nwaits - w0)

    tokens[0] = 0
    fill(-1)
    tokens[0] = 0
    for g, m in enumerate(mf):
        w0 = P.nwaits
        for t in m.get("pre", []):
            t() if callable(t) else E(t)
        if m.get("waitfor") and P._need(P.dsq, Ins(m["text"]).src) >= 0:
            P.wait_ds_regs(m["waitfor"] | Ins(m["text"]).src)
        E(m["text"])
        tokens[0] = min(CAP, tokens[0] + 2 - (P.nwaits - w0))
        if tokens[0] < -2:
            over[0] += -2 - tokens[0]
            tokens[0] = -2
        fill(g)
    left = sum(it.cost for q in qs for it in q)
    for q in qs:
        for it in q:
            it.emit()
    if OPT.get("v"):
        sys.stderr.write("phase %s: %d mfma, overflow %d, leftover %d units\n" % (name, len(mf), over[0], left))


areg_set = lambda n, k=4: {("a", n + i) for i in range(k)}
mfma = lambda d, a, b, c: "v_mfma_f32_16x16x32_bf16 %s, %s, %s, %s" % (d, a, b, c)


class Frags:
    def __init__(self, pool, npool, tr, lead):
        self.pool, self.n, self.tr, self.lead = pool, npool, tr, lead
        self.fr = []
        self.first = []

    def new(self, mf, areg, off, before=(), after=()):
        b = self.pool + 4 * (len(self.fr) % self.n)
        self.fr.append((b, areg, off, list(before), list(after)))
        self.first.append(len(mf))
        return b

    def texts(self, f):
        b, areg, off, before, after = self.fr[f]
        t = list(before)
        if self.tr:
            t.append("ds_read_b64_tr_b16 %s, v%d offset:%d" % (ar(b, 2), areg, off))
            t.append("ds_read_b64_tr_b16 %s, v%d offset:%d" % (ar(b + 2, 2), areg, off + 2048))
        else:
            t.append("ds_read_b128 %s, v%d offset:%d" % (ar(b), areg, off))
        return t + after

    def pair_waits(self, mf):
        for f in range(0, len(self.fr) - 1, 2):
            mf[self.first[f]]["waitfor"] = areg_set(self.fr[f + 1][0])

    def items(self, skip):
        out = []
        for f in range(skip, len(self.fr)):
            e = -1 if f < self.lead else self.first[f - self.lead]
            d = -1 if f < self.lead else self.first[min(f - self.lead + 2, f)]
            for t in self.texts(f):
                out.append(Item(t, e, d))
        return out

    def head_items(self, nmf, step, earliest_min=-1):
        out = []
        for f in range(self.lead):
            e = max(earliest_min, nmf - 1 - (self.lead - f) * step)
            for t in self.texts(f):
                out.append(Item(t, e, min(nmf - 1, e + 2 * step)))
        return out


def m0set(slot):
    if isinstance(slot, tuple):
        return "s_add_u32 m0, s%d, %d" % (sW4K, slot[1])
    return "s_add_u32 m0, s%d, s%d" % (sW4K, slot)


def dma_kv(which, slot, tag):
    s_srd, s_off = (SRD_K, sOffK) if which == "K" else (SRD_V, sOffV)
    res = [m0set(slot)]
    for m in range(4):
        res.append("buffer_load_dwordx4 v%d, %s, s%d offen offset:%d %s lds" % (vDKV, srd(s_srd), s_off, m * 1024, NTK if which == "K" else NTV))
    res.append("s_add_u32 s%d, s%d, %d" % (s_off, s_off, SLOT))
    return [(r, tag) for r in res]


def dma_wq(s, slot, tag):
    res = [(m0set(slot), tag)]
    for m in range(4):
        so = (32 * s + 16 * (m & 1) + 4 * (m >> 1)) * 8192 - m * 1024
        res.append(("s_mov_b32 s%d, %d\nbuffer_load_dwordx4 v%d, %s, s%d offen offset:%d %s lds"
                    % (sTmpO, so, vDWQ, srd(SRD_WQ), sTmpO, m * 1024, WNT), tag))
    return res


def dma_wo(q, slot, tag):
    H, s = q >> 3, q & 7
    res = [(m0set(slot), tag)]
    for m in range(4):
        so = (32 * s + 8 * m) * 896 + H * 512 - m * 1024
        res.append(("s_mov_b32 s%d, %d\nbuffer_load_dwordx4 v%d, %s, s%d offen offset:%d %s lds"
                    % (sTmpO, so, vDWO, srd(SRD_WO), sTmpO, m * 1024, WNT), tag))
    return res


def dma_x(p, tag):
    res = []
    buf = (p & 1) * 6144
    for n in range(6):
        t = ""
        if n == 0:
            t += "s_add_u32 m0, s%d, %d\n" % (sXB, buf)
        if n == 4:
            t += "s_add_u32 m0, s%d, %d\n" % (sXB, buf + 4096)
        if n < 4:
            t += "s_add_u32 s%d, s%d, %d\n" % (sTmpO, sXw, 8 * n * 896 + 128 * p - 1024 * n)
            imm = 1024 * n
        else:
            t += "s_mov_b32 s%d, %d\n" % (sTmpO, (128 + 8 * (n - 4)) * 896 + 128 * p - 1024 * (n - 4))
            imm = 1024 * (n - 4)
        t += "buffer_load_dwordx4 v%d, %s, s%d offen offset:%d %s lds" % (vDX + (n & 1), srd(SRD_X), sTmpO, imm, WNT)
        res.append((t, tag))
    return res


def spread(pieces, start, step):
    out = []
    k = 0
    for (t, tag) in pieces:
        e = start + k * step
        out.append(Item(t, e, e + step, tag))
        if "buffer_load" in t:
            k += 1
    return out


def inc_slot(dst, src):
    return "s_add_u32 s%d, s%d, %d\ns_cmp_eq_u32 s%d, %d\ns_cselect_b32 s%d, 0, s%d" % (dst, src, SLOT, dst, RING, dst, dst)


def softmax_items(regs_S, regs_P, earliest, deadline, bank):
    t = vTmp + 4 * bank
    its = [Item("v_exp_f32 v%d, v%d" % (t + r, regs_S + r), earliest, deadline) for r in range(4)]
    its.append(Item("v_cvt_pk_bf16_f32 v%d, v%d, v%d" % (regs_P, t, t + 1), earliest, deadline))
    its.append(Item("v_cvt_pk_bf16_f32 v%d, v%d, v%d" % (regs_P + 1, t + 2, t + 3), earliest, deadline))
    return its


def check_items(base, earliest, deadline):
    x = vChk
    return [Item("v_or3_b32 v%d, v%d, v%d, v%d" % (x, base, base + 1, base + 2), earliest, deadline),
            Item("v_or3_b32 v%d, v%d, v%d, v%d" % (x, x, base + 3, base + 4), earliest, deadline),
            Item("v_or3_b32 v%d, v%d, v%d, v%d" % (x, x, base + 5, base + 6), earliest, deadline),
            Item("v_bitop3_b32 v%d, v%d, v%d, s%d bitop3:0xa8" % (x, x, base + 7, sMask), earliest, deadline),
            Item("v_cmp_ne_u32 vcc, 0, v%d" % x, earliest, deadline)]


nchk = [0]


def check_branch(sub, force):
    k = nchk[0]
    nchk[0] += 1
    t = ""
    if force:
        t += "s_or_b64 vcc, vcc, s[%d:%d]\n" % (sForce, sForce + 1)
    t += "s_cbranch_vccnz L_rare%d\nL_back%d:" % (k, k)
    stubs.append("L_rare%d:\ns_call_b64 s[%d:%d], %s\ns_branch L_back%d" % (k, sRet, sRet + 1, sub, k))
    return t


S_ = lambda kt, T: vS + 8 * kt + 4 * T
P_ = lambda s, T: vP + 8 * s + 4 * T
Q_ = lambda T, s: aQ + 32 * T + 4 * s
O_ = lambda T, t: vO + 64 * T + 4 * t
SPECIAL = {6: 0, 7: 1, 14: 2, 15: 3}
vadd = lambda r, s: "v_add_u32 v%d, s%d, v%d" % (r, s, r)


def build_qk():
    fr = Frags(aKB, NKB, False, LEAD_K)
    mf = []
    for s in range(8):
        b9 = fr.new(mf, vK9 + (s & 3), (s >> 2) * 256, after=[vadd(vK9 + (s & 3), sD2)] if s >= 4 else [])
        mf.append(dict(text=mfma(vr(vS9), ar(b9), ar(Q_(2, s)), vr(vNegM + 8) if s == 0 else vr(vS9))))
        b = fr.new(mf, vK + (s & 3), (s >> 2) * 256)
        for T in range(2):
            mf.append(dict(text=mfma(vr(S_(0, T)), ar(b), ar(Q_(T, s)), vr(vNegM + 4 * T) if s == 0 else vr(S_(0, T)))))
    end_kt = {0: len(mf) - 1}
    for kt in range(1, 4):
        for s in range(8):
            aft = []
            if s >= 4 and kt == 1:
                aft = [vadd(vK + (s & 3), sD0)]
            if s >= 4 and kt == 3:
                aft = [vadd(vK + (s & 3), sD1)]
            b = fr.new(mf, vK + (s & 3), (kt & 1) * 2048 + (s >> 2) * 256, after=aft)
            for T in range(2):
                mf.append(dict(text=mfma(vr(S_(kt, T)), ar(b), ar(Q_(T, s)), vr(vNegM + 4 * T) if s == 0 else vr(S_(kt, T)))))
        end_kt[kt] = len(mf) - 1
    fr.pair_waits(mf)
    return fr, mf, end_kt


def build_pv():
    fr = Frags(aVB, NVB, True, LEAD_V)
    mf = []
    chk9_at = s1_at = None
    for s in range(2):
        if s == 1:
            s1_at = len(mf)
        for T in range(2):
            mf.append(dict(text=mfma(ar(aL + 4 * T), ar(aOnes), vr(P_(s, T)), ar(aL + 4 * T))))
        for t in range(16):
            aft = [vadd(vV + (t & 7), sD3 if s == 0 else sD4)] if t >= 8 else []
            b = fr.new(mf, vV + (t & 7), (t >> 3) * 256, after=aft)
            for T in range(2):
                mf.append(dict(text=mfma(vr(O_(T, t)), ar(b), vr(P_(s, T)), vr(O_(T, t)))))
            if t in SPECIAL:
                if chk9_at is None:
                    chk9_at = len(mf)
                o9 = aO9 + 4 * SPECIAL[t]
                mf.append(dict(text=mfma(ar(o9), ar(b), vr(vP9 + 4 * s), ar(o9))))
            if t == 8:
                mf.append(dict(text=mfma(ar(aL + 8), ar(aOnes), vr(vP9 + 4 * s), ar(aL + 8))))
    fr.pair_waits(mf)
    return fr, mf, chk9_at, s1_at


def scalar_next():
    return [inc_slot(sNKa, sVb), inc_slot(sNKb, sNKa),
            "s_sub_u32 s%d, s%d, s%d\ns_sub_u32 s%d, s%d, s%d" % (sT0, sNKa, sKa, sT1, sNKb, sKb),
            "s_cmp_eq_u32 s%d, 0\ns_cselect_b32 s%d, s%d, s%d" % (sWhi, sD2, sT0, sT1),
            "s_sub_u32 s%d, s%d, s%d" % (sD0, sKb, sKa),
            "s_sub_u32 s%d, s%d, s%d" % (sD1, sNKa, sKb),
            inc_slot(sNVa, sNKb), inc_slot(sNVb, sNVa),
            "s_sub_u32 s%d, s%d, s%d" % (sD3, sVb, sVa),
            "s_sub_u32 s%d, s%d, s%d" % (sD4, sNVa, sVb)]


def block(site1, site2, vm1, vm2, last=False, cs=False):
    cstamp(cs)
    E("s_waitcnt vmcnt(%d)" % vm1)
    E("s_barrier")
    cstamp(cs)
    fr, mf, end_kt = build_qk()
    pv_fr, pv_mf, chk9_at, s1_at = build_pv()
    n = len(mf)
    rq = fr.items(LEAD_K) + pv_fr.head_items(n, 2, fr.first[-1] - 2 * LEAD_K + 2)
    dq = spread(site1, 0, 4)
    vq = []
    e9 = 21 + 4
    vq += softmax_items(vS9, vP9o, e9, BIG, 0)
    vq.append(Item("ds_write_b64 v%d, v[%d:%d]" % (vP9W, vP9o, vP9o + 1), e9, BIG))
    bank = 1
    for kt in range(3):
        for T in range(2):
            vq += softmax_items(S_(kt, T), P_(kt >> 1, T) + 2 * (kt & 1), end_kt[kt] + 4, BIG, bank)
            bank ^= 1
        if kt == 1:
            vq += check_items(vP, end_kt[kt] + 4, BIG)
    run_phase(mf, [rq, dq, vq], "qk")
    E(check_branch("L_fix", True))
    cstamp(cs)
    E("s_waitcnt vmcnt(%d)" % vm2)
    assert not any(d == set() for (_, d) in P.dsq), "P9 write must have retired"
    E("s_barrier")
    cstamp(cs)
    mf = pv_mf
    n = len(mf)
    mf[chk9_at]["pre"] = [lambda: E(check_branch("L_fix9", True))]
    mf[s1_at]["pre"] = [lambda: E(check_branch("L_fix", False))]
    rq = [Item("ds_read_b128 %s, v%d offset:%d" % (vr(vP9), vLane16, LDS_P9 - LB), -1, -1),
          Item("ds_read_b128 %s, v%d offset:%d" % (vr(vP9 + 4), vLane16, LDS_P9 - LB + 1024), -1, -1)]
    rq += pv_fr.items(LEAD_V)
    if not last:
        nfr, _, _ = build_qk()
        rq += nfr.head_items(n, 2, pv_fr.first[-1] - 2 * LEAD_V + 2)
    dq = spread(site2, 0, 4)
    vq = check_items(vP9, 5, chk9_at - 2)
    bank = 0
    for T in range(2):
        vq += softmax_items(S_(3, T), P_(1, T) + 2, 0, s1_at - 8, bank)
        bank ^= 1
    vq += check_items(vP + 8, chk9_at, s1_at - 2)
    sc = ["s_mov_b32 s%d, s%d" % (a, b_) for a, b_ in
          ((sPVa, sVa), (sPVb, sVb), (sKa, sNKa), (sKb, sNKb), (sVa, sNVa), (sVb, sNVb))]
    sc.append("s_mov_b64 s[%d:%d], 0\ns_mov_b32 s%d, 0\ns_mov_b32 s%d, 0" % (sForce, sForce + 1, sFloor, sFirst))
    nx = scalar_next()
    lastadd = pv_fr.first[len(pv_fr.fr) - 1 - LEAD_V + 2]
    sq = [Item(t, max(s1_at + 1, 34), BIG) for t in sc + nx[:8]] + [Item(t, lastadd + 1, BIG) for t in nx[8:]]
    run_phase(mf, [rq, dq, vq, sq], "pv")
    cstamp(cs)


E("%s:" % KN)
E("s_cmp_ge_u32 s2, 256\ns_cbranch_scc1 L_end")
stamp()
E("s_and_b32 s%d, s2, 7" % sT0)
E("s_lshr_b32 s%d, s2, 3" % sT1)
E("s_lshr_b32 s96, s%d, 4" % sT1)
E("s_lshr_b32 s97, s%d, 1\ns_and_b32 s97, s97, 7" % sT1)
E("s_and_b32 s98, s%d, 1\ns_lshl_b32 s99, s%d, 1\ns_add_u32 s98, s98, s99" % (sT1, sT0))
E("s_mul_i32 s99, s96, 40")
E("s_add_u32 s0, s0, s99\ns_addc_u32 s1, s1, 0")
E("s_load_dwordx2 s[4:5], s[0:1], 0")
E("s_load_dwordx2 s[8:9], s[0:1], 24")
E("s_load_dwordx2 s[12:13], s[0:1], 8")
E("s_load_dwordx2 s[16:17], s[0:1], 16")
E("s_load_dwordx2 s[20:21], s[0:1], 32")
E("s_sub_u32 s0, s0, s99\ns_subb_u32 s1, s1, 0")
E("s_load_dwordx2 s[24:25], s[0:1], 96")
E("v_lshrrev_b32 v1, 6, v0")
E("v_and_b32 v2, 63, v0")
E("v_readfirstlane_b32 s%d, v1" % sW)
E("v_lshrrev_b32 v3, 5, v2")
E("v_and_b32 v4, 31, v2")
E("v_lshl_add_u32 v5, v1, 1, v3")
E("v_lshlrev_b32 v6, 1, v5\nv_xor_b32 v6, v6, v4\nv_lshlrev_b32 v6, 4, v6")
E("v_lshl_add_u32 v7, v1, 3, v3")
E("v_lshl_add_u32 v%d, v7, 9, v6" % vDKV)
E("v_and_b32 v7, 2, v1\nv_lshlrev_b32 v7, 2, v7")
E("v_and_b32 v8, 1, v1\nv_lshl_add_u32 v7, v8, 1, v7\nv_add_u32 v7, v7, v3")
E("v_lshl_add_u32 v%d, v7, 13, v6" % vDWQ)
E("v_mul_u32_u24 v7, 896, v5\nv_add_u32 v%d, v7, v6" % vDWO)
E("v_and_b32 v8, 15, v2")
E("v_lshrrev_b32 v9, 4, v2")
E("v_lshrrev_b32 v10, 3, v2\nv_mul_u32_u24 v10, 896, v10\nv_and_b32 v11, 7, v2\nv_xor_b32 v11, v11, v9")
E("v_lshl_add_u32 v%d, v11, 4, v10\nv_xor_b32 v11, 4, v11\nv_lshl_add_u32 v%d, v11, 4, v10" % (vDX, vDX + 1))
E("s_lshl_b32 s%d, s%d, 12" % (sW4K, sW))
E("s_lshr_b32 s%d, s%d, 1" % (sWhi, sW))
E("s_mul_i32 s%d, s%d, %d" % (sXw, sW, 32 * 896))
E("s_mul_i32 s100, s97, 129024")
E("s_lshl_b32 s101, s98, 9")
E("s_waitcnt lgkmcnt(0)")
E("s_add_u32 s4, s4, s100\ns_addc_u32 s5, s5, 0\ns_mov_b32 s6, 129024\ns_mov_b32 s7, 0x20000")
E("s_add_u32 s8, s8, s101\ns_addc_u32 s9, s9, 0\ns_sub_u32 s10, %d, s101\ns_mov_b32 s11, 0x20000" % (448 * 8192))
E("s_lshl_b32 s99, s97, 4\ns_add_u32 s99, s99, s98")
E("s_xor_b32 s100, s96, 1\ns_lshr_b32 s99, s99, s100")
E("s_lshl_b32 s99, s99, 19")
E("s_add_u32 s12, s12, s99\ns_addc_u32 s13, s13, 0\ns_mov_b32 s14, 0x80000\ns_mov_b32 s15, 0x20000")
E("s_add_u32 s16, s16, s99\ns_addc_u32 s17, s17, 0\ns_mov_b32 s18, 0x80000\ns_mov_b32 s19, 0x20000")
E("s_mul_i32 s99, s98, %d" % (256 * 896))
E("s_add_u32 s20, s20, s99\ns_addc_u32 s21, s21, 0\ns_sub_u32 s22, %d, s99\ns_mov_b32 s23, 0x20000" % (4096 * 896))
if STAMP:
    E("s_lshl_b32 s99, s2, 8\ns_add_u32 s99, s99, 0x4000000\ns_add_u32 s%d, s24, s99\ns_addc_u32 s%d, s25, 0" % (sWSB, sWSB + 1))
E("s_lshl_b32 s99, s96, 3\ns_add_u32 s99, s99, s97\ns_lshl_b32 s99, s99, 4\ns_add_u32 s99, s99, s98")
E("s_mov_b32 s3, s99")
E("s_mul_i32 s99, s99, 129024")
E("s_add_u32 s24, s24, s99\ns_addc_u32 s25, s25, 0\ns_mov_b32 s26, 129024\ns_mov_b32 s27, 0x20000")
E("s_mul_i32 s%d, s%d, 12288\ns_add_u32 s%d, s%d, %d" % (sXB, sW, sXB, sXB, LDS_XB))

wslot = lambda N: (N % 7) * SLOT
kvslot = lambda n: (n % NSLOT) * SLOT


def emit_pieces(pieces):
    for (t, tag) in pieces:
        E(t, tag=tag)


emit_pieces(dma_x(0, ("X", 0)))
emit_pieces(dma_wq(0, ("c", wslot(0)), ("W", 0)))
emit_pieces(dma_wq(1, ("c", wslot(1)), ("W", 1)))
emit_pieces(dma_x(1, ("X", 1)))
emit_pieces(dma_wq(2, ("c", wslot(2)), ("W", 2)))
emit_pieces(dma_wq(3, ("c", wslot(3)), ("W", 3)))
E("s_mov_b32 s%d, 0\ns_mov_b32 s%d, 0" % (sOffK, sOffV))


def rho(dst, i, t1):
    E("v_lshrrev_b32 v%d, 1, v%d\nv_and_b32 v%d, 3, v%d\nv_lshlrev_b32 v%d, 3, v%d" % (dst, i, dst, dst, dst, dst))
    E("v_lshrrev_b32 v%d, 3, v%d\nv_lshl_add_u32 v%d, v%d, 1, v%d" % (t1, i, dst, t1, dst))
    E("v_and_b32 v%d, 1, v%d\nv_add_u32 v%d, v%d, v%d" % (t1, i, dst, dst, t1))


E("v_lshrrev_b32 v10, 1, v8\nv_xor_b32 v10, v10, v9\nv_lshlrev_b32 v11, 7, v8\nv_add_u32 v11, s%d, v11" % sXB)
E("v_lshl_add_u32 v%d, v10, 4, v11\nv_xor_b32 v10, 4, v10\nv_lshl_add_u32 v%d, v10, 4, v11" % (vXR, vXR + 1))
E("v_lshrrev_b32 v13, 2, v2")
rho(10, 13, 11)
E("v_and_b32 v11, 7, v13")
E("v_and_b32 v12, 3, v2")
E("v_lshlrev_b32 v3, 1, v11\nv_lshlrev_b32 v4, 2, v1\nv_xor_b32 v3, v3, v4\nv_xor_b32 v3, v3, v12")
for b in range(4):
    E("v_xor_b32 v4, %d, v3\nv_lshlrev_b32 v4, 4, v4\nv_lshl_add_u32 v%d, v10, 9, v4" % (4 * b, vW + b))
E("v_lshlrev_b32 v3, 1, v1\nv_xor_b32 v3, v3, v11")
for b in range(8):
    E("v_xor_b32 v4, %d, v3\nv_lshlrev_b32 v4, 5, v4\nv_lshl_add_u32 v4, v12, 3, v4" % b)
    E("v_lshl_add_u32 v4, v10, 9, v4\nv_add_u32 v%d, %d, v4" % (vV + b, kvslot(2)))
rho(10, 8, 11)
E("v_and_b32 v11, 7, v8\nv_lshlrev_b32 v11, 1, v11\nv_lshlrev_b32 v4, 2, v1\nv_xor_b32 v11, v11, v4\nv_xor_b32 v11, v11, v9")
for b in range(4):
    E("v_xor_b32 v4, %d, v11\nv_lshlrev_b32 v4, 4, v4\nv_lshl_add_u32 v%d, v10, 9, v4" % (4 * b, vK + b))
E("s_and_b32 s99, s%d, 1\ns_lshl_b32 s99, s99, 11" % sW)
E("s_lshl_b32 s100, s%d, 14\ns_add_u32 s99, s99, s100" % sWhi)
for b in range(4):
    E("v_add_u32 v%d, s99, v%d" % (vK9 + b, vK + b))
E("v_lshlrev_b32 v%d, 4, v2\nv_add_u32 v%d, %d, v%d" % (vLane16, vLane16, LB, vLane16))
E("s_lshl_b32 s99, s%d, 10\ns_and_b32 s100, s%d, 1\ns_lshl_b32 s100, s100, 3\ns_add_u32 s99, s99, s100\ns_add_u32 s99, s99, %d"
  % (sWhi, sW, LDS_P9 - LB))
E("v_add_u32 v%d, s99, v%d" % (vP9W, vLane16))
E("s_mov_b32 s%d, 0x40004000" % sMask)
for N in (4, 5, 6):
    emit_pieces(dma_wq(N, ("c", wslot(N)), ("W", N)))
stamp(not FUSE)

QA = lambda T, sd, v: (64, 128)[T] + 4 * (2 * sd + v)
QA9 = lambda sd, v: 48 + 4 * (2 * (sd >> 2) + v)
X_ = lambda T, s: 56 * T + 4 * s


def xread_texts(p):
    out = []
    for s in (2 * p, 2 * p + 1):
        for T in range(3):
            out.append("ds_read_b128 %s, v%d offset:%d" % (ar(X_(T, s)), vXR + (s & 1), (p & 1) * 6144 + T * 2048))
    return out


def vmwait(tags):
    c = P.vm_count_after(tags)
    if c is not None:
        E("s_waitcnt vmcnt(%d)" % min(63, c))


def build_qp(p):
    fr = Frags(aVB, NVB, True, LEAD_V)
    mf = []
    last = {}
    for s in (2 * p, 2 * p + 1):
        for sd in range(8):
            for v in range(2):
                aft = []
                if sd >= 4 and v == 1 and s < 13:
                    aft = ["v_add_u32 v%d, 0x%x, v%d" % (vW + (sd & 3), (wslot(s + 1) - wslot(s)) & 0xffffffff, vW + (sd & 3))]
                b = fr.new(mf, vW + (sd & 3), (sd >> 2) * 256 + 8 * v, after=aft)
                for T in range(2):
                    mf.append(dict(text=mfma(vr(QA(T, sd, v)), ar(b), ar(X_(T, s)), "0" if s == 0 else vr(QA(T, sd, v)))))
                if (sd & 3) == 3:
                    mf.append(dict(text=mfma(vr(QA9(sd, v)), ar(b), ar(X_(2, s)), "0" if s == 0 else vr(QA9(sd, v)))))
                last[(sd, v)] = len(mf) - 1
    fr.pair_waits(mf)
    return fr, mf, last


stream = [("W", N) for N in range(7, 14)] + [("KV", n) for n in range(7)]


def stream_pieces(k):
    kind, n = stream[k]
    if kind == "W":
        return dma_wq(n, ("c", wslot(n)), ("W", n))
    return dma_kv("K" if (n & 3) < 2 else "V", ("c", kvslot(n)), ("KV", n))


vmwait([("X", 0)])
for t in xread_texts(0):
    E(t)
vmwait([("W", 3)])
E("s_barrier")
zero_q = ["v_mov_b32 v%d, 0" % r for r in range(192, 256)] + \
         ["v_mov_b32 v%d, 0" % vChk]
for p in range(7):
    fr, mf, last = build_qp(p)
    n = len(mf)
    if p > 0:
        vmwait([("W", min(2 * p + 3, 13))] + ([("KV", 1)] if p == 6 and False else []))
        E("s_barrier")
    rq = fr.items(0 if p == 0 else LEAD_V)
    if p < 6:
        nfr, _, _ = build_qp(p + 1)
        rq += nfr.head_items(n, 2, fr.first[-1] - 2 * LEAD_V + 2)
    dq = []
    xq = []
    if p == 0:
        xq += [Item(lambda: P.wait_ds_regs(areg_set(X_(2, 1))), 0, 0)]
        xq += spread(dma_x(2, ("X", 2)), 1, 3)
    else:
        dq += spread(stream_pieces(2 * p - 2) + stream_pieces(2 * p - 1), 0, 4)
    if p + 1 < 7:
        y = 34
        xq += [Item(lambda p=p: vmwait([("X", p + 1)]), y, y)]
        xq += [Item(t, y, y + 8) for t in xread_texts(p + 1)]
        if p + 3 < 7:
            xq += [Item(lambda p=p: P.wait_ds_regs(areg_set(X_(2, 2 * p + 3))), y + 14, y + 14)]
            xq += spread(dma_x(p + 3, ("X", p + 3)), y + 15, 3)
    zq = []
    if p in (1, 2, 3, 4):
        zq = [Item(t, 0, BIG) for t in zero_q[16 * (p - 1):16 * p]]
    run_phase(mf, [rq, dq, xq, zq], "qp%d" % p)
stamp()
E("s_mov_b32 s100, %s\ns_mov_b32 s101, %s" % (fbits(CSCALE), fbits(CSCALE)))
E("s_xor_b32 s99, s%d, 3\ns_lshl_b32 s99, s99, 10\ns_add_u32 s99, s99, %d" % (sW, LDS_O9 - LB))
E("v_add_u32 v2, s99, v%d" % vLane16)
for k in range(8):
    E("v_pk_mul_f32 %s, %s, s[100:101]" % (vr(48 + 2 * k, 2), vr(48 + 2 * k, 2)))
for k in range(8):
    E("v_cvt_pk_bf16_f32 v%d, v%d, v%d" % (4 + k, 48 + 2 * k, 49 + 2 * k))
E("ds_write_b128 v2, v[4:7]")
E("ds_write_b128 v2, v[8:11] offset:4096")
vmwait([("KV", 1)])
E("s_waitcnt lgkmcnt(0)")
E("s_barrier")
emit_pieces(stream_pieces(12))
for b in range(4):
    E("s_xor_b32 s99, s%d, %d\ns_lshl_b32 s99, s99, 10\ns_add_u32 s99, s99, %d" % (sW, b, LDS_O9 - LB))
    E("v_add_u32 v2, s99, v%d" % vLane16)
    E("ds_read_b128 %s, v2" % ar(Q_(2, b)))
    E("ds_read_b128 %s, v2 offset:4096" % ar(Q_(2, 4 + b)))
emit_pieces(stream_pieces(13))
for T in range(2):
    for sd in range(8):
        a = QA(T, sd, 0)
        for j in range(4):
            E("v_pk_mul_f32 %s, %s, s[100:101]" % (vr(a + 2 * j, 2), vr(a + 2 * j, 2)))
        for j in range(4):
            E("v_cvt_pk_bf16_f32 v%d, v%d, v%d" % (vTmp + j, a + 2 * j, a + 2 * j + 1))
        for j in range(4):
            E("v_accvgpr_write_b32 a%d, v%d" % (Q_(T, sd) + j, vTmp + j))
        if T == 1:
            for j in range(8):
                E("v_mov_b32 v%d, 0" % (a + j))
for j in range(aO9, aL + 12):
    E("v_accvgpr_write_b32 a%d, 0" % j)
E("v_mov_b32 v%d, 0x3f803f80" % vTmp)
for j in range(4):
    E("v_accvgpr_write_b32 a%d, v%d" % (aOnes + j, vTmp))
for j in range(12):
    E("v_mov_b32 v%d, 0" % (vNegM + j))
E("s_mov_b64 s[%d:%d], -1\ns_mov_b32 s%d, 0xff800000\ns_mov_b32 s%d, 1" % (sForce, sForce + 1, sFloor, sFirst))
for r, n in ((sPVa, 7), (sPVb, 8), (sKa, 0), (sKb, 1), (sVa, 2), (sVb, 3)):
    E("s_mov_b32 s%d, %d" % (r, kvslot(n)))
for t in scalar_next():
    E(t)
E("s_mov_b32 s%d, 0" % sLoop)
E("s_waitcnt lgkmcnt(0)")
stamp()
fr0, _, _ = build_qk()
for f in range(LEAD_K):
    for t in fr0.texts(f):
        E(t)

entry_q = [set(d) for (_, d) in P.dsq]
E("L_loop:")
block(dma_kv("V", sPVa, "a") + dma_kv("K", sPVb, "b"), dma_kv("K", sKa, "c") + dma_kv("V", sKb, "d"), VMX, VMX)
assert [set(d) for (_, d) in P.dsq][-len(entry_q):] == entry_q and len(P.dsq) == len(entry_q), (P.dsq, entry_q)
E("s_add_u32 s%d, s%d, 1\ns_cmp_lt_u32 s%d, 14\ns_cbranch_scc1 L_loop" % (sLoop, sLoop, sLoop))
block(dma_kv("V", sPVa, "e") + dma_wo(0, sPVb, ("O", 0)), dma_wo(1, sKa, ("O", 1)) + dma_wo(2, sKb, ("O", 2)), 12, 12,
      cs=(STAMP == 2))
block(dma_wo(3, sPVa, ("O", 3)) + dma_wo(4, sPVb, ("O", 4)), dma_wo(5, sKa, ("O", 5)) + dma_wo(6, sKb, ("O", 6)), 12, 20,
      last=True)
stamp()

vOF = 64
OF_ = lambda T, s: vOF + 32 * T + 4 * s
aOF9 = 0
aA9 = 32
vRI = 2
vST = 8
vREL = vV
vABS = {0: 16, 1: 40, 2: 48, 3: 56}
vT9 = 24
acc_ = lambda T, t: vO + 64 * T + 4 * t
E("s_nop 7")
for T in range(3):
    E("v_accvgpr_read_b32 v%d, a%d" % (vRI + T, aL + 4 * T))
for k in range(16):
    E("v_accvgpr_read_b32 v%d, a%d" % (44 + k, aO9 + k))
for T in range(3):
    E("v_rcp_f32 v%d, v%d" % (vRI + T, vRI + T))
E("s_xor_b32 s99, s%d, 3\ns_lshl_b32 s99, s99, 10\ns_add_u32 s99, s99, %d" % (sW, LDS_O9 - LB))
E("v_add_u32 v5, s99, v%d" % vLane16)
for k in range(16):
    E("v_mul_f32 v%d, v%d, v%d" % (44 + k, vRI + 2, 44 + k))
for k in range(8):
    E("v_cvt_pk_bf16_f32 v%d, v%d, v%d" % (8 + k, 44 + 2 * k, 45 + 2 * k))
E("ds_write_b128 v5, v[8:11]")
E("ds_write_b128 v5, v[12:15] offset:4096")
for b in range(8):
    E("v_subrev_u32 v%d, s%d, v%d" % (vREL + b, sVa, vREL + b))


def conv_items(s, e=-1, d=BIG):
    its = []
    for T in range(2):
        a = O_(T, 2 * s)
        for j in range(8):
            its.append(Item("v_mul_f32 v%d, v%d, v%d" % (a + j, vRI + T, a + j), e, d))
        for j in range(4):
            its.append(Item("v_cvt_pk_bf16_f32 v%d, v%d, v%d" % (OF_(T, s) + j, a + 2 * j, a + 2 * j + 1), e, d))
    return its


woslot = lambda q: ((64 + q) % NSLOT) * SLOT


def wo_slot_sgpr(dst, ph, b):
    base = (64 + 4 * ph) % NSLOT
    t = "s_xor_b32 s%d, s%d, %d\ns_add_u32 s%d, s%d, %d\n" % (dst, sW, b, dst, dst, base)
    t += "s_cmp_ge_u32 s%d, %d\ns_cselect_b32 s%d, %d, 0\ns_sub_u32 s%d, s%d, s%d\n" % (dst, NSLOT, sT3, NSLOT, dst, dst, sT3)
    t += "s_lshl_b32 s%d, s%d, 14" % (dst, dst)
    return t


issue_plan = {0: [7, 8], 1: [9, 10, 11, 12], 2: [13, 14, 15], 3: []}
sSL = [41, 42, 43, 50]
for ph in range(4):
    H, a = ph >> 1, ph & 1
    ntile = 16 if H == 0 else 12
    pre = [wo_slot_sgpr(sSL[b], ph, b) for b in range(4)]
    for t in pre:
        E(t)
    c = P.vm_count_after([("O", 4 * ph + 3)])
    E("s_waitcnt lgkmcnt(0)" if c is None else "s_waitcnt vmcnt(%d) lgkmcnt(0)" % min(63, c))
    E("s_barrier")
    fr = Frags(aVB, NVB, True, LEAD_V)
    mf = []
    done_pair = {}
    order = [(b, t) for b in range(4) for t in range(ntile)] if a == 0 else \
            [(b, t) for kp in range(ntile // 2) for t in (2 * kp, 2 * kp + 1) for b in range(4)]
    seen = set()
    first_of_k = {}
    for (b, t) in order:
        sl = 4 * a + b
        areg = vABS[b] + (t & 7)
        bef = []
        if t < 8:
            bef = ["v_add_u32 v%d, s%d, v%d" % (areg, sSL[b], vREL + t)]
        elif H == 1:
            bef = ["v_xor_b32 v%d, s%d, v%d" % (areg, sT2, areg)]
        bb = fr.new(mf, areg, (t >> 3) * 256, before=bef)
        first_of_k.setdefault(b, len(mf))
        for T in range(2):
            mf.append(dict(text=mfma(vr(acc_(T, t)), ar(bb), vr(OF_(T, sl)), "0" if sl == 0 else vr(acc_(T, t)))))
        sp = SPECIAL.get(t) if (H == 0 or t < 8) else {10: 2, 11: 3}.get(t)
        if sp is not None:
            mf.append(dict(text=mfma(ar(aA9 + 4 * sp), ar(bb), ar(aOF9 + 4 * sl), "0" if sl == 0 else ar(aA9 + 4 * sp))))
        if a == 1 and b == 3 and (t & 1):
            done_pair[t >> 1] = len(mf) - 1
    fr.pair_waits(mf)
    n = len(mf)
    rq = fr.items(0)
    dq = []
    for q in issue_plan[ph]:
        dq += dma_wo(q, ("c", woslot(q)), ("O", q))
    dq = spread(dq, 0, 4)
    cq = []
    if ph == 0:
        nfirst = 3 * LEAD_V
        for it in rq[:nfirst]:
            it.emit()
        rq = rq[nfirst:]
        for b in range(4):
            E("s_xor_b32 s99, s%d, %d\ns_lshl_b32 s99, s99, 10\ns_add_u32 s99, s99, %d" % (sW, b, LDS_O9 - LB))
            E("v_add_u32 v5, s99, v%d" % vLane16)
            E("ds_read_b128 %s, v5" % ar(aOF9 + 4 * b))
            if b < 2:
                E("ds_read_b128 %s, v5 offset:4096" % ar(aOF9 + 16 + 4 * b))
            else:
                cq.append(b)
        for s in range(8):
            for it in conv_items(s):
                it.emit()
        for b in cq:
            E("s_xor_b32 s99, s%d, %d\ns_lshl_b32 s99, s99, 10\ns_add_u32 s99, s99, %d" % (sW, b, LDS_O9 - LB))
            E("v_add_u32 v5, s99, v%d" % vLane16)
            E("ds_read_b128 %s, v5 offset:4096" % ar(aOF9 + 16 + 4 * b))
        cq = []
        st = ["v_subrev_u32 v6, %d, v%d" % (LB, vLane16), "s_mul_i32 s100, s%d, %d" % (sW, 2 * 14336)]
        for b in range(4):
            st.append("s_xor_b32 s99, s%d, %d\ns_lshl_b32 s99, s99, 10\ns_add_u32 s99, s99, s100" % (sW, b))
            st.append("v_add_u32 v%d, s99, v6" % (vST + b))
        st.append("s_xor_b32 s99, s%d, 3\ns_lshl_b32 s99, s99, 10\ns_add_u32 s99, s99, %d" % (sW, 8 * 14336))
        st.append("v_add_u32 v%d, s99, v6" % (vST + 4))
        for b in range(2):
            st.append("s_and_b32 s99, s%d, 1\ns_xor_b32 s99, s99, %d\ns_lshl_b32 s99, s99, 10\ns_add_u32 s99, s99, s100" % (sW, b))
            st.append("v_add_u32 v%d, s99, v6" % (vST + 5 + b))
        st.append("s_and_b32 s99, s%d, 1\ns_xor_b32 s99, s99, 1\ns_lshl_b32 s99, s99, 10\ns_add_u32 s99, s99, %d" % (sW, 8 * 14336))
        st.append("s_lshl_b32 s100, s%d, 20\ns_add_u32 s99, s99, s100" % sWhi)
        st.append("v_add_u32 v%d, s99, v6" % (vST + 7))
        st.append("s_lshl_b32 s%d, s%d, 7" % (sT2, sWhi))
        cq = [Item(t, 40, BIG) for t in st]
    if a == 1:
        for kp in range(ntile // 2):
            e = done_pair[kp] + 5
            for T in range(2):
                a0 = acc_(T, 2 * kp)
                for j in range(4):
                    cq.append(Item("v_cvt_pk_bf16_f32 v%d, v%d, v%d" % (a0 + j, a0 + 2 * j, a0 + 2 * j + 1), e, BIG))
                if H == 1 and kp >= 4:
                    vb, so = vST + 5 + (kp - 4), (8 * H + 4) * 1024 + T * 14336
                else:
                    vb, so = vST + (kp & 3), (8 * H + (kp & 4)) * 1024 + T * 14336
                cq.append(Item("s_mov_b32 s%d, %d\nbuffer_store_dwordx4 %s, v%d, %s, s%d offen %s"
                               % (sT1, so, vr(a0), vb, srd(SRD_WS), sT1, STP), e, BIG, "st"))
            k9 = {3: 0, 7: 1}.get(kp) if H == 0 else {3: 0, 5: 1}.get(kp)
            if k9 is not None:
                stg = vT9
                for j in range(4):
                    cq.append(Item("v_accvgpr_read_b32 v6, a%d\nv_accvgpr_read_b32 v7, a%d\nv_cvt_pk_bf16_f32 v%d, v6, v7"
                                   % (aA9 + 8 * k9 + 2 * j, aA9 + 8 * k9 + 2 * j + 1, stg + j), e, BIG))
                if H == 1 and k9 == 1:
                    vb, so = vST + 7, 12 * 1024
                else:
                    vb, so = vST + 4, (8 * H + 4 * k9) * 1024
                cq.append(Item("s_mov_b32 s%d, %d\nbuffer_store_dwordx4 %s, v%d, %s, s%d offen %s"
                               % (sT1, so, vr(stg), vb, srd(SRD_WS), sT1, STP), e, BIG, "st"))
    run_phase(mf, [rq, dq, cq], "op%d" % ph)
    stamp(ph == (3 if FUSE else 1))

if FUSE:
    E("s_load_dwordx2 s[4:5], s[0:1], 96\ns_load_dwordx2 s[8:9], s[0:1], 80\ns_load_dwordx2 s[12:13], s[0:1], 88")
    E("v_mbcnt_lo_u32_b32 v2, -1, 0\nv_mbcnt_hi_u32_b32 v2, -1, v2")
    E("v_and_b32 v4, 15, v2\nv_lshrrev_b32 v5, 4, v2")
    E("s_mov_b32 s99, 129024\nv_mul_lo_u32 v16, s99, v5\nv_lshl_add_u32 v16, v4, 4, v16")
    E("v_mul_u32_u24 v17, 1792, v4\nv_and_b32 v6, 1, v5\nv_lshl_add_u32 v17, v6, 5, v17\nv_lshrrev_b32 v6, 1, v5\nv_lshl_add_u32 v17, v6, 3, v17")
    E("v_and_b32 v6, 1, v4\nv_lshlrev_b32 v6, 4, v6\nv_mov_b32 v7, 0x3f80\nv_lshlrev_b32 v7, v6, v7\nv_lshrrev_b32 v6, 1, v4")
    for r in range(4):
        E("v_cmp_eq_u32 vcc, %d, v6\nv_cndmask_b32 v%d, 0, v7, vcc" % (r, 20 + r))
        E("v_cmp_eq_u32 vcc, %d, v6\nv_cndmask_b32 v%d, 0, v7, vcc" % (4 + r, 40 + r))
    E("s_lshr_b32 s14, s3, 4\ns_and_b32 s15, s3, 15")
    E("s_waitcnt lgkmcnt(0)")
    E("s_mul_i32 s99, s14, %d\ns_add_u32 s4, s4, s99\ns_addc_u32 s5, s5, 0\ns_mov_b32 s6, %d\ns_mov_b32 s7, 0x20000" % (16 * 129024, 16 * 129024))
    E("s_mov_b32 s10, %d\ns_mov_b32 s11, 0x20000" % (8 * 144 * 896 * 2))
    E("s_and_b32 s16, s14, 7\ns_mul_i32 s16, s16, %d\ns_lshr_b32 s17, s14, 3\ns_mul_i32 s17, s17, 896\ns_add_u32 s16, s16, s17" % (144 * 1792))
    E("v_mov_b32 v18, %d" % LDS_MB)
    E("s_waitcnt vmcnt(0)")
    stamp()
    E("s_barrier")
    E("s_cmp_lg_u32 s%d, 0\ns_cbranch_scc1 L_join" % sW)
    E("s_mov_b64 exec, 1")
    E("s_lshl_b32 s17, s14, 4\nv_mov_b32 v8, s17\nv_mov_b32 v9, 1")
    E("global_atomic_add v10, v8, v9, s[12:13] sc0")
    E("s_lshl_b32 s18, 1, s15")
    E("s_waitcnt vmcnt(0)")
    E("v_readfirstlane_b32 s19, v10")
    E("s_and_b32 s20, s19, 0xffff\ns_cmp_eq_u32 s20, 15\ns_cbranch_scc0 L_spin0")
    E("s_lshr_b32 s19, s19, 16\ns_or_b32 s18, s18, s19\ns_branch L_pub")
    E("L_spin0:\ns_mov_b32 s21, 0")
    E("L_spin:")
    E("global_load_dword v10, v8, s[12:13] sc1")
    E("s_waitcnt vmcnt(0)")
    E("v_readfirstlane_b32 s19, v10")
    E("s_and_b32 s20, s19, 0xffff\ns_cmp_eq_u32 s20, 16\ns_cbranch_scc1 L_pub")
    E("s_add_u32 s21, s21, 1\ns_cmp_lt_u32 s21, 4000\ns_cbranch_scc1 L_spin")
    E("s_lshl_b32 s19, s18, 16\nv_mov_b32 v9, s19")
    E("global_atomic_or v10, v8, v9, s[12:13] sc0")
    E("s_waitcnt vmcnt(0)")
    E("v_readfirstlane_b32 s19, v10")
    E("s_and_b32 s20, s19, 0xffff\ns_cmp_eq_u32 s20, 16\ns_cselect_b32 s18, s18, 0")
    E("L_pub:")
    E("v_mov_b32 v9, s18\nds_write_b32 v18, v9\ns_waitcnt lgkmcnt(0)")
    E("s_mov_b64 exec, -1")
    E("L_join:")
    E("s_barrier")
    E("ds_read_b32 v9, v18\ns_waitcnt lgkmcnt(0)")
    E("v_readfirstlane_b32 s18, v9")
    stamp()
    E("L_slice:")
    E("s_cmp_eq_u32 s18, 0\ns_cbranch_scc1 L_done")
    E("s_ff1_i32_b32 s19, s18\ns_sub_u32 s20, s18, 1\ns_and_b32 s18, s18, s20")
    E("s_lshl_b32 s19, s19, 2\ns_add_u32 s19, s19, s%d\ns_lshl_b32 s19, s19, 1" % sW)
    E("s_cmp_ge_u32 s19, 126\ns_cbranch_scc1 L_slice")
    E("s_lshl_b32 s20, s19, 10")
    for p in range(4):
        for u in range(2):
            for pc in range(4):
                E("buffer_load_dwordx4 %s, v16, s[4:7], s20 offen offset:%d sc1" % (vr(128 + 32 * p + 16 * u + 4 * pc), 1024 * u + 256 * pc))
        if p < 3:
            E("s_add_u32 s20, s20, %d" % (4 * 129024))
    for u in range(2):
        E("s_add_u32 s21, s19, %d\ns_mul_hi_u32 s22, s21, %d\ns_mul_i32 s23, s22, 14\ns_sub_u32 s23, s21, s23" % (u, (2 ** 32 + 13) // 14))
        E("s_mul_i32 s22, s22, %d\ns_lshl_b32 s23, s23, 6\ns_add_u32 s22, s22, s23\ns_add_u32 s%d, s22, s16" % (16 * 1792, 30 + u))
    for p in range(4):
        for u in range(2):
            for pc in range(4):
                d = 48 + 8 * u + 4 * (pc >> 1)
                E(mfma(vr(d), vr(20 if (pc & 1) == 0 else 40), vr(128 + 32 * p + 16 * u + 4 * pc), "0" if (p == 0 and (pc & 1) == 0) else vr(d)))
    for u in range(2):
        for k in range(2):
            d = 48 + 8 * u + 4 * k
            E("v_cvt_pk_bf16_f32 v%d, v%d, v%d\nv_cvt_pk_bf16_f32 v%d, v%d, v%d" % (d, d, d + 1, d + 1, d + 2, d + 3))
            E("buffer_store_dwordx2 v[%d:%d], v17, s[8:11], s%d offen offset:%d" % (d, d + 1, 30 + u, 16 * k))
    E("s_nop 1\ns_branch L_slice")
    E("L_done:")
if STAMP:
    stamp(not FUSE)
    E("s_waitcnt vmcnt(0)")
    stamp()
    E("v_mov_b32 v1, 0")
    E("v_cmp_eq_u32 vcc, 0, v0\ns_and_saveexec_b64 s[96:97], vcc\ns_cbranch_execz L_end")
    if STAMP == 4:
        E("s_load_dwordx2 s[98:99], s[0:1], 88\ns_waitcnt lgkmcnt(0)")
        offs = [4, 8, 12, 20, 24, 28, 36, 40, 44, 52, 56, 60]
        E("s_cmp_lg_u32 s2, 200\ns_cbranch_scc1 L_dbg2")
        for j, k in enumerate((2, 3, 4, 5, 6, 7)):
            E("s_sub_u32 s100, s%d, s%d\nv_mov_b32 v2, s100\nglobal_store_dword v1, v2, s[98:99] offset:%d" % (sStamp + 2 * k, sStamp, offs[j]))
        E("L_dbg2:\ns_cmp_lg_u32 s2, 72\ns_cbranch_scc1 L_end")
        for j, k in enumerate((2, 3, 4, 5, 6, 7)):
            E("s_sub_u32 s100, s%d, s%d\nv_mov_b32 v2, s100\nglobal_store_dword v1, v2, s[98:99] offset:%d" % (sStamp + 2 * k, sStamp, offs[6 + j]))
        E("s_branch L_end")
    for k in range(16):
        E("v_mov_b32 v2, s%d\nv_mov_b32 v3, s%d" % (sStamp + 2 * k, sStamp + 2 * k + 1))
        E("global_store_dwordx2 v1, v[2:3], s[%d:%d] offset:%d" % (sWSB, sWSB + 1, 8 * k))
        E("s_nop 1")
E("L_end:\ns_endpgm")
main_ins = P.ins

R = Prog()
F = R.emit
for s in stubs:
    F(s)


def xlane_max(F, reg, t1, t2):
    F("v_mbcnt_lo_u32_b32 v%d, -1, 0\nv_mbcnt_hi_u32_b32 v%d, -1, v%d" % (t1, t1, t1))
    for x in (16, 32):
        F("v_xor_b32 v%d, %d, v%d\nv_lshlrev_b32 v%d, 2, v%d" % (t2, x, t1, t2, t2))
        F("ds_bpermute_b32 v%d, v%d, v%d" % (t2, t2, reg))
        F("s_waitcnt lgkmcnt(0)")
        F("v_max_f32 v%d, v%d, v%d" % (reg, reg, t2))


F("L_fix:")
F("s_nop 15\ns_waitcnt lgkmcnt(0)")
F("s_mov_b32 s%d, %s" % (sT2, fbits(TOFF)))
for T in range(2):
    m = 2 + T
    regs = [S_(kt, T) + r for kt in range(4) for r in range(4)]
    F("v_max3_f32 v%d, v%d, v%d, v%d" % (m, regs[0], regs[1], regs[2]))
    for k in range(3, 15, 2):
        F("v_max3_f32 v%d, v%d, v%d, v%d" % (m, m, regs[k], regs[k + 1]))
    F("v_max_f32 v%d, v%d, v%d" % (m, m, regs[15]))
    xlane_max(F, m, 4, 5)
    F("v_add_f32 v%d, s%d, v%d" % (m, sT2, m))
    F("v_max_f32 v%d, s%d, v%d" % (m, sFloor, m))
    for j in range(4):
        F("v_sub_f32 v%d, v%d, v%d" % (vNegM + 4 * T + j, vNegM + 4 * T + j, m))
    for r in regs:
        F("v_sub_f32 v%d, v%d, v%d" % (r, r, m))
F("s_cmp_eq_u32 s%d, 1\ns_cbranch_scc1 L_fix_p" % sFirst)
for T in range(2):
    F("v_sub_f32 v4, 0, v%d\nv_exp_f32 v4, v4\ns_nop 0" % (2 + T))
    for j in range(64):
        F("v_mul_f32 v%d, v4, v%d" % (vO + 64 * T + j, vO + 64 * T + j))
    for j in range(4):
        F("v_accvgpr_read_b32 v5, a%d\nv_mul_f32 v5, v4, v5\nv_accvgpr_write_b32 a%d, v5" % (aL + 4 * T + j, aL + 4 * T + j))
F("L_fix_p:")
for kt in range(4):
    for T in range(2):
        for r in range(4):
            F("v_exp_f32 v%d, v%d" % (6 + r, S_(kt, T) + r))
        d = P_(kt >> 1, T) + 2 * (kt & 1)
        F("v_cvt_pk_bf16_f32 v%d, v6, v7\nv_cvt_pk_bf16_f32 v%d, v8, v9" % (d, d + 1))
F("s_nop 3\ns_setpc_b64 s[%d:%d]" % (sRet, sRet + 1))

F("L_fix9:")
F("s_nop 15\ns_waitcnt lgkmcnt(0)")
F("s_mov_b32 s%d, %s" % (sT2, fbits(TOFF)))
F("v_max3_f32 v2, v%d, v%d, v%d\nv_max_f32 v2, v2, v%d" % (vS9, vS9 + 1, vS9 + 2, vS9 + 3))
xlane_max(F, 2, 4, 5)
F("v_lshlrev_b32 v4, 2, v4\nv_add_u32 v4, %d, v4" % LDS_MB)
F("s_lshl_b32 s%d, s%d, 8\nv_add_u32 v5, s%d, v4" % (sT2 + 1, sW, sT2 + 1))
F("ds_write_b32 v5, v2\ns_waitcnt lgkmcnt(0)\ns_barrier")
for w in range(4):
    F("ds_read_b32 v%d, v4 offset:%d" % (6 + w, 256 * w))
F("s_waitcnt lgkmcnt(0)")
F("v_max3_f32 v2, v6, v7, v8\nv_max_f32 v2, v2, v9")
F("v_add_f32 v2, s%d, v2\nv_max_f32 v2, s%d, v2" % (sT2, sFloor))
for j in range(4):
    F("v_sub_f32 v%d, v%d, v2" % (vNegM + 8 + j, vNegM + 8 + j))
    F("v_sub_f32 v%d, v%d, v2" % (vS9 + j, vS9 + j))
F("s_cmp_eq_u32 s%d, 1\ns_cbranch_scc1 L_fix9_p" % sFirst)
F("v_sub_f32 v4, 0, v2\nv_exp_f32 v4, v4\ns_nop 0")
for j in list(range(aO9, aO9 + 16)) + list(range(aL + 8, aL + 12)):
    F("v_accvgpr_read_b32 v5, a%d\nv_mul_f32 v5, v4, v5\nv_accvgpr_write_b32 a%d, v5" % (j, j))
F("L_fix9_p:")
for r in range(4):
    F("v_exp_f32 v%d, v%d" % (6 + r, vS9 + r))
F("v_cvt_pk_bf16_f32 v%d, v6, v7\nv_cvt_pk_bf16_f32 v%d, v8, v9" % (vP9o, vP9o + 1))
F("ds_write_b64 v%d, v[%d:%d]\ns_waitcnt lgkmcnt(0)\ns_barrier" % (vP9W, vP9o, vP9o + 1))
F("ds_read_b128 %s, v%d offset:%d" % (vr(vP9), vLane16, LDS_P9 - LB))
F("ds_read_b128 %s, v%d offset:%d" % (vr(vP9 + 4), vLane16, LDS_P9 - LB + 1024))
F("s_waitcnt lgkmcnt(0)\ns_nop 3\ns_setpc_b64 s[%d:%d]" % (sRet, sRet + 1))

Z = Prog()
G = Z.emit
G("reduce_kernel:")
G("s_cmp_ge_u32 s2, 504\ns_cbranch_scc1 L_rend")
G("s_load_dwordx2 s[4:5], s[0:1], 96\ns_load_dwordx2 s[8:9], s[0:1], 80")
G("v_lshrrev_b32 v1, 6, v0\nv_and_b32 v2, 63, v0\ns_nop 0\nv_readfirstlane_b32 s3, v1")
G("s_lshl_b32 s12, s2, 2\ns_add_u32 s12, s12, s3")
G("s_mul_hi_u32 s13, s12, %d" % ((2 ** 32 + 125) // 126))
G("s_mul_i32 s14, s13, 126\ns_sub_u32 s14, s12, s14")
G("s_mul_hi_u32 s15, s14, %d" % ((2 ** 32 + 13) // 14))
G("s_mul_i32 s16, s15, 14\ns_sub_u32 s16, s14, s16")
G("s_mul_i32 s17, s13, %d\ns_lshl_b32 s18, s14, 10\ns_add_u32 s17, s17, s18" % (16 * 129024))
G("v_lshlrev_b32 v3, 4, v2")
G("s_waitcnt lgkmcnt(0)")
G("s_mov_b32 s6, %d\ns_mov_b32 s7, 0x20000" % (256 * 129024))
G("s_mov_b32 s10, %d\ns_mov_b32 s11, 0x20000" % (8 * 144 * 896 * 2))
for h in range(16):
    G("buffer_load_dwordx4 %s, v3, s[4:7], s17 offen" % vr(16 + 4 * h))
    G("s_add_u32 s17, s17, 129024")
G("s_and_b32 s18, s13, 7\ns_mul_i32 s18, s18, 144\ns_lshl_b32 s19, s15, 4\ns_add_u32 s18, s18, s19\ns_mul_i32 s18, s18, 1792")
G("s_lshr_b32 s19, s13, 3\ns_mul_i32 s19, s19, 896\ns_add_u32 s18, s18, s19\ns_lshl_b32 s19, s16, 6\ns_add_u32 s18, s18, s19")
G("v_and_b32 v4, 15, v2\nv_mul_u32_u24 v4, 1792, v4\nv_lshrrev_b32 v5, 4, v2\nv_lshl_add_u32 v4, v5, 3, v4")
for h in range(16):
    for j in range(4):
        r = 16 + 4 * h + j
        if h == 0:
            G("v_lshlrev_b32 v%d, 16, v%d\nv_and_b32 v%d, 0xffff0000, v%d" % (8 + 2 * j, r, 9 + 2 * j, r))
        else:
            G("v_lshlrev_b32 v6, 16, v%d\nv_and_b32 v7, 0xffff0000, v%d" % (r, r))
            G("v_add_f32 v%d, v%d, v6\nv_add_f32 v%d, v%d, v7" % (8 + 2 * j, 8 + 2 * j, 9 + 2 * j, 9 + 2 * j))
for j in range(4):
    G("v_cvt_pk_bf16_f32 v%d, v%d, v%d" % (16 + j, 8 + 2 * j, 9 + 2 * j))
G("buffer_store_dwordx2 v[16:17], v4, s[8:11], s18 offen")
G("buffer_store_dwordx2 v[18:19], v4, s[8:11], s18 offen offset:32")
G("L_rend:\ns_endpgm")

rep = []
main_ins = pad_hazards(main_ins, rep)
rare_ins = pad_hazards(R.ins, None)
red_ins = pad_hazards(Z.ins, None)
from collections import Counter
sys.stderr.write("hazard pads (main): %s\n" % dict(Counter(r[0] for r in rep)))
if OPT.get("v"):
    for r in rep:
        sys.stderr.write("  %s\n" % (r,))

txt = lambda ins: "\n".join(("" if i.kind == "label" else "    ") + i.text for i in ins)
hdr = open("concat_heads__gqa_block_cached__mha_block_cached__near_ridge.s.ref").read().split("; Override launch")[0]
print(hdr.rstrip())
if FUSE:
    print("; @launch grid=(256,1,1) block=(256,1,1) lds=%d" % LDS_TOTAL)
else:
    print("; @launch kernel=%s grid=(256,1,1) block=(256,1,1) lds=%d" % (KN, LDS_TOTAL))
    print("; @launch kernel=reduce_kernel grid=(504,1,1) block=(256,1,1) lds=0")
print('.amdgcn_target "amdgcn-amd-amdhsa--gfx950"')
print(".text")
print(".globl %s\n.p2align 8\n.type %s,@function" % (KN, KN))
print(txt(main_ins))
print(txt(rare_ins))
if not FUSE:
    print(".globl reduce_kernel\n.p2align 8\n.type reduce_kernel,@function")
    print(txt(red_ins))
print('.section .rodata,"a"')
for name, nv, acc in ((KN, 512, 256), ("reduce_kernel", 80, 80))[:1 if FUSE else 2]:
    print(""".p2align 6
.amdhsa_kernel %s
  .amdhsa_next_free_vgpr %d
  .amdhsa_next_free_sgpr 102
  .amdhsa_accum_offset %d
  .amdhsa_group_segment_fixed_size 0
  .amdhsa_kernarg_size 104
  .amdhsa_user_sgpr_count 2
  .amdhsa_user_sgpr_kernarg_segment_ptr 1
  .amdhsa_system_sgpr_workgroup_id_x 1
.end_amdhsa_kernel""" % (name, nv, acc))
```

```python
import sys, struct, math
sys.path.insert(0, "work")
from asmlib import *

OPT = dict(a.split("=") for a in sys.argv[1:] if "=" in a)
NT = OPT.get("nt", "nt").replace("_", " ")
NTK = OPT.get("ntk", NT).replace("_", " ")
NTV = OPT.get("ntv", NT).replace("_", " ")
WNT = OPT.get("wnt", "").replace("_", " ")
STP = OPT.get("st", "").replace("_", " ")
STAMP = int(OPT.get("stamp", "0"))
LEAD_K = int(OPT.get("lk", "6"))
LEAD_V = int(OPT.get("lv", "5"))
CAP = int(OPT.get("cap", "4"))
FUSE = int(OPT.get("fuse", "1"))
LDP = OPT.get("ld", "sc1").replace("_", " ")
WSOFF = int(OPT.get("wsoff", "0"))
if FUSE and "st" not in OPT:
    STP = "sc1"
VMX = int(OPT.get("vmx", "24"))
DSTEP = int(OPT.get("dstep", "4"))
CAPV = int(OPT.get("capv", "0"))
QK2T = int(OPT.get("qk2t", "1"))

KN = "concat_heads__gqa_block_cached__mha_block_cached__near_ridge_kernel"
NSLOT = 9
SLOT = 16384
RING = NSLOT * SLOT
LDS_P9 = RING
LDS_MB = RING + 2048
LDS_O9 = RING + 3072
LDS_XB = 7 * SLOT
LDS_TOTAL = 163840
LB = 131072
TOFF = 7.0
CSCALE = math.log2(math.e) / 16.0
BIG = 10 ** 6


def fbits(x):
    return "0x%08x" % struct.unpack("<I", struct.pack("<f", x))[0]


vr = lambda n, k=4: "v[%d:%d]" % (n, n + k - 1)
ar = lambda n, k=4: "a[%d:%d]" % (n, n + k - 1)
srd = lambda n: "s[%d:%d]" % (n, n + 3)

SRD_X, SRD_WQ, SRD_K, SRD_V, SRD_WO, SRD_WS = 4, 8, 12, 16, 20, 24
sW, sW4K, sXw = 28, 29, 30
sOffK, sOffV, sTmpO, sLoop = 31, 32, 33, 34
sPVb, sKa, sKb, sVa, sVb = 36, 37, 38, 39, 40
sNKa, sNKb, sNVa, sNVb = 41, 42, 43, 50
sD0, sD1, sD2, sD3, sD4 = 51, 52, 53, 54, 55
sForce, sFloor, sFirst, sRet = 44, 46, 47, 48
sMask = 56
sT0, sT1, sT2, sT3 = 57, 58, 59, 60
sWhi = 61
sWSB = 62
sStamp = 64
sXB = 96

vDWO, vLane16, vP9W, vDKV = 10, 11, 12, 13
vXR = 14
vK, vK9, vV = 20, 24, 28
vDWQ = 36
vDX = 37
vChk = 39
vW = 40
vTmp = 44
vNegM = 52
vP = 64
vP9o = 80
vP9 = 84
vS = 92
vS9 = 124
vO = 128
aQ = 0
aO9 = 96
aL = 112
aOnes = 124
aKB, NKB = 128, 10
aVB, NVB = 168, 16
SLAB = 131072

P = Prog()
E = P.emit
stubs = []
nstamp = [0]
cyc = [0]


def stamp(cond=True):
    if STAMP and cond and nstamp[0] < (16 if STAMP in (5, 6) else 8):
        E("s_memrealtime s[%d:%d]" % (sStamp + 2 * nstamp[0], sStamp + 2 * nstamp[0] + 1))
        E("s_waitcnt lgkmcnt(0)")
        nstamp[0] += 1


def cstamp(on):
    if STAMP and on:
        E("s_memtime s[%d:%d]" % (80 + 2 * cyc[0], 81 + 2 * cyc[0]))
        E("s_waitcnt lgkmcnt(0)")
        cyc[0] += 1


class Item:
    def __init__(self, text, earliest=-1, deadline=BIG, tag=None, cost=None):
        self.text, self.earliest, self.deadline, self.tag = text, earliest, deadline, tag
        if callable(text):
            self.cost = cost or 1
        else:
            self.cost = cost if cost is not None else sum(Ins(l.strip()).cost for l in text.split("\n") if l.strip())

    def emit(self):
        if callable(self.text):
            self.text()
        else:
            E(self.text, tag=self.tag)


def run_phase(mf, queues, name=""):
    qs = [list(q) for q in queues]
    tokens = [0]
    over = [0]

    def fill(g):
        while True:
            best = None
            for qi, q in enumerate(qs):
                if q and q[0].earliest <= g:
                    forced = q[0].deadline <= g
                    if forced or q[0].cost <= tokens[0]:
                        key = (0 if forced else 1, q[0].deadline, qi)
                        if best is None or key < best[0]:
                            best = (key, qi)
            if best is None:
                break
            it = qs[best[1]].pop(0)
            w0 = P.nwaits
            it.emit()
            tokens[0] -= it.cost + (P.nwaits - w0)

    tokens[0] = 0
    fill(-1)
    tokens[0] = 0
    for g, m in enumerate(mf):
        w0 = P.nwaits
        for t in m.get("pre", []):
            t() if callable(t) else E(t)
        if m.get("waitfor") and P._need(P.dsq, Ins(m["text"]).src) >= 0:
            P.wait_ds_regs(m["waitfor"] | Ins(m["text"]).src)
        E(m["text"])
        tokens[0] = min(CAP, tokens[0] + 2 - (P.nwaits - w0))
        if tokens[0] < -2:
            over[0] += -2 - tokens[0]
            tokens[0] = -2
        fill(g)
    left = sum(it.cost for q in qs for it in q)
    for q in qs:
        for it in q:
            it.emit()
    if OPT.get("v"):
        sys.stderr.write("phase %s: %d mfma, overflow %d, leftover %d units\n" % (name, len(mf), over[0], left))


areg_set = lambda n, k=4: {("a", n + i) for i in range(k)}
mfma = lambda d, a, b, c: "v_mfma_f32_16x16x32_bf16 %s, %s, %s, %s" % (d, a, b, c)


class Frags:
    def __init__(self, pool, npool, tr, lead):
        self.pool, self.n, self.tr, self.lead = pool, npool, tr, lead
        self.fr = []
        self.first = []

    def new(self, mf, areg, off, before=(), after=()):
        b = self.pool + 4 * (len(self.fr) % self.n)
        self.fr.append((b, areg, off, list(before), list(after)))
        self.first.append(len(mf))
        return b

    def texts(self, f):
        b, areg, off, before, after = self.fr[f]
        t = list(before)
        if self.tr:
            t.append("ds_read_b64_tr_b16 %s, v%d offset:%d" % (ar(b, 2), areg, off))
            t.append("ds_read_b64_tr_b16 %s, v%d offset:%d" % (ar(b + 2, 2), areg, off + 2048))
        else:
            t.append("ds_read_b128 %s, v%d offset:%d" % (ar(b), areg, off))
        return t + after

    def pair_waits(self, mf):
        for f in range(0, len(self.fr) - 1, 2):
            mf[self.first[f]]["waitfor"] = areg_set(self.fr[f + 1][0])

    def items(self, skip):
        out = []
        for f in range(skip, len(self.fr)):
            e = -1 if f < self.lead else self.first[f - self.lead]
            d = -1 if f < self.lead else self.first[min(f - self.lead + 2, f)]
            for t in self.texts(f):
                out.append(Item(t, e, d))
        return out

    def head_items(self, nmf, step, earliest_min=-1):
        out = []
        for f in range(self.lead):
            e = max(earliest_min, nmf - 1 - (self.lead - f) * step)
            for t in self.texts(f):
                out.append(Item(t, e, min(nmf - 1, e + 2 * step)))
        return out


def m0set(slot):
    if isinstance(slot, tuple):
        return "s_add_u32 m0, s%d, %d" % (sW4K, slot[1])
    return "s_add_u32 m0, s%d, s%d" % (sW4K, slot)


def dma_kv(which, slot, tag):
    s_srd, s_off = (SRD_K, sOffK) if which == "K" else (SRD_V, sOffV)
    res = [m0set(slot)]
    for m in range(4):
        res.append(("s_waitcnt vmcnt(%d)\n" % (CAPV - 1) if CAPV and not isinstance(slot, tuple) else "") +
                   "buffer_load_dwordx4 v%d, %s, s%d offen offset:%d %s lds"
                   % (vDKV, srd(s_srd), s_off, m * 1024, NTK if which == "K" else NTV))
    res.append("s_add_u32 s%d, s%d, %d" % (s_off, s_off, SLOT))
    return [(r, tag) for r in res]


def dma_wq(s, slot, tag):
    res = [(m0set(slot), tag)]
    for m in range(4):
        so = (32 * s + 16 * (m & 1) + 4 * (m >> 1)) * 8192 - m * 1024
        res.append(("s_mov_b32 s%d, %d\nbuffer_load_dwordx4 v%d, %s, s%d offen offset:%d %s lds"
                    % (sTmpO, so, vDWQ, srd(SRD_WQ), sTmpO, m * 1024, WNT), tag))
    return res


def dma_wo(q, slot, tag):
    sg, a = q >> 1, q & 1
    res = [(m0set(slot), tag)]
    for m in range(4):
        so = a * 114688 + m * 6144 + 128 * sg
        res.append(("s_mov_b32 s%d, %d\nbuffer_load_dwordx4 v%d, %s, s%d offen offset:%d %s lds"
                    % (sTmpO, so, vDWO, srd(SRD_WO), sTmpO, m * 1024, WNT), tag))
    return res


def dma_x(p, tag):
    res = []
    buf = (p & 1) * 6144
    for n in range(6):
        t = ""
        if n == 0:
            t += "s_add_u32 m0, s%d, %d\n" % (sXB, buf)
        if n == 4:
            t += "s_add_u32 m0, s%d, %d\n" % (sXB, buf + 4096)
        if n < 4:
            t += "s_add_u32 s%d, s%d, %d\n" % (sTmpO, sXw, 8 * n * 896 + 128 * p - 1024 * n)
            imm = 1024 * n
        else:
            t += "s_mov_b32 s%d, %d\n" % (sTmpO, (128 + 8 * (n - 4)) * 896 + 128 * p - 1024 * (n - 4))
            imm = 1024 * (n - 4)
        t += "buffer_load_dwordx4 v%d, %s, s%d offen offset:%d %s lds" % (vDX + (n & 1), srd(SRD_X), sTmpO, imm, WNT)
        res.append((t, tag))
    return res


def spread(pieces, start, step):
    out = []
    k = 0
    for (t, tag) in pieces:
        e = int(start + k * step)
        out.append(Item(t, e, e + max(1, int(step)), tag))
        if "buffer_load" in t:
            k += 1
    return out


def emit_pieces(pieces):
    for (t, tag) in pieces:
        E(t, tag=tag)


def vmwait(tags):
    c = P.vm_count_after(tags)
    if c is not None:
        E("s_waitcnt vmcnt(%d)" % min(63, c))


def inc_slot(dst, src):
    return "s_add_u32 s%d, s%d, %d\ns_cmp_eq_u32 s%d, %d\ns_cselect_b32 s%d, 0, s%d" % (dst, src, SLOT, dst, RING, dst, dst)


def softmax_items(regs_S, regs_P, earliest, deadline, bank):
    t = vTmp + 4 * bank
    its = [Item("v_exp_f32 v%d, v%d" % (t + r, regs_S + r), earliest, deadline) for r in range(4)]
    its.append(Item("v_cvt_pk_bf16_f32 v%d, v%d, v%d" % (regs_P, t, t + 1), earliest, deadline))
    its.append(Item("v_cvt_pk_bf16_f32 v%d, v%d, v%d" % (regs_P + 1, t + 2, t + 3), earliest, deadline))
    return its


def check_items(base, earliest, deadline):
    x = vChk
    return [Item("v_or3_b32 v%d, v%d, v%d, v%d" % (x, base, base + 1, base + 2), earliest, deadline),
            Item("v_or3_b32 v%d, v%d, v%d, v%d" % (x, x, base + 3, base + 4), earliest, deadline),
            Item("v_or3_b32 v%d, v%d, v%d, v%d" % (x, x, base + 5, base + 6), earliest, deadline),
            Item("v_bitop3_b32 v%d, v%d, v%d, s%d bitop3:0xa8" % (x, x, base + 7, sMask), earliest, deadline),
            Item("v_cmp_ne_u32 vcc, 0, v%d" % x, earliest, deadline)]


nchk = [0]


def check_branch(sub, force):
    k = nchk[0]
    nchk[0] += 1
    t = ""
    if force:
        t += "s_or_b64 vcc, vcc, s[%d:%d]\n" % (sForce, sForce + 1)
    t += "s_cbranch_vccnz L_rare%d\nL_back%d:" % (k, k)
    stubs.append("L_rare%d:\ns_call_b64 s[%d:%d], %s\ns_branch L_back%d" % (k, sRet, sRet + 1, sub, k))
    return t


S_ = lambda kt, T: vS + 8 * kt + 4 * T
P_ = lambda s, T: vP + 8 * s + 4 * T
Q_ = lambda T, s: aQ + 32 * T + 4 * s
O_ = lambda T, t: vO + 64 * T + 4 * t
SPECIAL = {6: 0, 7: 1, 14: 2, 15: 3}
vadd = lambda r, s: "v_add_u32 v%d, s%d, v%d" % (r, s, r)


def build_qk():
    fr = Frags(aKB, NKB, False, LEAD_K)
    mf = []
    end_kt = {}
    for kt in range(4):
        for s in range(8):
            aft = []
            if s >= 4 and kt == 1:
                aft = [vadd(vK + (s & 3), sD0)]
            if s >= 4 and kt == 3:
                aft = [vadd(vK + (s & 3), sD1)]
            b = fr.new(mf, vK + (s & 3), (kt & 1) * 2048 + (s >> 2) * 256, after=aft)
            for T in range(2):
                mf.append(dict(text=mfma(vr(S_(kt, T)), ar(b), ar(Q_(T, s)), vr(vNegM + 4 * T) if s == 0 else vr(S_(kt, T)))))
            if kt == 1:
                b9 = fr.new(mf, vK9 + (s & 3), (s >> 2) * 256, after=[vadd(vK9 + (s & 3), sD2)] if s >= 4 else [])
                mf.append(dict(text=mfma(vr(vS9), ar(b9), ar(Q_(2, s)), vr(vNegM + 8) if s == 0 else vr(vS9))))
        end_kt[kt] = len(mf) - 1
    fr.pair_waits(mf)
    return fr, mf, end_kt


def build_pv():
    fr = Frags(aVB, NVB, True, LEAD_V)
    mf = []
    chk9_at = s1_at = None
    for s in range(2):
        if s == 1:
            s1_at = len(mf)
        for T in range(2):
            mf.append(dict(text=mfma(ar(aL + 4 * T), ar(aOnes), vr(P_(s, T)), ar(aL + 4 * T))))
        for t in range(16):
            aft = [vadd(vV + (t & 7), sD3 if s == 0 else sD4)] if t >= 8 else []
            b = fr.new(mf, vV + (t & 7), (t >> 3) * 256, after=aft)
            for T in range(2):
                mf.append(dict(text=mfma(vr(O_(T, t)), ar(b), vr(P_(s, T)), vr(O_(T, t)))))
            if t in SPECIAL:
                if chk9_at is None:
                    chk9_at = len(mf)
                o9 = aO9 + 4 * SPECIAL[t]
                mf.append(dict(text=mfma(ar(o9), ar(b), vr(vP9 + 4 * s), ar(o9))))
            if t == 8:
                mf.append(dict(text=mfma(ar(aL + 8), ar(aOnes), vr(vP9 + 4 * s), ar(aL + 8))))
    fr.pair_waits(mf)
    return fr, mf, chk9_at, s1_at


def scalar_next():
    return [inc_slot(sNKa, sVb), inc_slot(sNKb, sNKa),
            "s_sub_u32 s%d, s%d, s%d\ns_sub_u32 s%d, s%d, s%d" % (sT0, sNKa, sKa, sT1, sNKb, sKb),
            "s_cmp_eq_u32 s%d, 0\ns_cselect_b32 s%d, s%d, s%d" % (sWhi, sD2, sT0, sT1),
            "s_sub_u32 s%d, s%d, s%d" % (sD0, sKb, sKa),
            "s_sub_u32 s%d, s%d, s%d" % (sD1, sNKa, sKb),
            inc_slot(sNVa, sNKb), inc_slot(sNVb, sNVa),
            "s_sub_u32 s%d, s%d, s%d" % (sD3, sVb, sVa),
            "s_sub_u32 s%d, s%d, s%d" % (sD4, sNVa, sVb)]


TB = [1] + list(range(13, 28))
woslot = lambda q: (64 + q) % NSLOT
vOF = 64
OF_ = lambda T, s: vOF + 32 * T + 4 * s
aOF9 = 0
accb = lambda sg: 32 if sg == 0 else 128 + 32 * ((sg - 1) & 3)
acc9 = lambda sg: 2 + 4 * (sg & 1)
vRI = 28
vST, vST9 = 12, 0


def build_stage(sg):
    fr = Frags(aVB, NVB, True, LEAD_V)
    mf = []
    kfirst = {}
    for a in range(2):
        q = 2 * sg + a
        win = woslot(q) >> 2
        pw = (woslot(q - 1) >> 2) if q > 0 else 0
        for b in range(4):
            sl = 4 * a + b
            for nt in range(4):
                r = TB[4 * b + nt]
                bef = []
                if win != pw:
                    bef = ["v_add_u32 v%d, 0x%x, v%d" % (r, ((win - pw) * 65536) & 0xffffffff, r)]
                bb = fr.new(mf, r, (woslot(q) & 3) * 16384, before=bef)
                kfirst.setdefault(sl, len(mf))
                for T in range(2):
                    d = accb(sg) + 16 * T + 4 * nt
                    mf.append(dict(text=mfma(vr(d), ar(bb), vr(OF_(T, sl)), "0" if sl == 0 else vr(d))))
                if nt == 3:
                    mf.append(dict(text=mfma(vr(acc9(sg)), ar(bb), ar(aOF9 + 4 * sl), "0" if sl == 0 else vr(acc9(sg)))))
    fr.pair_waits(mf)
    return fr, mf, kfirst


def tb_setup():
    t = ["v_mbcnt_lo_u32_b32 v2, -1, 0\nv_mbcnt_hi_u32_b32 v2, -1, v2",
         "v_lshrrev_b32 v3, 2, v2\nv_lshlrev_b32 v3, 7, v3", "v_and_b32 v4, 3, v2\nv_lshl_add_u32 v3, v4, 3, v3",
         "v_lshrrev_b32 v4, 3, v2\nv_and_b32 v4, 3, v4", "v_xor_b32 v4, s%d, v4" % sW]
    for b in range(4):
        t.append("s_xor_b32 s%d, s%d, %d\ns_lshl_b32 s%d, s%d, 12" % (96 + b, sW, b, 96 + b, 96 + b))
    for nt in range(4):
        t.append("v_xor_b32 v5, %d, v4\nv_lshl_add_u32 v5, v5, 5, v3" % nt)
        for b in range(4):
            t.append("v_add_u32 v%d, s%d, v5" % (TB[4 * b + nt], 96 + b))
    t.append("v_lshlrev_b32 v2, 4, v2")
    t.append("v_add_u32 v%d, s%d, v2" % (vST, sW4K))
    t.append("s_lshl_b32 s96, s%d, 10\nv_add_u32 v%d, s96, v2" % (sW, vST9))
    return t


def bar(vm):
    E("s_waitcnt vmcnt(%d)" % vm)
    E("s_barrier")


def block(sites, last=False, cs=False):
    cstamp(cs)
    bar(VMX)
    cstamp(cs)
    fr, mf, end_kt = build_qk()
    pv_fr, pv_mf, chk9_at, s1_at = build_pv()
    n = len(mf)
    b1 = end_kt[1] + 1
    mf[b1]["pre"] = [lambda: bar(VMX)]
    rq = fr.items(LEAD_K) + pv_fr.head_items(n, 2, fr.first[-1] - 2 * LEAD_K + 2)
    dq = spread(sites[0], 0, DSTEP) + spread(sites[1], b1, DSTEP)
    vq = []
    bank = 0
    for kt in range(3):
        if kt == 1:
            vq += softmax_items(vS9, vP9o, end_kt[1] + 5, BIG, bank)
            vq.append(Item("ds_write_b64 v%d, v[%d:%d]" % (vP9W, vP9o, vP9o + 1), end_kt[1] + 5, BIG))
            bank ^= 1
        for T in range(2):
            if kt == 2 and T >= QK2T:
                continue
            vq += softmax_items(S_(kt, T), P_(kt >> 1, T) + 2 * (kt & 1), end_kt[kt] + 4, BIG, bank)
            bank ^= 1
        if kt == 1:
            vq += check_items(vP, end_kt[kt] + 4, BIG)
    run_phase(mf, [rq, dq, vq], "qk")
    E(check_branch("L_fix", True))
    cstamp(cs)
    pend = [k for k, (_, d) in enumerate(P.dsq) if d == set()]
    if pend:
        E("s_waitcnt lgkmcnt(%d)" % (len(P.dsq) - 1 - pend[-1]))
    bar(VMX)
    cstamp(cs)
    mf = pv_mf
    n = len(mf)
    mf[chk9_at]["pre"] = [lambda: E(check_branch("L_fix9", True))]
    mf[s1_at]["pre"] = [lambda: E(check_branch("L_fix", False)), lambda: bar(VMX)]
    rq = [Item("ds_read_b128 %s, v%d offset:%d" % (vr(vP9), vLane16, LDS_P9 - LB), -1, -1),
          Item("ds_read_b128 %s, v%d offset:%d" % (vr(vP9 + 4), vLane16, LDS_P9 - LB + 1024), -1, -1)]
    rq += pv_fr.items(LEAD_V)
    emin = pv_fr.first[-1] - 2 * LEAD_V + 2
    if not last:
        rq += build_qk()[0].head_items(n, 2, emin)
    else:
        rq += build_stage(0)[0].head_items(n, 2, emin)
    dq = spread(sites[2], 0, DSTEP) + spread(sites[3], s1_at, DSTEP)
    vq = check_items(vP9, 5, chk9_at - 2)
    bank = 0
    for kt, T in [(2, T) for T in range(QK2T, 2)] + [(3, 0), (3, 1)]:
        vq += softmax_items(S_(kt, T), P_(1, T) + 2 * (kt & 1), 0, s1_at - 8, bank)
        bank ^= 1
    vq += check_items(vP + 8, chk9_at, s1_at - 2)
    if not last:
        sc = ["s_mov_b32 s%d, s%d" % (a, b_) for a, b_ in
              ((sPVb, sVb), (sKa, sNKa), (sKb, sNKb), (sVa, sNVa), (sVb, sNVb))]
        sc.append("s_mov_b64 s[%d:%d], 0\ns_mov_b32 s%d, 0\ns_mov_b32 s%d, 0" % (sForce, sForce + 1, sFloor, sFirst))
        nx = scalar_next()
        lastadd = pv_fr.first[len(pv_fr.fr) - 1 - LEAD_V + 2]
        sq = [Item(t, s1_at + 3, BIG) for t in sc + nx[:8]] + [Item(t, lastadd + 1, BIG) for t in nx[8:]]
    else:
        sq = [Item(t, s1_at, emin - 1) for t in tb_setup()]
    run_phase(mf, [rq, dq, vq, sq], "pv")
    cstamp(cs)


E("%s:" % KN)
E("s_cmp_ge_u32 s2, 256\ns_cbranch_scc1 L_end")
stamp()
if STAMP == 1:
    E("s_memtime s[92:93]\ns_waitcnt lgkmcnt(0)")
E("s_and_b32 s%d, s2, 7" % sT0)
E("s_lshr_b32 s%d, s2, 3" % sT1)
E("s_lshr_b32 s96, s%d, 4" % sT1)
E("s_lshr_b32 s97, s%d, 1\ns_and_b32 s97, s97, 7" % sT1)
E("s_and_b32 s98, s%d, 1\ns_lshl_b32 s99, s%d, 1\ns_add_u32 s98, s98, s99" % (sT1, sT0))
E("s_mul_i32 s99, s96, 40")
E("s_add_u32 s0, s0, s99\ns_addc_u32 s1, s1, 0")
E("s_load_dwordx2 s[4:5], s[0:1], 0")
E("s_load_dwordx2 s[8:9], s[0:1], 24")
E("s_load_dwordx2 s[12:13], s[0:1], 8")
E("s_load_dwordx2 s[16:17], s[0:1], 16")
E("s_load_dwordx2 s[20:21], s[0:1], 32")
E("s_sub_u32 s0, s0, s99\ns_subb_u32 s1, s1, 0")
E("s_load_dwordx2 s[24:25], s[0:1], 96")
E("v_lshrrev_b32 v1, 6, v0")
E("v_and_b32 v2, 63, v0")
E("v_readfirstlane_b32 s%d, v1" % sW)
E("v_and_b32 v8, 15, v2")
E("v_lshrrev_b32 v9, 4, v2")
E("v_lshrrev_b32 v100, 3, v2\nv_mul_u32_u24 v100, 896, v100\nv_and_b32 v101, 7, v2\nv_xor_b32 v102, v101, v9")
E("v_lshl_add_u32 v%d, v102, 4, v100\nv_xor_b32 v102, 4, v102\nv_lshl_add_u32 v%d, v102, 4, v100" % (vDX, vDX + 1))
E("v_lshrrev_b32 v3, 5, v2")
E("v_and_b32 v4, 31, v2")
E("v_lshl_add_u32 v5, v1, 1, v3")
E("v_lshlrev_b32 v6, 1, v5\nv_xor_b32 v6, v6, v4\nv_lshlrev_b32 v6, 4, v6")
E("v_and_b32 v7, 2, v1\nv_lshlrev_b32 v7, 2, v7")
E("v_and_b32 v103, 1, v1\nv_lshl_add_u32 v7, v103, 1, v7\nv_add_u32 v7, v7, v3")
E("v_lshl_add_u32 v%d, v7, 13, v6" % vDWQ)
E("v_lshl_add_u32 v7, v1, 3, v3")
E("v_lshl_add_u32 v%d, v7, 9, v6" % vDKV)
E("s_lshl_b32 s%d, s%d, 12" % (sW4K, sW))
E("s_lshr_b32 s%d, s%d, 1" % (sWhi, sW))
E("s_mul_i32 s%d, s%d, %d" % (sXw, sW, 32 * 896))
E("s_mul_i32 s100, s97, 129024")
E("s_lshl_b32 s101, s98, 9")
E("s_mul_i32 s35, s%d, 12288\ns_add_u32 s35, s35, %d" % (sW, LDS_XB))
E("s_waitcnt lgkmcnt(0)")
stamp(STAMP == 6)
E("s_add_u32 s4, s4, s100\ns_addc_u32 s5, s5, 0\ns_mov_b32 s6, 129024\ns_mov_b32 s7, 0x20000")
E("s_add_u32 s8, s8, s101\ns_addc_u32 s9, s9, 0\ns_sub_u32 s10, %d, s101\ns_mov_b32 s11, 0x20000" % (448 * 8192))
sXB = 35
wslot = lambda N: (N % 7) * SLOT
kvslot = lambda n: (n % NSLOT) * SLOT
emit_pieces(dma_x(0, ("X", 0)))
emit_pieces(dma_wq(0, ("c", wslot(0)), ("W", 0)))
emit_pieces(dma_wq(1, ("c", wslot(1)), ("W", 1)))
E("s_lshl_b32 s99, s97, 4\ns_add_u32 s99, s99, s98")
E("s_xor_b32 s100, s96, 1\ns_lshr_b32 s99, s99, s100")
if OPT.get("map") == "l2":
    E("s_and_b32 s99, s2, 7")
E("s_lshl_b32 s99, s99, 19")
E("s_add_u32 s12, s12, s99\ns_addc_u32 s13, s13, 0\ns_mov_b32 s14, 0x80000\ns_mov_b32 s15, 0x20000")
E("s_add_u32 s16, s16, s99\ns_addc_u32 s17, s17, 0\ns_mov_b32 s18, 0x80000\ns_mov_b32 s19, 0x20000")
E("s_mul_i32 s99, s98, %d" % (256 * 896))
E("s_add_u32 s20, s20, s99\ns_addc_u32 s21, s21, 0\ns_mov_b32 s22, %d\ns_mov_b32 s23, 0x20000" % (256 * 896))
if STAMP:
    E("s_lshl_b32 s99, s2, 8\ns_add_u32 s99, s99, 0x4000000\ns_add_u32 s%d, s24, s99\ns_addc_u32 s%d, s25, 0" % (sWSB, sWSB + 1))
E("s_lshl_b32 s99, s96, 3\ns_add_u32 s99, s99, s97\ns_lshl_b32 s99, s99, 4\ns_add_u32 s3, s99, s98")
E("s_lshl_b32 s99, s3, 17")
E("s_add_u32 s24, s24, s99\ns_addc_u32 s25, s25, 0\ns_mov_b32 s26, %d\ns_mov_b32 s27, 0x20000" % SLAB)
E("s_mov_b32 s%d, 0\ns_mov_b32 s%d, 0" % (sOffK, sOffV))


def rho(dst, i, t1):
    E("v_lshrrev_b32 v%d, 1, v%d\nv_and_b32 v%d, 3, v%d\nv_lshlrev_b32 v%d, 3, v%d" % (dst, i, dst, dst, dst, dst))
    E("v_lshrrev_b32 v%d, 3, v%d\nv_lshl_add_u32 v%d, v%d, 1, v%d" % (t1, i, dst, t1, dst))
    E("v_and_b32 v%d, 1, v%d\nv_add_u32 v%d, v%d, v%d" % (t1, i, dst, dst, t1))


E("v_lshlrev_b32 v102, 1, v9\nv_xor_b32 v102, v102, v101\nv_lshl_add_u32 v102, v102, 4, v100\nv_add_u32 v%d, s%d, v102" % (vDWO, sXw))
E("v_lshrrev_b32 v100, 1, v8\nv_xor_b32 v100, v100, v9\nv_lshlrev_b32 v101, 7, v8\nv_add_u32 v101, s%d, v101" % sXB)
E("v_lshl_add_u32 v%d, v100, 4, v101\nv_xor_b32 v100, 4, v100\nv_lshl_add_u32 v%d, v100, 4, v101" % (vXR, vXR + 1))
E("v_lshrrev_b32 v103, 2, v2")
rho(100, 103, 101)
E("v_and_b32 v101, 7, v103")
E("v_and_b32 v102, 3, v2")
E("v_lshlrev_b32 v3, 1, v101\nv_lshlrev_b32 v4, 2, v1\nv_xor_b32 v3, v3, v4\nv_xor_b32 v3, v3, v102")
E("v_lshrrev_b32 v5, 1, v102\nv_lshlrev_b32 v5, 3, v5\nv_lshl_add_u32 v5, v100, 9, v5")
for b in range(4):
    E("v_xor_b32 v4, %d, v3\nv_lshl_add_u32 v%d, v4, 4, v5\nv_xor_b32 v%d, 8, v%d" % (4 * b, vW + b, vW + 4 + b, vW + b))
emit_pieces(dma_x(1, ("X", 1)))
emit_pieces(dma_wq(2, ("c", wslot(2)), ("W", 2)))
E("v_lshlrev_b32 v3, 1, v1\nv_xor_b32 v3, v3, v101")
for b in range(8):
    E("v_xor_b32 v4, %d, v3\nv_lshlrev_b32 v4, 5, v4\nv_lshl_add_u32 v4, v102, 3, v4" % b)
    E("v_lshl_add_u32 v4, v100, 9, v4\nv_add_u32 v%d, %d, v4" % (vV + b, kvslot(2)))
rho(100, 8, 101)
E("v_and_b32 v101, 7, v8\nv_lshlrev_b32 v101, 1, v101\nv_lshlrev_b32 v4, 2, v1\nv_xor_b32 v101, v101, v4\nv_xor_b32 v101, v101, v9")
for b in range(4):
    E("v_xor_b32 v4, %d, v101\nv_lshlrev_b32 v4, 4, v4\nv_lshl_add_u32 v%d, v100, 9, v4" % (4 * b, vK + b))
E("s_and_b32 s99, s%d, 1\ns_lshl_b32 s99, s99, 11" % sW)
E("s_lshl_b32 s100, s%d, 14\ns_add_u32 s99, s99, s100" % sWhi)
for b in range(4):
    E("v_add_u32 v%d, s99, v%d" % (vK9 + b, vK + b))
E("v_lshlrev_b32 v%d, 4, v2\nv_add_u32 v%d, %d, v%d" % (vLane16, vLane16, LB, vLane16))
E("s_lshl_b32 s99, s%d, 10\ns_and_b32 s100, s%d, 1\ns_lshl_b32 s100, s100, 3\ns_add_u32 s99, s99, s100\ns_add_u32 s99, s99, %d"
  % (sWhi, sW, LDS_P9 - LB))
E("v_add_u32 v%d, s99, v%d" % (vP9W, vLane16))
E("s_mov_b32 s%d, 0x40004000" % sMask)
emit_pieces(dma_wq(3, ("c", wslot(3)), ("W", 3)))
stamp(STAMP == 6)

QA = lambda T, sd, v: (64, 128)[T] + 4 * (2 * sd + v)
QA9 = lambda sd, v: 48 + 4 * (2 * (sd >> 2) + v)
X_ = lambda T, s: 56 * T + 4 * s


def xread_texts(p):
    return ["ds_read_b128 %s, v%d offset:%d" % (ar(X_(T, s)), vXR + (s & 1), (p & 1) * 6144 + T * 2048)
            for s in (2 * p, 2 * p + 1) for T in range(3)]


def build_qp(s):
    fr = Frags(aVB, NVB, True, LEAD_V)
    mf = []
    for sd in range(8):
        for v in range(2):
            r = vW + 4 * v + (sd & 3)
            aft = []
            if sd >= 4 and s < 13:
                aft = ["v_add_u32 v%d, 0x%x, v%d" % (r, (wslot(s + 1) - wslot(s)) & 0xffffffff, r)]
            b = fr.new(mf, r, (sd >> 2) * 256, after=aft)
            for T in range(2):
                mf.append(dict(text=mfma(vr(QA(T, sd, v)), ar(b), ar(X_(T, s)), "0" if s == 0 else vr(QA(T, sd, v)))))
            if (sd & 3) == 3:
                mf.append(dict(text=mfma(vr(QA9(sd, v)), ar(b), ar(X_(2, s)), "0" if s == 0 else vr(QA9(sd, v)))))
    fr.pair_waits(mf)
    return fr, mf


Wp = lambda N: dma_wq(N, ("c", wslot(N)), ("W", N))
KVp = lambda n: dma_kv("K" if (n & 3) < 2 else "V", ("c", kvslot(n)), ("KV", n))
plan = {0: [4], 1: [5], 2: [6, 7], 3: [8], 4: [9, 10], 5: [11], 6: [12], 7: [13]}
vmwait([("X", 0)])
for t in xread_texts(0):
    E(t)
stamp(STAMP == 6)
zero_q = ["v_mov_b32 v%d, 0" % r for r in range(192, 256)]
for N in range(14):
    fr, mf = build_qp(N)
    n = len(mf)
    vmwait([("W", min(N + 1, 13))])
    E("s_barrier")
    stamp(STAMP == 6 and N == 0)
    rq = fr.items(0 if N == 0 else LEAD_V)
    if N < 13:
        rq += build_qp(N + 1)[0].head_items(n, 2, fr.first[-1] - 2 * LEAD_V + 2)
    pieces = []
    for W in plan.get(N, []):
        pieces += Wp(W)
    if N >= 8:
        pieces += KVp(N - 8)
    dq = spread(pieces, 0, 4)
    xq = []
    if N == 0:
        dq += [Item(lambda: P.wait_ds_regs(areg_set(X_(2, 1))), 15, 15)] + spread(dma_x(2, ("X", 2)), 16, 3)
    if (N & 1) and N < 12:
        p1 = (N + 1) // 2
        xq += [Item(lambda p1=p1: vmwait([("X", p1)]), 1, 1)]
        xq += [Item(t, 1, 8) for t in xread_texts(p1)]
        if p1 + 2 < 7:
            dq += [Item(lambda p1=p1: P.wait_ds_regs(areg_set(X_(2, 2 * p1 + 1))), 15, 15)]
            dq += spread(dma_x(p1 + 2, ("X", p1 + 2)), 16, 3)
    zq = [Item(t, 0, BIG) for t in zero_q[8 * (N - 2):8 * (N - 1)]] if 2 <= N < 10 else []
    run_phase(mf, [rq, xq, dq, zq], "qp%d" % N)
    stamp(STAMP == 6 and (N & 1) and N < 13)
stamp(STAMP != 1)
E("s_mov_b32 s100, %s\ns_mov_b32 s101, %s" % (fbits(CSCALE), fbits(CSCALE)))
E("s_xor_b32 s99, s%d, 3\ns_lshl_b32 s99, s99, 10\ns_add_u32 s99, s99, %d" % (sW, LDS_O9 - LB))
E("v_add_u32 v2, s99, v%d\nv_lshrrev_b32 v3, 1, v9\nv_lshl_add_u32 v2, v3, 3, v2\nv_xor_b32 v3, 8, v2" % vLane16)
for k in range(8):
    E("v_pk_mul_f32 %s, %s, s[100:101]" % (vr(48 + 2 * k, 2), vr(48 + 2 * k, 2)))
for k in range(8):
    E("v_cvt_pk_bf16_f32 v%d, v%d, v%d" % (40 + k, 48 + 2 * k, 49 + 2 * k))
E("ds_write_b64 v2, v[40:41]\nds_write_b64 v3, v[42:43]\nds_write_b64 v2, v[44:45] offset:4096\nds_write_b64 v3, v[46:47] offset:4096")
vmwait([("KV", 0)])
E("s_waitcnt lgkmcnt(0)")
E("s_barrier")
emit_pieces(KVp(6))
for b in range(4):
    E("s_xor_b32 s99, s%d, %d\ns_lshl_b32 s99, s99, 10\ns_add_u32 s99, s99, %d" % (sW, b, LDS_O9 - LB))
    E("v_add_u32 v2, s99, v%d" % vLane16)
    E("ds_read_b128 %s, v2" % ar(Q_(2, b)))
    E("ds_read_b128 %s, v2 offset:4096" % ar(Q_(2, 4 + b)))
emit_pieces(KVp(7))
for T in range(2):
    for sd in range(8):
        a = QA(T, sd, 0)
        for j in range(4):
            E("v_pk_mul_f32 %s, %s, s[100:101]" % (vr(a + 2 * j, 2), vr(a + 2 * j, 2)))
        for j in range(4):
            E("v_cvt_pk_bf16_f32 v%d, v%d, v%d" % (64 + 32 * T + 4 * sd + j, a + 2 * j, a + 2 * j + 1))
for half in range(2):
    E("s_mov_b32 exec_lo, %d\ns_mov_b32 exec_hi, %d" % ((-1, 0) if half == 0 else (0, -1)))
    for T in range(2):
        for sd in range(8):
            for j in range(4):
                E("v_accvgpr_write_b32 a%d, v%d" % (Q_(T, sd) + j, 64 + 32 * T + 4 * sd + (j ^ (2 * half))))
E("s_mov_b64 exec, -1")
for j in range(128, 192):
    E("v_mov_b32 v%d, 0" % j)
for j in range(aO9, aL + 12):
    E("v_accvgpr_write_b32 a%d, 0" % j)
E("v_mov_b32 v%d, 0x3f803f80" % vTmp)
for j in range(4):
    E("v_accvgpr_write_b32 a%d, v%d" % (aOnes + j, vTmp))
for j in range(12):
    E("v_mov_b32 v%d, 0" % (vNegM + j))
E("s_mov_b64 s[%d:%d], -1\ns_mov_b32 s%d, 0xff800000\ns_mov_b32 s%d, 1" % (sForce, sForce + 1, sFloor, sFirst))
for r, n in ((sPVb, 8), (sKa, 0), (sKb, 1), (sVa, 2), (sVb, 3)):
    E("s_mov_b32 s%d, %d" % (r, kvslot(n)))
for t in scalar_next():
    E(t)
E("s_mov_b32 s%d, 0" % sLoop)
E("s_waitcnt lgkmcnt(0)")
stamp()
if STAMP == 1:
    E("s_memtime s[88:89]\ns_memrealtime s[84:85]\ns_waitcnt lgkmcnt(0)")
fr0 = build_qk()[0]
for f in range(LEAD_K):
    for t in fr0.texts(f):
        E(t)

entry_q = [set(d) for (_, d) in P.dsq]
E("L_loop:")
block([dma_kv("K", sPVb, "a"), dma_kv("K", sKa, "b"), dma_kv("V", sKb, "c"), dma_kv("V", sVa, "d")])
assert [set(d) for (_, d) in P.dsq] == entry_q, (P.dsq, entry_q)
if STAMP == 7:
    P.ins.append(Ins("s_memrealtime s[80:81]"))
    P.ins.append(Ins("s_memtime s[82:83]"))
    P.ins.append(Ins("s_waitcnt lgkmcnt(0)"))
    P.ins.append(Ins("s_lshl_b64 exec, 1, s%d" % sLoop))
    P.ins.append(Ins("v_mov_b32 v43, s80 ;keep"))
    P.ins.append(Ins("v_mov_b32 v42, s82 ;keep"))
    P.ins.append(Ins("s_mov_b64 exec, -1"))
E("s_add_u32 s%d, s%d, 1\ns_cmp_lt_u32 s%d, 14\ns_cbranch_scc1 L_loop" % (sLoop, sLoop, sLoop))
if STAMP == 7:
    E("v_accvgpr_write_b32 a254, v42\nv_accvgpr_write_b32 a255, v43")
if STAMP == 1:
    P.ins.append(Ins("s_memtime s[90:91]"))
    P.ins.append(Ins("s_memrealtime s[86:87]"))
    E("s_waitcnt lgkmcnt(0)")
Op = lambda q, slot: dma_wo(q, slot, ("O", q))
block([Op(0, sPVb), Op(1, sKa), Op(2, sKb), Op(3, sVa)], cs=(STAMP == 2))
block([Op(4, sPVb), Op(5, sKa), Op(6, sKb), Op(7, sVa)], last=True)
stamp()

E("s_nop 7")
for T in range(3):
    E("v_accvgpr_read_b32 v%d, a%d" % (vRI + T, aL + 4 * T))
for k in range(8):
    E("v_accvgpr_read_b32 v%d, a%d" % (2 + k, aO9 + k))
for T in (2, 0, 1):
    E("v_rcp_f32 v%d, v%d" % (vRI + T, vRI + T))
E("s_xor_b32 s99, s%d, 3\ns_lshl_b32 s99, s99, 10\ns_add_u32 s99, s99, %d" % (sW, LDS_O9 - LB))
E("v_add_u32 v31, s99, v%d" % vLane16)
for hf in range(2):
    if hf:
        for k in range(8):
            E("v_accvgpr_read_b32 v%d, a%d" % (2 + k, aO9 + 8 + k))
    for k in range(8):
        E("v_mul_f32 v%d, v%d, v%d" % (2 + k, vRI + 2, 2 + k))
    for k in range(4):
        E("v_cvt_pk_bf16_f32 v%d, v%d, v%d" % (32 + 4 * hf + k, 2 + 2 * k, 3 + 2 * k))
    E("ds_write_b128 v31, v[%d:%d] offset:%d" % (32 + 4 * hf, 35 + 4 * hf, 4096 * hf))


def conv_items(s, e=-1, d=BIG):
    its = []
    for T in range(2):
        a = O_(T, 2 * s)
        for j in range(8):
            its.append(Item("v_mul_f32 v%d, v%d, v%d" % (a + j, vRI + T, a + j), e, d))
        for j in range(4):
            its.append(Item("v_cvt_pk_bf16_f32 v%d, v%d, v%d" % (OF_(T, s) + j, a + 2 * j, a + 2 * j + 1), e, d))
    return its


for it in conv_items(0):
    it.emit()
E("s_load_dwordx2 s[12:13], s[0:1], 88")


def store_items(sg, e):
    its = []
    for T in range(2):
        for kp in range(2):
            a0 = accb(sg) + 16 * T + 8 * kp
            for j in range(4):
                its.append(Item("v_cvt_pk_bf16_f32 v%d, v%d, v%d" % (a0 + j, a0 + 2 * j, a0 + 2 * j + 1), e, BIG))
            its.append(Item("s_mov_b32 s%d, %d\nbuffer_store_dwordx4 %s, v%d, %s, s%d offen offset:%d %s"
                            % (sT1, sg * 16384, vr(a0), vST, srd(SRD_WS), sT1, T * 2048 + kp * 1024, STP), e, BIG, ("st", sg)))
    d = 28 + 2 * (sg & 1)
    its.append(Item("v_cvt_pk_bf16_f32 v%d, v%d, v%d\nv_cvt_pk_bf16_f32 v%d, v%d, v%d"
                    % (d, acc9(sg), acc9(sg) + 1, d + 1, acc9(sg) + 2, acc9(sg) + 3), e, BIG))
    if sg == 6:
        its.append(Item("v_mov_b32 v30, 0\nv_mov_b32 v31, 0", e, BIG))
    if (sg & 1) or sg == 6:
        its.append(Item("s_mov_b32 s%d, %d\nbuffer_store_dwordx4 v[28:31], v%d, %s, s%d offen %s"
                        % (sT1, 114688 + 4096 * (sg >> 1), vST9, srd(SRD_WS), sT1, STP), e, BIG, ("st9", sg)))
    return its


issue_plan = {0: [8], 1: [9, 10], 2: [11, 12], 3: [13]}
for sg in range(7):
    fr, mf, kfirst = build_stage(sg)
    n = len(mf)
    stamp(STAMP == 5)
    tags = [("O", min(2 * sg + 2, 13))]
    if sg == 6:
        tags.append(("st", 3))
    vmwait(tags)
    if sg == 0:
        E("s_waitcnt lgkmcnt(0)")
    E("s_barrier")
    if sg == 6:
        E("s_cmp_lg_u32 s%d, 0\ns_cbranch_scc1 L_nopub1" % sW)
        E("s_mov_b64 exec, 1\ns_lshr_b32 s14, s3, 4\ns_lshl_b32 s14, s14, 4\nv_mov_b32 v62, s14\nv_mov_b32 v63, 1")
        P.ins.append(Ins("global_atomic_add v62, v63, s[12:13] offset:4"))
        E("s_mov_b64 exec, -1")
        E("L_nopub1:")
    rq = fr.items(LEAD_V)
    if sg < 6:
        rq += build_stage(sg + 1)[0].head_items(n, 2, fr.first[-1] - 2 * LEAD_V + 2)
    pieces = []
    for q in issue_plan.get(sg, []):
        pieces += Op(q, ("c", woslot(q) * SLOT))
    dq = spread(pieces, 0, 3)
    cq = []
    if sg == 0:
        o9 = []
        for b in range(4):
            o9.append("s_xor_b32 s99, s%d, %d\ns_lshl_b32 s99, s99, 10\ns_add_u32 s99, s99, %d\nv_add_u32 v31, s99, v%d\n"
                      "ds_read_b128 %s, v31\nds_read_b128 %s, v31 offset:4096"
                      % (sW, b, LDS_O9 - LB, vLane16, ar(aOF9 + 4 * b), ar(aOF9 + 16 + 4 * b)))
        E(o9[0])
        dq = [Item(t, 9 * k, 9 * k + 4) for k, t in enumerate(o9[1:])] + spread(pieces, 30, 3)
        for s in range(1, 8):
            cq += conv_items(s, -1, kfirst[s] - 2)
    else:
        nd = len([1 for (t, _) in pieces if "buffer_load" in t])
        cq = store_items(sg - 1, max(5, 3 * nd))
    run_phase(mf, [rq, dq, cq], "st%d" % sg)
E("s_nop 4")
for it in store_items(6, 0):
    it.emit()
stamp()

E("s_load_dwordx2 s[4:5], s[0:1], 96\ns_load_dwordx2 s[8:9], s[0:1], 80")
E("v_mbcnt_lo_u32_b32 v2, -1, 0\nv_mbcnt_hi_u32_b32 v2, -1, v2")
E("v_and_b32 v4, 15, v2\nv_lshrrev_b32 v5, 4, v2")
E("v_lshlrev_b32 v16, 17, v5\nv_lshl_add_u32 v16, v4, 4, v16")
E("v_mul_u32_u24 v17, 1792, v4\nv_lshrrev_b32 v6, 1, v5\nv_lshl_add_u32 v17, v6, 3, v17\nv_and_b32 v19, 1, v5")
E("v_lshl_add_u32 v14, v19, 7, v17\nv_lshl_add_u32 v17, v19, 5, v17\nv_lshlrev_b32 v19, 30, v19")
E("v_and_b32 v6, 1, v4\nv_lshlrev_b32 v6, 4, v6\nv_mov_b32 v7, 0x3f80\nv_lshlrev_b32 v7, v6, v7\nv_lshrrev_b32 v6, 1, v4")
for r in range(4):
    E("v_cmp_eq_u32 vcc, %d, v6\nv_cndmask_b32 v%d, 0, v7, vcc" % (r, 20 + r))
    E("v_cmp_eq_u32 vcc, %d, v6\nv_cndmask_b32 v%d, 0, v7, vcc" % (4 + r, 24 + r))
E("s_lshr_b32 s14, s3, 4\ns_and_b32 s15, s3, 15")
E("s_waitcnt lgkmcnt(0)")
E("s_lshl_b32 s99, s14, 21\ns_add_u32 s4, s4, s99\ns_addc_u32 s5, s5, 0\ns_mov_b32 s6, %d\ns_mov_b32 s7, 0x20000" % (16 * SLAB))
E("s_mov_b32 s10, %d\ns_mov_b32 s11, 0x20000" % (8 * 144 * 896 * 2))
E("s_and_b32 s16, s14, 7\ns_mul_i32 s16, s16, %d\ns_lshr_b32 s17, s14, 3\ns_mul_i32 s17, s17, 896\ns_add_u32 s16, s16, s17" % (144 * 1792))
E("v_mov_b32 v18, %d" % LDS_MB)
E("s_lshl_b32 s17, s14, 4\nv_mov_b32 v8, s17\nv_mov_b32 v9, 1")
E("s_lshl_b32 s18, 1, s15\ns_mov_b32 s21, 0")
LIM = 4000


def uloads(u):
    for p in range(4):
        for pc in range(4):
            E("buffer_load_dwordx4 %s, v16, s[4:7], s20 offen offset:%d %s" % (vr(128 + 64 * u + 16 * p + 4 * pc), 256 * pc, LDP))
        if p < 3:
            E("s_add_u32 s20, s20, %d" % (4 * SLAB))


E("s_waitcnt vmcnt(0)")
stamp()
E("s_barrier")
E("s_cmp_lg_u32 s%d, 0\ns_cbranch_scc1 L_joinx" % sW)
E("s_mov_b64 exec, 1")
E("global_atomic_add v10, v8, v9, s[12:13] sc0")
E("L_spin1:")
E("global_load_dword v11, v8, s[12:13] offset:4 sc1")
E("s_waitcnt vmcnt(0)")
E("v_readfirstlane_b32 s19, v11\nv_readfirstlane_b32 s22, v10")
E("s_mov_b32 s20, 1\ns_cmp_eq_u32 s19, 16\ns_cbranch_scc1 L_got1")
E("s_add_u32 s21, s21, 1\ns_cmp_lt_u32 s21, %d\ns_cbranch_scc1 L_spin1" % LIM)
E("s_mov_b32 s20, 0")
E("L_got1:")
E("v_mov_b32 v11, s20\nds_write_b32 v18, v11\ns_waitcnt lgkmcnt(0)")
E("s_mov_b64 exec, -1")
E("L_joinx:")
E("s_barrier")
E("ds_read_b32 v11, v18\ns_waitcnt lgkmcnt(0)")
E("v_readfirstlane_b32 s23, v11")
E("s_cmp_eq_u32 s23, 0\ns_cbranch_scc1 L_noearly")
E("s_lshl_b32 s20, s15, 2\ns_add_u32 s20, s20, s%d\ns_lshl_b32 s20, s20, 10" % sW)
uloads(0)
E("L_noearly:")
stamp()
E("s_cmp_lg_u32 s%d, 0\ns_cbranch_scc1 L_join" % sW)
E("s_mov_b64 exec, 1")
E("s_and_b32 s20, s22, 0xffff\ns_cmp_eq_u32 s20, 15\ns_cbranch_scc0 L_spin")
E("s_lshr_b32 s19, s22, 16\ns_or_b32 s18, s18, s19\ns_branch L_pub")
E("L_spin:")
E("global_load_dword v10, v8, s[12:13] sc1")
E("s_waitcnt vmcnt(0)")
E("v_readfirstlane_b32 s19, v10")
E("s_and_b32 s20, s19, 0xffff\ns_cmp_eq_u32 s20, 16\ns_cbranch_scc1 L_pub")
E("s_add_u32 s21, s21, 1\ns_cmp_lt_u32 s21, %d\ns_cbranch_scc1 L_spin" % LIM)
E("s_lshl_b32 s19, s18, 16\nv_mov_b32 v9, s19")
E("global_atomic_or v10, v8, v9, s[12:13] sc0")
E("s_waitcnt vmcnt(0)")
E("v_readfirstlane_b32 s19, v10")
E("s_and_b32 s20, s19, 0xffff\ns_cmp_eq_u32 s20, 16\ns_cselect_b32 s18, s18, 0")
E("L_pub:")
E("v_mov_b32 v9, s18\nds_write_b32 v18, v9 offset:4\ns_waitcnt lgkmcnt(0)")
E("s_mov_b64 exec, -1")
E("L_join:")
E("s_barrier")
E("ds_read_b32 v9, v18 offset:4\ns_waitcnt lgkmcnt(0)")
E("v_readfirstlane_b32 s18, v9")
stamp()
E("s_cmp_eq_u32 s18, 0\ns_cbranch_scc1 L_done")
E("s_cmp_eq_u32 s23, 0\ns_cbranch_scc1 L_slice")
E("s_mov_b32 s19, s15\ns_lshl_b32 s20, 1, s15\ns_andn2_b32 s18, s18, s20")
E("s_lshl_b32 s19, s19, 2\ns_add_u32 s19, s19, s%d" % sW)
E("s_branch L_second")
E("L_slice:")
E("s_ff1_i32_b32 s19, s18\ns_sub_u32 s20, s18, 1\ns_and_b32 s18, s18, s20")
E("s_lshl_b32 s19, s19, 2\ns_add_u32 s19, s19, s%d\ns_lshl_b32 s20, s19, 10" % sW)
P.vmq = []
uloads(0)
E("L_second:")
E("s_lshl_b32 s20, s19, 10\ns_add_u32 s20, s20, 65536")
uloads(1)
for u in range(2):
    E("s_add_u32 s21, s19, %d" % (64 * u))
    if u == 1:
        E("s_cmp_ge_u32 s21, 112\ns_cbranch_scc1 L_t9")
    E("s_lshr_b32 s22, s21, 4\ns_lshl_b32 s22, s22, 7\ns_add_u32 s22, s22, s16")
    E("s_bfe_u32 s99, s21, 0x30001\ns_mul_i32 s99, s99, %d\ns_add_u32 s22, s22, s99" % (16 * 1792))
    E("s_lshr_b32 s99, s21, 3\ns_xor_b32 s99, s99, s21\ns_and_b32 s99, s99, 1\ns_lshl_b32 s99, s99, 6\ns_add_u32 s%d, s22, s99" % (30 + u))
    E("s_bfe_u32 s99, s21, 0x10002\ns_lshl_b32 s99, s99, 5")
    E("v_xor_b32 v%d, s99, v17" % (12 + u))
E("s_branch L_sum")
E("L_t9:")
E("s_bfe_u32 s22, s21, 0x20002\ns_and_b32 s99, s21, 3\ns_xor_b32 s99, s99, 3\ns_lshl_b32 s99, s99, 5")
E("s_lshl_b32 s31, s22, 8\ns_add_u32 s31, s31, s99\ns_add_u32 s31, s31, s16\ns_add_u32 s31, s31, %d" % (128 * 1792))
E("v_mov_b32 v13, v14\ns_cmp_eq_u32 s22, 3\ns_cbranch_scc0 L_sum\nv_add_u32 v13, v19, v14")
E("L_sum:")
for u in range(2):
    for p in range(4):
        for pc in range(4):
            d = 48 + 8 * u + 4 * (pc >> 1)
            E(mfma(vr(d), vr(20 if (pc & 1) == 0 else 24), vr(128 + 64 * u + 16 * p + 4 * pc), "0" if (p == 0 and (pc & 1) == 0) else vr(d)))
for u in range(2):
    for k in range(2):
        d = 48 + 8 * u + 4 * k
        E("v_cvt_pk_bf16_f32 v%d, v%d, v%d\nv_cvt_pk_bf16_f32 v%d, v%d, v%d" % (d, d, d + 1, d + 1, d + 2, d + 3))
        E("buffer_store_dwordx2 v[%d:%d], v%d, s[8:11], s%d offen offset:%d" % (d, d + 1, 12 + u, 30 + u, 16 * k))
E("s_nop 1\ns_cmp_lg_u32 s18, 0\ns_cbranch_scc1 L_slice")
E("L_done:")
if STAMP:
    E("s_waitcnt vmcnt(0)")
    stamp()
    if STAMP == 1:
        E("s_memtime s[94:95]\ns_waitcnt lgkmcnt(0)")
    E("v_mov_b32 v1, 0")
    E("s_cmp_lg_u32 s%d, 0\ns_cbranch_scc1 L_end" % sW)
    if STAMP == 7:
        E("v_mbcnt_lo_u32_b32 v2, -1, 0\nv_mbcnt_hi_u32_b32 v2, -1, v2\nv_lshlrev_b32 v2, 2, v2\nv_accvgpr_read_b32 v3, a255\nv_accvgpr_read_b32 v4, a254")
        E("s_mov_b64 exec, 0xffff\nglobal_store_dword v2, v3, s[%d:%d] offset:128\nglobal_store_dword v2, v4, s[%d:%d] offset:192" % (sWSB, sWSB + 1, sWSB, sWSB + 1))
    E("s_mov_b64 exec, 1")
    if STAMP == 4:
        E("s_load_dwordx2 s[98:99], s[0:1], 88\ns_waitcnt lgkmcnt(0)")
        offs = [8, 12, 24, 28, 40, 44, 56, 60]
        E("s_cmp_lg_u32 s2, 200\ns_cbranch_scc1 L_end")
        for j, k in enumerate((1, 2, 3, 4, 5, 6, 7)):
            E("s_sub_u32 s100, s%d, s%d\nv_mov_b32 v2, s100\nglobal_store_dword v1, v2, s[98:99] offset:%d" % (sStamp + 2 * k, sStamp, offs[j]))
        E("s_branch L_end")
    for k in range(16):
        E("v_mov_b32 v2, s%d\nv_mov_b32 v3, s%d" % (sStamp + 2 * k, sStamp + 2 * k + 1))
        E("global_store_dwordx2 v1, v[2:3], s[%d:%d] offset:%d" % (sWSB, sWSB + 1, 8 * k))
        E("s_nop 1")
E("L_end:\ns_endpgm")
main_ins = P.ins

R = Prog()
F = R.emit
for s in stubs:
    F(s)


def xlane_max(F, reg, t1, t2):
    F("v_mbcnt_lo_u32_b32 v%d, -1, 0\nv_mbcnt_hi_u32_b32 v%d, -1, v%d" % (t1, t1, t1))
    for x in (16, 32):
        F("v_xor_b32 v%d, %d, v%d\nv_lshlrev_b32 v%d, 2, v%d" % (t2, x, t1, t2, t2))
        F("ds_bpermute_b32 v%d, v%d, v%d" % (t2, t2, reg))
        F("s_waitcnt lgkmcnt(0)")
        F("v_max_f32 v%d, v%d, v%d" % (reg, reg, t2))


F("L_fix:")
F("s_nop 15\ns_waitcnt lgkmcnt(0)")
F("s_mov_b32 s%d, %s" % (sT2, fbits(TOFF)))
for T in range(2):
    m = 2 + T
    regs = [S_(kt, T) + r for kt in range(4) for r in range(4)]
    F("v_max3_f32 v%d, v%d, v%d, v%d" % (m, regs[0], regs[1], regs[2]))
    for k in range(3, 15, 2):
        F("v_max3_f32 v%d, v%d, v%d, v%d" % (m, m, regs[k], regs[k + 1]))
    F("v_max_f32 v%d, v%d, v%d" % (m, m, regs[15]))
    xlane_max(F, m, 4, 5)
    F("v_add_f32 v%d, s%d, v%d" % (m, sT2, m))
    F("v_max_f32 v%d, s%d, v%d" % (m, sFloor, m))
    for j in range(4):
        F("v_sub_f32 v%d, v%d, v%d" % (vNegM + 4 * T + j, vNegM + 4 * T + j, m))
    for r in regs:
        F("v_sub_f32 v%d, v%d, v%d" % (r, r, m))
F("s_cmp_eq_u32 s%d, 1\ns_cbranch_scc1 L_fix_p" % sFirst)
for T in range(2):
    F("v_sub_f32 v4, 0, v%d\nv_exp_f32 v4, v4\ns_nop 0" % (2 + T))
    for j in range(64):
        F("v_mul_f32 v%d, v4, v%d" % (vO + 64 * T + j, vO + 64 * T + j))
    for j in range(4):
        F("v_accvgpr_read_b32 v5, a%d\nv_mul_f32 v5, v4, v5\nv_accvgpr_write_b32 a%d, v5" % (aL + 4 * T + j, aL + 4 * T + j))
F("L_fix_p:")
for kt in range(4):
    for T in range(2):
        for r in range(4):
            F("v_exp_f32 v%d, v%d" % (6 + r, S_(kt, T) + r))
        d = P_(kt >> 1, T) + 2 * (kt & 1)
        F("v_cvt_pk_bf16_f32 v%d, v6, v7\nv_cvt_pk_bf16_f32 v%d, v8, v9" % (d, d + 1))
F("s_nop 3\ns_setpc_b64 s[%d:%d]" % (sRet, sRet + 1))

F("L_fix9:")
F("s_nop 15\ns_waitcnt lgkmcnt(0)")
F("s_mov_b32 s%d, %s" % (sT2, fbits(TOFF)))
F("v_max3_f32 v2, v%d, v%d, v%d\nv_max_f32 v2, v2, v%d" % (vS9, vS9 + 1, vS9 + 2, vS9 + 3))
xlane_max(F, 2, 4, 5)
F("v_lshlrev_b32 v4, 2, v4\nv_add_u32 v4, %d, v4" % LDS_MB)
F("s_lshl_b32 s%d, s%d, 8\nv_add_u32 v5, s%d, v4" % (sT2 + 1, sW, sT2 + 1))
F("ds_write_b32 v5, v2\ns_waitcnt lgkmcnt(0)\ns_barrier")
for w in range(4):
    F("ds_read_b32 v%d, v4 offset:%d" % (6 + w, 256 * w))
F("s_waitcnt lgkmcnt(0)")
F("v_max3_f32 v2, v6, v7, v8\nv_max_f32 v2, v2, v9")
F("v_add_f32 v2, s%d, v2\nv_max_f32 v2, s%d, v2" % (sT2, sFloor))
for j in range(4):
    F("v_sub_f32 v%d, v%d, v2" % (vNegM + 8 + j, vNegM + 8 + j))
    F("v_sub_f32 v%d, v%d, v2" % (vS9 + j, vS9 + j))
F("s_cmp_eq_u32 s%d, 1\ns_cbranch_scc1 L_fix9_p" % sFirst)
F("v_sub_f32 v4, 0, v2\nv_exp_f32 v4, v4\ns_nop 0")
for j in list(range(aO9, aO9 + 16)) + list(range(aL + 8, aL + 12)):
    F("v_accvgpr_read_b32 v5, a%d\nv_mul_f32 v5, v4, v5\nv_accvgpr_write_b32 a%d, v5" % (j, j))
F("L_fix9_p:")
for r in range(4):
    F("v_exp_f32 v%d, v%d" % (6 + r, vS9 + r))
F("v_cvt_pk_bf16_f32 v%d, v6, v7\nv_cvt_pk_bf16_f32 v%d, v8, v9" % (vP9o, vP9o + 1))
F("ds_write_b64 v%d, v[%d:%d]\ns_waitcnt lgkmcnt(0)\ns_barrier" % (vP9W, vP9o, vP9o + 1))
F("ds_read_b128 %s, v%d offset:%d" % (vr(vP9), vLane16, LDS_P9 - LB))
F("ds_read_b128 %s, v%d offset:%d" % (vr(vP9 + 4), vLane16, LDS_P9 - LB + 1024))
F("s_waitcnt lgkmcnt(0)\ns_nop 3\ns_setpc_b64 s[%d:%d]" % (sRet, sRet + 1))


KILL = OPT.get("kill", "").split(",") if OPT.get("kill") else []
if KILL:
    a = [k for k, i in enumerate(main_ins) if i.text.startswith("L_loop:")][0]
    b = [k for k, i in enumerate(main_ins) if "s_cbranch_scc1 L_loop" in i.text][0]
    keep = []
    for k, i in enumerate(main_ins):
        drop = False
        if a < k < b - 2:
            if "dma" in KILL and i.kind == "dma": drop = True
            if "bar" in KILL and i.kind == "barrier": drop = True
            if "exp" in KILL and i.kind == "trans": drop = True
            if "valu" in KILL and i.kind == "valu": drop = True
            if "salu" in KILL and i.kind == "salu" and "vcc" not in i.text: drop = True
            if "ds" in KILL and i.kind in ("dsr", "dsw"): drop = True
            if "wait" in KILL and i.kind == "wait": drop = True
            if "br" in KILL and (i.kind == "branch" or "vcc" in i.text): drop = True
        if not drop or 'keep' in i.text or 's_memtime' in i.text or (k > 0 and 's_memtime' in main_ins[k-1].text): keep.append(i)
    main_ins = keep
rep = []
main_ins = pad_hazards(main_ins, rep)
rare_ins = pad_hazards(R.ins, None)
from collections import Counter
sys.stderr.write("hazard pads (main): %s\n" % dict(Counter(r[0] for r in rep)))
if OPT.get("v"):
    for r in rep:
        sys.stderr.write("  %s\n" % (r,))

txt = lambda ins: "\n".join(("" if i.kind == "label" else "    ") + i.text for i in ins)
hdr = open("concat_heads__gqa_block_cached__mha_block_cached__near_ridge.s.ref").read().split("; Override launch")[0]
print(hdr.rstrip())
print("; @launch grid=(256,1,1) block=(256,1,1) lds=%d" % LDS_TOTAL)
print('.amdgcn_target "amdgcn-amd-amdhsa--gfx950"')
print(".text")
print(".globl %s\n.p2align 8\n.type %s,@function" % (KN, KN))
body = txt(main_ins) + "\n" + txt(rare_ins)
if OPT.get("split"):
    import re as _re
    first, rest = body.split("\n", 1)
    bcopy = _re.sub(r"\bL_(\w+)", r"L_\1_B", rest)
    acopy = rest.replace(" nt lds", " %s lds" % OPT["split"].replace("_", " "))
    body = first + "\n    s_bitcmp1_b32 s2, 7\n    s_cbranch_scc1 L_entry_B\n" + acopy + "\n.p2align 6\nL_entry_B:\n" + bcopy
print(body)
print('.section .rodata,"a"')
print(""".p2align 6
.amdhsa_kernel %s
  .amdhsa_next_free_vgpr 512
  .amdhsa_next_free_sgpr 102
  .amdhsa_accum_offset 256
  .amdhsa_group_segment_fixed_size 0
  .amdhsa_kernarg_size 104
  .amdhsa_user_sgpr_count 2
  .amdhsa_user_sgpr_kernarg_segment_ptr 1
  .amdhsa_system_sgpr_workgroup_id_x 1
.end_amdhsa_kernel""" % KN)
```

```python
import re

REG_RE = re.compile(r"\b([vas])(?:\[(\d+):(\d+)\]|(\d+)\b)")


def regs_of(tok):
    tok = tok.strip()
    out = set()
    if tok in ("vcc", "vcc_lo", "vcc_hi"):
        return {("s", "vcc")}
    if tok in ("exec", "exec_lo", "exec_hi"):
        return {("s", "exec")}
    if tok == "m0":
        return {("s", "m0")}
    t = tok.lstrip("-")
    if t.startswith("abs(") or t.startswith("|"):
        t = t.replace("abs(", "").replace(")", "").replace("|", "")
    m = re.fullmatch(r"([vas])\[(\d+):(\d+)\]", t)
    if m:
        for n in range(int(m.group(2)), int(m.group(3)) + 1):
            out.add((m.group(1), n))
        return out
    m = re.fullmatch(r"([vas])(\d+)", t)
    if m:
        out.add((m.group(1), int(m.group(2))))
    return out


TRANS = ("v_exp_f32", "v_log_f32", "v_rcp_f32", "v_rsq_f32", "v_sqrt_f32")


class Ins:
    __slots__ = ("text", "op", "kind", "dst", "src", "srcC", "tag", "cost")

    def __init__(self, text, tag=None):
        self.text = text
        self.tag = tag
        body = text.split(";")[0].strip()
        self.op = body.split()[0] if body else ""
        rest = body[len(self.op):].strip()
        ops = [o.strip() for o in rest.split(",")] if rest else []
        if ops:
            last = ops[-1].split()
            ops[-1] = last[0] if last else ""
            mods = last[1:]
        else:
            mods = []
        self.dst = set()
        self.src = set()
        self.srcC = set()
        op = self.op
        self.cost = 1
        if op.endswith(":") or op == "" or op.startswith("."):
            self.kind = "label"
            self.cost = 0
        elif op.startswith("v_mfma"):
            self.kind = "mfma"
            self.dst = regs_of(ops[0])
            self.src = regs_of(ops[1]) | regs_of(ops[2]) | regs_of(ops[3])
            self.srcC = regs_of(ops[3])
            self.cost = 2
        elif op.startswith("ds_read") or op.startswith("ds_bpermute") or op.startswith("ds_swizzle"):
            self.kind = "dsr"
            self.dst = regs_of(ops[0])
            for o in ops[1:]:
                self.src |= regs_of(o)
        elif op.startswith("ds_write"):
            self.kind = "dsw"
            for o in ops:
                self.src |= regs_of(o)
        elif op.startswith("buffer_load") or op.startswith("global_load"):
            if "lds" in mods:
                self.kind = "dma"
                for o in ops:
                    self.src |= regs_of(o)
                self.src.add(("s", "m0"))
            else:
                self.kind = "vld"
                self.dst = regs_of(ops[0])
                for o in ops[1:]:
                    self.src |= regs_of(o)
        elif op.startswith("buffer_store") or op.startswith("global_store"):
            self.kind = "vst"
            for o in ops:
                self.src |= regs_of(o)
        elif op.startswith("buffer_atomic") or op.startswith("global_atomic"):
            self.kind = "vld" if "sc0" in mods else "vst"
            if op.startswith("buffer_atomic"):
                if "sc0" in mods:
                    self.dst = regs_of(ops[0])
                for o in ops:
                    self.src |= regs_of(o)
            else:
                if "sc0" in mods:
                    self.dst = regs_of(ops[0])
                    for o in ops[1:]:
                        self.src |= regs_of(o)
                else:
                    for o in ops:
                        self.src |= regs_of(o)
        elif op in ("buffer_wbl2", "buffer_inv"):
            self.kind = "vst"
        elif op == "s_waitcnt":
            self.kind = "wait"
        elif op == "s_barrier":
            self.kind = "barrier"
        elif op == "s_nop":
            self.kind = "nop"
            self.cost = int(ops[0], 0) + 1
        elif op.startswith("s_cbranch") or op in ("s_branch", "s_call_b64", "s_setpc_b64", "s_endpgm", "s_swappc_b64"):
            self.kind = "branch"
            if op == "s_call_b64":
                self.dst = regs_of(ops[0])
        elif op.startswith("s_load") or op in ("s_memtime", "s_memrealtime"):
            self.kind = "smem"
            self.dst = regs_of(ops[0])
            for o in ops[1:]:
                self.src |= regs_of(o)
        elif op.startswith("s_cmp") or op.startswith("s_bitcmp"):
            self.kind = "salu"
            for o in ops:
                self.src |= regs_of(o)
        elif op.startswith("s_"):
            self.kind = "salu"
            if ops:
                self.dst = regs_of(ops[0])
                for o in ops[1:]:
                    self.src |= regs_of(o)
            if "saveexec" in op:
                self.dst |= {("s", "exec")}
        elif op.startswith("v_"):
            base = op.replace("_e32", "").replace("_e64", "")
            self.kind = "trans" if base in TRANS else "valu"
            if self.kind == "trans":
                self.cost = 2
            self.dst = regs_of(ops[0])
            start = 1
            if "_co_" in base:
                self.dst |= regs_of(ops[1])
                start = 2
            for o in ops[start:]:
                self.src |= regs_of(o)
            if base.startswith("v_permlane") and "swap" in base:
                self.dst |= regs_of(ops[1])
                self.src |= regs_of(ops[0])
            if base in ("v_fmac_f32", "v_dot2c_f32_bf16"):
                self.src |= regs_of(ops[0])
            if base.startswith("v_cndmask") and len(ops) == 3:
                self.src.add(("s", "vcc"))
        else:
            raise ValueError("unknown instruction: " + text)

    def states(self):
        if self.kind == "label":
            return 0
        if self.kind == "nop":
            return self.cost
        return 1


def parse_wait(text):
    vm = re.search(r"vmcnt\((\d+)\)", text)
    lg = re.search(r"lgkmcnt\((\d+)\)", text)
    return (int(vm.group(1)) if vm else None, int(lg.group(1)) if lg else None)


class Prog:
    def __init__(self):
        self.ins = []
        self.dsq = []
        self.vmq = []
        self.nwaits = 0

    def emit(self, text, tag=None, auto=True):
        for line in text.split("\n"):
            line = line.strip()
            if not line:
                continue
            self._emit1(Ins(line, tag), auto)

    def _need(self, q, regs):
        idx = -1
        for k, (_, d) in enumerate(q):
            if d & regs:
                idx = k
        return idx

    def _emit1(self, I, auto):
        touched = I.src | I.dst
        if I.kind not in ("label", "wait"):
            a = self._need(self.dsq, touched)
            b = self._need(self.vmq, touched)
            if a >= 0 or b >= 0:
                assert auto, "missing wait before " + I.text
                parts = []
                if b >= 0:
                    parts.append("vmcnt(%d)" % min(63, len(self.vmq) - 1 - b))
                if a >= 0:
                    parts.append("lgkmcnt(%d)" % min(15, len(self.dsq) - 1 - a))
                self._emit1(Ins("s_waitcnt " + " ".join(parts)), False)
        if I.kind == "wait":
            vm, lg = parse_wait(I.text)
            if vm is not None:
                while len(self.vmq) > vm:
                    self.vmq.pop(0)
            if lg is not None:
                while len(self.dsq) > lg:
                    self.dsq.pop(0)
            self.nwaits += 1
        if I.kind in ("dsr", "dsw"):
            if len(self.dsq) >= 15:
                self._emit1(Ins("s_waitcnt lgkmcnt(14)"), False)
            self.dsq.append((I.tag, set(I.dst)))
        if I.kind == "smem":
            self.dsq.append((I.tag, set(I.dst)))
            self.dsq.append((I.tag, set(I.dst)))
        if I.kind in ("vld", "vst", "dma"):
            self.vmq.append((I.tag, set(I.dst)))
        self.ins.append(I)

    def wait_ds_regs(self, regs):
        a = self._need(self.dsq, regs)
        if a >= 0:
            self.emit("s_waitcnt lgkmcnt(%d)" % min(15, len(self.dsq) - 1 - a))

    def vm_count_after(self, tags):
        idx = -1
        for k, (t, _) in enumerate(self.vmq):
            if t in tags:
                idx = k
        if idx < 0:
            return None
        return len(self.vmq) - 1 - idx

    def text(self):
        return "\n".join(("" if i.kind == "label" else "    ") + i.text for i in self.ins)


def mfma_passes(op):
    if "32x32x16" in op:
        return 8
    if "16x16x32" in op:
        return 4
    raise ValueError(op)


def pad_hazards(ins, report=None):
    out = []

    def dist_back(pred, limit):
        d = 0
        for J in reversed(out):
            if pred(J):
                return d
            d += J.states()
            if d >= limit:
                return None
        return None

    for I in ins:
        need = 0

        def req(pred, n, why):
            nonlocal need
            d = dist_back(pred, n)
            if d is not None and d < n:
                if n - d > need:
                    need = n - d
                if report is not None:
                    report.append((why, n - d, I.text))

        isv = I.kind in ("valu", "trans")
        vsrc = {r for r in I.src if r[0] in "va"}
        vdst = {r for r in I.dst if r[0] in "va"}
        ssrc = {r for r in I.src if r[0] == "s"}
        if I.kind == "mfma":
            req(lambda J: J.kind in ("valu", "trans") and J.dst & vsrc, 2, "valu->mfma")
            ab = I.src - I.srcC if I.srcC != I.src else I.src
            for p, n_ab, n_c in ((4, 8, 6), (8, 12, 10)):
                req(lambda J: J.kind == "mfma" and mfma_passes(J.op) == p and (J.dst & (I.src - I.srcC)), n_ab, "mfmaD->AB")
                req(lambda J: J.kind == "mfma" and mfma_passes(J.op) == p and (J.dst & I.srcC)
                    and not (J.dst == I.srcC and mfma_passes(I.op) == p), n_c, "mfmaD->Cpartial")
                req(lambda J: J.kind == "mfma" and mfma_passes(J.op) == p and (J.dst & I.dst)
                    and not (J.dst == I.srcC), n_c, "mfmaD->Dwaw")
            req(lambda J: J.kind in ("valu", "trans") and ("s", "exec") in J.dst, 4, "exec->mfma")
        if isv or I.kind in ("dsr", "dsw", "vld", "vst", "dma"):
            touch = vsrc | vdst
            for p, n in ((4, 8), (8, 12)):
                req(lambda J: J.kind == "mfma" and mfma_passes(J.op) == p and (J.dst & touch), n, "mfmaD->valu/mem")
        if isv:
            for p, n in ((4, 3), (8, 7)):
                req(lambda J: J.kind == "mfma" and mfma_passes(J.op) == p and (J.srcC & vdst), n, "mfmaC war")
            if I.kind == "valu":
                req(lambda J: J.kind == "trans" and (J.dst & vsrc), 1, "trans->valu")
            req(lambda J: J.kind in ("valu", "trans") and (J.dst & ssrc), 2, "valu sgpr->valu")
            req(lambda J: J.kind == "vst" and ("x4" in J.op or "x3" in J.op) and (J.src & vdst), 2, "store war")
            if I.op.startswith("v_readfirstlane") or I.op.startswith("v_readlane"):
                req(lambda J: J.kind in ("valu", "trans") and (J.dst & vsrc), 1, "valu->readlane")
            if I.op.startswith("v_permlane") or "dpp" in I.op:
                req(lambda J: J.kind in ("valu", "trans") and (J.dst & vsrc), 2, "valu->permlane/dpp")
        if I.kind in ("dsr", "vld"):
            req(lambda J: J.kind == "vst" and ("x4" in J.op or "x3" in J.op) and (J.src & vdst), 2, "store war(load)")
        if I.kind in ("vld", "vst", "dma"):
            req(lambda J: J.kind in ("valu", "trans") and (J.dst & ssrc), 5, "valu sgpr->vmem")
        if I.kind == "dma":
            req(lambda J: J.kind == "salu" and ("s", "m0") in J.dst, 1, "m0->dma")
        if I.kind == "salu":
            req(lambda J: J.kind in ("valu", "trans") and (J.dst & ssrc), 2, "valu sgpr->salu(pad)")
        while need > 0:
            k = min(need, 16)
            out.append(Ins("s_nop %d" % (k - 1)))
            need -= k
        out.append(I)
    return out
```

```python
import sys, struct, math, re
sys.path.insert(0, "work")
from asmlib import *

OPT = dict(a.split("=") for a in sys.argv[1:] if "=" in a)
opt = lambda k, d: OPT.get(k, d).replace("_", " ")
NT = opt("nt", "nt")
WNT = opt("wnt", "")
STP = opt("st", "sc1")
LDP = opt("ld", "sc1")
STAMP = int(opt("stamp", "0"))
LEAD = int(opt("lead", "3"))
CAPV = int(opt("capv", "7"))
EARLY = int(opt("early", "10"))
PARA = int(opt("para", "0"))
LTHR = float(opt("lthr", str(2.0 ** 30)))

KN = "concat_heads__gqa_block_cached__mha_block_cached__near_ridge_kernel"
SLOT = 16384
KB, VB = 0, 65536
PX = 131072
MB = 151552
XB = 98304
QS = 81920
LDS_TOTAL = 163840
CSCALE = math.log2(math.e) / 16.0
BIG = 10 ** 6
SLAB = 131072
FLG = 0x2000000

fbits = lambda x: "0x%08x" % struct.unpack("<I", struct.pack("<f", x))[0]
vr = lambda n, k=4: "v[%d:%d]" % (n, n + k - 1)
ar = lambda n, k=4: "a[%d:%d]" % (n, n + k - 1)
srd = lambda n: "s[%d:%d]" % (n, n + 3)
mfma = lambda d, a, b, c: "v_mfma_f32_16x16x32_bf16 %s, %s, %s, %s" % (d, a, b, c)
rset = lambda k, n, c=4: {(k, n + i) for i in range(c)}

SRD_X, SRD_WQ, SRD_K, SRD_V, SRD_WO, SRD_WS = 4, 8, 12, 16, 20, 24
sW, sW4K, sR, sC = 28, 29, 30, 31
sOffK, sOffV, sTmpO, sLoop = 32, 33, 34, 35
sFloor, sFirst, sHas9, sPara = 36, 37, 38, 39
sRet = 40
sT0, sT1, sT2, sT3 = 42, 43, 44, 45
sXm0 = 46
sClk = 48
sWSB = 62
sStamp = 64
vDKV, vPW, vPR, vMB = 0, 1, 2, 3
vK = 4
vV = 8
vL = 24
vSc = 29
vTmp = 30
vP9 = 36
vNegM = 40
S_base = {0: 60, 1: 76}
vS9 = 92
P_base = {0: 96, 1: 112}
vO = 128
aQ = 0
aO9 = 160
aF = 192
aPOOL, NPOOL = 224, 8

S_ = lambda par, T: S_base[par] + 4 * T if T < 4 else vS9
P_ = lambda par, T: P_base[par] + 4 * T if T < 4 else vP9
Q_ = lambda T, s: aQ + 32 * T + 4 * s
O_ = lambda T, b: vO + 32 * T + 4 * b
own9 = lambda n, r: ((n >> 1) & 1) == r

P = Prog()
E = P.emit
stubs = []
nstamp = [0]


def raw(t):
    for l in t.split("\n"):
        P.ins.append(Ins(l.strip()))


def stamp(cond=True):
    if STAMP and cond and nstamp[0] < (16 if STAMP in (5, 6) else 8):
        E("s_memrealtime s[%d:%d]" % (sStamp + 2 * nstamp[0], sStamp + 2 * nstamp[0] + 1))
        E("s_waitcnt lgkmcnt(0)")
        nstamp[0] += 1


SCALAR = ("salu", "wait", "branch", "barrier", "nop", "smem")


def advance(t, ins):
    for I in ins:
        if I.kind == "label":
            continue
        if I.kind in SCALAR:
            t += 4 * (I.cost if I.kind == "nop" else 1)
        else:
            t = max(t, 8)
            if I.kind == "trans":
                t += 8
            elif I.kind == "dsw":
                t += 20 if ("b128" in I.op or "write2" in I.op) else (10 if "b64" in I.op else 6)
            elif I.op.startswith("v_pk_"):
                t += 20
            else:
                t += 4
    return t


class Item:
    def __init__(self, text, e=-1, d=BIG, tag=None, cost=None):
        self.text, self.e, self.d, self.tag = text, e, d, tag
        self.ins = [Ins("s_nop 0")] if callable(text) else [Ins(l.strip()) for l in text.split("\n") if l.strip()]
        self.lead_scalar = self.ins[0].kind in SCALAR

    def emit(self):
        self.text() if callable(self.text) else E(self.text, tag=self.tag)


PACK2 = int(opt("pack2", "1"))


def run_phase(mf, queues, name=""):
    qs = [list(q) for q in queues]
    for q in qs:
        for j in range(len(q) - 2, -1, -1):
            q[j].d = min(q[j].d, q[j + 1].d)
        for it in q:
            assert it.e <= it.d or it.d >= BIG, (name, it.text, it.e, it.d)
    lost = [0]
    n = len(mf)

    def pressure(g):
        return None

    def fill(g, t):
        while True:
            best = None
            for qi, q in enumerate(qs):
                if q and q[0].e <= g:
                    it = q[0]
                    forced = it.d <= g
                    te = advance(t, it.ins)
                    fits = te <= 16 or (t <= 8 and advance(4, it.ins) > 16)
                    if forced or fits:
                        key = (0 if forced else 1, 0 if (t == 4 and it.lead_scalar) else 1, it.d, qi)
                        if best is None or key < best[0]:
                            best = (key, qi, te)
            if best is None:
                break
            it = qs[best[1]].pop(0)
            w0 = P.nwaits
            nw = sum(1 for I in it.ins if I.kind == "wait")
            it.emit()
            t = best[2] + 4 * max(0, P.nwaits - w0 - nw)
        return t

    fill(-1, 100)
    for g, m in enumerate(mf):
        for t_ in m.get("pre", []):
            t_() if callable(t_) else E(t_)
        E(m["text"])
        t = 4
        if g + 1 < n and not mf[g + 1].get("pre"):
            nx = Ins(mf[g + 1]["text"])
            if P._need(P.dsq, nx.src) >= 0:
                P.wait_ds_regs(nx.src | mf[g + 1].get("waitfor", set()))
                t = 8
        t = fill(g, t)
        lost[0] += max(0, t - 16)
    left = 0
    for q in qs:
        for it in q:
            left += advance(8, it.ins) - 8
            it.emit()
    if OPT.get("v"):
        sys.stderr.write("phase %s: %d mfma, lost %d cyc, leftover %d cyc\n" % (name, n, lost[0], left))


pool_ctr = [0]


class Frags:
    def __init__(self, start):
        self.k = start
        self.fr = []
        self.first = []

    def new(self, mf, texts_fn, buf=None):
        if buf is None:
            buf = aPOOL + 4 * (self.k % NPOOL)
            self.k += 1
        self.fr.append((buf, texts_fn(buf)))
        self.first.append(len(mf))
        return buf

    def items(self, skip, lead, off=0, emin=-1):
        out = []
        for f in range(skip, len(self.fr)):
            e = max(emin, self.first[f - lead] + off) if f >= lead else emin
            d = (self.first[f - lead + 1] + off) if f >= lead else emin
            out.append(Item("\n".join(self.fr[f][1]), e, max(d, e)))
        return out


rd128 = lambda areg, off: (lambda b: ["ds_read_b128 %s, v%d offset:%d" % (ar(b), areg, off)])
rdtr = lambda a0, a1, o0, o1: (lambda b: ["ds_read_b64_tr_b16 %s, v%d offset:%d" % (ar(b, 2), a0, o0),
                                          "ds_read_b64_tr_b16 %s, v%d offset:%d" % (ar(b + 2, 2), a1, o1)])


def dma_kv(which, lds, tag, cap=True):
    s_srd, s_off = (SRD_K, sOffK) if which == "K" else (SRD_V, sOffV)
    res = []
    for m in range(4):
        t = "s_add_u32 m0, s%d, %d\n" % (sW4K, lds) if m == 0 else ""
        if cap and CAPV:
            t += "s_waitcnt vmcnt(%d)\n" % (CAPV - 1)
        t += "buffer_load_dwordx4 v%d, %s, s%d offen offset:%d %s lds" % (vDKV, srd(s_srd), s_off, m * 1024, NT)
        res.append(t)
    res.append("s_add_u32 s%d, s%d, %d" % (s_off, s_off, SLOT))
    return [(r, tag) for r in res]


def spread(pieces, start, step):
    out, k = [], 0
    for (t, tag) in pieces:
        e = int(start + k * step)
        out.append(Item(t, e, e + max(1, int(step)), tag))
        if "buffer_load" in t:
            k += 1
    return out


def emit_pieces(pieces):
    for (t, tag) in pieces:
        E(t, tag=tag)


def vmwait(tags):
    c = P.vm_count_after(tags)
    if c is not None:
        E("s_waitcnt vmcnt(%d)" % min(63, c))


def drain_writes():
    pend = [k for k, (_, d) in enumerate(P.dsq) if d == set()]
    if pend:
        E("s_waitcnt lgkmcnt(%d)" % (len(P.dsq) - 1 - pend[-1]))


nchk = [0]


def cond_call(sub, has9):
    k = nchk[0]
    nchk[0] += 1
    stubs.append("L_rare%d:\ns_mov_b32 s%d, %d\ns_call_b64 s[%d:%d], %s\ns_branch L_back%d" % (k, sHas9, has9, sRet, sRet + 1, sub, k))
    return "s_cbranch_vccnz L_rare%d\nL_back%d:" % (k, k)


tiles_of = lambda n, r: [0, 1, 2, 3] + ([4] if own9(n, r) else [])


def qk_part(n, r, fr, mf):
    par = n & 1
    for s in range(8):
        b = fr.new(mf, rd128(vK + (s & 3), KB + (n & 3) * SLOT + (s >> 2) * 256))
        for T in tiles_of(n, r):
            mf.append(dict(text=mfma(vr(S_(par, T)), ar(b), ar(Q_(T, s)), vr(vNegM + 4 * T) if s == 0 else vr(S_(par, T)))))


def pv_part(n, r, fr, mf):
    par = n & 1
    for b_ in range(8):
        b = fr.new(mf, rdtr(vV + b_, vV + 8 + b_, (n & 3) * SLOT, (n & 3) * SLOT))
        for T in range(4):
            mf.append(dict(text=mfma(vr(O_(T, b_)), ar(b), vr(P_(par, T)), vr(O_(T, b_)))))
        if own9(n, r):
            mf.append(dict(text=mfma(ar(aO9 + 4 * b_), ar(b), vr(vP9), ar(aO9 + 4 * b_))))


tbank = [0]


def softmax_items(n, tiles, e, d):
    par = n & 1
    its = []
    for T in tiles:
        for h in range(2):
            t = vTmp + 2 * (tbank[0] % 3)
            tbank[0] += 1
            s0 = S_(par, T) + 2 * h
            its.append(Item("v_exp_f32 v%d, v%d" % (t, s0), e, d))
            its.append(Item("v_exp_f32 v%d, v%d" % (t + 1, s0 + 1), e, d))
            its.append(Item("v_add_f32 v%d, v%d, v%d" % (vL + T, vL + T, t), e, d))
            its.append(Item("v_cvt_pk_bf16_f32 v%d, v%d, v%d" % (P_(par, T) + h, t, t + 1), e, d))
            its.append(Item("v_add_f32 v%d, v%d, v%d" % (vL + T, vL + T, t + 1), e, d))
        if T < 4 and (T & 1):
            its.append(Item("ds_write2st64_b64 v%d, %s, %s offset0:%d offset1:%d"
                            % (vPW, vr(P_(par, T - 1), 2), vr(P_(par, T), 2), 5 * par + T - 1, 5 * par + T), e, d))
        if T == 4:
            its.append(Item("ds_write_b64 v%d, %s offset:%d" % (vPW, vr(vP9, 2), (5 * par + 4) * 512), e, d))
    return its


def partner_reads(n, r):
    return ["ds_read_b64 %s, v%d offset:%d" % (vr(P_(n & 1, T) + 2, 2), vPR, (5 * (n & 1) + T) * 512) for T in tiles_of(n, r)]


def split_tiles(n, r, everything=False):
    if everything:
        return tiles_of(n, r), []
    if own9(n, r) and not (n & 1):
        return [4, 0], [1, 2, 3]
    if own9(n, r):
        return [0, 1, 2], [3, 4]
    return [0, 1], [2, 3]


def pair(fr, mf, lo, hi):
    for f in range(lo, hi - 1, 2):
        mf[fr.first[f]]["waitfor"] = rset("a", fr.fr[f + 1][0])


def step(n, r, k0, dma_pre, dma_post, vm, pref, all_next=False):
    fr = Frags(k0)
    mf = []
    qk_part(n + 1, r, fr, mf)
    nq, fq = len(mf), len(fr.fr)
    pv_part(n, r, fr, mf)
    N = len(mf)
    bpos = nq - EARLY

    def barrier():
        P.wait_ds_regs(rset("a", fr.fr[fq - 1][0]))
        drain_writes()
        E("s_waitcnt vmcnt(%d)" % vm) if isinstance(vm, int) else vmwait(vm)
        E("s_barrier")

    rq = []
    for f in range(LEAD, len(fr.fr)):
        if f < fq:
            d = min(fr.first[f - LEAD + 1], bpos - 3)
            e = min(fr.first[f - LEAD], d)
        elif f - fq < LEAD:
            if f == fq:
                rq += [Item(t, bpos, bpos + 1 + j // 2) for j, t in enumerate(partner_reads(n, r))]
            e, d = bpos, bpos + 3 + (f - fq)
        else:
            e, d = fr.first[f - LEAD], fr.first[f - LEAD + 1]
        rq.append(Item("\n".join(fr.fr[f][1]), e, d))
    for j, t in enumerate(pref):
        e = fr.first[len(fr.fr) - LEAD + j]
        rq.append(Item("\n".join(t), e, min(N - 1, e + 3)))
    mf[bpos]["pre"] = [barrier]
    mf[nq]["pre"] = [lambda: E(cond_call("L_fix%d" % ((n + 1) & 1), int(own9(n + 1, r))))]
    vq = softmax_items(n, split_tiles(n, r)[1], -1, bpos - 2)
    first = split_tiles(n + 1, r, all_next)[0]
    for T in first:
        e = nq + 5
        if T == 4 and own9(n, r):
            e = N - 1
        vq += softmax_items(n + 1, [T], e, BIG)
    npre = len([1 for (t, _) in dma_pre if "buffer_load" in t])
    npost = len([1 for (t, _) in dma_post if "buffer_load" in t])
    dq = spread(dma_pre, 1, max(1, (bpos - 3) // max(1, npre))) + spread(dma_post, bpos + 4, max(1, (N - bpos - 6) // max(1, npost)))
    run_phase(mf, [rq, vq, dq], "step%d r%d" % (n, r))
    E(cond_call("L_fixo", 0))
    return fr.k


def qk_pref(n, r, k0):
    fr, mf = Frags(k0), []
    qk_part(n, r, fr, mf)
    return [fr.fr[f][1] for f in range(LEAD)]


def pv_pref(n, r, k0):
    fr, mf = Frags(k0), []
    pv_part(n, r, fr, mf)
    return [fr.fr[f][1] for f in range(LEAD)]


E("%s:" % KN)
E("s_cmp_ge_u32 s2, 256\ns_cbranch_scc1 L_end")
E("v_lshrrev_b32 v1, 6, v0\ns_mov_b32 s%d, %d" % (sPara, PARA))
E("v_readfirstlane_b32 s%d, v1" % sW)
stamp()
if STAMP == 1:
    E("s_memtime s[92:93]\ns_waitcnt lgkmcnt(0)")
E("L_start:")
E("s_and_b32 s%d, s2, 7" % sT0)
E("s_lshr_b32 s%d, s2, 3" % sT1)
E("s_lshr_b32 s96, s%d, 4" % sT1)
E("s_lshr_b32 s97, s%d, 1\ns_and_b32 s97, s97, 7" % sT1)
E("s_and_b32 s98, s%d, 1\ns_lshl_b32 s99, s%d, 1\ns_add_u32 s98, s98, s99" % (sT1, sT0))
E("s_mul_i32 s99, s96, 40")
E("s_add_u32 s50, s0, s99\ns_addc_u32 s51, s1, 0")
E("s_load_dwordx2 s[4:5], s[50:51], 0")
E("s_load_dwordx2 s[8:9], s[50:51], 24")
E("s_load_dwordx2 s[12:13], s[50:51], 8")
E("s_load_dwordx2 s[16:17], s[50:51], 16")
E("s_load_dwordx2 s[20:21], s[50:51], 32")
E("s_load_dwordx2 s[24:25], s[0:1], 96")
hL, hW, hI, hG = 200, 201, 202, 203
vDX, vDWQ = 204, 205
vXR = 206
vW = 210
h0, h1, h2, h3, h4, h5 = 220, 221, 222, 223, 224, 225
E("v_mbcnt_lo_u32_b32 v%d, -1, 0\nv_mbcnt_hi_u32_b32 v%d, -1, v%d\nv_mov_b32 v%d, s%d" % (hL, hL, hL, hW, sW))
E("v_and_b32 v%d, 15, v%d\nv_lshrrev_b32 v%d, 4, v%d" % (hI, hL, hG, hL))
E("s_lshl_b32 s%d, s%d, 12\ns_lshr_b32 s%d, s%d, 1\ns_and_b32 s%d, s%d, 1" % (sW4K, sW, sR, sW, sC, sW))
E("v_lshrrev_b32 v%d, 3, v%d\nv_lshl_add_u32 v%d, v%d, 3, v%d\nv_mul_u32_u24 v%d, 896, v%d" % (h0, hL, h1, hW, h0, h1, h1))
E("v_and_b32 v%d, 7, v%d\nv_xor_b32 v%d, v%d, v%d\ns_lshl_b32 s99, s%d, 2\nv_xor_b32 v%d, s99, v%d" % (h2, hL, h3, h2, hG, sC, h3, h3))
E("v_lshl_add_u32 v%d, v%d, 4, v%d" % (vDX, h3, h1))
E("v_lshrrev_b32 v%d, 5, v%d\nv_and_b32 v%d, 31, v%d\nv_lshl_add_u32 v%d, v%d, 1, v%d" % (h0, hL, h1, hL, h3, hW, h0))
E("v_lshlrev_b32 v%d, 1, v%d\nv_xor_b32 v%d, v%d, v%d\nv_lshlrev_b32 v%d, 4, v%d" % (h3, h3, h3, h3, h1, h3, h3))
E("s_lshl_b32 s99, s%d, 3\ns_lshl_b32 s100, s%d, 1\ns_add_u32 s99, s99, s100\nv_add_u32 v%d, s99, v%d" % (sR, sC, h1, h0))
E("v_lshl_add_u32 v%d, v%d, 13, v%d" % (vDWQ, h1, h3))
E("v_lshl_add_u32 v%d, v%d, 3, v%d\nv_lshl_add_u32 v%d, v%d, 9, v%d" % (h1, hW, h0, vDKV, h1, h3))
E("s_mul_i32 s100, s97, 129024")
E("s_lshl_b32 s101, s98, 9")
E("s_lshl_b32 s%d, s%d, 10\ns_add_u32 s%d, s%d, %d" % (sXm0, sW, sXm0, sXm0, XB))
E("s_waitcnt lgkmcnt(0)")
stamp(STAMP == 6)
E("s_add_u32 s4, s4, s100\ns_addc_u32 s5, s5, 0\ns_mov_b32 s6, 129024\ns_mov_b32 s7, 0x20000")
E("s_add_u32 s8, s8, s101\ns_addc_u32 s9, s9, 0\ns_sub_u32 s10, %d, s101\ns_mov_b32 s11, 0x20000" % (448 * 8192))

WPI = {2: 0, 3: 1, 4: 4, 5: 2, 0: 3, 1: 5}
wslot = lambda N: WPI[N % 6] * SLOT


def dma_wq(s):
    res = []
    for m in range(4):
        so = (32 * s + 16 * (m & 1) + 4 * (m >> 1)) * 8192 - m * 1024
        t = "s_add_u32 m0, s%d, %d\n" % (sW4K, wslot(s)) if m == 0 else ""
        res.append((t + "s_mov_b32 s%d, %d\nbuffer_load_dwordx4 v%d, %s, s%d offen offset:%d %s lds"
                    % (sTmpO, so, vDWQ, srd(SRD_WQ), sTmpO, m * 1024, WNT), ("W", s)))
    return res


def dma_x(p):
    res = []
    for k in range(5):
        res.append(("s_add_u32 m0, s%d, %d\ns_mov_b32 s%d, %d\nbuffer_load_dwordx4 v%d, %s, s%d offen %s lds"
                    % (sXm0, (p % 3) * 20480 + 4096 * k, sTmpO, 28672 * k + 128 * p, vDX, srd(SRD_X), sTmpO, WNT), ("X", p)))
    return res


emit_pieces(dma_x(0) + dma_wq(0) + dma_wq(1))
E("s_lshl_b32 s99, s97, 4\ns_add_u32 s99, s99, s98")
E("s_xor_b32 s100, s96, 1\ns_lshr_b32 s99, s99, s100")
if OPT.get("map") == "l2":
    E("s_and_b32 s99, s2, 7")
E("s_lshl_b32 s99, s99, 19")
E("s_add_u32 s12, s12, s99\ns_addc_u32 s13, s13, 0\ns_mov_b32 s14, 0x80000\ns_mov_b32 s15, 0x20000")
E("s_add_u32 s16, s16, s99\ns_addc_u32 s17, s17, 0\ns_mov_b32 s18, 0x80000\ns_mov_b32 s19, 0x20000")
E("s_mul_i32 s99, s98, %d" % (256 * 896))
E("s_add_u32 s20, s20, s99\ns_addc_u32 s21, s21, 0\ns_mov_b32 s22, %d\ns_mov_b32 s23, 0x20000" % (256 * 896))
if STAMP:
    E("s_lshl_b32 s99, s2, 8\ns_add_u32 s99, s99, 0x4000000\ns_add_u32 s%d, s24, s99\ns_addc_u32 s%d, s25, 0" % (sWSB, sWSB + 1))
E("s_lshl_b32 s99, s96, 3\ns_add_u32 s99, s99, s97\ns_lshl_b32 s99, s99, 4\ns_add_u32 s3, s99, s98")
E("s_lshl_b32 s99, s3, 17")
E("s_add_u32 s24, s24, s99\ns_addc_u32 s25, s25, 0\ns_mov_b32 s26, %d\ns_mov_b32 s27, 0x20000" % SLAB)
E("s_mov_b32 s%d, 0\ns_mov_b32 s%d, 0" % (sOffK, sOffV))


def rho(dst, i, t1):
    E("v_lshrrev_b32 v%d, 1, v%d\nv_and_b32 v%d, 3, v%d\nv_lshlrev_b32 v%d, 3, v%d" % (dst, i, dst, dst, dst, dst))
    E("v_lshrrev_b32 v%d, 3, v%d\nv_lshl_add_u32 v%d, v%d, 1, v%d" % (t1, i, dst, t1, dst))
    E("v_and_b32 v%d, 1, v%d\nv_add_u32 v%d, v%d, v%d" % (t1, i, dst, dst, t1))


E("v_lshrrev_b32 v%d, 1, v%d\nv_xor_b32 v%d, v%d, v%d\nv_lshlrev_b32 v%d, 7, v%d" % (h0, hI, h0, h0, hG, h1, hI))
E("v_add_u32 v%d, %d, v%d\ns_lshl_b32 s99, s%d, 13" % (h1, XB, h1, sR))
for par in range(2):
    E("v_xor_b32 v%d, %d, v%d\nv_lshl_add_u32 v%d, v%d, 4, v%d" % (h2, 4 * par, h0, h2, h2, h1))
    E("v_add_u32 v%d, s99, v%d\nv_add_u32 v%d, %d, v%d" % (vXR + par, h2, vXR + 2 + par, 128 * 128, h2))
E("v_lshrrev_b32 v%d, 2, v%d" % (h5, hL))
rho(h4, h5, h0)
E("v_lshlrev_b32 v%d, 9, v%d\nv_and_b32 v%d, 7, v%d\nv_and_b32 v%d, 3, v%d" % (h4, h4, h5, h5, h3, hL))
E("v_lshlrev_b32 v%d, 1, v%d\nv_xor_b32 v%d, v%d, v%d\ns_lshl_b32 s99, s%d, 3\nv_xor_b32 v%d, s99, v%d" % (h0, h5, h0, h0, h3, sR, h0, h0))
E("s_lshl_b32 s99, s%d, 8\nv_add_u32 v%d, s99, v%d" % (sC, h1, h4))
for b in range(4):
    E("v_xor_b32 v%d, %d, v%d\nv_lshl_add_u32 v%d, v%d, 4, v%d\nv_add_u32 v%d, 0x10000, v%d" % (h2, 4 * b, h0, vW + b, h2, h1, vW + 4 + b, vW + b))
emit_pieces(dma_x(1) + dma_wq(2))
E("s_lshl_b32 s99, s%d, 2\nv_xor_b32 v%d, s99, v%d" % (sR, h0, h5))
E("s_mul_i32 s99, s%d, 2304\ns_add_u32 s99, s99, %d\nv_add_u32 v%d, s99, v%d\nv_lshl_add_u32 v%d, v%d, 3, v%d" % (sC, VB, h1, h4, h1, h3, h1))
for b in range(8):
    E("v_xor_b32 v%d, %d, v%d\nv_lshl_add_u32 v%d, v%d, 5, v%d\nv_xor_b32 v%d, 0x800, v%d" % (h2, b, h0, vV + b, h2, h1, vV + 8 + b, vV + b))
rho(h4, hI, h0)
E("v_and_b32 v%d, 7, v%d\nv_lshlrev_b32 v%d, 1, v%d\nv_xor_b32 v%d, v%d, v%d" % (h0, hI, h0, h0, h0, h0, hG))
E("s_lshl_b32 s99, s%d, 11\nv_lshlrev_b32 v%d, 9, v%d\nv_add_u32 v%d, s99, v%d" % (sC, h1, h4, h1, h1))
for b in range(4):
    E("v_xor_b32 v%d, %d, v%d\nv_lshl_add_u32 v%d, v%d, 4, v%d" % (h2, 4 * b, h0, vK + b, h2, h1))
E("s_mul_i32 s99, s%d, 5120\ns_add_u32 s99, s99, %d\nv_lshlrev_b32 v%d, 3, v%d\nv_add_u32 v%d, s99, v%d" % (sW, PX, h0, hL, vPW, h0))
E("s_xor_b32 s99, s%d, 1\ns_mul_i32 s99, s99, 5120\ns_add_u32 s99, s99, %d\nv_add_u32 v%d, s99, v%d" % (sW, PX, vPR, h0))
E("v_lshlrev_b32 v%d, 2, v%d\nv_add_u32 v%d, %d, v%d" % (vMB, hL, vMB, MB, vMB))
emit_pieces(dma_wq(3))
stamp(STAMP == 6)

QAB = 28
QA = lambda T, sd, v: QAB + 32 * T + 4 * (2 * sd + v) if T < 4 else QAB + 128 + 4 * (2 * (sd - 2) + v)
aX = 0
X_ = lambda T, s: aX + 40 * ((s >> 1) & 1) + 20 * (s & 1) + 4 * T


def xreads(p):
    out = []
    for s in (2 * p, 2 * p + 1):
        for T in range(5):
            if T < 4:
                out.append("ds_read_b128 %s, v%d offset:%d" % (ar(X_(T, s)), vXR + (s & 1), (p % 3) * 20480 + T * 2048))
            else:
                out.append("ds_read_b128 %s, v%d offset:%d" % (ar(X_(T, s)), vXR + 2 + (s & 1), (p % 3) * 20480))
    return out


def build_qp(N, k0):
    fr = Frags(k0)
    mf = []
    win, off = wslot(N) >> 16, wslot(N) & 0xffff
    for sd in range(4):
        for v in range(2):
            a = vW + 4 * win + sd
            b = fr.new(mf, rdtr(a, a, off + 8 * v, off + 8 * v + 2048))
            for T in range(5 if sd >= 2 else 4):
                mf.append(dict(text=mfma(vr(QA(T, sd, v)), ar(b), ar(X_(T, N)), "0" if N == 0 else vr(QA(T, sd, v)))))
    return fr, mf


Kp = lambda n, cap=False: dma_kv("K", KB + (n & 3) * SLOT, ("K", n), cap)
Vp = lambda n, cap=False: dma_kv("V", VB + (n & 3) * SLOT, ("V", n), cap)
late = {9: Kp(0), 10: Kp(1), 11: Vp(0), 12: Kp(2), 13: Kp(3)}
wplan = {0: [4], 1: [5], 2: [6, 7], 3: [8], 4: [9], 5: [10], 6: [11], 7: [12], 8: [13]}
zero_q = ["v_mov_b32 v%d, 0" % r for r in range(172, 200)] + ["v_mov_b32 v%d, 0" % r for r in range(226, 256)] + \
         ["v_accvgpr_write_b32 a%d, 0" % r for r in range(aO9, aO9 + 32)]
vmwait([("X", 0), ("W", 1)])
E("s_barrier")
stamp(STAMP == 6)
for t in xreads(0):
    E(t)
k = 0
for N in range(14):
    fr, mf = build_qp(N, k)
    n = len(mf)
    if N > 0:
        vmwait([("W", min(N + 1, 13))] + ([("X", (N + 1) // 2)] if (N & 1) and N < 12 else []))
        E("s_barrier")
    rq = fr.items(0 if N == 0 else LEAD, LEAD)
    if N < 13:
        nf, _ = build_qp(N + 1, fr.k)
        for j in range(LEAD):
            e = fr.first[len(fr.fr) - LEAD + j]
            rq.append(Item("\n".join(nf.fr[j][1]), e, e + 3))
    pieces = []
    for W in wplan.get(N, []):
        pieces += dma_wq(W)
    pieces += late.get(N, [])
    if N == 0:
        pieces += dma_x(2)
    elif (N & 1) == 0 and N // 2 + 2 < 7:
        pieces += dma_x(N // 2 + 2)
    nd = len([1 for (t, _) in pieces if "buffer_load" in t])
    dq = spread(pieces, 0, max(2.5, min(4.0, (n - 2) / max(1, nd))))
    xq = [Item(t, 0, 24) for t in xreads((N + 1) // 2)] if (N & 1) and N < 12 else []
    zq = [Item(t, 0, BIG) for t in zero_q[9 * (N - 1):9 * N]] if 1 <= N <= 10 else []
    run_phase(mf, [rq, xq, dq, zq], "qp%d" % N)
    k = fr.k
    stamp(STAMP == 6 and (N & 1) and N < 13)
stamp(STAMP in (5, 6))
E("s_barrier")
E("s_mov_b32 s100, %s\ns_mov_b32 s101, %s" % (fbits(CSCALE), fbits(CSCALE)))
E("s_lshl_b32 s99, s%d, 15\ns_lshl_b32 s96, s%d, 12\ns_add_u32 s99, s99, s96\ns_lshl_b32 s97, s%d, 11\ns_add_u32 s99, s99, s97\ns_add_u32 s99, s99, %d"
  % (sR, sC, sR, QS))
E("v_lshlrev_b32 v%d, 4, v%d\nv_add_u32 v%d, s99, v%d\nv_xor_b32 v%d, 0x800, v%d" % (h0, hL, h1, h0, h2, h1))
E("s_xor_b32 s97, s97, 0x800\ns_add_u32 s96, s96, s97\ns_add_u32 s96, s96, %d\nv_add_u32 v%d, s96, v%d" % (QS + 65536, h3, h0))
for T in (4, 0, 1, 2, 3):
    for sd in (range(4) if T < 4 else (2, 3)):
        a = QA(T, sd, 0)
        for j in range(4):
            E("v_pk_mul_f32 %s, %s, s[100:101]" % (vr(a + 2 * j, 2), vr(a + 2 * j, 2)))
        for j in range(4):
            E("v_cvt_pk_bf16_f32 v%d, v%d, v%d" % (a + j, a + 2 * j, a + 2 * j + 1))
        if T < 4:
            E("ds_write_b128 v%d, %s offset:%d" % (h1 if sd < 2 else h2, vr(a), T * 8192 + (sd & 1) * 1024))
        else:
            E("ds_write_b128 v%d, %s offset:%d" % (h3, vr(a), (sd & 1) * 1024))
E("s_lshl_b32 s99, s%d, 15\ns_add_u32 s99, s99, %d\nv_add_u32 v%d, s99, v%d\nv_add_u32 v%d, %d, v%d" % (sR, QS, h1, h0, h2, QS + 65536, h0))
vmwait([("K", 1)])
E("s_waitcnt lgkmcnt(0)")
E("s_barrier")
qreads = []
for s in range(8):
    for T in range(5):
        qreads.append("ds_read_b128 %s, v%d offset:%d" % (ar(Q_(T, s)), h1 if T < 4 else h2, (T * 8192 if T < 4 else 0) + s * 1024))
init = ["v_mov_b32 v%d, 0" % r for r in range(vNegM, vNegM + 20)] + ["v_mov_b32 v%d, 0" % r for r in range(vL, vL + 5)]
for j in range(0, 40):
    E(qreads[j])
    if j < len(init):
        E(init[j])
E("s_mov_b64 vcc, -1\ns_mov_b32 s%d, 0xff800000\ns_mov_b32 s%d, 1" % (sFloor, sFirst))
E("s_memrealtime s[%d:%d]" % (sClk, sClk + 1))
E("s_waitcnt lgkmcnt(0)")
E("s_barrier")
emit_pieces(Vp(1))
stamp()
late_zero = ["v_mov_b32 v%d, 0" % r for r in list(range(128, 172)) + list(range(200, 226))]
if int(opt("wot", "1")):
    E("s_lshr_b32 s99, s3, 4\ns_and_b32 s99, s99, 7\ns_lshl_b32 s99, s99, 2\ns_add_u32 s99, s99, s%d\ns_mul_i32 s99, s99, %d" % (sW, 56 * 128))
    E("v_lshlrev_b32 v%d, 7, v%d\ns_mov_b32 exec_hi, 0x00ffffff" % (vTmp, hL))
    E("buffer_load_dword a200, v%d, %s, s99 offen" % (vTmp, srd(SRD_WO)), tag="t")
    E("s_mov_b32 exec_hi, -1")
E("s_cmp_eq_u32 s%d, 1\ns_cbranch_scc1 L_att1" % sR)

OBUF = [VB, KB, KB + 32768, VB + 32768]
OLDS = lambda q: OBUF[(q >> 1) & 3] + (q & 1) * SLOT
vDWO = vSc


def dma_wo(q):
    sg, a = q >> 1, q & 1
    res = []
    for m in range(4):
        t = "s_add_u32 m0, s%d, %d\n" % (sW4K, OLDS(q)) if m == 0 else ""
        res.append((t + "s_mov_b32 s%d, %d\nbuffer_load_dwordx4 v%d, %s, s%d offen offset:%d %s lds"
                    % (sTmpO, a * 114688 + m * 6144 + 128 * sg, vDWO, srd(SRD_WO), sTmpO, m * 1024, WNT), ("O", q)))
    return res


OFo = lambda T, kk: 64 + 16 * T + 4 * kk
OFp = lambda T, kk: 0 + 16 * T + 4 * kk
aOF9 = 64
aHOLD = 96
TB = list(range(40, 56))
vST, vST9, wA, wB, rA, rB = 4, 5, 6, 7, 1, 2
vRI = vL
acc_ = lambda sg, T: (8, 16, 56, 32)[T] if sg == 0 else 128 + 32 * ((sg - 1) % 3) + 8 * T
acc9 = lambda sg: 224 + 4 * (sg % 4)
v9st = 240
O9S, LX, O9P = PX, PX + 16384, 155648


def tail_setup():
    t = ["v_mbcnt_lo_u32_b32 v0, -1, 0\nv_mbcnt_hi_u32_b32 v0, -1, v0",
         "s_load_dwordx2 s[12:13], s[0:1], 88\ns_load_dwordx2 s[14:15], s[0:1], 96" if False else "s_nop 0",
         "v_lshrrev_b32 v3, 2, v0\nv_lshlrev_b32 v3, 7, v3", "v_and_b32 v30, 3, v0\nv_lshl_add_u32 v3, v30, 3, v3",
         "s_lshl_b32 s99, s%d, 1\ns_xor_b32 s99, s99, s%d\nv_bfe_u32 v30, v0, 3, 2" % (sC, sR), "v_xor_b32 v30, s99, v30",
         "v_lshl_add_u32 v30, v30, 5, v3\nv_xor_b32 v31, 32, v30"]
    for kk in range(4):
        t.append("s_lshl_b32 s98, s%d, 1\ns_xor_b32 s98, s98, %d\ns_lshl_b32 s98, s98, 12" % (sR, kk))
        t.append("s_lshl_b32 s99, s%d, 14\ns_add_u32 s99, s99, s98\ns_add_u32 s99, s99, %d" % (sC, VB))
        for nt in range(2):
            t.append("v_add_u32 v%d, s99, v%d\nv_xor_b32 v%d, 0x4000, v%d" % (TB[2 * kk + nt], 30 + nt, TB[8 + 2 * kk + nt], TB[2 * kk + nt]))
    for T in range(5):
        t.append("v_mov_b32 v30, v%d\nv_mov_b32 v31, v%d" % (vL + T, vL + T))
        t.append("s_nop 0\nv_permlane32_swap_b32 v30, v31")
        t.append("v_add_f32 v30, v30, v31\nv_mov_b32 v31, v30")
        t.append("s_nop 0\nv_permlane16_swap_b32 v30, v31")
        t.append("v_add_f32 v%d, v30, v31" % (vL + T))
    t.append("v_and_b32 v3, 15, v0\nv_lshlrev_b32 v3, 2, v3")
    t.append("s_mul_i32 s99, s%d, 320\ns_add_u32 s99, s99, %d\nv_add_u32 v30, s99, v3" % (sW, LX))
    t += ["ds_write_b32 v30, v%d offset:%d" % (vL + T, 64 * T) for T in range(5)]
    t.append("v_lshlrev_b32 v0, 4, v0")
    t.append("s_lshl_b32 s99, s%d, 16\ns_lshl_b32 s98, s%d, 12\ns_add_u32 s99, s99, s98" % (sR, sC))
    t.append("s_lshl_b32 s98, s%d, 11\ns_add_u32 s99, s99, s98\ns_add_u32 s99, s99, 32768" % sR)
    t.append("v_add_u32 v%d, s99, v0\nv_xor_b32 v%d, 0x800, v%d" % (wA, wB, wA))
    t.append("v_xor_b32 v%d, 0x1000, v%d\nv_xor_b32 v%d, 0x1000, v%d" % (rA, wA, rB, wB))
    t.append("s_lshl_b32 s99, s%d, 13\ns_lshl_b32 s98, s%d, 10\ns_add_u32 s99, s99, s98" % (sR, sC))
    t.append("v_add_u32 v%d, s99, v0" % vST)
    t.append("s_lshl_b32 s99, s%d, 10\nv_add_u32 v%d, s99, v0" % (sW, vST9))
    return t


saved = (list(P.dsq), list(P.vmq), nstamp[0])
for r in range(2):
    P.dsq, P.vmq = list(saved[0]), list(saved[1])
    nstamp[0] = saved[2]
    if r == 1:
        E("L_att1:")
    fr, mf = Frags(0), []
    qk_part(0, r, fr, mf)
    run_phase(mf, [fr.items(0, LEAD), [Item(t, 0, BIG) for t in late_zero]], "qk0")
    E("s_barrier")
    E(cond_call("L_fix0", int(own9(0, r))))
    E("s_cmp_eq_u32 s%d, 0\ns_cselect_b64 vcc, 0, -1\ns_mov_b32 s%d, 0\ns_mov_b32 s%d, 0" % (sPara, sFloor, sFirst))
    emit_pieces(Kp(4))
    if STAMP == 1:
        E("s_memtime s[88:89]\ns_memrealtime s[84:85]\ns_waitcnt lgkmcnt(0)")
    tbank[0] = 0
    for it in softmax_items(0, split_tiles(0, r)[0], -1, BIG):
        it.emit()
    E("s_mov_b32 s%d, 0" % sLoop)
    drain_writes()
    k = 8
    for t in qk_pref(1, r, k):
        E("\n".join(t))
    tbank[0] = 0
    entry = [set(d) for (_, d) in P.dsq]
    E("L_loop%d:" % r)
    for n in range(4):
        k = step(n, r, k, Vp(n + 2, True), Kp(n + 5, True), 16, qk_pref(n + 2, r, k + 16))
    now = [set(d) for (_, d) in P.dsq if d]
    assert now == entry, (now, entry)
    drain_writes()
    if STAMP == 7:
        raw("s_memrealtime s[80:81]\ns_memtime s[82:83]\ns_waitcnt lgkmcnt(0)\ns_lshl_b64 exec, 1, s%d\n"
            "v_accvgpr_write_b32 a199, s80\nv_accvgpr_write_b32 a198, s82\ns_mov_b64 exec, -1" % sLoop)
    E("s_add_u32 s%d, s%d, 1\ns_cmp_lt_u32 s%d, 6\ns_cbranch_scc1 L_loop%d" % (sLoop, sLoop, sLoop, r))
    if STAMP == 1:
        raw("s_memtime s[90:91]\ns_memrealtime s[86:87]")
        E("s_waitcnt lgkmcnt(0)")
    for n in range(24, 31):
        pre = Vp(n + 2, True) if n + 2 < 32 else []
        post = Kp(n + 5, True) if n + 5 < 32 else []
        if n >= 27:
            post = dma_wo({27: 2, 28: 3, 29: 0, 30: 1}[n])
        vm = 16 if n < 26 else [("K", min(n + 2, 31)), ("V", n if n < 30 else 31)]
        pref = qk_pref(n + 2, r, k + 16) if n < 30 else pv_pref(31, r, k + 16)
        if n == 27:
            t0 = vTmp
            E("v_mbcnt_lo_u32_b32 v%d, -1, 0\nv_mbcnt_hi_u32_b32 v%d, -1, v%d" % (t0, t0, t0))
            E("v_lshrrev_b32 v%d, 4, v%d\nv_lshlrev_b32 v%d, 1, v%d\nv_xor_b32 v%d, v%d, v%d\nv_and_b32 v%d, 7, v%d\nv_lshlrev_b32 v%d, 4, v%d"
              % (vSc, t0, vSc, vSc, vSc, vSc, t0, vSc, vSc, vSc, vSc))
            E("v_lshrrev_b32 v%d, 3, v%d\nv_mul_u32_u24 v%d, 896, v%d\nv_add_u32 v%d, v%d, v%d\ns_mul_i32 s99, s%d, %d\nv_add_u32 v%d, s99, v%d"
              % (t0, t0, t0, t0, vSc, vSc, t0, sW, 32 * 896, vSc, vSc))
        k = step(n, r, k, pre, post, vm, pref, all_next=(n == 30))
    drain_writes()
    E("s_barrier")
    for t in partner_reads(31, r):
        E(t)
    fr, mf = Frags(k), []
    pv_part(31, r, fr, mf)
    run_phase(mf, [fr.items(LEAD, LEAD), [Item(t, 2, BIG) for t in tail_setup()]], "pv31")
    if r == 0:
        E("s_branch L_oproj")
E("L_oproj:")
stamp()
vmwait([("O", 1)])
E("s_waitcnt lgkmcnt(0)")
E("s_barrier")


def hold_of(sg, a_, kk):
    return aHOLD + 32 * sg + 4 * (4 * a_ + kk)


def stage_part(sg, a_, fr, mf, kfirst, prev_buf):
    buf = OBUF[sg & 3]
    dwin = ((buf & ~0xffff) - (prev_buf & ~0xffff)) & 0xffffffff
    off = buf & 0xffff
    for kk in range(4):
        for nt in range(2):
            rg = TB[8 * a_ + 2 * kk + nt]
            hold = hold_of(sg, a_, kk) if (sg < 2 and nt == 1) else None
            pre_ = ["v_add_u32 v%d, 0x%x, v%d" % (rg, dwin, rg)] if dwin else []
            bb = fr.new(mf, (lambda p_, f_: (lambda b: p_ + f_(b)))(pre_, rdtr(rg, rg, off, off + 2048)), hold)
            kfirst.setdefault((sg, a_, kk), len(mf))
            z = (a_ == 0 and kk == 0)
            for T in range(4):
                d = acc_(sg, T) + 4 * nt
                mf.append(dict(text=mfma(vr(d), ar(bb), vr(OFo(T, kk)) if a_ == 0 else ar(OFp(T, kk)), "0" if z else vr(d))))
            if nt == 1 and sg >= 2:
                j = 4 * a_ + kk
                mf.append(dict(text=mfma(vr(acc9(sg)), ar(bb), ar(aOF9 + 4 * j), "0" if z else vr(acc9(sg)))))
                if sg == 2:
                    for s9 in range(2):
                        mf.append(dict(text=mfma(vr(acc9(s9)), ar(hold_of(s9, a_, kk)), ar(aOF9 + 4 * j), "0" if j == 0 else vr(acc9(s9)))))


def build_stage(sg, k0):
    fr, mf, kfirst = Frags(k0), [], {}
    if sg == 0:
        for (s_, a_) in ((0, 0), (1, 0), (0, 1), (1, 1)):
            stage_part(s_, a_, fr, mf, kfirst, OBUF[0])
    else:
        for a_ in range(2):
            stage_part(sg, a_, fr, mf, kfirst, OBUF[(sg - 1) & 3])
    return fr, mf, kfirst


def conv_items(kk, e, d):
    return [Item("v_cvt_pk_bf16_f32 v%d, v%d, v%d" % (OFo(T, kk) + j, O_(T, 2 * kk) + 2 * j, O_(T, 2 * kk) + 2 * j + 1), e, d)
            for T in range(4) for j in range(4)]


def out_items(sg, e0, step_, nine):
    its = []
    for T in range(4):
        e = e0 + T * step_
        a0 = acc_(sg, T)
        for j in range(8):
            its.append(Item("v_mul_f32 v%d, v%d, v%d" % (a0 + j, vRI + T, a0 + j), e, BIG))
        for j in range(4):
            its.append(Item("v_cvt_pk_bf16_f32 v%d, v%d, v%d" % (a0 + j, a0 + 2 * j, a0 + 2 * j + 1), e, BIG))
        its.append(Item("s_mov_b32 s%d, %d\nbuffer_store_dwordx4 %s, v%d, %s, s%d offen offset:%d %s"
                        % (sT1, sg * 16384 + (T >> 1) * 4096, vr(a0), vST, srd(SRD_WS), sT1, (T & 1) * 2048, STP), e, BIG, ("st", sg)))
    e = e0 + 4 * step_
    for s9 in nine:
        a0, d = acc9(s9), v9st + 2 * (s9 & 1)
        for j in range(4):
            its.append(Item("v_mul_f32 v%d, v%d, v%d" % (a0 + j, vRI + 4, a0 + j), e, BIG))
        its.append(Item("v_cvt_pk_bf16_f32 v%d, v%d, v%d\nv_cvt_pk_bf16_f32 v%d, v%d, v%d" % (d, a0, a0 + 1, d + 1, a0 + 2, a0 + 3), e, BIG))
        if s9 == 6:
            its.append(Item("v_mov_b32 v%d, 0\nv_mov_b32 v%d, 0" % (v9st + 2, v9st + 3), e, BIG))
        if (s9 & 1) or s9 == 6:
            its.append(Item("s_mov_b32 s%d, %d\nbuffer_store_dwordx4 %s, v%d, %s, s%d offen %s"
                            % (sT1, 114688 + 4096 * (s9 >> 1), vr(v9st), vST9, srd(SRD_WS), sT1, STP), e, BIG, ("st", sg)))
    return its


npub = [0]


def publish(parts):
    k_ = npub[0]
    npub[0] += 1
    E("s_cmp_lg_u32 s%d, 0\ns_cbranch_scc1 L_nopub%d" % (sW, k_))
    raw("s_memrealtime s[96:97]")
    E("s_mov_b64 exec, 1\ns_and_b32 s99, s3, 15\ns_lshl_b32 s99, s99, 3\nv_mov_b32 v1, s99")
    raw("s_waitcnt lgkmcnt(0)")
    E("v_mov_b32 v2, s96\nv_mov_b32 v3, s97")
    for p_ in parts:
        raw("global_store_dwordx2 v1, v[2:3], s[14:15] offset:%d sc1" % (256 * p_))
    E("s_mov_b64 exec, -1")
    E("L_nopub%d:" % k_)


fr0 = build_stage(0, 0)[0]
for f in range(LEAD):
    E("\n".join(fr0.fr[f][1]))
for it in conv_items(0, -1, BIG):
    it.emit()
k = 0
issue_plan = {2: [6, 7, 8, 9], 3: [10, 11], 4: [12, 13]}
for sg in (0, 2, 3, 4, 5, 6):
    fr, mf, kfirst = build_stage(sg, k)
    N = len(mf)
    stamp(STAMP == 5)
    bpos = N - EARLY
    rq = fr.items(LEAD, LEAD)
    nxt = 2 if sg == 0 else sg + 1
    pieces = []
    for q in issue_plan.get(sg, []):
        pieces += dma_wo(q)
    dq = spread(pieces, 0, 3)
    if sg < 6:
        nf = build_stage(nxt, fr.k)[0]
        for it in rq:
            it.d = min(it.d, bpos - 3)
            it.e = min(it.e, it.d)
        for j in range(LEAD):
            rq.append(Item("\n".join(nf.fr[j][1]), bpos, bpos + 2 + 2 * j))

    def stage_barrier(sg=sg, fr=fr, nxt=nxt):
        P.wait_ds_regs(rset("a", fr.fr[-1][0]))
        drain_writes()
        pub = {3: [0, 1], 4: [2], 5: [3]}.get(sg, [])
        vmwait([("O", 2 * nxt + 1)] + [("st", p_) for p_ in pub])
        E("s_barrier")
        if pub:
            publish(pub)
    if sg < 6:
        mf[bpos]["pre"] = [stage_barrier]
    cq, xq, wq_ = [], [], []
    if sg == 0:
        M = kfirst[(0, 1, 0)] - 8
        M2 = M + 18
        wq_.append(Item("v_add_u32 v31, s%d, v0\nv_add_u32 v31, %d, v31" % (sW4K, O9S), -1, M - 1))
        wq_ += [Item("ds_write_b128 v31, %s offset:%d" % (ar(aO9 + 4 * b_), 1024 * b_), -1, M - 1) for b_ in range(4)]
        for kk in range(4):
            if kk:
                cq += conv_items(kk, -1, kfirst[(0, 0, kk)] - 2)
            wq_ += [Item("ds_write_b128 v%d, %s offset:%d" % (wA + (kk >> 1), vr(OFo(T, kk)), T * 8192 + (kk & 1) * 1024),
                         kfirst[(0, 0, kk)] - 1 if kk else -1, M - 1) for T in range(4)]

        def mid_barrier():
            drain_writes()
            E("s_barrier")

        def mid2_barrier():
            P.wait_ds_regs(rset("a", OFp(3, 3)))
            E("s_barrier")
        mf[M]["pre"] = [mid_barrier]
        mf[M2]["pre"] = [mid2_barrier]
        j = 0
        for kk in range(4):
            for T in range(4):
                wq_.append(Item("ds_read_b128 %s, v%d offset:%d" % (ar(OFp(T, kk)), rA + (kk >> 1), T * 8192 + (kk & 1) * 1024),
                                M, M + j // 2 + (2 if kk else 0)))
                j += 1
        dq = spread(dma_wo(4) + dma_wo(5), M2, 3)
        lq = ["s_xor_b32 s99, s%d, 1\ns_mul_i32 s99, s99, 320\ns_add_u32 s99, s99, %d\nv_add_u32 v30, s99, v3\nv_add_u32 v3, %d, v3" % (sW, LX, LX + 256)]
        lq += ["ds_read_b32 v%d, v30 offset:%d" % (244 + T, 64 * T) for T in range(4)]
        lq += ["ds_read_b32 v%d, v3 offset:%d" % (248 + w_, 320 * w_) for w_ in range(4)]
        lq += ["v_add_f32 v%d, v%d, v%d" % (vL + T, vL + T, 244 + T) for T in range(4)]
        lq += ["v_add_f32 v248, v248, v249\nv_add_f32 v250, v250, v251", "v_add_f32 v%d, v248, v250" % (vL + 4),
               "v_add_f32 v244, v%d, v%d\nv_add_f32 v245, v%d, v%d" % (vL, vL + 1, vL + 2, vL + 3),
               "v_add_f32 v244, v244, v245\nv_add_f32 v244, v244, v%d" % (vL + 4),
               "s_mov_b32 s99, %s\nv_cmp_nge_f32 vcc, s99, v244" % fbits(LTHR),
               "s_lshl_b32 s98, s%d, 2\ns_add_u32 s98, s98, %d\nv_mov_b32 v245, s98" % (sW, LX + 2048),
               "s_cmp_lg_u64 vcc, 0\ns_cselect_b32 s99, 1, 0\nv_mov_b32 v244, s99",
               "ds_write_b32 v245, v244"]
        xq = [Item(t, kfirst[(1, 0, 0)], M - 1) for t in lq]
        xq += [Item("v_rcp_f32 v%d, v%d" % (vRI + T, vL + T), kfirst[(1, 0, 0)], BIG) for T in range(5)]
        t9 = ["s_xor_b32 s99, s%d, 0x2000\ns_add_u32 s99, s99, %d\nv_add_u32 v31, s99, v0" % (sW4K, O9S)]
        t9 += ["ds_read_b128 %s, v31 offset:%d" % (vr(176 + 4 * b_), 1024 * b_) for b_ in range(4)]
        t9 += ["v_mov_b32 v30, %d\nds_read_b128 v[244:247], v30" % (LX + 2048)]
        t9 += ["v_accvgpr_read_b32 v%d, a%d" % (160 + j, aO9 + 16 + j) for j in range(16)]
        t9 += ["v_or3_b32 v244, v244, v245, v246\nv_or_b32 v244, v244, v247", "s_nop 0\nv_readfirstlane_b32 s99, v244",
               "s_nop 1\ns_andn2_b32 s99, s99, s%d\ns_cbranch_scc1 L_restart" % sPara]
        t9 += ["v_add_f32 v%d, v%d, v%d" % (160 + j, 160 + j, 176 + j) for j in range(16)]
        t9 += ["v_cvt_pk_bf16_f32 v%d, v%d, v%d" % (160 + j, 160 + 2 * j, 161 + 2 * j) for j in range(8)]
        t9 += ["s_lshl_b32 s99, s%d, 12\ns_xor_b32 s98, s%d, 1\ns_lshl_b32 s98, s98, 11" % (sC, sR),
               "s_add_u32 s99, s99, s98\ns_add_u32 s99, s99, %d\nv_add_u32 v31, s99, v0" % O9P]
        t9 += ["ds_write_b128 v31, %s offset:%d" % (vr(160 + 4 * j), 1024 * j) for j in range(2)]
        xq += [Item(t, M + 8, bpos - 1) for t in t9]
        for a_ in range(2):
            for kh in range(2):
                xq.append(Item("s_xor_b32 s99, s%d, %d\ns_lshl_b32 s99, s99, 12\ns_xor_b32 s98, s%d, %d" % (sC, a_, sR, kh), bpos, BIG))
                xq.append(Item("s_lshl_b32 s98, s98, 11\ns_add_u32 s99, s99, s98\ns_add_u32 s99, s99, %d" % O9P, bpos, BIG))
                xq.append(Item("v_add_u32 v31, s99, v0\nds_read_b128 %s, v31" % ar(aOF9 + 16 * a_ + 8 * kh), bpos, BIG))
                xq.append(Item("ds_read_b128 %s, v31 offset:1024" % ar(aOF9 + 16 * a_ + 8 * kh + 4), bpos, BIG))
        cq += out_items(0, kfirst[(1, 1, 0)] + 5, 5, [])
    elif sg == 2:
        cq = out_items(1, 5, 14, [])
        xq = [Item("s_load_dwordx2 s[12:13], s[0:1], 88\ns_load_dwordx2 s[14:15], s[0:1], 96\ns_waitcnt lgkmcnt(0)", 30, 30),
              Item("s_lshr_b32 s99, s3, 4\ns_lshl_b32 s99, s99, 11\ns_add_u32 s99, s99, %d" % FLG, 31, 40),
              Item("s_add_u32 s14, s14, s99\ns_addc_u32 s15, s15, 0", 31, 40)]
    else:
        cq = out_items(sg - 1, 5, 11, [0, 1, 2] if sg == 3 else [sg - 1])
    if sg == 6:
        xq = [Item("s_and_b32 s36, s3, 15\ns_lshr_b32 s99, s36, 2\ns_lshl_b32 s99, s99, 8", 40, 50),
              Item("v_bfe_u32 v30, v0, 4, 4\nv_lshlrev_b32 v30, 3, v30", 40, 50), Item("v_add_u32 v31, s99, v30", 40, 50),
              Item("global_load_dwordx2 v[32:33], v31, s[14:15] sc1", 60, 62, "poll")]
    run_phase(mf, [rq, dq, cq, wq_, xq], "st%d" % sg)
    k = fr.k
for it in out_items(6, 0, 0, [6]):
    it.emit()
vmwait([("st", 4)])
E("s_barrier")
publish([4])
stamp()

E("s_load_dwordx2 s[4:5], s[0:1], 96\ns_load_dwordx2 s[8:9], s[0:1], 80")
E("v_lshrrev_b32 v2, 4, v0\nv_and_b32 v4, 15, v2\nv_lshrrev_b32 v5, 4, v2")
E("v_lshlrev_b32 v16, 17, v5\nv_lshl_add_u32 v16, v4, 4, v16")
E("v_mul_u32_u24 v17, 1792, v4\nv_lshrrev_b32 v6, 1, v5\nv_lshl_add_u32 v17, v6, 3, v17\nv_and_b32 v19, 1, v5")
E("v_lshl_add_u32 v14, v19, 7, v17\nv_lshl_add_u32 v17, v19, 5, v17\nv_lshlrev_b32 v19, 30, v19")
E("v_and_b32 v6, 1, v4\nv_lshlrev_b32 v6, 4, v6\nv_mov_b32 v7, 0x3f80\nv_lshlrev_b32 v7, v6, v7\nv_lshrrev_b32 v6, 1, v4")
for r_ in range(4):
    E("v_cmp_eq_u32 vcc, %d, v6\nv_cndmask_b32 v%d, 0, v7, vcc" % (r_, 40 + r_))
    E("v_cmp_eq_u32 vcc, %d, v6\nv_cndmask_b32 v%d, 0, v7, vcc" % (4 + r_, 44 + r_))
E("s_lshr_b32 s35, s3, 4\nv_mov_b32 v18, s%d" % (sClk + 1))
E("s_waitcnt lgkmcnt(0)")
E("s_lshl_b32 s99, s35, 21\ns_add_u32 s4, s4, s99\ns_addc_u32 s5, s5, 0\ns_mov_b32 s6, %d\ns_mov_b32 s7, 0x20000" % (16 * SLAB))
E("s_mov_b32 s10, %d\ns_mov_b32 s11, 0x20000" % (8 * 144 * 896 * 2))
E("s_and_b32 s16, s35, 7\ns_mul_i32 s16, s16, %d\ns_lshr_b32 s17, s35, 3\ns_mul_i32 s17, s17, 896\ns_add_u32 s16, s16, s17" % (144 * 1792))
E("s_lshl_b32 s17, s35, 4\nv_mov_b32 v8, s17")
E("s_lshl_b32 s19, s36, 2\ns_add_u32 s19, s19, s%d" % sW)
E("s_mov_b32 s21, 0\ns_mov_b32 s22, 0\ns_mov_b64 s[46:47], 0")
LIM = 2000
UD = [64, 176]


def uloads(u):
    E("s_lshl_b32 s20, s19, 10\ns_add_u32 s20, s20, %d" % (65536 * u))
    for p_ in range(4):
        for pc in range(4):
            E("buffer_load_dwordx4 %s, v16, s[4:7], s20 offen offset:%d %s" % (vr(UD[u] + 16 * p_ + 4 * pc), 256 * pc, LDP))
        if p_ < 3:
            E("s_add_u32 s20, s20, %d" % (4 * SLAB))


def flags_ok():
    E("v_subrev_co_u32 v32, vcc, s%d, v32\nv_subb_co_u32 v33, vcc, v33, v18, vcc\nv_cmp_eq_u32 vcc, 0, v33" % sClk)
    E("s_cmp_eq_u64 vcc, -1")


def spin(name, ok):
    E("L_%s:" % name)
    E("global_load_dwordx2 v[32:33], v31, s[14:15] sc1\ns_waitcnt vmcnt(0)")
    flags_ok()
    E("s_cbranch_scc1 %s" % ok)
    E("s_add_u32 s21, s21, 1\ns_cmp_lt_u32 s21, %d\ns_cbranch_scc1 L_%s\ns_branch L_slow" % (LIM, name))


vmwait(["poll"])
flags_ok()
E("s_cselect_b32 s23, 1, 0\ns_cbranch_scc0 L_late1")
uloads(0)
raw("s_waitcnt vmcnt(16)\ns_branch L_drained")
E("L_late1:")
E("s_waitcnt vmcnt(0)")
E("L_drained:")
stamp()
E("s_barrier")
publish([5, 6])
E("s_cmp_lg_u32 s%d, 0\ns_cbranch_scc1 L_noadd\ns_mov_b64 exec, 1\nv_mov_b32 v9, 1" % sW)
E("global_atomic_add v34, v8, v9, s[12:13] sc0")
E("s_mov_b64 exec, -1\nL_noadd:")
E("s_cmp_eq_u32 s23, 1\ns_cbranch_scc1 L_have1")
spin("spin1", "L_got1")
E("L_got1:")
uloads(0)
E("L_have1:")
stamp()
E("s_lshr_b32 s99, s36, 2\ns_add_u32 s99, s99, 4\ns_lshl_b32 s98, s36, 1\ns_sub_u32 s98, s98, 23\ns_min_u32 s98, s98, 6\ns_max_u32 s98, s98, 2\ns_cmp_ge_u32 s36, 12\ns_cselect_b32 s99, s98, s99")
E("s_lshl_b32 s99, s99, 8\nv_add_u32 v31, s99, v30")
spin("spin2", "L_second")
E("L_slow:")
E("s_mov_b32 s21, 0")
E("L_spin3:")
E("global_load_dword v32, v8, s[12:13] sc1\ns_waitcnt vmcnt(0)\nv_readfirstlane_b32 s99, v32")
E("s_cmp_eq_u32 s99, 16\ns_cbranch_scc1 L_both")
E("s_add_u32 s21, s21, 1\ns_cmp_lt_u32 s21, %d\ns_cbranch_scc1 L_spin3" % LIM)
E("s_lshl_b64 s[98:99], 1, s19\ns_mov_b64 exec, 1\nv_mov_b32 v32, s98\nv_mov_b32 v33, s99")
E("global_atomic_or_x2 v8, v[32:33], s[12:13] offset:8\ns_waitcnt vmcnt(0)\ns_mov_b64 exec, -1")
E("global_load_dword v32, v8, s[12:13] sc1\ns_waitcnt vmcnt(0)\nv_readfirstlane_b32 s99, v32")
E("s_cmp_eq_u32 s99, 16\ns_cbranch_scc0 L_next")
E("L_both:")
P.vmq = []
uloads(0)
E("L_second:")
stamp()
uloads(1)
for u in range(2):
    E("s_add_u32 s21, s19, %d" % (64 * u))
    if u == 1:
        E("s_cmp_ge_u32 s21, 112\ns_cbranch_scc1 L_t9")
    E("s_lshr_b32 s20, s21, 4\ns_lshl_b32 s20, s20, 7\ns_add_u32 s20, s20, s16")
    E("s_bfe_u32 s99, s21, 0x30001\ns_mul_i32 s99, s99, %d\ns_add_u32 s20, s20, s99" % (16 * 1792))
    E("s_and_b32 s99, s21, 1\ns_lshl_b32 s99, s99, 6\ns_add_u32 s%d, s20, s99" % (50 + u))
    E("s_bfe_u32 s99, s21, 0x10003\ns_lshl_b32 s99, s99, 5")
    E("v_xor_b32 v%d, s99, v17" % (12 + u))
E("s_branch L_sum")
E("L_t9:")
E("s_bfe_u32 s20, s21, 0x20002\ns_and_b32 s99, s21, 1\ns_lshl_b32 s99, s99, 1\ns_bfe_u32 s98, s21, 0x10001\ns_xor_b32 s98, s98, 1\ns_add_u32 s99, s99, s98\ns_lshl_b32 s99, s99, 5")
E("s_lshl_b32 s51, s20, 8\ns_add_u32 s51, s51, s99\ns_add_u32 s51, s51, s16\ns_add_u32 s51, s51, %d" % (128 * 1792))
E("v_mov_b32 v13, v14\ns_cmp_eq_u32 s20, 3\ns_cbranch_scc0 L_sum\nv_add_u32 v13, v19, v14")
E("L_sum:")
for u in range(2):
    for p_ in range(4):
        for pc in range(4):
            d = 48 + 8 * u + 4 * (pc >> 1)
            E(mfma(vr(d), vr(40 if (pc & 1) == 0 else 44), vr(UD[u] + 16 * p_ + 4 * pc), "0" if (p_ == 0 and (pc & 1) == 0) else vr(d)))
for u in range(2):
    for k_ in range(2):
        d = 48 + 8 * u + 4 * k_
        E("v_cvt_pk_bf16_f32 v%d, v%d, v%d\nv_cvt_pk_bf16_f32 v%d, v%d, v%d" % (d, d, d + 1, d + 1, d + 2, d + 3))
        E("buffer_store_dwordx2 v[%d:%d], v%d, s[8:11], s%d offen offset:%d" % (d, d + 1, 12 + u, 50 + u, 16 * k_))
E("L_next:")
E("s_cmp_lg_u32 s%d, 0\ns_cbranch_scc1 L_done" % sW)
E("s_cmp_lg_u32 s22, 0\ns_cbranch_scc1 L_more")
E("s_mov_b32 s22, 1\nv_readfirstlane_b32 s99, v34\ns_cmp_eq_u32 s99, 15\ns_cbranch_scc0 L_done")
E("global_load_dwordx2 v[32:33], v8, s[12:13] offset:8 sc1\ns_waitcnt vmcnt(0)\nv_readfirstlane_b32 s46, v32\nv_readfirstlane_b32 s47, v33")
E("L_more:")
E("s_cmp_eq_u64 s[46:47], 0\ns_cbranch_scc1 L_done")
E("s_ff1_i32_b64 s19, s[46:47]\ns_bitset0_b64 s[46:47], s19\ns_branch L_both")
E("L_done:")
if STAMP:
    E("s_waitcnt vmcnt(0)")
    stamp()
    if STAMP == 1:
        E("s_memtime s[94:95]\ns_waitcnt lgkmcnt(0)")
    E("v_mov_b32 v1, 0")
    E("s_cmp_lg_u32 s%d, 0\ns_cbranch_scc1 L_end" % sW)
    if STAMP == 7:
        E("v_lshrrev_b32 v2, 2, v0\nv_accvgpr_read_b32 v3, a199\nv_accvgpr_read_b32 v4, a198")
        E("s_mov_b64 exec, 0xffff\nglobal_store_dword v2, v3, s[%d:%d] offset:128\nglobal_store_dword v2, v4, s[%d:%d] offset:192" % (sWSB, sWSB + 1, sWSB, sWSB + 1))
    E("s_mov_b64 exec, 1")
    for k_ in range(16):
        E("v_mov_b32 v2, s%d\nv_mov_b32 v3, s%d" % (sStamp + 2 * k_, sStamp + 2 * k_ + 1))
        E("global_store_dwordx2 v1, v[2:3], s[%d:%d] offset:%d" % (sWSB, sWSB + 1, 8 * k_))
        E("s_nop 1")
E("L_end:\ns_endpgm")
main_ins = P.ins

R = Prog()
F = R.emit
for s_ in stubs:
    F(s_)
F("L_restart:\ns_waitcnt vmcnt(0) lgkmcnt(0)\ns_barrier\ns_mov_b32 s%d, 1\ns_branch L_start" % sPara)
for par in range(2):
    sc = P_base[par]
    F("L_fix%d:" % par)
    F("s_nop 15\ns_waitcnt lgkmcnt(0)")
    for T in range(5):
        s0 = S_(par, T)
        F("v_max3_f32 v%d, v%d, v%d, v%d\nv_max_f32 v%d, v%d, v%d" % (sc + T, s0, s0 + 1, s0 + 2, sc + T, sc + T, s0 + 3))
    F("v_mov_b32 v%d, 0xff800000\ns_cmp_eq_u32 s%d, 1\ns_cbranch_scc1 L_fix%d_a\nv_mov_b32 v%d, v%d\nL_fix%d_a:" % (sc + 5, sHas9, par, sc + 4, sc + 5, par))
    for T in range(5):
        for sw in ("v_permlane32_swap_b32", "v_permlane16_swap_b32"):
            F("v_mov_b32 v%d, v%d\ns_nop 1\n%s v%d, v%d\ns_nop 1\nv_max_f32 v%d, v%d, v%d" % (sc + 5, sc + T, sw, sc + T, sc + 5, sc + T, sc + T, sc + 5))
    F("s_mul_i32 s99, s%d, 1280\nv_add_u32 v%d, s99, v%d" % (sW, sc + 5, vMB))
    for T in range(5):
        F("ds_write_b32 v%d, v%d offset:%d" % (sc + 5, sc + T, 256 * T))
    F("s_waitcnt lgkmcnt(0)\ns_barrier")
    F("s_xor_b32 s99, s%d, 1\ns_mul_i32 s99, s99, 1280\nv_add_u32 v%d, s99, v%d" % (sW, sc + 5, vMB))
    for T in range(4):
        F("ds_read_b32 v%d, v%d offset:%d" % (sc + 6 + T, sc + 5, 256 * T))
    for w_ in range(4):
        F("ds_read_b32 v%d, v%d offset:%d" % (sc + 10 + w_, vMB, 1280 * w_ + 1024))
    F("s_waitcnt lgkmcnt(0)")
    for T in range(4):
        F("v_max3_f32 v%d, v%d, v%d, s%d" % (sc + T, sc + T, sc + 6 + T, sFloor))
    F("v_max3_f32 v%d, v%d, v%d, v%d\nv_max3_f32 v%d, v%d, v%d, s%d" % (sc + 4, sc + 10, sc + 11, sc + 12, sc + 4, sc + 4, sc + 13, sFloor))
    for T in range(5):
        for j in range(4):
            F("v_sub_f32 v%d, v%d, v%d" % (vNegM + 4 * T + j, vNegM + 4 * T + j, sc + T))
        if T == 4:
            F("s_cmp_eq_u32 s%d, 0\ns_cbranch_scc1 L_fix%d_b" % (sHas9, par))
        for j in range(4):
            F("v_sub_f32 v%d, v%d, v%d" % (S_(par, T) + j, S_(par, T) + j, sc + T))
    F("L_fix%d_b:" % par)
    F("s_cmp_eq_u32 s%d, 1\ns_cbranch_scc1 L_fix%d_c" % (sFirst, par))
    for T in range(5):
        F("v_sub_f32 v%d, 0, v%d\nv_exp_f32 v%d, v%d\ns_nop 0\nv_mul_f32 v%d, v%d, v%d\nv_accvgpr_write_b32 a%d, v%d"
          % (sc + T, sc + T, sc + T, sc + T, vL + T, vL + T, sc + T, aF + T, sc + T))
    F("L_fix%d_c:\ns_nop 3\ns_setpc_b64 s[%d:%d]" % (par, sRet, sRet + 1))
F("L_fixo:")
F("s_nop 15")
for T in range(4):
    F("v_accvgpr_read_b32 v%d, a%d" % (vTmp, aF + T))
    for j in range(32):
        F("v_mul_f32 v%d, v%d, v%d" % (vO + 32 * T + j, vTmp, vO + 32 * T + j))
F("v_accvgpr_read_b32 v%d, a%d" % (vTmp, aF + 4))
for j in range(32):
    F("v_accvgpr_read_b32 v%d, a%d\nv_mul_f32 v%d, v%d, v%d\nv_accvgpr_write_b32 a%d, v%d" % (vTmp + 1, aO9 + j, vTmp + 1, vTmp, vTmp + 1, aO9 + j, vTmp + 1))
F("s_nop 3\ns_setpc_b64 s[%d:%d]" % (sRet, sRet + 1))

KILL = OPT.get("kill", "").split(",") if OPT.get("kill") else []
if KILL:
    keep, inside = [], False
    for i in main_ins:
        if i.text.startswith("L_loop"): inside = True
        if "s_cbranch_scc1 L_loop" in i.text: inside = False
        drop = False
        if inside and "sLoop" not in i.text and ("s%d," % sLoop) not in i.text:
            if "dma" in KILL and (i.kind == "dma" or (i.kind == "wait" and "vmcnt" in i.text)): drop = True
            if "bar" in KILL and i.kind == "barrier": drop = True
            if "exp" in KILL and i.kind == "trans": drop = True
            if "valu" in KILL and i.kind == "valu": drop = True
            if "dsw" in KILL and i.kind == "dsw": drop = True
            if "ds" in KILL and i.kind in ("dsr", "dsw"): drop = True
            if "wait" in KILL and i.kind == "wait" and "lgkm" in i.text: drop = True
        if not drop: keep.append(i)
    main_ins = keep
rep = []
main_ins = pad_hazards(main_ins, rep)
rare_ins = pad_hazards(R.ins, None)
from collections import Counter
sys.stderr.write("hazard pads (main): %s\n" % dict(Counter(r_[0] for r_ in rep)))
if OPT.get("v") == "2":
    for r_ in rep:
        sys.stderr.write("  %s\n" % (r_,))
txt = lambda ins: "\n".join(("" if i.kind == "label" else "    ") + i.text for i in ins)
hdr = open("concat_heads__gqa_block_cached__mha_block_cached__near_ridge.s.ref").read().split("; Override launch")[0]
print(hdr.rstrip())
print("; @launch grid=(256,1,1) block=(256,1,1) lds=%d" % LDS_TOTAL)
print('.amdgcn_target "amdgcn-amd-amdhsa--gfx950"')
print(".text")
print(".globl %s\n.p2align 8\n.type %s,@function" % (KN, KN))
print(txt(main_ins))
print(txt(rare_ins))
print('.section .rodata,"a"')
print(""".p2align 6
.amdhsa_kernel %s
  .amdhsa_next_free_vgpr 512
  .amdhsa_next_free_sgpr 102
  .amdhsa_accum_offset 256
  .amdhsa_group_segment_fixed_size 0
  .amdhsa_kernarg_size 104
  .amdhsa_user_sgpr_count 2
  .amdhsa_user_sgpr_kernarg_segment_ptr 1
  .amdhsa_system_sgpr_workgroup_id_x 1
.end_amdhsa_kernel""" % KN)
```

```python
import sys, struct, math, re
sys.path.insert(0, "work")
from asmlib import *

OPT = dict(a.split("=") for a in sys.argv[1:] if "=" in a)
opt = lambda k, d: OPT.get(k, d).replace("_", " ")
NT = opt("nt", "nt")
WNT = opt("wnt", "")
STP = opt("st", "sc1")
LDP = opt("ld", "sc1")
STAMP = int(opt("stamp", "0"))
LEAD = int(opt("lead", "3"))
CAPV = int(opt("capv", "7"))
EARLY = int(opt("early", "10"))
PARA = int(opt("para", "0"))
LTHR = float(opt("lthr", str(2.0 ** 30)))

KN = "concat_heads__gqa_block_cached__mha_block_cached__near_ridge_kernel"
SLOT = 16384
KB, VB = 0, 65536
PX = 131072
MB = 151552
XB = 98304
QS = 81920
LDS_TOTAL = 163840
CSCALE = math.log2(math.e) / 16.0
BIG = 10 ** 6
SLAB = 131072
FLG = 0x2000000

fbits = lambda x: "0x%08x" % struct.unpack("<I", struct.pack("<f", x))[0]
vr = lambda n, k=4: "v[%d:%d]" % (n, n + k - 1)
ar = lambda n, k=4: "a[%d:%d]" % (n, n + k - 1)
srd = lambda n: "s[%d:%d]" % (n, n + 3)
mfma = lambda d, a, b, c: "v_mfma_f32_16x16x32_bf16 %s, %s, %s, %s" % (d, a, b, c)
rset = lambda k, n, c=4: {(k, n + i) for i in range(c)}

SRD_X, SRD_WQ, SRD_K, SRD_V, SRD_WO, SRD_WS = 4, 8, 12, 16, 20, 24
sW, sW4K, sR, sC = 28, 29, 30, 31
sOffK, sOffV, sTmpO, sLoop = 32, 33, 34, 35
sFloor, sFirst, sHas9, sPara = 36, 37, 38, 39
sRet = 40
sT0, sT1, sT2, sT3 = 42, 43, 44, 45
sXm0 = 46
sClk = 48
sWSB = 62
sStamp = 64
vDKV, vPW, vPR, vMB = 0, 1, 2, 3
vK = 4
vV = 8
vL = 24
vSc = 29
vTmp = 30
vP9 = 36
vNegM = 40
S_base = {0: 60, 1: 76}
vS9 = 92
P_base = {0: 96, 1: 112}
vO = 128
aQ = 0
aO9 = 160
aF = 192
aPOOL, NPOOL = 224, 8

S_ = lambda par, T: S_base[par] + 4 * T if T < 4 else vS9
P_ = lambda par, T: P_base[par] + 4 * T if T < 4 else vP9
Q_ = lambda T, s: aQ + 32 * T + 4 * s
O_ = lambda T, b: vO + 32 * T + 4 * b
own9 = lambda n, r: ((n >> 1) & 1) == r

P = Prog()
E = P.emit
stubs = []
nstamp = [0]


def raw(t):
    for l in t.split("\n"):
        P.ins.append(Ins(l.strip()))


def stamp(cond=True):
    if STAMP and cond and nstamp[0] < (16 if STAMP in (5, 6, 9) else 8):
        E("s_memrealtime s[%d:%d]" % (sStamp + 2 * nstamp[0], sStamp + 2 * nstamp[0] + 1))
        E("s_waitcnt lgkmcnt(0)")
        nstamp[0] += 1


SCALAR = ("salu", "wait", "branch", "barrier", "nop", "smem")


def advance(t, ins):
    for I in ins:
        if I.kind == "label":
            continue
        if I.kind in SCALAR:
            t += 4 * (I.cost if I.kind == "nop" else 1)
        else:
            t = max(t, 8)
            if I.kind == "trans":
                t += 8
            elif I.kind == "dsw":
                t += 20 if ("b128" in I.op or "write2" in I.op) else (10 if "b64" in I.op else 6)
            elif I.op.startswith("v_pk_"):
                t += 20
            else:
                t += 4
    return t


class Item:
    def __init__(self, text, e=-1, d=BIG, tag=None, cost=None):
        self.text, self.e, self.d, self.tag = text, e, d, tag
        self.ins = [Ins("s_nop 0")] if callable(text) else [Ins(l.strip()) for l in text.split("\n") if l.strip()]
        self.lead_scalar = self.ins[0].kind in SCALAR

    def emit(self):
        self.text() if callable(self.text) else E(self.text, tag=self.tag)


PACK2 = int(opt("pack2", "1"))


def run_phase(mf, queues, name=""):
    qs = [list(q) for q in queues]
    for q in qs:
        for j in range(len(q) - 2, -1, -1):
            q[j].d = min(q[j].d, q[j + 1].d)
        for it in q:
            assert it.e <= it.d or it.d >= BIG, (name, it.text, it.e, it.d)
    lost = [0]
    n = len(mf)

    def pressure(g):
        return None

    def fill(g, t):
        while True:
            best = None
            for qi, q in enumerate(qs):
                if q and q[0].e <= g:
                    it = q[0]
                    forced = it.d <= g
                    te = advance(t, it.ins)
                    fits = te <= 16 or (t <= 8 and advance(4, it.ins) > 16)
                    if forced or fits:
                        key = (0 if forced else 1, 0 if (t == 4 and it.lead_scalar) else 1, it.d, qi)
                        if best is None or key < best[0]:
                            best = (key, qi, te)
            if best is None:
                break
            it = qs[best[1]].pop(0)
            w0 = P.nwaits
            nw = sum(1 for I in it.ins if I.kind == "wait")
            it.emit()
            t = best[2] + 4 * max(0, P.nwaits - w0 - nw)
        return t

    fill(-1, 100)
    for g, m in enumerate(mf):
        for t_ in m.get("pre", []):
            t_() if callable(t_) else E(t_)
        E(m["text"])
        t = 4
        if g + 1 < n and not mf[g + 1].get("pre"):
            nx = Ins(mf[g + 1]["text"])
            if P._need(P.dsq, nx.src) >= 0:
                P.wait_ds_regs(nx.src | mf[g + 1].get("waitfor", set()))
                t = 8
        t = fill(g, t)
        lost[0] += max(0, t - 16)
    left = 0
    for q in qs:
        for it in q:
            left += advance(8, it.ins) - 8
            it.emit()
    if OPT.get("v"):
        sys.stderr.write("phase %s: %d mfma, lost %d cyc, leftover %d cyc\n" % (name, n, lost[0], left))


pool_ctr = [0]


class Frags:
    def __init__(self, start):
        self.k = start
        self.fr = []
        self.first = []

    def new(self, mf, texts_fn, buf=None):
        if buf is None:
            buf = aPOOL + 4 * (self.k % NPOOL)
            self.k += 1
        self.fr.append((buf, texts_fn(buf)))
        self.first.append(len(mf))
        return buf

    def items(self, skip, lead, off=0, emin=-1):
        out = []
        for f in range(skip, len(self.fr)):
            e = max(emin, self.first[f - lead] + off) if f >= lead else emin
            d = (self.first[f - lead + 1] + off) if f >= lead else emin
            out.append(Item("\n".join(self.fr[f][1]), e, max(d, e)))
        return out


rd128 = lambda areg, off: (lambda b: ["ds_read_b128 %s, v%d offset:%d" % (ar(b), areg, off)])
rdtr = lambda a0, a1, o0, o1: (lambda b: ["ds_read_b64_tr_b16 %s, v%d offset:%d" % (ar(b, 2), a0, o0),
                                          "ds_read_b64_tr_b16 %s, v%d offset:%d" % (ar(b + 2, 2), a1, o1)])


def dma_kv(which, lds, tag, cap=True):
    s_srd, s_off = (SRD_K, sOffK) if which == "K" else (SRD_V, sOffV)
    res = []
    for m in range(4):
        t = "s_add_u32 m0, s%d, %d\n" % (sW4K, lds) if m == 0 else ""
        if cap and CAPV:
            t += "s_waitcnt vmcnt(%d)\n" % (CAPV - 1)
        t += "buffer_load_dwordx4 v%d, %s, s%d offen offset:%d %s lds" % (vDKV, srd(s_srd), s_off, m * 1024, NT)
        res.append(t)
    res.append("s_add_u32 s%d, s%d, %d" % (s_off, s_off, SLOT))
    return [(r, tag) for r in res]


def spread(pieces, start, step):
    out, k = [], 0
    for (t, tag) in pieces:
        e = int(start + k * step)
        out.append(Item(t, e, e + max(1, int(step)), tag))
        if "buffer_load" in t:
            k += 1
    return out


def emit_pieces(pieces):
    for (t, tag) in pieces:
        E(t, tag=tag)


def vmwait(tags):
    c = P.vm_count_after(tags)
    if c is not None:
        E("s_waitcnt vmcnt(%d)" % min(63, c))


def drain_writes():
    pend = [k for k, (_, d) in enumerate(P.dsq) if d == set()]
    if pend:
        E("s_waitcnt lgkmcnt(%d)" % (len(P.dsq) - 1 - pend[-1]))


nchk = [0]


def cond_call(sub, has9):
    k = nchk[0]
    nchk[0] += 1
    stubs.append("L_rare%d:\ns_mov_b32 s%d, %d\ns_call_b64 s[%d:%d], %s\ns_branch L_back%d" % (k, sHas9, has9, sRet, sRet + 1, sub, k))
    return "s_cbranch_vccnz L_rare%d\nL_back%d:" % (k, k)


tiles_of = lambda n, r: [0, 1, 2, 3] + ([4] if own9(n, r) else [])


def qk_part(n, r, fr, mf):
    par = n & 1
    for s in range(8):
        b = fr.new(mf, rd128(vK + (s & 3), KB + (n & 3) * SLOT + (s >> 2) * 256))
        for T in tiles_of(n, r):
            mf.append(dict(text=mfma(vr(S_(par, T)), ar(b), ar(Q_(T, s)), vr(vNegM + 4 * T) if s == 0 else vr(S_(par, T)))))


def pv_part(n, r, fr, mf):
    par = n & 1
    for b_ in range(8):
        b = fr.new(mf, rdtr(vV + b_, vV + 8 + b_, (n & 3) * SLOT, (n & 3) * SLOT))
        for T in range(4):
            mf.append(dict(text=mfma(vr(O_(T, b_)), ar(b), vr(P_(par, T)), vr(O_(T, b_)))))
        if own9(n, r):
            mf.append(dict(text=mfma(ar(aO9 + 4 * b_), ar(b), vr(vP9), ar(aO9 + 4 * b_))))


tbank = [0]


def softmax_items(n, tiles, e, d):
    par = n & 1
    its = []
    for T in tiles:
        for h in range(2):
            t = vTmp + 2 * (tbank[0] % 3)
            tbank[0] += 1
            s0 = S_(par, T) + 2 * h
            its.append(Item("v_exp_f32 v%d, v%d" % (t, s0), e, d))
            its.append(Item("v_exp_f32 v%d, v%d" % (t + 1, s0 + 1), e, d))
            its.append(Item("v_add_f32 v%d, v%d, v%d" % (vL + T, vL + T, t), e, d))
            its.append(Item("v_cvt_pk_bf16_f32 v%d, v%d, v%d" % (P_(par, T) + h, t, t + 1), e, d))
            its.append(Item("v_add_f32 v%d, v%d, v%d" % (vL + T, vL + T, t + 1), e, d))
        if T < 4 and (T & 1):
            its.append(Item("ds_write2st64_b64 v%d, %s, %s offset0:%d offset1:%d"
                            % (vPW, vr(P_(par, T - 1), 2), vr(P_(par, T), 2), 5 * par + T - 1, 5 * par + T), e, d))
        if T == 4:
            its.append(Item("ds_write_b64 v%d, %s offset:%d" % (vPW, vr(vP9, 2), (5 * par + 4) * 512), e, d))
    return its


def partner_reads(n, r):
    return ["ds_read_b64 %s, v%d offset:%d" % (vr(P_(n & 1, T) + 2, 2), vPR, (5 * (n & 1) + T) * 512) for T in tiles_of(n, r)]


def split_tiles(n, r, everything=False):
    if everything:
        return tiles_of(n, r), []
    if own9(n, r) and not (n & 1):
        return [4, 0], [1, 2, 3]
    if own9(n, r):
        return [0, 1, 2], [3, 4]
    return [0, 1], [2, 3]


def pair(fr, mf, lo, hi):
    for f in range(lo, hi - 1, 2):
        mf[fr.first[f]]["waitfor"] = rset("a", fr.fr[f + 1][0])


def step(n, r, k0, dma_pre, dma_post, vm, pref, all_next=False):
    fr = Frags(k0)
    mf = []
    qk_part(n + 1, r, fr, mf)
    nq, fq = len(mf), len(fr.fr)
    pv_part(n, r, fr, mf)
    N = len(mf)
    bpos = nq - EARLY

    def barrier():
        P.wait_ds_regs(rset("a", fr.fr[fq - 1][0]))
        drain_writes()
        E("s_waitcnt vmcnt(%d)" % vm) if isinstance(vm, int) else vmwait(vm)
        E("s_barrier")

    rq = []
    for f in range(LEAD, len(fr.fr)):
        if f < fq:
            d = min(fr.first[f - LEAD + 1], bpos - 3)
            e = min(fr.first[f - LEAD], d)
        elif f - fq < LEAD:
            if f == fq:
                rq += [Item(t, bpos, bpos + 1 + j // 2) for j, t in enumerate(partner_reads(n, r))]
            e, d = bpos, bpos + 3 + (f - fq)
        else:
            e, d = fr.first[f - LEAD], fr.first[f - LEAD + 1]
        rq.append(Item("\n".join(fr.fr[f][1]), e, d))
    for j, t in enumerate(pref):
        e = fr.first[len(fr.fr) - LEAD + j]
        rq.append(Item("\n".join(t), e, min(N - 1, e + 3)))
    mf[bpos]["pre"] = [barrier]
    mf[nq]["pre"] = [lambda: E(cond_call("L_fix%d" % ((n + 1) & 1), int(own9(n + 1, r))))]
    vq = softmax_items(n, split_tiles(n, r)[1], -1, bpos - 2)
    first = split_tiles(n + 1, r, all_next)[0]
    for T in first:
        e = nq + 5
        if T == 4 and own9(n, r):
            e = N - 1
        vq += softmax_items(n + 1, [T], e, BIG)
    npre = len([1 for (t, _) in dma_pre if "buffer_load" in t])
    npost = len([1 for (t, _) in dma_post if "buffer_load" in t])
    dq = spread(dma_pre, 1, max(1, (bpos - 3) // max(1, npre))) + spread(dma_post, bpos + 4, max(1, (N - bpos - 6) // max(1, npost)))
    run_phase(mf, [rq, vq, dq], "step%d r%d" % (n, r))
    E(cond_call("L_fixo", 0))
    return fr.k


def qk_pref(n, r, k0):
    fr, mf = Frags(k0), []
    qk_part(n, r, fr, mf)
    return [fr.fr[f][1] for f in range(LEAD)]


def pv_pref(n, r, k0):
    fr, mf = Frags(k0), []
    pv_part(n, r, fr, mf)
    return [fr.fr[f][1] for f in range(LEAD)]


CPFL = 16
E("%s:" % KN)
E("s_cmp_ge_u32 s2, 256\ns_cbranch_scc1 L_end")
E("v_lshrrev_b32 v1, 6, v0\ns_mov_b32 s%d, %d" % (sPara, PARA))
E("v_readfirstlane_b32 s%d, v1" % sW)
stamp()
if STAMP == 1:
    E("s_memtime s[92:93]\ns_waitcnt lgkmcnt(0)")
if int(opt("cpf", "1")):
    E("s_getpc_b64 s[52:53]\nL_pc:\ns_lshr_b32 s99, s2, 3\nv_and_b32 v2, 63, v0\nv_lshlrev_b32 v2, 5, v2\nv_add_u32 v2, s99, v2\nv_lshlrev_b32 v2, 7, v2")
    E("s_cmp_lg_u32 s%d, 3\ns_cbranch_scc1 L_nocpf" % sW)
    raw("s_mov_b32 s98, L_codeend-L_pc-4")
    E("v_cmp_gt_u32 vcc, s98, v2\ns_and_saveexec_b64 s[54:55], vcc\ns_cbranch_execz L_cpf2")
    raw("global_load_dword a201, v2, s[52:53]")
    E("L_cpf2:\ns_mov_b64 exec, -1\nL_nocpf:")
E("L_start:")
E("s_and_b32 s%d, s2, 7" % sT0)
E("s_lshr_b32 s%d, s2, 3" % sT1)
E("s_lshr_b32 s96, s%d, 4" % sT1)
E("s_lshr_b32 s97, s%d, 1\ns_and_b32 s97, s97, 7" % sT1)
E("s_and_b32 s98, s%d, 1\ns_lshl_b32 s99, s%d, 1\ns_add_u32 s98, s98, s99" % (sT1, sT0))
E("s_mul_i32 s99, s96, 40")
E("s_add_u32 s50, s0, s99\ns_addc_u32 s51, s1, 0")
E("s_load_dwordx2 s[4:5], s[50:51], 0")
E("s_load_dwordx2 s[8:9], s[50:51], 24")
E("s_load_dwordx2 s[12:13], s[50:51], 8")
E("s_load_dwordx2 s[16:17], s[50:51], 16")
E("s_load_dwordx2 s[20:21], s[50:51], 32")
E("s_load_dwordx2 s[24:25], s[0:1], 96")
hL, hW, hI, hG = 200, 201, 202, 203
vDX, vDWQ = 204, 205
vXR = 206
vW = 210
h0, h1, h2, h3, h4, h5 = 220, 221, 222, 223, 224, 225
E("v_mbcnt_lo_u32_b32 v%d, -1, 0\nv_mbcnt_hi_u32_b32 v%d, -1, v%d\nv_mov_b32 v%d, s%d" % (hL, hL, hL, hW, sW))
E("v_and_b32 v%d, 15, v%d\nv_lshrrev_b32 v%d, 4, v%d" % (hI, hL, hG, hL))
E("s_lshl_b32 s%d, s%d, 12\ns_lshr_b32 s%d, s%d, 1\ns_and_b32 s%d, s%d, 1" % (sW4K, sW, sR, sW, sC, sW))
E("v_lshrrev_b32 v%d, 3, v%d\nv_lshl_add_u32 v%d, v%d, 3, v%d\nv_mul_u32_u24 v%d, 896, v%d" % (h0, hL, h1, hW, h0, h1, h1))
E("v_and_b32 v%d, 7, v%d\nv_xor_b32 v%d, v%d, v%d\ns_lshl_b32 s99, s%d, 2\nv_xor_b32 v%d, s99, v%d" % (h2, hL, h3, h2, hG, sC, h3, h3))
E("v_lshl_add_u32 v%d, v%d, 4, v%d" % (vDX, h3, h1))
E("v_lshrrev_b32 v%d, 5, v%d\nv_and_b32 v%d, 31, v%d\nv_lshl_add_u32 v%d, v%d, 1, v%d" % (h0, hL, h1, hL, h3, hW, h0))
E("v_lshlrev_b32 v%d, 1, v%d\nv_xor_b32 v%d, v%d, v%d\nv_lshlrev_b32 v%d, 4, v%d" % (h3, h3, h3, h3, h1, h3, h3))
E("s_lshl_b32 s99, s%d, 3\ns_lshl_b32 s100, s%d, 1\ns_add_u32 s99, s99, s100\nv_add_u32 v%d, s99, v%d" % (sR, sC, h1, h0))
E("v_lshl_add_u32 v%d, v%d, 13, v%d" % (vDWQ, h1, h3))
E("v_lshl_add_u32 v%d, v%d, 3, v%d\nv_lshl_add_u32 v%d, v%d, 9, v%d" % (h1, hW, h0, vDKV, h1, h3))
E("s_mul_i32 s100, s97, 129024")
E("s_lshl_b32 s101, s98, 9")
E("s_lshl_b32 s%d, s%d, 10\ns_add_u32 s%d, s%d, %d" % (sXm0, sW, sXm0, sXm0, XB))
E("s_waitcnt lgkmcnt(0)")
stamp(STAMP == 6)
E("s_add_u32 s4, s4, s100\ns_addc_u32 s5, s5, 0\ns_mov_b32 s6, 129024\ns_mov_b32 s7, 0x20000")
E("s_add_u32 s8, s8, s101\ns_addc_u32 s9, s9, 0\ns_sub_u32 s10, %d, s101\ns_mov_b32 s11, 0x20000" % (448 * 8192))

WPI = {2: 0, 3: 1, 4: 4, 5: 2, 0: 3, 1: 5}
wslot = lambda N: WPI[N % 6] * SLOT


def dma_wq(s):
    res = []
    for m in range(4):
        so = (32 * s + 16 * (m & 1) + 4 * (m >> 1)) * 8192 - m * 1024
        t = "s_add_u32 m0, s%d, %d\n" % (sW4K, wslot(s)) if m == 0 else ""
        res.append((t + "s_mov_b32 s%d, %d\nbuffer_load_dwordx4 v%d, %s, s%d offen offset:%d %s lds"
                    % (sTmpO, so, vDWQ, srd(SRD_WQ), sTmpO, m * 1024, WNT), ("W", s)))
    return res


def dma_x(p):
    res = []
    for k in range(5):
        res.append(("s_add_u32 m0, s%d, %d\ns_mov_b32 s%d, %d\nbuffer_load_dwordx4 v%d, %s, s%d offen %s lds"
                    % (sXm0, (p % 3) * 20480 + 4096 * k, sTmpO, 28672 * k + 128 * p, vDX, srd(SRD_X), sTmpO, WNT), ("X", p)))
    return res


emit_pieces(dma_x(0) + dma_wq(0) + dma_wq(1))
E("s_lshl_b32 s99, s97, 4\ns_add_u32 s99, s99, s98")
E("s_xor_b32 s100, s96, 1\ns_lshr_b32 s99, s99, s100")
if OPT.get("map") == "l2":
    E("s_and_b32 s99, s2, 7")
E("s_lshl_b32 s99, s99, 19")
E("s_add_u32 s12, s12, s99\ns_addc_u32 s13, s13, 0\ns_mov_b32 s14, 0x80000\ns_mov_b32 s15, 0x20000")
E("s_add_u32 s16, s16, s99\ns_addc_u32 s17, s17, 0\ns_mov_b32 s18, 0x80000\ns_mov_b32 s19, 0x20000")
E("s_mul_i32 s99, s98, %d" % (256 * 896))
E("s_add_u32 s20, s20, s99\ns_addc_u32 s21, s21, 0\ns_mov_b32 s22, %d\ns_mov_b32 s23, 0x20000" % (256 * 896))
if STAMP:
    E("s_lshl_b32 s99, s2, 8\ns_add_u32 s99, s99, 0x4000000\ns_add_u32 s%d, s24, s99\ns_addc_u32 s%d, s25, 0" % (sWSB, sWSB + 1))
E("s_lshl_b32 s99, s96, 3\ns_add_u32 s99, s99, s97\ns_lshl_b32 s99, s99, 4\ns_add_u32 s3, s99, s98")
E("s_lshl_b32 s99, s3, 17")
E("s_add_u32 s24, s24, s99\ns_addc_u32 s25, s25, 0\ns_mov_b32 s26, %d\ns_mov_b32 s27, 0x20000" % SLAB)
E("s_mov_b32 s%d, 0\ns_mov_b32 s%d, 0" % (sOffK, sOffV))


def rho(dst, i, t1):
    E("v_lshrrev_b32 v%d, 1, v%d\nv_and_b32 v%d, 3, v%d\nv_lshlrev_b32 v%d, 3, v%d" % (dst, i, dst, dst, dst, dst))
    E("v_lshrrev_b32 v%d, 3, v%d\nv_lshl_add_u32 v%d, v%d, 1, v%d" % (t1, i, dst, t1, dst))
    E("v_and_b32 v%d, 1, v%d\nv_add_u32 v%d, v%d, v%d" % (t1, i, dst, dst, t1))


E("v_lshrrev_b32 v%d, 1, v%d\nv_xor_b32 v%d, v%d, v%d\nv_lshlrev_b32 v%d, 7, v%d" % (h0, hI, h0, h0, hG, h1, hI))
E("v_add_u32 v%d, %d, v%d\ns_lshl_b32 s99, s%d, 13" % (h1, XB, h1, sR))
for par in range(2):
    E("v_xor_b32 v%d, %d, v%d\nv_lshl_add_u32 v%d, v%d, 4, v%d" % (h2, 4 * par, h0, h2, h2, h1))
    E("v_add_u32 v%d, s99, v%d\nv_add_u32 v%d, %d, v%d" % (vXR + par, h2, vXR + 2 + par, 128 * 128, h2))
E("v_lshrrev_b32 v%d, 2, v%d" % (h5, hL))
rho(h4, h5, h0)
E("v_lshlrev_b32 v%d, 9, v%d\nv_and_b32 v%d, 7, v%d\nv_and_b32 v%d, 3, v%d" % (h4, h4, h5, h5, h3, hL))
E("v_lshlrev_b32 v%d, 1, v%d\nv_xor_b32 v%d, v%d, v%d\ns_lshl_b32 s99, s%d, 3\nv_xor_b32 v%d, s99, v%d" % (h0, h5, h0, h0, h3, sR, h0, h0))
E("s_lshl_b32 s99, s%d, 8\nv_add_u32 v%d, s99, v%d" % (sC, h1, h4))
for b in range(4):
    E("v_xor_b32 v%d, %d, v%d\nv_lshl_add_u32 v%d, v%d, 4, v%d\nv_add_u32 v%d, 0x10000, v%d" % (h2, 4 * b, h0, vW + b, h2, h1, vW + 4 + b, vW + b))
emit_pieces(dma_x(1) + dma_wq(2))
E("s_lshl_b32 s99, s%d, 2\nv_xor_b32 v%d, s99, v%d" % (sR, h0, h5))
E("s_mul_i32 s99, s%d, 2304\ns_add_u32 s99, s99, %d\nv_add_u32 v%d, s99, v%d\nv_lshl_add_u32 v%d, v%d, 3, v%d" % (sC, VB, h1, h4, h1, h3, h1))
for b in range(8):
    E("v_xor_b32 v%d, %d, v%d\nv_lshl_add_u32 v%d, v%d, 5, v%d\nv_xor_b32 v%d, 0x800, v%d" % (h2, b, h0, vV + b, h2, h1, vV + 8 + b, vV + b))
rho(h4, hI, h0)
E("v_and_b32 v%d, 7, v%d\nv_lshlrev_b32 v%d, 1, v%d\nv_xor_b32 v%d, v%d, v%d" % (h0, hI, h0, h0, h0, h0, hG))
E("s_lshl_b32 s99, s%d, 11\nv_lshlrev_b32 v%d, 9, v%d\nv_add_u32 v%d, s99, v%d" % (sC, h1, h4, h1, h1))
for b in range(4):
    E("v_xor_b32 v%d, %d, v%d\nv_lshl_add_u32 v%d, v%d, 4, v%d" % (h2, 4 * b, h0, vK + b, h2, h1))
E("s_mul_i32 s99, s%d, 5120\ns_add_u32 s99, s99, %d\nv_lshlrev_b32 v%d, 3, v%d\nv_add_u32 v%d, s99, v%d" % (sW, PX, h0, hL, vPW, h0))
E("s_xor_b32 s99, s%d, 1\ns_mul_i32 s99, s99, 5120\ns_add_u32 s99, s99, %d\nv_add_u32 v%d, s99, v%d" % (sW, PX, vPR, h0))
E("v_lshlrev_b32 v%d, 2, v%d\nv_add_u32 v%d, %d, v%d" % (vMB, hL, vMB, MB, vMB))
emit_pieces(dma_wq(3))
stamp(STAMP == 6)

QAB = 28
QA = lambda T, sd, v: QAB + 32 * T + 4 * (2 * sd + v) if T < 4 else QAB + 128 + 4 * (2 * (sd - 2) + v)
aX = 0
X_ = lambda T, s: aX + 40 * ((s >> 1) & 1) + 20 * (s & 1) + 4 * T


def xreads(p):
    out = []
    for s in (2 * p, 2 * p + 1):
        for T in range(5):
            if T < 4:
                out.append("ds_read_b128 %s, v%d offset:%d" % (ar(X_(T, s)), vXR + (s & 1), (p % 3) * 20480 + T * 2048))
            else:
                out.append("ds_read_b128 %s, v%d offset:%d" % (ar(X_(T, s)), vXR + 2 + (s & 1), (p % 3) * 20480))
    return out


def build_qp(N, k0):
    fr = Frags(k0)
    mf = []
    win, off = wslot(N) >> 16, wslot(N) & 0xffff
    for sd in range(4):
        for v in range(2):
            a = vW + 4 * win + sd
            b = fr.new(mf, rdtr(a, a, off + 8 * v, off + 8 * v + 2048))
            for T in range(5 if sd >= 2 else 4):
                mf.append(dict(text=mfma(vr(QA(T, sd, v)), ar(b), ar(X_(T, N)), "0" if N == 0 else vr(QA(T, sd, v)))))
    return fr, mf


Kp = lambda n, cap=False: dma_kv("K", KB + (n & 3) * SLOT, ("K", n), cap)
Vp = lambda n, cap=False: dma_kv("V", VB + (n & 3) * SLOT, ("V", n), cap)
late = {9: Kp(0), 10: Kp(1), 11: Vp(0), 12: Kp(2), 13: Kp(3)}
wplan = {0: [4], 1: [5], 2: [6, 7], 3: [8], 4: [9], 5: [10], 6: [11], 7: [12], 8: [13]}
zero_q = ["v_mov_b32 v%d, 0" % r for r in range(172, 200)] + ["v_mov_b32 v%d, 0" % r for r in range(226, 256)] + \
         ["v_accvgpr_write_b32 a%d, 0" % r for r in range(aO9, aO9 + 32)]
vmwait([("X", 0), ("W", 1)])
E("s_barrier")
stamp(STAMP == 6)
for t in xreads(0):
    E(t)
k = 0
for N in range(14):
    fr, mf = build_qp(N, k)
    n = len(mf)
    if N > 0:
        vmwait([("W", min(N + 1, 13))] + ([("X", (N + 1) // 2)] if (N & 1) and N < 12 else []))
        E("s_barrier")
    rq = fr.items(0 if N == 0 else LEAD, LEAD)
    if N < 13:
        nf, _ = build_qp(N + 1, fr.k)
        for j in range(LEAD):
            e = fr.first[len(fr.fr) - LEAD + j]
            rq.append(Item("\n".join(nf.fr[j][1]), e, e + 3))
    pieces = []
    for W in wplan.get(N, []):
        pieces += dma_wq(W)
    pieces += late.get(N, [])
    if N == 0:
        pieces += dma_x(2)
    elif (N & 1) == 0 and N // 2 + 2 < 7:
        pieces += dma_x(N // 2 + 2)
    nd = len([1 for (t, _) in pieces if "buffer_load" in t])
    dq = spread(pieces, 0, max(2.5, min(4.0, (n - 2) / max(1, nd))))
    xq = [Item(t, 0, 24) for t in xreads((N + 1) // 2)] if (N & 1) and N < 12 else []
    zq = [Item(t, 0, BIG) for t in zero_q[9 * (N - 1):9 * N]] if 1 <= N <= 10 else []
    run_phase(mf, [rq, xq, dq, zq], "qp%d" % N)
    k = fr.k
    stamp(STAMP == 6 and (N & 1) and N < 13)
stamp(STAMP in (5, 6))
E("s_barrier")
E("s_mov_b32 s100, %s\ns_mov_b32 s101, %s" % (fbits(CSCALE), fbits(CSCALE)))
E("s_lshl_b32 s99, s%d, 15\ns_lshl_b32 s96, s%d, 12\ns_add_u32 s99, s99, s96\ns_lshl_b32 s97, s%d, 11\ns_add_u32 s99, s99, s97\ns_add_u32 s99, s99, %d"
  % (sR, sC, sR, QS))
E("v_lshlrev_b32 v%d, 4, v%d\nv_add_u32 v%d, s99, v%d\nv_xor_b32 v%d, 0x800, v%d" % (h0, hL, h1, h0, h2, h1))
E("s_xor_b32 s97, s97, 0x800\ns_add_u32 s96, s96, s97\ns_add_u32 s96, s96, %d\nv_add_u32 v%d, s96, v%d" % (QS + 65536, h3, h0))
for T in (4, 0, 1, 2, 3):
    for sd in (range(4) if T < 4 else (2, 3)):
        a = QA(T, sd, 0)
        for j in range(4):
            E("v_pk_mul_f32 %s, %s, s[100:101]" % (vr(a + 2 * j, 2), vr(a + 2 * j, 2)))
        for j in range(4):
            E("v_cvt_pk_bf16_f32 v%d, v%d, v%d" % (a + j, a + 2 * j, a + 2 * j + 1))
        if T < 4:
            E("ds_write_b128 v%d, %s offset:%d" % (h1 if sd < 2 else h2, vr(a), T * 8192 + (sd & 1) * 1024))
        else:
            E("ds_write_b128 v%d, %s offset:%d" % (h3, vr(a), (sd & 1) * 1024))
E("s_lshl_b32 s99, s%d, 15\ns_add_u32 s99, s99, %d\nv_add_u32 v%d, s99, v%d\nv_add_u32 v%d, %d, v%d" % (sR, QS, h1, h0, h2, QS + 65536, h0))
vmwait([("K", 1)])
E("s_waitcnt lgkmcnt(0)")
E("s_barrier")
qreads = []
for s in range(8):
    for T in range(5):
        qreads.append("ds_read_b128 %s, v%d offset:%d" % (ar(Q_(T, s)), h1 if T < 4 else h2, (T * 8192 if T < 4 else 0) + s * 1024))
init = ["v_mov_b32 v%d, 0" % r for r in range(vNegM, vNegM + 20)] + ["v_mov_b32 v%d, 0" % r for r in range(vL, vL + 5)]
for j in range(0, 40):
    E(qreads[j])
    if j < len(init):
        E(init[j])
E("s_mov_b64 vcc, -1\ns_mov_b32 s%d, 0xff800000\ns_mov_b32 s%d, 1" % (sFloor, sFirst))
E("s_memrealtime s[%d:%d]" % (sClk, sClk + 1))
E("s_waitcnt lgkmcnt(0)")
E("s_barrier")
emit_pieces(Vp(1))
stamp()
WOT = int(opt("wot", "24"))
late_zero = ["v_mov_b32 v%d, 0" % r for r in list(range(128, 172)) + list(range(200, 226))]
E("s_cmp_eq_u32 s%d, 1\ns_cbranch_scc1 L_att1" % sR)

OBUF = [VB, KB, KB + 32768, VB + 32768]
OLDS = lambda q: OBUF[(q >> 1) & 3] + (q & 1) * SLOT
vDWO = vSc


def dma_wo(q):
    sg, a = q >> 1, q & 1
    res = []
    for m in range(4):
        t = "s_add_u32 m0, s%d, %d\n" % (sW4K, OLDS(q)) if m == 0 else ""
        res.append((t + "s_mov_b32 s%d, %d\nbuffer_load_dwordx4 v%d, %s, s%d offen offset:%d %s lds"
                    % (sTmpO, a * 114688 + m * 6144 + 128 * sg, vDWO, srd(SRD_WO), sTmpO, m * 1024, WNT), ("O", q)))
    return res


OFo = lambda T, kk: 64 + 16 * T + 4 * kk
OFp = lambda T, kk: 0 + 16 * T + 4 * kk
aOF9 = 64
aHOLD = 96
TB = list(range(40, 56))
vST, vST9, wA, wB, rA, rB = 4, 5, 6, 7, 1, 2
vRI = vL
acc_ = lambda sg, T: (8, 16, 56, 32)[T] if sg == 0 else 128 + 32 * ((sg - 1) % 3) + 8 * T
acc9 = lambda sg: 224 + 4 * (sg % 4)
v9st = 240
O9S, LX, O9P = PX, PX + 16384, 155648


def tail_setup():
    t = ["v_mbcnt_lo_u32_b32 v0, -1, 0\nv_mbcnt_hi_u32_b32 v0, -1, v0",
         "s_load_dwordx2 s[12:13], s[0:1], 88\ns_load_dwordx2 s[14:15], s[0:1], 96" if False else "s_nop 0",
         "v_lshrrev_b32 v3, 2, v0\nv_lshlrev_b32 v3, 7, v3", "v_and_b32 v30, 3, v0\nv_lshl_add_u32 v3, v30, 3, v3",
         "s_lshl_b32 s99, s%d, 1\ns_xor_b32 s99, s99, s%d\nv_bfe_u32 v30, v0, 3, 2" % (sC, sR), "v_xor_b32 v30, s99, v30",
         "v_lshl_add_u32 v30, v30, 5, v3\nv_xor_b32 v31, 32, v30"]
    for kk in range(4):
        t.append("s_lshl_b32 s98, s%d, 1\ns_xor_b32 s98, s98, %d\ns_lshl_b32 s98, s98, 12" % (sR, kk))
        t.append("s_lshl_b32 s99, s%d, 14\ns_add_u32 s99, s99, s98\ns_add_u32 s99, s99, %d" % (sC, VB))
        for nt in range(2):
            t.append("v_add_u32 v%d, s99, v%d\nv_xor_b32 v%d, 0x4000, v%d" % (TB[2 * kk + nt], 30 + nt, TB[8 + 2 * kk + nt], TB[2 * kk + nt]))
    for T in range(5):
        t.append("v_mov_b32 v30, v%d\nv_mov_b32 v31, v%d" % (vL + T, vL + T))
        t.append("s_nop 0\nv_permlane32_swap_b32 v30, v31")
        t.append("v_add_f32 v30, v30, v31\nv_mov_b32 v31, v30")
        t.append("s_nop 0\nv_permlane16_swap_b32 v30, v31")
        t.append("v_add_f32 v%d, v30, v31" % (vL + T))
    t.append("v_and_b32 v3, 15, v0\nv_lshlrev_b32 v3, 2, v3")
    t.append("s_mul_i32 s99, s%d, 320\ns_add_u32 s99, s99, %d\nv_add_u32 v30, s99, v3" % (sW, LX))
    t += ["ds_write_b32 v30, v%d offset:%d" % (vL + T, 64 * T) for T in range(5)]
    t.append("v_lshlrev_b32 v0, 4, v0")
    t.append("s_lshl_b32 s99, s%d, 16\ns_lshl_b32 s98, s%d, 12\ns_add_u32 s99, s99, s98" % (sR, sC))
    t.append("s_lshl_b32 s98, s%d, 11\ns_add_u32 s99, s99, s98\ns_add_u32 s99, s99, 32768" % sR)
    t.append("v_add_u32 v%d, s99, v0\nv_xor_b32 v%d, 0x800, v%d" % (wA, wB, wA))
    t.append("v_xor_b32 v%d, 0x1000, v%d\nv_xor_b32 v%d, 0x1000, v%d" % (rA, wA, rB, wB))
    t.append("s_lshl_b32 s99, s%d, 13\ns_lshl_b32 s98, s%d, 10\ns_add_u32 s99, s99, s98" % (sR, sC))
    t.append("v_add_u32 v%d, s99, v0" % vST)
    t.append("s_lshl_b32 s99, s%d, 10\nv_add_u32 v%d, s99, v0" % (sW, vST9))
    return t


saved = (list(P.dsq), list(P.vmq), nstamp[0])
for r in range(2):
    P.dsq, P.vmq = list(saved[0]), list(saved[1])
    nstamp[0] = saved[2]
    if r == 1:
        E("L_att1:")
    fr, mf = Frags(0), []
    qk_part(0, r, fr, mf)
    run_phase(mf, [fr.items(0, LEAD), [Item(t, 0, BIG) for t in late_zero]], "qk0")
    stamp(STAMP == 9)
    sc = P_base[0]
    tl = tiles_of(0, r)
    for T in tl:
        s0 = S_(0, T)
        E("v_max3_f32 v%d, v%d, v%d, v%d\nv_max_f32 v%d, v%d, v%d" % (sc + T, s0, s0 + 1, s0 + 2, sc + T, sc + T, s0 + 3))
    for sw in ("v_permlane32_swap_b32", "v_permlane16_swap_b32"):
        for T in tl:
            E("v_mov_b32 v%d, v%d" % (sc + 8 + T, sc + T))
        for T in tl:
            E("%s v%d, v%d" % (sw, sc + T, sc + 8 + T))
        for T in tl:
            E("v_max_f32 v%d, v%d, v%d" % (sc + T, sc + T, sc + 8 + T))
    E("s_mul_i32 s99, s%d, 1280\nv_add_u32 v%d, s99, v%d" % (sW, sc + 5, vMB))
    for T in tl:
        E("ds_write_b32 v%d, v%d offset:%d" % (sc + 5, sc + T, 256 * T))
    E("s_xor_b32 s99, s%d, 1\ns_mul_i32 s99, s99, 1280\nv_add_u32 v%d, s99, v%d" % (sW, sc + 5, vMB))
    E("s_waitcnt lgkmcnt(0)\ns_barrier")
    for T in range(4):
        E("ds_read_b32 v%d, v%d offset:%d" % (sc + 8 + T, sc + 5, 256 * T))
    for w_ in range(2):
        E("ds_read_b32 v%d, v%d offset:%d" % (sc + 12 + w_, vMB, 1280 * w_ + 1024))
    E("s_cmp_eq_u32 s%d, 0\ns_cselect_b64 vcc, 0, -1\ns_mov_b32 s%d, 0\ns_mov_b32 s%d, 0" % (sPara, sFloor, sFirst))
    emit_pieces(Kp(4))
    for T in (split_tiles(0, r)[0] + split_tiles(0, r)[1] + ([] if 4 in tl else [4])):
        if T < 4:
            E("v_max_f32 v%d, v%d, v%d" % (sc + T, sc + T, sc + 8 + T))
        else:
            E("v_max_f32 v%d, v%d, v%d" % (sc + 4, sc + 12, sc + 13))
        for j in range(4):
            E("v_sub_f32 v%d, 0, v%d" % (vNegM + 4 * T + j, sc + T))
        if T in tl:
            for j in range(4):
                E("v_sub_f32 v%d, v%d, v%d" % (S_(0, T) + j, S_(0, T) + j, sc + T))
    stamp(STAMP == 9)
    stamp(STAMP == 9)
    if STAMP == 1:
        E("s_memtime s[88:89]\ns_memrealtime s[84:85]\ns_waitcnt lgkmcnt(0)")
    tbank[0] = 0
    for it in softmax_items(0, split_tiles(0, r)[0], -1, BIG):
        it.emit()
    E("s_mov_b32 s%d, 0" % sLoop)
    drain_writes()
    k = 8
    for t in qk_pref(1, r, k):
        E("\n".join(t))
    tbank[0] = 0
    if STAMP == 9:
        stamp()
        for n in range(4):
            for t in (qk_pref(1, r, k) if n == 0 else []):
                E("\n".join(t))
            k = step(n, r, k, Vp(n + 2, True), Kp(n + 5, True), 16, qk_pref(n + 2, r, k + 16))
            raw("s_memrealtime s[%d:%d]" % (sStamp + 2 * nstamp[0], sStamp + 2 * nstamp[0] + 1))
            nstamp[0] += 1
        E("s_waitcnt lgkmcnt(0)")
        for t in qk_pref(1, r, k):
            E("\n".join(t))
        E("s_mov_b32 s%d, 1" % sLoop)
    entry = [set(d) for (_, d) in P.dsq]
    E("L_loop%d:" % r)
    for n in range(4):
        k = step(n, r, k, Vp(n + 2, True), Kp(n + 5, True), 16, qk_pref(n + 2, r, k + 16))
    now = [set(d) for (_, d) in P.dsq if d]
    assert now == entry, (now, entry)
    drain_writes()
    if STAMP == 7:
        raw("s_memrealtime s[80:81]\ns_memtime s[82:83]\ns_waitcnt lgkmcnt(0)\ns_lshl_b64 exec, 1, s%d\n"
            "v_accvgpr_write_b32 a199, s80\nv_accvgpr_write_b32 a198, s82\ns_mov_b64 exec, -1" % sLoop)
    E("s_add_u32 s%d, s%d, 1\ns_cmp_lt_u32 s%d, 6\ns_cbranch_scc1 L_loop%d" % (sLoop, sLoop, sLoop, r))
    if STAMP == 1:
        raw("s_memtime s[90:91]\ns_memrealtime s[86:87]")
        E("s_waitcnt lgkmcnt(0)")
    for n in range(24, 31):
        pre = Vp(n + 2, True) if n + 2 < 32 else []
        post = Kp(n + 5, True) if n + 5 < 32 else []
        if n == WOT:
            post = post + [("s_lshr_b32 s99, s3, 4\ns_and_b32 s99, s99, 7\ns_lshl_b32 s99, s99, 2", None),
                           ("s_add_u32 s99, s99, s%d\ns_mul_i32 s99, s99, %d\nv_lshlrev_b32 v%d, 5, v%d" % (sW, 56 * 128, vSc, vMB), None),
                           ("s_sub_u32 s99, s99, %d\ns_mov_b32 exec_hi, 0x00ffffff\nbuffer_load_dword a200, v%d, %s, s99 offen\ns_mov_b32 exec_hi, -1"
                            % (MB * 32, vSc, srd(SRD_WO)), "t")] if False else post
            E("s_lshr_b32 s99, s3, 4\ns_and_b32 s99, s99, 7\ns_lshl_b32 s99, s99, 2\ns_add_u32 s99, s99, s%d\ns_mul_i32 s99, s99, %d" % (sW, 56 * 128))
            E("v_subrev_u32 v%d, %d, v%d\nv_lshlrev_b32 v%d, 5, v%d\ns_mov_b32 exec_hi, 0x00ffffff" % (vSc, MB, vMB, vSc, vSc))
            E("buffer_load_dword a200, v%d, %s, s99 offen" % (vSc, srd(SRD_WO)), tag="t")
            E("s_mov_b32 exec_hi, -1")
        if n >= 27:
            post = dma_wo({27: 2, 28: 3, 29: 0, 30: 1}[n])
        vm = 16 if n < 26 else [("K", min(n + 2, 31)), ("V", n if n < 30 else 31)]
        pref = qk_pref(n + 2, r, k + 16) if n < 30 else pv_pref(31, r, k + 16)
        if n == 27:
            t0 = vTmp
            E("v_mbcnt_lo_u32_b32 v%d, -1, 0\nv_mbcnt_hi_u32_b32 v%d, -1, v%d" % (t0, t0, t0))
            E("v_lshrrev_b32 v%d, 4, v%d\nv_lshlrev_b32 v%d, 1, v%d\nv_xor_b32 v%d, v%d, v%d\nv_and_b32 v%d, 7, v%d\nv_lshlrev_b32 v%d, 4, v%d"
              % (vSc, t0, vSc, vSc, vSc, vSc, t0, vSc, vSc, vSc, vSc))
            E("v_lshrrev_b32 v%d, 3, v%d\nv_mul_u32_u24 v%d, 896, v%d\nv_add_u32 v%d, v%d, v%d\ns_mul_i32 s99, s%d, %d\nv_add_u32 v%d, s99, v%d"
              % (t0, t0, t0, t0, vSc, vSc, t0, sW, 32 * 896, vSc, vSc))
        k = step(n, r, k, pre, post, vm, pref, all_next=(n == 30))
    drain_writes()
    E("s_barrier")
    for t in partner_reads(31, r):
        E(t)
    fr, mf = Frags(k), []
    pv_part(31, r, fr, mf)
    run_phase(mf, [fr.items(LEAD, LEAD), [Item(t, 2, BIG) for t in tail_setup()]], "pv31")
    if r == 0:
        E("s_branch L_oproj")
E("L_oproj:")
stamp()
vmwait([("O", 1)])
E("s_waitcnt lgkmcnt(0)")
E("s_barrier")


def hold_of(sg, a_, kk):
    return aHOLD + 32 * sg + 4 * (4 * a_ + kk)


def stage_part(sg, a_, fr, mf, kfirst, prev_buf):
    buf = OBUF[sg & 3]
    dwin = ((buf & ~0xffff) - (prev_buf & ~0xffff)) & 0xffffffff
    off = buf & 0xffff
    for kk in range(4):
        for nt in range(2):
            rg = TB[8 * a_ + 2 * kk + nt]
            hold = hold_of(sg, a_, kk) if (sg < 2 and nt == 1) else None
            pre_ = ["v_add_u32 v%d, 0x%x, v%d" % (rg, dwin, rg)] if dwin else []
            bb = fr.new(mf, (lambda p_, f_: (lambda b: p_ + f_(b)))(pre_, rdtr(rg, rg, off, off + 2048)), hold)
            kfirst.setdefault((sg, a_, kk), len(mf))
            z = (a_ == 0 and kk == 0)
            for T in range(4):
                d = acc_(sg, T) + 4 * nt
                mf.append(dict(text=mfma(vr(d), ar(bb), vr(OFo(T, kk)) if a_ == 0 else ar(OFp(T, kk)), "0" if z else vr(d))))
            if nt == 1 and sg >= 2:
                j = 4 * a_ + kk
                mf.append(dict(text=mfma(vr(acc9(sg)), ar(bb), ar(aOF9 + 4 * j), "0" if z else vr(acc9(sg)))))
                if sg == 2:
                    for s9 in range(2):
                        mf.append(dict(text=mfma(vr(acc9(s9)), ar(hold_of(s9, a_, kk)), ar(aOF9 + 4 * j), "0" if j == 0 else vr(acc9(s9)))))


def build_stage(sg, k0):
    fr, mf, kfirst = Frags(k0), [], {}
    if sg == 0:
        for (s_, a_) in ((0, 0), (1, 0), (0, 1), (1, 1)):
            stage_part(s_, a_, fr, mf, kfirst, OBUF[0])
    else:
        for a_ in range(2):
            stage_part(sg, a_, fr, mf, kfirst, OBUF[(sg - 1) & 3])
    return fr, mf, kfirst


def conv_items(kk, e, d):
    return [Item("v_cvt_pk_bf16_f32 v%d, v%d, v%d" % (OFo(T, kk) + j, O_(T, 2 * kk) + 2 * j, O_(T, 2 * kk) + 2 * j + 1), e, d)
            for T in range(4) for j in range(4)]


def out_items(sg, e0, step_, nine):
    its = []
    for T in range(4):
        e = e0 + T * step_
        a0 = acc_(sg, T)
        for j in range(8):
            its.append(Item("v_mul_f32 v%d, v%d, v%d" % (a0 + j, vRI + T, a0 + j), e, BIG))
        for j in range(4):
            its.append(Item("v_cvt_pk_bf16_f32 v%d, v%d, v%d" % (a0 + j, a0 + 2 * j, a0 + 2 * j + 1), e, BIG))
        its.append(Item("s_mov_b32 s%d, %d\nbuffer_store_dwordx4 %s, v%d, %s, s%d offen offset:%d %s"
                        % (sT1, sg * 16384 + (T >> 1) * 4096, vr(a0), vST, srd(SRD_WS), sT1, (T & 1) * 2048, STP), e, BIG, ("st", sg)))
    e = e0 + 4 * step_
    for s9 in nine:
        a0, d = acc9(s9), v9st + 2 * (s9 & 1)
        for j in range(4):
            its.append(Item("v_mul_f32 v%d, v%d, v%d" % (a0 + j, vRI + 4, a0 + j), e, BIG))
        its.append(Item("v_cvt_pk_bf16_f32 v%d, v%d, v%d\nv_cvt_pk_bf16_f32 v%d, v%d, v%d" % (d, a0, a0 + 1, d + 1, a0 + 2, a0 + 3), e, BIG))
        if s9 == 6:
            its.append(Item("v_mov_b32 v%d, 0\nv_mov_b32 v%d, 0" % (v9st + 2, v9st + 3), e, BIG))
        if (s9 & 1) or s9 == 6:
            its.append(Item("s_mov_b32 s%d, %d\nbuffer_store_dwordx4 %s, v%d, %s, s%d offen %s"
                            % (sT1, 114688 + 4096 * (s9 >> 1), vr(v9st), vST9, srd(SRD_WS), sT1, STP), e, BIG, ("st", sg)))
    return its


npub = [0]


def publish(parts):
    k_ = npub[0]
    npub[0] += 1
    E("s_cmp_lg_u32 s%d, 0\ns_cbranch_scc1 L_nopub%d" % (sW, k_))
    raw("s_memrealtime s[96:97]")
    E("s_mov_b64 exec, 1\ns_and_b32 s99, s3, 15\ns_lshl_b32 s99, s99, 3\nv_mov_b32 v1, s99")
    raw("s_waitcnt lgkmcnt(0)")
    E("v_mov_b32 v2, s96\nv_mov_b32 v3, s97")
    for p_ in parts:
        raw("global_store_dwordx2 v1, v[2:3], s[14:15] offset:%d sc1" % (256 * p_))
    E("s_mov_b64 exec, -1")
    E("L_nopub%d:" % k_)


fr0 = build_stage(0, 0)[0]
for f in range(LEAD):
    E("\n".join(fr0.fr[f][1]))
for it in conv_items(0, -1, BIG):
    it.emit()
k = 0
issue_plan = {2: [6, 7, 8, 9], 3: [10, 11], 4: [12, 13]}
for sg in (0, 2, 3, 4, 5, 6):
    fr, mf, kfirst = build_stage(sg, k)
    N = len(mf)
    stamp(STAMP == 5)
    bpos = N - EARLY
    rq = fr.items(LEAD, LEAD)
    nxt = 2 if sg == 0 else sg + 1
    pieces = []
    for q in issue_plan.get(sg, []):
        pieces += dma_wo(q)
    dq = spread(pieces, 0, 3)
    if sg < 6:
        nf = build_stage(nxt, fr.k)[0]
        for it in rq:
            it.d = min(it.d, bpos - 3)
            it.e = min(it.e, it.d)
        for j in range(LEAD):
            rq.append(Item("\n".join(nf.fr[j][1]), bpos, bpos + 2 + 2 * j))

    def stage_barrier(sg=sg, fr=fr, nxt=nxt):
        P.wait_ds_regs(rset("a", fr.fr[-1][0]))
        drain_writes()
        pub = {3: [0, 1], 4: [2], 5: [3]}.get(sg, [])
        vmwait([("O", 2 * nxt + 1)] + [("st", p_) for p_ in pub])
        E("s_barrier")
        if pub:
            publish(pub)
    if sg < 6:
        mf[bpos]["pre"] = [stage_barrier]
    cq, xq, wq_ = [], [], []
    if sg == 0:
        M = kfirst[(0, 1, 0)] - 8
        M2 = M + 18
        wq_.append(Item("v_add_u32 v31, s%d, v0\nv_add_u32 v31, %d, v31" % (sW4K, O9S), -1, M - 1))
        wq_ += [Item("ds_write_b128 v31, %s offset:%d" % (ar(aO9 + 4 * b_), 1024 * b_), -1, M - 1) for b_ in range(4)]
        for kk in range(4):
            if kk:
                cq += conv_items(kk, -1, kfirst[(0, 0, kk)] - 2)
            wq_ += [Item("ds_write_b128 v%d, %s offset:%d" % (wA + (kk >> 1), vr(OFo(T, kk)), T * 8192 + (kk & 1) * 1024),
                         kfirst[(0, 0, kk)] - 1 if kk else -1, M - 1) for T in range(4)]

        def mid_barrier():
            drain_writes()
            E("s_barrier")

        def mid2_barrier():
            P.wait_ds_regs(rset("a", OFp(3, 3)))
            E("s_barrier")
        mf[M]["pre"] = [mid_barrier]
        mf[M2]["pre"] = [mid2_barrier]
        j = 0
        for kk in range(4):
            for T in range(4):
                wq_.append(Item("ds_read_b128 %s, v%d offset:%d" % (ar(OFp(T, kk)), rA + (kk >> 1), T * 8192 + (kk & 1) * 1024),
                                M, M + j // 2 + (2 if kk else 0)))
                j += 1
        dq = spread(dma_wo(4) + dma_wo(5), M2, 3)
        lq = ["s_xor_b32 s99, s%d, 1\ns_mul_i32 s99, s99, 320\ns_add_u32 s99, s99, %d\nv_add_u32 v30, s99, v3\nv_add_u32 v3, %d, v3" % (sW, LX, LX + 256)]
        lq += ["ds_read_b32 v%d, v30 offset:%d" % (244 + T, 64 * T) for T in range(4)]
        lq += ["ds_read_b32 v%d, v3 offset:%d" % (248 + w_, 320 * w_) for w_ in range(4)]
        lq += ["v_add_f32 v%d, v%d, v%d" % (vL + T, vL + T, 244 + T) for T in range(4)]
        lq += ["v_add_f32 v248, v248, v249\nv_add_f32 v250, v250, v251", "v_add_f32 v%d, v248, v250" % (vL + 4),
               "v_add_f32 v244, v%d, v%d\nv_add_f32 v245, v%d, v%d" % (vL, vL + 1, vL + 2, vL + 3),
               "v_add_f32 v244, v244, v245\nv_add_f32 v244, v244, v%d" % (vL + 4),
               "s_mov_b32 s99, %s\nv_cmp_nge_f32 vcc, s99, v244" % fbits(LTHR),
               "s_lshl_b32 s98, s%d, 2\ns_add_u32 s98, s98, %d\nv_mov_b32 v245, s98" % (sW, LX + 2048),
               "s_cmp_lg_u64 vcc, 0\ns_cselect_b32 s99, 1, 0\nv_mov_b32 v244, s99",
               "ds_write_b32 v245, v244"]
        xq = [Item(t, kfirst[(1, 0, 0)], M - 1) for t in lq]
        xq += [Item("v_rcp_f32 v%d, v%d" % (vRI + T, vL + T), kfirst[(1, 0, 0)], BIG) for T in range(5)]
        t9 = ["s_xor_b32 s99, s%d, 0x2000\ns_add_u32 s99, s99, %d\nv_add_u32 v31, s99, v0" % (sW4K, O9S)]
        t9 += ["ds_read_b128 %s, v31 offset:%d" % (vr(176 + 4 * b_), 1024 * b_) for b_ in range(4)]
        t9 += ["v_mov_b32 v30, %d\nds_read_b128 v[244:247], v30" % (LX + 2048)]
        t9 += ["v_accvgpr_read_b32 v%d, a%d" % (160 + j, aO9 + 16 + j) for j in range(16)]
        t9 += ["v_or3_b32 v244, v244, v245, v246\nv_or_b32 v244, v244, v247", "s_nop 0\nv_readfirstlane_b32 s99, v244",
               "s_nop 1\ns_andn2_b32 s99, s99, s%d\ns_cbranch_scc1 L_restart" % sPara]
        t9 += ["v_add_f32 v%d, v%d, v%d" % (160 + j, 160 + j, 176 + j) for j in range(16)]
        t9 += ["v_cvt_pk_bf16_f32 v%d, v%d, v%d" % (160 + j, 160 + 2 * j, 161 + 2 * j) for j in range(8)]
        t9 += ["s_lshl_b32 s99, s%d, 12\ns_xor_b32 s98, s%d, 1\ns_lshl_b32 s98, s98, 11" % (sC, sR),
               "s_add_u32 s99, s99, s98\ns_add_u32 s99, s99, %d\nv_add_u32 v31, s99, v0" % O9P]
        t9 += ["ds_write_b128 v31, %s offset:%d" % (vr(160 + 4 * j), 1024 * j) for j in range(2)]
        xq += [Item(t, M + 8, bpos - 1) for t in t9]
        for a_ in range(2):
            for kh in range(2):
                xq.append(Item("s_xor_b32 s99, s%d, %d\ns_lshl_b32 s99, s99, 12\ns_xor_b32 s98, s%d, %d" % (sC, a_, sR, kh), bpos, BIG))
                xq.append(Item("s_lshl_b32 s98, s98, 11\ns_add_u32 s99, s99, s98\ns_add_u32 s99, s99, %d" % O9P, bpos, BIG))
                xq.append(Item("v_add_u32 v31, s99, v0\nds_read_b128 %s, v31" % ar(aOF9 + 16 * a_ + 8 * kh), bpos, BIG))
                xq.append(Item("ds_read_b128 %s, v31 offset:1024" % ar(aOF9 + 16 * a_ + 8 * kh + 4), bpos, BIG))
        cq += out_items(0, kfirst[(1, 1, 0)] + 5, 5, [])
    elif sg == 2:
        cq = out_items(1, 5, 14, [])
        xq = [Item("s_load_dwordx2 s[12:13], s[0:1], 88\ns_load_dwordx2 s[14:15], s[0:1], 96\ns_waitcnt lgkmcnt(0)", 30, 30),
              Item("s_lshr_b32 s99, s3, 4\ns_lshl_b32 s99, s99, 11\ns_add_u32 s99, s99, %d" % FLG, 31, 40),
              Item("s_add_u32 s14, s14, s99\ns_addc_u32 s15, s15, 0", 31, 40)]
    else:
        cq = out_items(sg - 1, 5, 11, [0, 1, 2] if sg == 3 else [sg - 1])
    if sg == 6:
        xq = [Item("s_and_b32 s36, s3, 15\ns_lshr_b32 s99, s36, 2\ns_lshl_b32 s99, s99, 8", 40, 50),
              Item("v_bfe_u32 v30, v0, 4, 4\nv_lshlrev_b32 v30, 3, v30", 40, 50), Item("v_add_u32 v31, s99, v30", 40, 50),
              Item("global_load_dwordx2 v[32:33], v31, s[14:15] sc1", 60, 62, "poll")]
    run_phase(mf, [rq, dq, cq, wq_, xq], "st%d" % sg)
    k = fr.k
for it in out_items(6, 0, 0, [6]):
    it.emit()
vmwait([("st", 4)])
E("s_barrier")
publish([4])
stamp()

E("s_load_dwordx2 s[4:5], s[0:1], 96\ns_load_dwordx2 s[8:9], s[0:1], 80")
E("v_lshrrev_b32 v2, 4, v0\nv_and_b32 v4, 15, v2\nv_lshrrev_b32 v5, 4, v2")
E("v_lshlrev_b32 v16, 17, v5\nv_lshl_add_u32 v16, v4, 4, v16")
E("v_mul_u32_u24 v17, 1792, v4\nv_lshrrev_b32 v6, 1, v5\nv_lshl_add_u32 v17, v6, 3, v17\nv_and_b32 v19, 1, v5")
E("v_lshl_add_u32 v14, v19, 7, v17\nv_lshl_add_u32 v17, v19, 5, v17\nv_lshlrev_b32 v19, 30, v19")
E("v_and_b32 v6, 1, v4\nv_lshlrev_b32 v6, 4, v6\nv_mov_b32 v7, 0x3f80\nv_lshlrev_b32 v7, v6, v7\nv_lshrrev_b32 v6, 1, v4")
for r_ in range(4):
    E("v_cmp_eq_u32 vcc, %d, v6\nv_cndmask_b32 v%d, 0, v7, vcc" % (r_, 40 + r_))
    E("v_cmp_eq_u32 vcc, %d, v6\nv_cndmask_b32 v%d, 0, v7, vcc" % (4 + r_, 44 + r_))
E("s_lshr_b32 s35, s3, 4\nv_mov_b32 v18, s%d" % (sClk + 1))
E("s_waitcnt lgkmcnt(0)")
E("s_lshl_b32 s99, s35, 21\ns_add_u32 s4, s4, s99\ns_addc_u32 s5, s5, 0\ns_mov_b32 s6, %d\ns_mov_b32 s7, 0x20000" % (16 * SLAB))
E("s_mov_b32 s10, %d\ns_mov_b32 s11, 0x20000" % (8 * 144 * 896 * 2))
E("s_and_b32 s16, s35, 7\ns_mul_i32 s16, s16, %d\ns_lshr_b32 s17, s35, 3\ns_mul_i32 s17, s17, 896\ns_add_u32 s16, s16, s17" % (144 * 1792))
E("s_lshl_b32 s17, s35, 4\nv_mov_b32 v8, s17")
E("s_lshl_b32 s19, s36, 2\ns_add_u32 s19, s19, s%d" % sW)
E("s_mov_b32 s21, 0\ns_mov_b32 s22, 0\ns_mov_b64 s[46:47], 0")
LIM = 2000
UD = [64, 176]


def uloads(u):
    E("s_lshl_b32 s20, s19, 10\ns_add_u32 s20, s20, %d" % (65536 * u))
    for p_ in range(4):
        for pc in range(4):
            E("buffer_load_dwordx4 %s, v16, s[4:7], s20 offen offset:%d %s" % (vr(UD[u] + 16 * p_ + 4 * pc), 256 * pc, LDP))
        if p_ < 3:
            E("s_add_u32 s20, s20, %d" % (4 * SLAB))


def flags_ok():
    E("v_subrev_co_u32 v32, vcc, s%d, v32\nv_subb_co_u32 v33, vcc, v33, v18, vcc\nv_cmp_eq_u32 vcc, 0, v33" % sClk)
    E("s_cmp_eq_u64 vcc, -1")


def spin(name, ok):
    E("L_%s:" % name)
    E("global_load_dwordx2 v[32:33], v31, s[14:15] sc1\ns_waitcnt vmcnt(0)")
    flags_ok()
    E("s_cbranch_scc1 %s" % ok)
    E("s_add_u32 s21, s21, 1\ns_cmp_lt_u32 s21, %d\ns_cbranch_scc1 L_%s\ns_branch L_slow" % (LIM, name))


vmwait(["poll"])
flags_ok()
E("s_cselect_b32 s23, 1, 0\ns_cbranch_scc0 L_late1")
uloads(0)
raw("s_waitcnt vmcnt(16)\ns_branch L_drained")
E("L_late1:")
E("s_waitcnt vmcnt(0)")
E("L_drained:")
stamp()
E("s_barrier")
publish([5, 6])
E("s_cmp_lg_u32 s%d, 0\ns_cbranch_scc1 L_noadd\ns_mov_b64 exec, 1\nv_mov_b32 v9, 1" % sW)
E("global_atomic_add v34, v8, v9, s[12:13] sc0")
E("s_mov_b64 exec, -1\nL_noadd:")
E("s_cmp_eq_u32 s23, 1\ns_cbranch_scc1 L_have1")
spin("spin1", "L_got1")
E("L_got1:")
uloads(0)
E("L_have1:")
stamp()
E("s_lshr_b32 s99, s36, 2\ns_add_u32 s99, s99, 4\ns_lshl_b32 s98, s36, 1\ns_sub_u32 s98, s98, 23\ns_min_u32 s98, s98, 6\ns_max_u32 s98, s98, 2\ns_cmp_ge_u32 s36, 12\ns_cselect_b32 s99, s98, s99")
E("s_lshl_b32 s99, s99, 8\nv_add_u32 v31, s99, v30")
spin("spin2", "L_second")
E("L_slow:")
E("s_mov_b32 s21, 0")
E("L_spin3:")
E("global_load_dword v32, v8, s[12:13] sc1\ns_waitcnt vmcnt(0)\nv_readfirstlane_b32 s99, v32")
E("s_cmp_eq_u32 s99, 16\ns_cbranch_scc1 L_both")
E("s_add_u32 s21, s21, 1\ns_cmp_lt_u32 s21, %d\ns_cbranch_scc1 L_spin3" % LIM)
E("s_lshl_b64 s[98:99], 1, s19\ns_mov_b64 exec, 1\nv_mov_b32 v32, s98\nv_mov_b32 v33, s99")
E("global_atomic_or_x2 v8, v[32:33], s[12:13] offset:8\ns_waitcnt vmcnt(0)\ns_mov_b64 exec, -1")
E("global_load_dword v32, v8, s[12:13] sc1\ns_waitcnt vmcnt(0)\nv_readfirstlane_b32 s99, v32")
E("s_cmp_eq_u32 s99, 16\ns_cbranch_scc0 L_next")
E("L_both:")
P.vmq = []
uloads(0)
E("L_second:")
stamp()
uloads(1)
for u in range(2):
    E("s_add_u32 s21, s19, %d" % (64 * u))
    if u == 1:
        E("s_cmp_ge_u32 s21, 112\ns_cbranch_scc1 L_t9")
    E("s_lshr_b32 s20, s21, 4\ns_lshl_b32 s20, s20, 7\ns_add_u32 s20, s20, s16")
    E("s_bfe_u32 s99, s21, 0x30001\ns_mul_i32 s99, s99, %d\ns_add_u32 s20, s20, s99" % (16 * 1792))
    E("s_and_b32 s99, s21, 1\ns_lshl_b32 s99, s99, 6\ns_add_u32 s%d, s20, s99" % (50 + u))
    E("s_bfe_u32 s99, s21, 0x10003\ns_lshl_b32 s99, s99, 5")
    E("v_xor_b32 v%d, s99, v17" % (12 + u))
E("s_branch L_sum")
E("L_t9:")
E("s_bfe_u32 s20, s21, 0x20002\ns_and_b32 s99, s21, 1\ns_lshl_b32 s99, s99, 1\ns_bfe_u32 s98, s21, 0x10001\ns_xor_b32 s98, s98, 1\ns_add_u32 s99, s99, s98\ns_lshl_b32 s99, s99, 5")
E("s_lshl_b32 s51, s20, 8\ns_add_u32 s51, s51, s99\ns_add_u32 s51, s51, s16\ns_add_u32 s51, s51, %d" % (128 * 1792))
E("v_mov_b32 v13, v14\ns_cmp_eq_u32 s20, 3\ns_cbranch_scc0 L_sum\nv_add_u32 v13, v19, v14")
E("L_sum:")
for u in range(2):
    for p_ in range(4):
        for pc in range(4):
            d = 48 + 8 * u + 4 * (pc >> 1)
            E(mfma(vr(d), vr(40 if (pc & 1) == 0 else 44), vr(UD[u] + 16 * p_ + 4 * pc), "0" if (p_ == 0 and (pc & 1) == 0) else vr(d)))
for u in range(2):
    for k_ in range(2):
        d = 48 + 8 * u + 4 * k_
        E("v_cvt_pk_bf16_f32 v%d, v%d, v%d\nv_cvt_pk_bf16_f32 v%d, v%d, v%d" % (d, d, d + 1, d + 1, d + 2, d + 3))
        E("buffer_store_dwordx2 v[%d:%d], v%d, s[8:11], s%d offen offset:%d" % (d, d + 1, 12 + u, 50 + u, 16 * k_))
E("L_next:")
E("s_cmp_lg_u32 s%d, 0\ns_cbranch_scc1 L_done" % sW)
E("s_cmp_lg_u32 s22, 0\ns_cbranch_scc1 L_more")
E("s_mov_b32 s22, 1\nv_readfirstlane_b32 s99, v34\ns_cmp_eq_u32 s99, 15\ns_cbranch_scc0 L_done")
E("global_load_dwordx2 v[32:33], v8, s[12:13] offset:8 sc1\ns_waitcnt vmcnt(0)\nv_readfirstlane_b32 s46, v32\nv_readfirstlane_b32 s47, v33")
E("L_more:")
E("s_cmp_eq_u64 s[46:47], 0\ns_cbranch_scc1 L_done")
E("s_ff1_i32_b64 s19, s[46:47]\ns_bitset0_b64 s[46:47], s19\ns_branch L_both")
E("L_done:")
if STAMP:
    E("s_waitcnt vmcnt(0)")
    stamp()
    if STAMP == 1:
        E("s_memtime s[94:95]\ns_waitcnt lgkmcnt(0)")
    E("v_mov_b32 v1, 0")
    E("s_cmp_lg_u32 s%d, 0\ns_cbranch_scc1 L_end" % sW)
    if STAMP == 7:
        E("v_lshrrev_b32 v2, 2, v0\nv_accvgpr_read_b32 v3, a199\nv_accvgpr_read_b32 v4, a198")
        E("s_mov_b64 exec, 0xffff\nglobal_store_dword v2, v3, s[%d:%d] offset:128\nglobal_store_dword v2, v4, s[%d:%d] offset:192" % (sWSB, sWSB + 1, sWSB, sWSB + 1))
    E("s_mov_b64 exec, 1")
    for k_ in range(16):
        E("v_mov_b32 v2, s%d\nv_mov_b32 v3, s%d" % (sStamp + 2 * k_, sStamp + 2 * k_ + 1))
        E("global_store_dwordx2 v1, v[2:3], s[%d:%d] offset:%d" % (sWSB, sWSB + 1, 8 * k_))
        E("s_nop 1")
E("L_end:\ns_endpgm")
main_ins = P.ins

R = Prog()
F = R.emit
for s_ in stubs:
    F(s_)
F("L_restart:\ns_waitcnt vmcnt(0) lgkmcnt(0)\ns_barrier\ns_mov_b32 s%d, 1\ns_branch L_start" % sPara)
for par in range(2):
    sc = P_base[par]
    F("L_fix%d:" % par)
    F("s_nop 15\ns_waitcnt lgkmcnt(0)")
    for T in range(5):
        s0 = S_(par, T)
        F("v_max3_f32 v%d, v%d, v%d, v%d\nv_max_f32 v%d, v%d, v%d" % (sc + T, s0, s0 + 1, s0 + 2, sc + T, sc + T, s0 + 3))
    F("v_mov_b32 v%d, 0xff800000\ns_cmp_eq_u32 s%d, 1\ns_cbranch_scc1 L_fix%d_a\nv_mov_b32 v%d, v%d\nL_fix%d_a:" % (sc + 5, sHas9, par, sc + 4, sc + 5, par))
    for T in range(5):
        for sw in ("v_permlane32_swap_b32", "v_permlane16_swap_b32"):
            F("v_mov_b32 v%d, v%d\ns_nop 1\n%s v%d, v%d\ns_nop 1\nv_max_f32 v%d, v%d, v%d" % (sc + 5, sc + T, sw, sc + T, sc + 5, sc + T, sc + T, sc + 5))
    F("s_mul_i32 s99, s%d, 1280\nv_add_u32 v%d, s99, v%d" % (sW, sc + 5, vMB))
    for T in range(5):
        F("ds_write_b32 v%d, v%d offset:%d" % (sc + 5, sc + T, 256 * T))
    F("s_waitcnt lgkmcnt(0)\ns_barrier")
    F("s_xor_b32 s99, s%d, 1\ns_mul_i32 s99, s99, 1280\nv_add_u32 v%d, s99, v%d" % (sW, sc + 5, vMB))
    for T in range(4):
        F("ds_read_b32 v%d, v%d offset:%d" % (sc + 6 + T, sc + 5, 256 * T))
    for w_ in range(4):
        F("ds_read_b32 v%d, v%d offset:%d" % (sc + 10 + w_, vMB, 1280 * w_ + 1024))
    F("s_waitcnt lgkmcnt(0)")
    for T in range(4):
        F("v_max3_f32 v%d, v%d, v%d, s%d" % (sc + T, sc + T, sc + 6 + T, sFloor))
    F("v_max3_f32 v%d, v%d, v%d, v%d\nv_max3_f32 v%d, v%d, v%d, s%d" % (sc + 4, sc + 10, sc + 11, sc + 12, sc + 4, sc + 4, sc + 13, sFloor))
    for T in range(5):
        for j in range(4):
            F("v_sub_f32 v%d, v%d, v%d" % (vNegM + 4 * T + j, vNegM + 4 * T + j, sc + T))
        if T == 4:
            F("s_cmp_eq_u32 s%d, 0\ns_cbranch_scc1 L_fix%d_b" % (sHas9, par))
        for j in range(4):
            F("v_sub_f32 v%d, v%d, v%d" % (S_(par, T) + j, S_(par, T) + j, sc + T))
    F("L_fix%d_b:" % par)
    F("s_cmp_eq_u32 s%d, 1\ns_cbranch_scc1 L_fix%d_c" % (sFirst, par))
    for T in range(5):
        F("v_sub_f32 v%d, 0, v%d\nv_exp_f32 v%d, v%d\ns_nop 0\nv_mul_f32 v%d, v%d, v%d\nv_accvgpr_write_b32 a%d, v%d"
          % (sc + T, sc + T, sc + T, sc + T, vL + T, vL + T, sc + T, aF + T, sc + T))
    F("L_fix%d_c:\ns_nop 3\ns_setpc_b64 s[%d:%d]" % (par, sRet, sRet + 1))
F("L_fixo:")
F("s_nop 15")
for T in range(4):
    F("v_accvgpr_read_b32 v%d, a%d" % (vTmp, aF + T))
    for j in range(32):
        F("v_mul_f32 v%d, v%d, v%d" % (vO + 32 * T + j, vTmp, vO + 32 * T + j))
F("v_accvgpr_read_b32 v%d, a%d" % (vTmp, aF + 4))
for j in range(32):
    F("v_accvgpr_read_b32 v%d, a%d\nv_mul_f32 v%d, v%d, v%d\nv_accvgpr_write_b32 a%d, v%d" % (vTmp + 1, aO9 + j, vTmp + 1, vTmp, vTmp + 1, aO9 + j, vTmp + 1))
F("s_nop 3\ns_setpc_b64 s[%d:%d]" % (sRet, sRet + 1))

KILL = OPT.get("kill", "").split(",") if OPT.get("kill") else []
if KILL:
    keep, inside = [], False
    for i in main_ins:
        if i.text.startswith("L_loop"): inside = True
        if "s_cbranch_scc1 L_loop" in i.text: inside = False
        drop = False
        if inside and "sLoop" not in i.text and ("s%d," % sLoop) not in i.text:
            if "dma" in KILL and (i.kind == "dma" or (i.kind == "wait" and "vmcnt" in i.text)): drop = True
            if "bar" in KILL and i.kind == "barrier": drop = True
            if "exp" in KILL and i.kind == "trans": drop = True
            if "valu" in KILL and i.kind == "valu": drop = True
            if "dsw" in KILL and i.kind == "dsw": drop = True
            if "ds" in KILL and i.kind in ("dsr", "dsw"): drop = True
            if "wait" in KILL and i.kind == "wait" and "lgkm" in i.text: drop = True
        if not drop: keep.append(i)
    main_ins = keep
rep = []
main_ins = pad_hazards(main_ins, rep)
rare_ins = pad_hazards(R.ins, None)
from collections import Counter
sys.stderr.write("hazard pads (main): %s\n" % dict(Counter(r_[0] for r_ in rep)))
if OPT.get("v") == "2":
    for r_ in rep:
        sys.stderr.write("  %s\n" % (r_,))
txt = lambda ins: "\n".join(("" if i.kind == "label" else "    ") + i.text for i in ins)
hdr = open("concat_heads__gqa_block_cached__mha_block_cached__near_ridge.s.ref").read().split("; Override launch")[0]
print(hdr.rstrip())
print("; @launch grid=(256,1,1) block=(256,1,1) lds=%d" % LDS_TOTAL)
print('.amdgcn_target "amdgcn-amd-amdhsa--gfx950"')
print(".text")
print(".globl %s\n.p2align 8\n.type %s,@function" % (KN, KN))
print(txt(main_ins))
print(txt(rare_ins))
print("L_codeend:")
print('.section .rodata,"a"')
print(""".p2align 6
.amdhsa_kernel %s
  .amdhsa_next_free_vgpr 512
  .amdhsa_next_free_sgpr 102
  .amdhsa_accum_offset 256
  .amdhsa_group_segment_fixed_size 0
  .amdhsa_kernarg_size 104
  .amdhsa_user_sgpr_count 2
  .amdhsa_user_sgpr_kernarg_segment_ptr 1
  .amdhsa_system_sgpr_workgroup_id_x 1
.end_amdhsa_kernel""" % KN)
```

```python
import sys, struct, math, re
sys.path.insert(0, "work")
from asmlib import *

OPT = dict(a.split("=") for a in sys.argv[1:] if "=" in a)
opt = lambda k, d: OPT.get(k, d).replace("_", " ")
NT = opt("nt", "nt")
WNT = opt("wnt", "")
STP = opt("st", "sc1")
LDP = opt("ld", "sc1")
STAMP = int(opt("stamp", "0"))
LEAD = int(opt("lead", "3"))
CAPV = int(opt("capv", "7"))
EARLY = int(opt("early", "10"))
PARA = int(opt("para", "0"))
LTHR = float(opt("lthr", str(2.0 ** 30)))

KN = "concat_heads__gqa_block_cached__mha_block_cached__near_ridge_kernel"
SLOT = 16384
KB, VB = 0, 65536
PX = 131072
MB = 151552
XB = 98304
QS = 81920
LDS_TOTAL = 163840
CSCALE = math.log2(math.e) / 16.0
BIG = 10 ** 6
SLAB = 131072
FLG = 0x2000000

fbits = lambda x: "0x%08x" % struct.unpack("<I", struct.pack("<f", x))[0]
vr = lambda n, k=4: "v[%d:%d]" % (n, n + k - 1)
ar = lambda n, k=4: "a[%d:%d]" % (n, n + k - 1)
srd = lambda n: "s[%d:%d]" % (n, n + 3)
mfma = lambda d, a, b, c: "v_mfma_f32_16x16x32_bf16 %s, %s, %s, %s" % (d, a, b, c)
rset = lambda k, n, c=4: {(k, n + i) for i in range(c)}

SRD_X, SRD_WQ, SRD_K, SRD_V, SRD_WO, SRD_WS = 4, 8, 12, 16, 20, 24
sW, sW4K, sR, sC = 28, 29, 30, 31
sOffK, sOffV, sTmpO, sLoop = 32, 33, 34, 35
sFloor, sFirst, sHas9, sPara = 36, 37, 38, 39
sRet = 40
sT0, sT1, sT2, sT3 = 42, 43, 44, 45
sXm0 = 46
sClk = 48
sWSB = 62
sStamp = 64
vDKV, vPW, vPR, vMB = 0, 1, 2, 3
vK = 4
vV = 8
vL = 24
vSc = 29
vTmp = 30
vP9 = 36
vNegM = 40
S_base = {0: 60, 1: 76}
vS9 = 92
P_base = {0: 96, 1: 112}
vO = 128
aQ = 0
aO9 = 160
aF = 192
aPOOL, NPOOL = 224, 8

S_ = lambda par, T: S_base[par] + 4 * T if T < 4 else vS9
P_ = lambda par, T: P_base[par] + 4 * T if T < 4 else vP9
Q_ = lambda T, s: aQ + 32 * T + 4 * s
O_ = lambda T, b: vO + 32 * T + 4 * b
own9 = lambda n, r: ((n >> 1) & 1) == r

P = Prog()
E = P.emit
stubs = []
nstamp = [0]


def raw(t):
    for l in t.split("\n"):
        P.ins.append(Ins(l.strip()))


def stamp(cond=True):
    if STAMP and cond and nstamp[0] < (16 if STAMP in (5, 6, 9) else 8):
        E("s_memrealtime s[%d:%d]" % (sStamp + 2 * nstamp[0], sStamp + 2 * nstamp[0] + 1))
        E("s_waitcnt lgkmcnt(0)")
        nstamp[0] += 1


SCALAR = ("salu", "wait", "branch", "barrier", "nop", "smem")


def advance(t, ins):
    for I in ins:
        if I.kind == "label":
            continue
        if I.kind in SCALAR:
            t += 4 * (I.cost if I.kind == "nop" else 1)
        else:
            t = max(t, 8)
            if I.kind == "trans":
                t += 8
            elif I.kind == "dsw":
                t += 20 if ("b128" in I.op or "write2" in I.op) else (10 if "b64" in I.op else 6)
            elif I.op.startswith("v_pk_"):
                t += 20
            else:
                t += 4
    return t


class Item:
    def __init__(self, text, e=-1, d=BIG, tag=None, cost=None):
        self.text, self.e, self.d, self.tag = text, e, d, tag
        self.ins = [Ins("s_nop 0")] if callable(text) else [Ins(l.strip()) for l in text.split("\n") if l.strip()]
        self.lead_scalar = self.ins[0].kind in SCALAR

    def emit(self):
        self.text() if callable(self.text) else E(self.text, tag=self.tag)


PACK2 = int(opt("pack2", "1"))


def run_phase(mf, queues, name=""):
    qs = [list(q) for q in queues]
    for q in qs:
        for j in range(len(q) - 2, -1, -1):
            q[j].d = min(q[j].d, q[j + 1].d)
        for it in q:
            assert it.e <= it.d or it.d >= BIG, (name, it.text, it.e, it.d)
    lost = [0]
    n = len(mf)

    def pressure(g):
        return None

    def fill(g, t):
        while True:
            best = None
            for qi, q in enumerate(qs):
                if q and q[0].e <= g:
                    it = q[0]
                    forced = it.d <= g
                    te = advance(t, it.ins)
                    fits = te <= 16 or (t <= 8 and advance(4, it.ins) > 16)
                    if forced or fits:
                        key = (0 if forced else 1, 0 if (t == 4 and it.lead_scalar) else 1, it.d, qi)
                        if best is None or key < best[0]:
                            best = (key, qi, te)
            if best is None:
                break
            it = qs[best[1]].pop(0)
            w0 = P.nwaits
            nw = sum(1 for I in it.ins if I.kind == "wait")
            it.emit()
            t = best[2] + 4 * max(0, P.nwaits - w0 - nw)
        return t

    fill(-1, 100)
    for g, m in enumerate(mf):
        for t_ in m.get("pre", []):
            t_() if callable(t_) else E(t_)
        E(m["text"])
        t = 4
        if g + 1 < n and not mf[g + 1].get("pre"):
            nx = Ins(mf[g + 1]["text"])
            if P._need(P.dsq, nx.src) >= 0:
                P.wait_ds_regs(nx.src | mf[g + 1].get("waitfor", set()))
                t = 8
        t = fill(g, t)
        lost[0] += max(0, t - 16)
    left = 0
    for q in qs:
        for it in q:
            left += advance(8, it.ins) - 8
            it.emit()
    if OPT.get("v"):
        sys.stderr.write("phase %s: %d mfma, lost %d cyc, leftover %d cyc\n" % (name, n, lost[0], left))


pool_ctr = [0]


class Frags:
    def __init__(self, start):
        self.k = start
        self.fr = []
        self.first = []

    def new(self, mf, texts_fn, buf=None):
        if buf is None:
            buf = aPOOL + 4 * (self.k % NPOOL)
            self.k += 1
        self.fr.append((buf, texts_fn(buf)))
        self.first.append(len(mf))
        return buf

    def items(self, skip, lead, off=0, emin=-1):
        out = []
        for f in range(skip, len(self.fr)):
            e = max(emin, self.first[f - lead] + off) if f >= lead else emin
            d = (self.first[f - lead + 1] + off) if f >= lead else emin
            out.append(Item("\n".join(self.fr[f][1]), e, max(d, e)))
        return out


rd128 = lambda areg, off: (lambda b: ["ds_read_b128 %s, v%d offset:%d" % (ar(b), areg, off)])
rdtr = lambda a0, a1, o0, o1: (lambda b: ["ds_read_b64_tr_b16 %s, v%d offset:%d" % (ar(b, 2), a0, o0),
                                          "ds_read_b64_tr_b16 %s, v%d offset:%d" % (ar(b + 2, 2), a1, o1)])


def dma_kv(which, lds, tag, cap=True):
    s_srd, s_off = (SRD_K, sOffK) if which == "K" else (SRD_V, sOffV)
    res = []
    for m in range(4):
        t = "s_add_u32 m0, s%d, %d\n" % (sW4K, lds) if m == 0 else ""
        if cap and CAPV:
            t += "s_waitcnt vmcnt(%d)\n" % (CAPV - 1)
        t += "buffer_load_dwordx4 v%d, %s, s%d offen offset:%d %s lds" % (vDKV, srd(s_srd), s_off, m * 1024, NT)
        res.append(t)
    res.append("s_add_u32 s%d, s%d, %d" % (s_off, s_off, SLOT))
    return [(r, tag) for r in res]


def spread(pieces, start, step):
    out, k = [], 0
    for (t, tag) in pieces:
        e = int(start + k * step)
        out.append(Item(t, e, e + max(1, int(step)), tag))
        if "buffer_load" in t:
            k += 1
    return out


def emit_pieces(pieces):
    for (t, tag) in pieces:
        E(t, tag=tag)


def vmwait(tags):
    c = P.vm_count_after(tags)
    if c is not None:
        E("s_waitcnt vmcnt(%d)" % min(63, c))


def drain_writes():
    pend = [k for k, (_, d) in enumerate(P.dsq) if d == set()]
    if pend:
        E("s_waitcnt lgkmcnt(%d)" % (len(P.dsq) - 1 - pend[-1]))


nchk = [0]


def cond_call(sub, has9):
    k = nchk[0]
    nchk[0] += 1
    stubs.append("L_rare%d:\ns_mov_b32 s%d, %d\ns_call_b64 s[%d:%d], %s\ns_branch L_back%d" % (k, sHas9, has9, sRet, sRet + 1, sub, k))
    return "s_cbranch_vccnz L_rare%d\nL_back%d:" % (k, k)


tiles_of = lambda n, r: [0, 1, 2, 3] + ([4] if own9(n, r) else [])


def qk_part(n, r, fr, mf):
    par = n & 1
    for s in range(8):
        b = fr.new(mf, rd128(vK + (s & 3), KB + (n & 3) * SLOT + (s >> 2) * 256))
        for T in tiles_of(n, r):
            mf.append(dict(text=mfma(vr(S_(par, T)), ar(b), ar(Q_(T, s)), vr(vNegM + 4 * T) if s == 0 else vr(S_(par, T)))))


def pv_part(n, r, fr, mf):
    par = n & 1
    for b_ in range(8):
        b = fr.new(mf, rdtr(vV + b_, vV + 8 + b_, (n & 3) * SLOT, (n & 3) * SLOT))
        for T in range(4):
            mf.append(dict(text=mfma(vr(O_(T, b_)), ar(b), vr(P_(par, T)), vr(O_(T, b_)))))
        if own9(n, r):
            mf.append(dict(text=mfma(ar(aO9 + 4 * b_), ar(b), vr(vP9), ar(aO9 + 4 * b_))))


tbank = [0]


def softmax_items(n, tiles, e, d):
    par = n & 1
    its = []
    for T in tiles:
        for h in range(2):
            t = vTmp + 2 * (tbank[0] % 3)
            tbank[0] += 1
            s0 = S_(par, T) + 2 * h
            its.append(Item("v_exp_f32 v%d, v%d" % (t, s0), e, d))
            its.append(Item("v_exp_f32 v%d, v%d" % (t + 1, s0 + 1), e, d))
            its.append(Item("v_add_f32 v%d, v%d, v%d" % (vL + T, vL + T, t), e, d))
            its.append(Item("v_cvt_pk_bf16_f32 v%d, v%d, v%d" % (P_(par, T) + h, t, t + 1), e, d))
            its.append(Item("v_add_f32 v%d, v%d, v%d" % (vL + T, vL + T, t + 1), e, d))
        if T < 4 and (T & 1):
            its.append(Item("ds_write2st64_b64 v%d, %s, %s offset0:%d offset1:%d"
                            % (vPW, vr(P_(par, T - 1), 2), vr(P_(par, T), 2), 5 * par + T - 1, 5 * par + T), e, d))
        if T == 4:
            its.append(Item("ds_write_b64 v%d, %s offset:%d" % (vPW, vr(vP9, 2), (5 * par + 4) * 512), e, d))
    return its


def partner_reads(n, r):
    return ["ds_read_b64 %s, v%d offset:%d" % (vr(P_(n & 1, T) + 2, 2), vPR, (5 * (n & 1) + T) * 512) for T in tiles_of(n, r)]


def split_tiles(n, r, everything=False):
    if everything:
        return tiles_of(n, r), []
    if own9(n, r) and not (n & 1):
        return [4, 0], [1, 2, 3]
    if own9(n, r):
        return [0, 1, 2], [3, 4]
    return [0, 1], [2, 3]


def pair(fr, mf, lo, hi):
    for f in range(lo, hi - 1, 2):
        mf[fr.first[f]]["waitfor"] = rset("a", fr.fr[f + 1][0])


def step(n, r, k0, dma_pre, dma_post, vm, pref, all_next=False):
    fr = Frags(k0)
    mf = []
    qk_part(n + 1, r, fr, mf)
    nq, fq = len(mf), len(fr.fr)
    pv_part(n, r, fr, mf)
    N = len(mf)
    bpos = nq - EARLY

    def barrier():
        P.wait_ds_regs(rset("a", fr.fr[fq - 1][0]))
        drain_writes()
        E("s_waitcnt vmcnt(%d)" % vm) if isinstance(vm, int) else vmwait(vm)
        E("s_barrier")

    rq = []
    for f in range(LEAD, len(fr.fr)):
        if f < fq:
            d = min(fr.first[f - LEAD + 1], bpos - 3)
            e = min(fr.first[f - LEAD], d)
        elif f - fq < LEAD:
            if f == fq:
                rq += [Item(t, bpos, bpos + 1 + j // 2) for j, t in enumerate(partner_reads(n, r))]
            e, d = bpos, bpos + 3 + (f - fq)
        else:
            e, d = fr.first[f - LEAD], fr.first[f - LEAD + 1]
        rq.append(Item("\n".join(fr.fr[f][1]), e, d))
    for j, t in enumerate(pref):
        e = fr.first[len(fr.fr) - LEAD + j]
        rq.append(Item("\n".join(t), e, min(N - 1, e + 3)))
    mf[bpos]["pre"] = [barrier]
    mf[nq]["pre"] = [lambda: E(cond_call("L_fix%d" % ((n + 1) & 1), int(own9(n + 1, r))))]
    vq = softmax_items(n, split_tiles(n, r)[1], -1, bpos - 2)
    first = split_tiles(n + 1, r, all_next)[0]
    for T in first:
        e = nq + 5
        if T == 4 and own9(n, r):
            e = N - 1
        vq += softmax_items(n + 1, [T], e, BIG)
    npre = len([1 for (t, _) in dma_pre if "buffer_load" in t])
    npost = len([1 for (t, _) in dma_post if "buffer_load" in t])
    dq = spread(dma_pre, 1, max(1, (bpos - 3) // max(1, npre))) + spread(dma_post, bpos + 4, max(1, (N - bpos - 6) // max(1, npost)))
    run_phase(mf, [rq, vq, dq], "step%d r%d" % (n, r))
    E(cond_call("L_fixo", 0))
    return fr.k


def qk_pref(n, r, k0):
    fr, mf = Frags(k0), []
    qk_part(n, r, fr, mf)
    return [fr.fr[f][1] for f in range(LEAD)]


def pv_pref(n, r, k0):
    fr, mf = Frags(k0), []
    pv_part(n, r, fr, mf)
    return [fr.fr[f][1] for f in range(LEAD)]


CPFL = 16
E("%s:" % KN)
E("s_cmp_ge_u32 s2, 256\ns_cbranch_scc1 L_end")
E("v_lshrrev_b32 v1, 6, v0\ns_mov_b32 s%d, %d" % (sPara, PARA))
E("v_readfirstlane_b32 s%d, v1" % sW)
stamp()
if STAMP == 1:
    E("s_memtime s[92:93]\ns_waitcnt lgkmcnt(0)")
if int(opt("cpf", "1")):
    E("s_getpc_b64 s[52:53]\nL_pc:\ns_lshr_b32 s99, s2, 3\nv_and_b32 v2, 63, v0\nv_lshlrev_b32 v2, 5, v2\nv_add_u32 v2, s99, v2\nv_lshlrev_b32 v2, 7, v2")
    E("s_cmp_lg_u32 s%d, 3\ns_cbranch_scc1 L_nocpf" % sW)
    raw("s_mov_b32 s98, L_codeend-L_pc-4")
    E("v_cmp_gt_u32 vcc, s98, v2\ns_and_saveexec_b64 s[54:55], vcc\ns_cbranch_execz L_cpf2")
    raw("global_load_dword a201, v2, s[52:53]")
    E("L_cpf2:\ns_mov_b64 exec, -1\nL_nocpf:")
E("L_start:")
E("s_and_b32 s%d, s2, 7" % sT0)
E("s_lshr_b32 s%d, s2, 3" % sT1)
E("s_lshr_b32 s96, s%d, 4" % sT1)
E("s_lshr_b32 s97, s%d, 1\ns_and_b32 s97, s97, 7" % sT1)
E("s_and_b32 s98, s%d, 1\ns_lshl_b32 s99, s%d, 1\ns_add_u32 s98, s98, s99" % (sT1, sT0))
E("s_mul_i32 s99, s96, 40")
E("s_add_u32 s50, s0, s99\ns_addc_u32 s51, s1, 0")
E("s_load_dwordx2 s[4:5], s[50:51], 0")
E("s_load_dwordx2 s[8:9], s[50:51], 24")
E("s_load_dwordx2 s[12:13], s[50:51], 8")
E("s_load_dwordx2 s[16:17], s[50:51], 16")
E("s_load_dwordx2 s[20:21], s[50:51], 32")
E("s_load_dwordx2 s[24:25], s[0:1], 96")
E("s_load_dwordx4 s[56:59], s[0:1], 80")
E("s_load_dwordx2 s[60:61], s[0:1], 96")
hL, hW, hI, hG = 200, 201, 202, 203
vDX, vDWQ = 204, 205
vXR = 206
vW = 210
h0, h1, h2, h3, h4, h5 = 220, 221, 222, 223, 224, 225
E("v_mbcnt_lo_u32_b32 v%d, -1, 0\nv_mbcnt_hi_u32_b32 v%d, -1, v%d\nv_mov_b32 v%d, s%d" % (hL, hL, hL, hW, sW))
E("v_and_b32 v%d, 15, v%d\nv_lshrrev_b32 v%d, 4, v%d" % (hI, hL, hG, hL))
E("s_lshl_b32 s%d, s%d, 12\ns_lshr_b32 s%d, s%d, 1\ns_and_b32 s%d, s%d, 1" % (sW4K, sW, sR, sW, sC, sW))
E("v_lshrrev_b32 v%d, 3, v%d\nv_lshl_add_u32 v%d, v%d, 3, v%d\nv_mul_u32_u24 v%d, 896, v%d" % (h0, hL, h1, hW, h0, h1, h1))
E("v_and_b32 v%d, 7, v%d\nv_xor_b32 v%d, v%d, v%d\ns_lshl_b32 s99, s%d, 2\nv_xor_b32 v%d, s99, v%d" % (h2, hL, h3, h2, hG, sC, h3, h3))
E("v_lshl_add_u32 v%d, v%d, 4, v%d" % (vDX, h3, h1))
E("v_lshrrev_b32 v%d, 5, v%d\nv_and_b32 v%d, 31, v%d\nv_lshl_add_u32 v%d, v%d, 1, v%d" % (h0, hL, h1, hL, h3, hW, h0))
E("v_lshlrev_b32 v%d, 1, v%d\nv_xor_b32 v%d, v%d, v%d\nv_lshlrev_b32 v%d, 4, v%d" % (h3, h3, h3, h3, h1, h3, h3))
E("s_lshl_b32 s99, s%d, 3\ns_lshl_b32 s100, s%d, 1\ns_add_u32 s99, s99, s100\nv_add_u32 v%d, s99, v%d" % (sR, sC, h1, h0))
E("v_lshl_add_u32 v%d, v%d, 13, v%d" % (vDWQ, h1, h3))
E("v_lshl_add_u32 v%d, v%d, 3, v%d\nv_lshl_add_u32 v%d, v%d, 9, v%d" % (h1, hW, h0, vDKV, h1, h3))
E("s_mul_i32 s100, s97, 129024")
E("s_lshl_b32 s101, s98, 9")
E("s_lshl_b32 s%d, s%d, 10\ns_add_u32 s%d, s%d, %d" % (sXm0, sW, sXm0, sXm0, XB))
E("s_waitcnt lgkmcnt(0)")
stamp(STAMP == 6)
E("s_add_u32 s4, s4, s100\ns_addc_u32 s5, s5, 0\ns_mov_b32 s6, 129024\ns_mov_b32 s7, 0x20000")
E("s_add_u32 s8, s8, s101\ns_addc_u32 s9, s9, 0\ns_sub_u32 s10, %d, s101\ns_mov_b32 s11, 0x20000" % (448 * 8192))

WPI = {2: 0, 3: 1, 4: 4, 5: 2, 0: 3, 1: 5}
wslot = lambda N: WPI[N % 6] * SLOT


def dma_wq(s):
    res = []
    for m in range(4):
        so = (32 * s + 16 * (m & 1) + 4 * (m >> 1)) * 8192 - m * 1024
        t = "s_add_u32 m0, s%d, %d\n" % (sW4K, wslot(s)) if m == 0 else ""
        res.append((t + "s_mov_b32 s%d, %d\nbuffer_load_dwordx4 v%d, %s, s%d offen offset:%d %s lds"
                    % (sTmpO, so, vDWQ, srd(SRD_WQ), sTmpO, m * 1024, WNT), ("W", s)))
    return res


def dma_x(p):
    res = []
    for k in range(5):
        res.append(("s_add_u32 m0, s%d, %d\ns_mov_b32 s%d, %d\nbuffer_load_dwordx4 v%d, %s, s%d offen %s lds"
                    % (sXm0, (p % 3) * 20480 + 4096 * k, sTmpO, 28672 * k + 128 * p, vDX, srd(SRD_X), sTmpO, WNT), ("X", p)))
    return res


emit_pieces(dma_x(0) + dma_wq(0) + dma_wq(1))
E("s_lshl_b32 s99, s97, 4\ns_add_u32 s99, s99, s98")
E("s_xor_b32 s100, s96, 1\ns_lshr_b32 s99, s99, s100")
if OPT.get("map") == "l2":
    E("s_and_b32 s99, s2, 7")
E("s_lshl_b32 s99, s99, 19")
E("s_add_u32 s12, s12, s99\ns_addc_u32 s13, s13, 0\ns_mov_b32 s14, 0x80000\ns_mov_b32 s15, 0x20000")
E("s_add_u32 s16, s16, s99\ns_addc_u32 s17, s17, 0\ns_mov_b32 s18, 0x80000\ns_mov_b32 s19, 0x20000")
E("s_mul_i32 s99, s98, %d" % (256 * 896))
E("s_add_u32 s20, s20, s99\ns_addc_u32 s21, s21, 0\ns_mov_b32 s22, %d\ns_mov_b32 s23, 0x20000" % (256 * 896))
if STAMP:
    E("s_lshl_b32 s99, s2, 8\ns_add_u32 s99, s99, 0x4000000\ns_add_u32 s%d, s24, s99\ns_addc_u32 s%d, s25, 0" % (sWSB, sWSB + 1))
E("s_lshl_b32 s99, s96, 3\ns_add_u32 s99, s99, s97\ns_lshl_b32 s99, s99, 4\ns_add_u32 s3, s99, s98")
E("s_lshl_b32 s99, s3, 17")
E("s_add_u32 s24, s24, s99\ns_addc_u32 s25, s25, 0\ns_mov_b32 s26, %d\ns_mov_b32 s27, 0x20000" % SLAB)
E("s_mov_b32 s%d, 0\ns_mov_b32 s%d, 0" % (sOffK, sOffV))
if int(opt("tlb", "0")):
    E("s_cmp_lg_u32 s%d, 2\ns_cbranch_scc1 L_notlb\ns_mov_b64 exec, 1\nv_mov_b32 v%d, 0" % (sW, h0))
    for sr in (SRD_K, SRD_V, SRD_WO, SRD_WS):
        raw("buffer_load_dword a202, v%d, %s, 0 offen" % (h0, srd(sr)))
    raw("global_load_dword a202, v%d, s[56:57]\nglobal_load_dword a202, v%d, s[58:59]" % (h0, h0))
    E("v_mov_b32 v%d, %d" % (h1, FLG + 0x10000))
    raw("global_load_dword a202, v%d, s[60:61]" % h1)
    E("s_mov_b64 exec, -1\nL_notlb:")


def rho(dst, i, t1):
    E("v_lshrrev_b32 v%d, 1, v%d\nv_and_b32 v%d, 3, v%d\nv_lshlrev_b32 v%d, 3, v%d" % (dst, i, dst, dst, dst, dst))
    E("v_lshrrev_b32 v%d, 3, v%d\nv_lshl_add_u32 v%d, v%d, 1, v%d" % (t1, i, dst, t1, dst))
    E("v_and_b32 v%d, 1, v%d\nv_add_u32 v%d, v%d, v%d" % (t1, i, dst, dst, t1))


E("v_lshrrev_b32 v%d, 1, v%d\nv_xor_b32 v%d, v%d, v%d\nv_lshlrev_b32 v%d, 7, v%d" % (h0, hI, h0, h0, hG, h1, hI))
E("v_add_u32 v%d, %d, v%d\ns_lshl_b32 s99, s%d, 13" % (h1, XB, h1, sR))
for par in range(2):
    E("v_xor_b32 v%d, %d, v%d\nv_lshl_add_u32 v%d, v%d, 4, v%d" % (h2, 4 * par, h0, h2, h2, h1))
    E("v_add_u32 v%d, s99, v%d\nv_add_u32 v%d, %d, v%d" % (vXR + par, h2, vXR + 2 + par, 128 * 128, h2))
E("v_lshrrev_b32 v%d, 2, v%d" % (h5, hL))
rho(h4, h5, h0)
E("v_lshlrev_b32 v%d, 9, v%d\nv_and_b32 v%d, 7, v%d\nv_and_b32 v%d, 3, v%d" % (h4, h4, h5, h5, h3, hL))
E("v_lshlrev_b32 v%d, 1, v%d\nv_xor_b32 v%d, v%d, v%d\ns_lshl_b32 s99, s%d, 3\nv_xor_b32 v%d, s99, v%d" % (h0, h5, h0, h0, h3, sR, h0, h0))
E("s_lshl_b32 s99, s%d, 8\nv_add_u32 v%d, s99, v%d" % (sC, h1, h4))
for b in range(4):
    E("v_xor_b32 v%d, %d, v%d\nv_lshl_add_u32 v%d, v%d, 4, v%d\nv_add_u32 v%d, 0x10000, v%d" % (h2, 4 * b, h0, vW + b, h2, h1, vW + 4 + b, vW + b))
emit_pieces(dma_x(1) + dma_wq(2))
E("s_lshl_b32 s99, s%d, 2\nv_xor_b32 v%d, s99, v%d" % (sR, h0, h5))
E("s_mul_i32 s99, s%d, 2304\ns_add_u32 s99, s99, %d\nv_add_u32 v%d, s99, v%d\nv_lshl_add_u32 v%d, v%d, 3, v%d" % (sC, VB, h1, h4, h1, h3, h1))
for b in range(8):
    E("v_xor_b32 v%d, %d, v%d\nv_lshl_add_u32 v%d, v%d, 5, v%d\nv_xor_b32 v%d, 0x800, v%d" % (h2, b, h0, vV + b, h2, h1, vV + 8 + b, vV + b))
rho(h4, hI, h0)
E("v_and_b32 v%d, 7, v%d\nv_lshlrev_b32 v%d, 1, v%d\nv_xor_b32 v%d, v%d, v%d" % (h0, hI, h0, h0, h0, h0, hG))
E("s_lshl_b32 s99, s%d, 11\nv_lshlrev_b32 v%d, 9, v%d\nv_add_u32 v%d, s99, v%d" % (sC, h1, h4, h1, h1))
for b in range(4):
    E("v_xor_b32 v%d, %d, v%d\nv_lshl_add_u32 v%d, v%d, 4, v%d" % (h2, 4 * b, h0, vK + b, h2, h1))
E("s_mul_i32 s99, s%d, 5120\ns_add_u32 s99, s99, %d\nv_lshlrev_b32 v%d, 3, v%d\nv_add_u32 v%d, s99, v%d" % (sW, PX, h0, hL, vPW, h0))
E("s_xor_b32 s99, s%d, 1\ns_mul_i32 s99, s99, 5120\ns_add_u32 s99, s99, %d\nv_add_u32 v%d, s99, v%d" % (sW, PX, vPR, h0))
E("v_lshlrev_b32 v%d, 2, v%d\nv_add_u32 v%d, %d, v%d" % (vMB, hL, vMB, MB, vMB))
emit_pieces(dma_wq(3))
stamp(STAMP == 6)

QAB = 28
QA = lambda T, sd, v: QAB + 32 * T + 4 * (2 * sd + v) if T < 4 else QAB + 128 + 4 * (2 * (sd - 2) + v)
aX = 0
X_ = lambda T, s: aX + 40 * ((s >> 1) & 1) + 20 * (s & 1) + 4 * T


def xreads(p):
    out = []
    for s in (2 * p, 2 * p + 1):
        for T in range(5):
            if T < 4:
                out.append("ds_read_b128 %s, v%d offset:%d" % (ar(X_(T, s)), vXR + (s & 1), (p % 3) * 20480 + T * 2048))
            else:
                out.append("ds_read_b128 %s, v%d offset:%d" % (ar(X_(T, s)), vXR + 2 + (s & 1), (p % 3) * 20480))
    return out


def build_qp(N, k0):
    fr = Frags(k0)
    mf = []
    win, off = wslot(N) >> 16, wslot(N) & 0xffff
    for sd in range(4):
        for v in range(2):
            a = vW + 4 * win + sd
            b = fr.new(mf, rdtr(a, a, off + 8 * v, off + 8 * v + 2048))
            for T in range(5 if sd >= 2 else 4):
                mf.append(dict(text=mfma(vr(QA(T, sd, v)), ar(b), ar(X_(T, N)), "0" if N == 0 else vr(QA(T, sd, v)))))
    return fr, mf


Kp = lambda n, cap=False: dma_kv("K", KB + (n & 3) * SLOT, ("K", n), cap)
Vp = lambda n, cap=False: dma_kv("V", VB + (n & 3) * SLOT, ("V", n), cap)
WOT = int(opt("wot", "99"))
late = {9: Kp(0), 10: Kp(1), 11: Vp(0), 12: Kp(2), 13: Kp(3)}
wplan = {0: [4], 1: [5], 2: [6, 7], 3: [8], 4: [9], 5: [10], 6: [11], 7: [12], 8: [13]}
zero_q = ["v_mov_b32 v%d, 0" % r for r in range(172, 200)] + ["v_mov_b32 v%d, 0" % r for r in range(226, 256)] + \
         ["v_accvgpr_write_b32 a%d, 0" % r for r in range(aO9, aO9 + 32)]
vmwait([("X", 0), ("W", 1)])
E("s_barrier")
stamp(STAMP == 6)
for t in xreads(0):
    E(t)
k = 0
for N in range(14):
    fr, mf = build_qp(N, k)
    n = len(mf)
    if N > 0:
        vmwait([("W", min(N + 1, 13))] + ([("X", (N + 1) // 2)] if (N & 1) and N < 12 else []))
        E("s_barrier")
    rq = fr.items(0 if N == 0 else LEAD, LEAD)
    if N < 13:
        nf, _ = build_qp(N + 1, fr.k)
        for j in range(LEAD):
            e = fr.first[len(fr.fr) - LEAD + j]
            rq.append(Item("\n".join(nf.fr[j][1]), e, e + 3))
    pieces = []
    for W in wplan.get(N, []):
        pieces += dma_wq(W)
    if N == WOT:
        pieces += [("s_lshr_b32 s99, s3, 4\ns_and_b32 s99, s99, 7\ns_lshl_b32 s99, s99, 2", None),
                   ("s_add_u32 s99, s99, s%d\ns_mul_i32 s99, s99, %d\nv_lshlrev_b32 v%d, 7, v%d" % (sW, 56 * 128, h5, hL), None),
                   ("s_mov_b32 exec_hi, 0x00ffffff\nbuffer_load_dword a200, v%d, %s, s99 offen\ns_mov_b32 exec_hi, -1" % (h5, srd(SRD_WO)), "t")]
    pieces += late.get(N, [])
    if N == 0:
        pieces += dma_x(2)
    elif (N & 1) == 0 and N // 2 + 2 < 7:
        pieces += dma_x(N // 2 + 2)
    nd = len([1 for (t, _) in pieces if "buffer_load" in t])
    dq = spread(pieces, 0, max(2.5, min(4.0, (n - 2) / max(1, nd))))
    xq = [Item(t, 0, 24) for t in xreads((N + 1) // 2)] if (N & 1) and N < 12 else []
    zq = [Item(t, 0, BIG) for t in zero_q[9 * (N - 1):9 * N]] if 1 <= N <= 10 else []
    run_phase(mf, [rq, xq, dq, zq], "qp%d" % N)
    k = fr.k
    stamp(STAMP == 6 and (N & 1) and N < 13)
stamp(STAMP in (5, 6))
E("s_barrier")
E("s_mov_b32 s100, %s\ns_mov_b32 s101, %s" % (fbits(CSCALE), fbits(CSCALE)))
E("s_lshl_b32 s99, s%d, 15\ns_lshl_b32 s96, s%d, 12\ns_add_u32 s99, s99, s96\ns_lshl_b32 s97, s%d, 11\ns_add_u32 s99, s99, s97\ns_add_u32 s99, s99, %d"
  % (sR, sC, sR, QS))
E("v_lshlrev_b32 v%d, 4, v%d\nv_add_u32 v%d, s99, v%d\nv_xor_b32 v%d, 0x800, v%d" % (h0, hL, h1, h0, h2, h1))
E("s_xor_b32 s97, s97, 0x800\ns_add_u32 s96, s96, s97\ns_add_u32 s96, s96, %d\nv_add_u32 v%d, s96, v%d" % (QS + 65536, h3, h0))
for T in (4, 0, 1, 2, 3):
    for sd in (range(4) if T < 4 else (2, 3)):
        a = QA(T, sd, 0)
        for j in range(4):
            E("v_pk_mul_f32 %s, %s, s[100:101]" % (vr(a + 2 * j, 2), vr(a + 2 * j, 2)))
        for j in range(4):
            E("v_cvt_pk_bf16_f32 v%d, v%d, v%d" % (a + j, a + 2 * j, a + 2 * j + 1))
        if T < 4:
            E("ds_write_b128 v%d, %s offset:%d" % (h1 if sd < 2 else h2, vr(a), T * 8192 + (sd & 1) * 1024))
        else:
            E("ds_write_b128 v%d, %s offset:%d" % (h3, vr(a), (sd & 1) * 1024))
E("s_lshl_b32 s99, s%d, 15\ns_add_u32 s99, s99, %d\nv_add_u32 v%d, s99, v%d\nv_add_u32 v%d, %d, v%d" % (sR, QS, h1, h0, h2, QS + 65536, h0))
vmwait([("K", 1)])
E("s_waitcnt lgkmcnt(0)")
E("s_barrier")
qreads = []
for s in range(8):
    for T in range(5):
        qreads.append("ds_read_b128 %s, v%d offset:%d" % (ar(Q_(T, s)), h1 if T < 4 else h2, (T * 8192 if T < 4 else 0) + s * 1024))
init = ["v_mov_b32 v%d, 0" % r for r in range(vNegM, vNegM + 20)] + ["v_mov_b32 v%d, 0" % r for r in range(vL, vL + 5)]
for j in range(0, 40):
    E(qreads[j])
    if j < len(init):
        E(init[j])
E("s_mov_b64 vcc, -1\ns_mov_b32 s%d, 0xff800000\ns_mov_b32 s%d, 1" % (sFloor, sFirst))
E("s_memrealtime s[%d:%d]" % (sClk, sClk + 1))
E("s_waitcnt lgkmcnt(0)")
E("s_barrier")
emit_pieces(Vp(1))
stamp()
late_zero = ["v_mov_b32 v%d, 0" % r for r in list(range(128, 172)) + list(range(200, 226))]
E("s_cmp_eq_u32 s%d, 1\ns_cbranch_scc1 L_att1" % sR)

OBUF = [VB, KB, KB + 32768, VB + 32768]
OLDS = lambda q: OBUF[(q >> 1) & 3] + (q & 1) * SLOT
vDWO = vSc


def dma_wo(q):
    sg, a = q >> 1, q & 1
    res = []
    for m in range(4):
        t = "s_add_u32 m0, s%d, %d\n" % (sW4K, OLDS(q)) if m == 0 else ""
        res.append((t + "s_mov_b32 s%d, %d\nbuffer_load_dwordx4 v%d, %s, s%d offen offset:%d %s lds"
                    % (sTmpO, a * 114688 + m * 6144 + 128 * sg, vDWO, srd(SRD_WO), sTmpO, m * 1024, opt("ont", "nt")), ("O", q)))
    return res


OFo = lambda T, kk: 64 + 16 * T + 4 * kk
OFp = lambda T, kk: 0 + 16 * T + 4 * kk
aOF9 = 64
aHOLD = 96
TB = list(range(40, 56))
vST, vST9, wA, wB, rA, rB = 4, 5, 6, 7, 1, 2
vRI = vL
acc_ = lambda sg, T: (8, 16, 56, 32)[T] if sg == 0 else 128 + 32 * ((sg - 1) % 3) + 8 * T
acc9 = lambda sg: 224 + 4 * (sg % 4)
v9st = 240
O9S, LX, O9P = PX, PX + 16384, 155648


def tail_setup():
    t = ["v_mbcnt_lo_u32_b32 v0, -1, 0\nv_mbcnt_hi_u32_b32 v0, -1, v0",
         "s_load_dwordx2 s[12:13], s[0:1], 88\ns_load_dwordx2 s[14:15], s[0:1], 96" if False else "s_nop 0",
         "v_lshrrev_b32 v3, 2, v0\nv_lshlrev_b32 v3, 7, v3", "v_and_b32 v30, 3, v0\nv_lshl_add_u32 v3, v30, 3, v3",
         "s_lshl_b32 s99, s%d, 1\ns_xor_b32 s99, s99, s%d\nv_bfe_u32 v30, v0, 3, 2" % (sC, sR), "v_xor_b32 v30, s99, v30",
         "v_lshl_add_u32 v30, v30, 5, v3\nv_xor_b32 v31, 32, v30"]
    for kk in range(4):
        t.append("s_lshl_b32 s98, s%d, 1\ns_xor_b32 s98, s98, %d\ns_lshl_b32 s98, s98, 12" % (sR, kk))
        t.append("s_lshl_b32 s99, s%d, 14\ns_add_u32 s99, s99, s98\ns_add_u32 s99, s99, %d" % (sC, VB))
        for nt in range(2):
            t.append("v_add_u32 v%d, s99, v%d\nv_xor_b32 v%d, 0x4000, v%d" % (TB[2 * kk + nt], 30 + nt, TB[8 + 2 * kk + nt], TB[2 * kk + nt]))
    for T in range(5):
        t.append("v_mov_b32 v30, v%d\nv_mov_b32 v31, v%d" % (vL + T, vL + T))
        t.append("s_nop 0\nv_permlane32_swap_b32 v30, v31")
        t.append("v_add_f32 v30, v30, v31\nv_mov_b32 v31, v30")
        t.append("s_nop 0\nv_permlane16_swap_b32 v30, v31")
        t.append("v_add_f32 v%d, v30, v31" % (vL + T))
    t.append("v_and_b32 v3, 15, v0\nv_lshlrev_b32 v3, 2, v3")
    t.append("s_mul_i32 s99, s%d, 320\ns_add_u32 s99, s99, %d\nv_add_u32 v30, s99, v3" % (sW, LX))
    t += ["ds_write_b32 v30, v%d offset:%d" % (vL + T, 64 * T) for T in range(5)]
    t.append("v_lshlrev_b32 v0, 4, v0")
    t.append("s_lshl_b32 s99, s%d, 16\ns_lshl_b32 s98, s%d, 12\ns_add_u32 s99, s99, s98" % (sR, sC))
    t.append("s_lshl_b32 s98, s%d, 11\ns_add_u32 s99, s99, s98\ns_add_u32 s99, s99, 32768" % sR)
    t.append("v_add_u32 v%d, s99, v0\nv_xor_b32 v%d, 0x800, v%d" % (wA, wB, wA))
    t.append("v_xor_b32 v%d, 0x1000, v%d\nv_xor_b32 v%d, 0x1000, v%d" % (rA, wA, rB, wB))
    t.append("s_lshl_b32 s99, s%d, 13\ns_lshl_b32 s98, s%d, 10\ns_add_u32 s99, s99, s98" % (sR, sC))
    t.append("v_add_u32 v%d, s99, v0" % vST)
    t.append("s_lshl_b32 s99, s%d, 10\nv_add_u32 v%d, s99, v0" % (sW, vST9))
    return t


saved = (list(P.dsq), list(P.vmq), nstamp[0])
for r in range(2):
    P.dsq, P.vmq = list(saved[0]), list(saved[1])
    nstamp[0] = saved[2]
    if r == 1:
        E("L_att1:")
    fr, mf = Frags(0), []
    qk_part(0, r, fr, mf)
    run_phase(mf, [fr.items(0, LEAD), [Item(t, 0, BIG) for t in late_zero]], "qk0")
    stamp(STAMP == 9)
    sc = P_base[0]
    tl = tiles_of(0, r)
    for T in tl:
        s0 = S_(0, T)
        E("v_max3_f32 v%d, v%d, v%d, v%d\nv_max_f32 v%d, v%d, v%d" % (sc + T, s0, s0 + 1, s0 + 2, sc + T, sc + T, s0 + 3))
    for sw in ("v_permlane32_swap_b32", "v_permlane16_swap_b32"):
        for T in tl:
            E("v_mov_b32 v%d, v%d" % (sc + 8 + T, sc + T))
        for T in tl:
            E("%s v%d, v%d" % (sw, sc + T, sc + 8 + T))
        for T in tl:
            E("v_max_f32 v%d, v%d, v%d" % (sc + T, sc + T, sc + 8 + T))
    E("s_mul_i32 s99, s%d, 1280\nv_add_u32 v%d, s99, v%d" % (sW, sc + 5, vMB))
    for T in tl:
        E("ds_write_b32 v%d, v%d offset:%d" % (sc + 5, sc + T, 256 * T))
    E("s_xor_b32 s99, s%d, 1\ns_mul_i32 s99, s99, 1280\nv_add_u32 v%d, s99, v%d" % (sW, sc + 5, vMB))
    E("s_waitcnt lgkmcnt(0)\ns_barrier")
    for T in range(4):
        E("ds_read_b32 v%d, v%d offset:%d" % (sc + 8 + T, sc + 5, 256 * T))
    for w_ in range(2):
        E("ds_read_b32 v%d, v%d offset:%d" % (sc + 12 + w_, vMB, 1280 * w_ + 1024))
    E("s_cmp_eq_u32 s%d, 0\ns_cselect_b64 vcc, 0, -1\ns_mov_b32 s%d, 0\ns_mov_b32 s%d, 0" % (sPara, sFloor, sFirst))
    emit_pieces(Kp(4))
    for T in (split_tiles(0, r)[0] + split_tiles(0, r)[1] + ([] if 4 in tl else [4])):
        if T < 4:
            E("v_max_f32 v%d, v%d, v%d" % (sc + T, sc + T, sc + 8 + T))
        else:
            E("v_max_f32 v%d, v%d, v%d" % (sc + 4, sc + 12, sc + 13))
        for j in range(4):
            E("v_sub_f32 v%d, 0, v%d" % (vNegM + 4 * T + j, sc + T))
        if T in tl:
            for j in range(4):
                E("v_sub_f32 v%d, v%d, v%d" % (S_(0, T) + j, S_(0, T) + j, sc + T))
    stamp(STAMP == 9)
    stamp(STAMP == 9)
    if STAMP == 1:
        E("s_memtime s[88:89]\ns_memrealtime s[84:85]\ns_waitcnt lgkmcnt(0)")
    tbank[0] = 0
    for it in softmax_items(0, split_tiles(0, r)[0], -1, BIG):
        it.emit()
    E("s_mov_b32 s%d, 0" % sLoop)
    drain_writes()
    k = 8
    for t in qk_pref(1, r, k):
        E("\n".join(t))
    tbank[0] = 0
    if STAMP == 9:
        stamp()
        for n in range(4):
            for t in (qk_pref(1, r, k) if n == 0 else []):
                E("\n".join(t))
            k = step(n, r, k, Vp(n + 2, True), Kp(n + 5, True), 16, qk_pref(n + 2, r, k + 16))
            raw("s_memrealtime s[%d:%d]" % (sStamp + 2 * nstamp[0], sStamp + 2 * nstamp[0] + 1))
            nstamp[0] += 1
        E("s_waitcnt lgkmcnt(0)")
        for t in qk_pref(1, r, k):
            E("\n".join(t))
        E("s_mov_b32 s%d, 1" % sLoop)
    entry = [set(d) for (_, d) in P.dsq]
    E("L_loop%d:" % r)
    for n in range(4):
        k = step(n, r, k, Vp(n + 2, True), Kp(n + 5, True), 16, qk_pref(n + 2, r, k + 16))
    now = [set(d) for (_, d) in P.dsq if d]
    assert now == entry, (now, entry)
    drain_writes()
    if STAMP == 7:
        raw("s_memrealtime s[80:81]\ns_memtime s[82:83]\ns_waitcnt lgkmcnt(0)\ns_lshl_b64 exec, 1, s%d\n"
            "v_accvgpr_write_b32 a199, s80\nv_accvgpr_write_b32 a198, s82\ns_mov_b64 exec, -1" % sLoop)
    E("s_add_u32 s%d, s%d, 1\ns_cmp_lt_u32 s%d, 6\ns_cbranch_scc1 L_loop%d" % (sLoop, sLoop, sLoop, r))
    if STAMP == 1:
        raw("s_memtime s[90:91]\ns_memrealtime s[86:87]")
        E("s_waitcnt lgkmcnt(0)")
    for n in range(24, 31):
        pre = Vp(n + 2, True) if n + 2 < 32 else []
        post = Kp(n + 5, True) if n + 5 < 32 else []
        if n >= 27:
            post = dma_wo({27: 2, 28: 3, 29: 0, 30: 1}[n])
        if n == int(opt("wot2", "30")):
            post = post + [("s_lshr_b32 s99, s3, 4\ns_and_b32 s99, s99, 7\ns_lshl_b32 s99, s99, 2", None),
                           ("s_add_u32 s99, s99, s%d\ns_mul_i32 s99, s99, %d\nv_subrev_u32 v%d, %d, v%d" % (sW, 56 * 128, vDKV, MB, vMB), None),
                           ("v_lshlrev_b32 v%d, 5, v%d" % (vDKV, vDKV), None),
                           ("s_mov_b32 exec_hi, 0x00ffffff\nbuffer_load_dword a200, v%d, %s, s99 offen %s\ns_mov_b32 exec_hi, -1"
                            % (vDKV, srd(SRD_WO), opt("tnt", "")), "t")]
        vm = 16 if n < 26 else [("K", min(n + 2, 31)), ("V", n if n < 30 else 31)]
        pref = qk_pref(n + 2, r, k + 16) if n < 30 else pv_pref(31, r, k + 16)
        if n == 27:
            t0 = vTmp
            E("v_mbcnt_lo_u32_b32 v%d, -1, 0\nv_mbcnt_hi_u32_b32 v%d, -1, v%d" % (t0, t0, t0))
            E("v_lshrrev_b32 v%d, 4, v%d\nv_lshlrev_b32 v%d, 1, v%d\nv_xor_b32 v%d, v%d, v%d\nv_and_b32 v%d, 7, v%d\nv_lshlrev_b32 v%d, 4, v%d"
              % (vSc, t0, vSc, vSc, vSc, vSc, t0, vSc, vSc, vSc, vSc))
            E("v_lshrrev_b32 v%d, 3, v%d\nv_mul_u32_u24 v%d, 896, v%d\nv_add_u32 v%d, v%d, v%d\ns_mul_i32 s99, s%d, %d\nv_add_u32 v%d, s99, v%d"
              % (t0, t0, t0, t0, vSc, vSc, t0, sW, 32 * 896, vSc, vSc))
        k = step(n, r, k, pre, post, vm, pref, all_next=(n == 30))
    drain_writes()
    E("s_barrier")
    for t in partner_reads(31, r):
        E(t)
    fr, mf = Frags(k), []
    pv_part(31, r, fr, mf)
    run_phase(mf, [fr.items(LEAD, LEAD), [Item(t, 2, BIG) for t in tail_setup()]], "pv31")
    if r == 0:
        E("s_branch L_oproj")
E("L_oproj:")
stamp()
vmwait([("O", 1)])
E("s_waitcnt lgkmcnt(0)")
E("s_barrier")


def hold_of(sg, a_, kk):
    return aHOLD + 32 * sg + 4 * (4 * a_ + kk)


def stage_part(sg, a_, fr, mf, kfirst, prev_buf):
    buf = OBUF[sg & 3]
    dwin = ((buf & ~0xffff) - (prev_buf & ~0xffff)) & 0xffffffff
    off = buf & 0xffff
    for kk in range(4):
        for nt in range(2):
            rg = TB[8 * a_ + 2 * kk + nt]
            hold = hold_of(sg, a_, kk) if (sg < 2 and nt == 1) else None
            pre_ = ["v_add_u32 v%d, 0x%x, v%d" % (rg, dwin, rg)] if dwin else []
            bb = fr.new(mf, (lambda p_, f_: (lambda b: p_ + f_(b)))(pre_, rdtr(rg, rg, off, off + 2048)), hold)
            kfirst.setdefault((sg, a_, kk), len(mf))
            z = (a_ == 0 and kk == 0)
            for T in range(4):
                d = acc_(sg, T) + 4 * nt
                mf.append(dict(text=mfma(vr(d), ar(bb), vr(OFo(T, kk)) if a_ == 0 else ar(OFp(T, kk)), "0" if z else vr(d))))
            if nt == 1 and sg >= 2:
                j = 4 * a_ + kk
                mf.append(dict(text=mfma(vr(acc9(sg)), ar(bb), ar(aOF9 + 4 * j), "0" if z else vr(acc9(sg)))))
                if sg == 2:
                    for s9 in range(2):
                        mf.append(dict(text=mfma(vr(acc9(s9)), ar(hold_of(s9, a_, kk)), ar(aOF9 + 4 * j), "0" if j == 0 else vr(acc9(s9)))))


def build_stage(sg, k0):
    fr, mf, kfirst = Frags(k0), [], {}
    if sg == 0:
        for (s_, a_) in ((0, 0), (1, 0), (0, 1), (1, 1)):
            stage_part(s_, a_, fr, mf, kfirst, OBUF[0])
    else:
        for a_ in range(2):
            stage_part(sg, a_, fr, mf, kfirst, OBUF[(sg - 1) & 3])
    return fr, mf, kfirst


def conv_items(kk, e, d):
    return [Item("v_cvt_pk_bf16_f32 v%d, v%d, v%d" % (OFo(T, kk) + j, O_(T, 2 * kk) + 2 * j, O_(T, 2 * kk) + 2 * j + 1), e, d)
            for T in range(4) for j in range(4)]


def out_items(sg, e0, step_, nine):
    its = []
    for T in range(4):
        e = e0 + T * step_
        a0 = acc_(sg, T)
        for j in range(8):
            its.append(Item("v_mul_f32 v%d, v%d, v%d" % (a0 + j, vRI + T, a0 + j), e, BIG))
        for j in range(4):
            its.append(Item("v_cvt_pk_bf16_f32 v%d, v%d, v%d" % (a0 + j, a0 + 2 * j, a0 + 2 * j + 1), e, BIG))
        its.append(Item("s_mov_b32 s%d, %d\nbuffer_store_dwordx4 %s, v%d, %s, s%d offen offset:%d %s"
                        % (sT1, sg * 16384 + (T >> 1) * 4096, vr(a0), vST, srd(SRD_WS), sT1, (T & 1) * 2048, STP), e, BIG, ("st", sg)))
    e = e0 + 4 * step_
    for s9 in nine:
        a0, d = acc9(s9), v9st + 2 * (s9 & 1)
        for j in range(4):
            its.append(Item("v_mul_f32 v%d, v%d, v%d" % (a0 + j, vRI + 4, a0 + j), e, BIG))
        its.append(Item("v_cvt_pk_bf16_f32 v%d, v%d, v%d\nv_cvt_pk_bf16_f32 v%d, v%d, v%d" % (d, a0, a0 + 1, d + 1, a0 + 2, a0 + 3), e, BIG))
        if s9 == 6:
            its.append(Item("v_mov_b32 v%d, 0\nv_mov_b32 v%d, 0" % (v9st + 2, v9st + 3), e, BIG))
        if (s9 & 1) or s9 == 6:
            its.append(Item("s_mov_b32 s%d, %d\nbuffer_store_dwordx4 %s, v%d, %s, s%d offen %s"
                            % (sT1, 114688 + 4096 * (s9 >> 1), vr(v9st), vST9, srd(SRD_WS), sT1, STP), e, BIG, ("st", sg)))
    return its


npub = [0]


def publish(parts):
    k_ = npub[0]
    npub[0] += 1
    E("s_cmp_lg_u32 s%d, 0\ns_cbranch_scc1 L_nopub%d" % (sW, k_))
    raw("s_memrealtime s[96:97]")
    E("s_mov_b64 exec, 1\ns_and_b32 s99, s3, 15\ns_lshl_b32 s99, s99, 3\nv_mov_b32 v1, s99")
    raw("s_waitcnt lgkmcnt(0)")
    E("v_mov_b32 v2, s96\nv_mov_b32 v3, s97")
    for p_ in parts:
        raw("global_store_dwordx2 v1, v[2:3], s[14:15] offset:%d sc1" % (256 * p_))
    E("s_mov_b64 exec, -1")
    E("L_nopub%d:" % k_)


fr0 = build_stage(0, 0)[0]
for f in range(LEAD):
    E("\n".join(fr0.fr[f][1]))
for it in conv_items(0, -1, BIG):
    it.emit()
k = 0
issue_plan = {2: [6, 7, 8, 9], 3: [10, 11], 4: [12, 13]}
for sg in (0, 2, 3, 4, 5, 6):
    fr, mf, kfirst = build_stage(sg, k)
    N = len(mf)
    stamp(STAMP == 5)
    bpos = N - EARLY
    rq = fr.items(LEAD, LEAD)
    nxt = 2 if sg == 0 else sg + 1
    pieces = []
    for q in issue_plan.get(sg, []):
        pieces += dma_wo(q)
    dq = spread(pieces, 0, 3)
    if sg < 6:
        nf = build_stage(nxt, fr.k)[0]
        for it in rq:
            it.d = min(it.d, bpos - 3)
            it.e = min(it.e, it.d)
        for j in range(LEAD):
            rq.append(Item("\n".join(nf.fr[j][1]), bpos, bpos + 2 + 2 * j))

    def stage_barrier(sg=sg, fr=fr, nxt=nxt):
        P.wait_ds_regs(rset("a", fr.fr[-1][0]))
        drain_writes()
        pub = {3: [0, 1], 4: [2], 5: [3]}.get(sg, [])
        vmwait([("O", 2 * nxt + 1)] + [("st", p_) for p_ in pub])
        E("s_barrier")
        if pub:
            publish(pub)
    if sg < 6:
        mf[bpos]["pre"] = [stage_barrier]
    cq, xq, wq_ = [], [], []
    if sg == 0:
        M = kfirst[(0, 1, 0)] - 8
        M2 = M + 18
        wq_.append(Item("v_add_u32 v31, s%d, v0\nv_add_u32 v31, %d, v31" % (sW4K, O9S), -1, M - 1))
        wq_ += [Item("ds_write_b128 v31, %s offset:%d" % (ar(aO9 + 4 * b_), 1024 * b_), -1, M - 1) for b_ in range(4)]
        for kk in range(4):
            if kk:
                cq += conv_items(kk, -1, kfirst[(0, 0, kk)] - 2)
            wq_ += [Item("ds_write_b128 v%d, %s offset:%d" % (wA + (kk >> 1), vr(OFo(T, kk)), T * 8192 + (kk & 1) * 1024),
                         kfirst[(0, 0, kk)] - 1 if kk else -1, M - 1) for T in range(4)]

        def mid_barrier():
            drain_writes()
            E("s_barrier")

        def mid2_barrier():
            P.wait_ds_regs(rset("a", OFp(3, 3)))
            E("s_barrier")
        mf[M]["pre"] = [mid_barrier]
        mf[M2]["pre"] = [mid2_barrier]
        j = 0
        for kk in range(4):
            for T in range(4):
                wq_.append(Item("ds_read_b128 %s, v%d offset:%d" % (ar(OFp(T, kk)), rA + (kk >> 1), T * 8192 + (kk & 1) * 1024),
                                M, M + j // 2 + (2 if kk else 0)))
                j += 1
        dq = spread(dma_wo(4) + dma_wo(5), M2, 3)
        lq = ["s_xor_b32 s99, s%d, 1\ns_mul_i32 s99, s99, 320\ns_add_u32 s99, s99, %d\nv_add_u32 v30, s99, v3\nv_add_u32 v3, %d, v3" % (sW, LX, LX + 256)]
        lq += ["ds_read_b32 v%d, v30 offset:%d" % (244 + T, 64 * T) for T in range(4)]
        lq += ["ds_read_b32 v%d, v3 offset:%d" % (248 + w_, 320 * w_) for w_ in range(4)]
        lq += ["v_add_f32 v%d, v%d, v%d" % (vL + T, vL + T, 244 + T) for T in range(4)]
        lq += ["v_add_f32 v248, v248, v249\nv_add_f32 v250, v250, v251", "v_add_f32 v%d, v248, v250" % (vL + 4),
               "v_add_f32 v244, v%d, v%d\nv_add_f32 v245, v%d, v%d" % (vL, vL + 1, vL + 2, vL + 3),
               "v_add_f32 v244, v244, v245\nv_add_f32 v244, v244, v%d" % (vL + 4),
               "s_mov_b32 s99, %s\nv_cmp_nge_f32 vcc, s99, v244" % fbits(LTHR),
               "s_lshl_b32 s98, s%d, 2\ns_add_u32 s98, s98, %d\nv_mov_b32 v245, s98" % (sW, LX + 2048),
               "s_cmp_lg_u64 vcc, 0\ns_cselect_b32 s99, 1, 0\nv_mov_b32 v244, s99",
               "ds_write_b32 v245, v244"]
        xq = [Item(t, kfirst[(1, 0, 0)], M - 1) for t in lq]
        xq += [Item("v_rcp_f32 v%d, v%d" % (vRI + T, vL + T), kfirst[(1, 0, 0)], BIG) for T in range(5)]
        t9 = ["s_xor_b32 s99, s%d, 0x2000\ns_add_u32 s99, s99, %d\nv_add_u32 v31, s99, v0" % (sW4K, O9S)]
        t9 += ["ds_read_b128 %s, v31 offset:%d" % (vr(176 + 4 * b_), 1024 * b_) for b_ in range(4)]
        t9 += ["v_mov_b32 v30, %d\nds_read_b128 v[244:247], v30" % (LX + 2048)]
        t9 += ["v_accvgpr_read_b32 v%d, a%d" % (160 + j, aO9 + 16 + j) for j in range(16)]
        t9 += ["v_or3_b32 v244, v244, v245, v246\nv_or_b32 v244, v244, v247", "s_nop 0\nv_readfirstlane_b32 s99, v244",
               "s_nop 1\ns_andn2_b32 s99, s99, s%d\ns_cbranch_scc1 L_restart" % sPara]
        t9 += ["v_add_f32 v%d, v%d, v%d" % (160 + j, 160 + j, 176 + j) for j in range(16)]
        t9 += ["v_cvt_pk_bf16_f32 v%d, v%d, v%d" % (160 + j, 160 + 2 * j, 161 + 2 * j) for j in range(8)]
        t9 += ["s_lshl_b32 s99, s%d, 12\ns_xor_b32 s98, s%d, 1\ns_lshl_b32 s98, s98, 11" % (sC, sR),
               "s_add_u32 s99, s99, s98\ns_add_u32 s99, s99, %d\nv_add_u32 v31, s99, v0" % O9P]
        t9 += ["ds_write_b128 v31, %s offset:%d" % (vr(160 + 4 * j), 1024 * j) for j in range(2)]
        xq += [Item(t, M + 8, bpos - 1) for t in t9]
        for a_ in range(2):
            for kh in range(2):
                xq.append(Item("s_xor_b32 s99, s%d, %d\ns_lshl_b32 s99, s99, 12\ns_xor_b32 s98, s%d, %d" % (sC, a_, sR, kh), bpos, BIG))
                xq.append(Item("s_lshl_b32 s98, s98, 11\ns_add_u32 s99, s99, s98\ns_add_u32 s99, s99, %d" % O9P, bpos, BIG))
                xq.append(Item("v_add_u32 v31, s99, v0\nds_read_b128 %s, v31" % ar(aOF9 + 16 * a_ + 8 * kh), bpos, BIG))
                xq.append(Item("ds_read_b128 %s, v31 offset:1024" % ar(aOF9 + 16 * a_ + 8 * kh + 4), bpos, BIG))
        cq += out_items(0, kfirst[(1, 1, 0)] + 5, 5, [])
    elif sg == 2:
        cq = out_items(1, 5, 14, [])
        xq = [Item("s_load_dwordx2 s[12:13], s[0:1], 88\ns_load_dwordx2 s[14:15], s[0:1], 96\ns_waitcnt lgkmcnt(0)", 30, 30),
              Item("s_lshr_b32 s99, s3, 4\ns_lshl_b32 s99, s99, 11\ns_add_u32 s99, s99, %d" % FLG, 31, 40),
              Item("s_add_u32 s14, s14, s99\ns_addc_u32 s15, s15, 0", 31, 40)]
    else:
        cq = out_items(sg - 1, 5, 11, [0, 1, 2] if sg == 3 else [sg - 1])
    if sg == 6:
        xq = [Item("s_and_b32 s36, s3, 15\ns_lshr_b32 s99, s36, 2\ns_lshl_b32 s99, s99, 8", 40, 50),
              Item("v_bfe_u32 v30, v0, 4, 4\nv_lshlrev_b32 v30, 3, v30", 40, 50), Item("v_add_u32 v31, s99, v30", 40, 50),
              Item("global_load_dwordx2 v[32:33], v31, s[14:15] sc1", 60, 62, "poll")]
    run_phase(mf, [rq, dq, cq, wq_, xq], "st%d" % sg)
    k = fr.k
for it in out_items(6, 0, 0, [6]):
    it.emit()
vmwait([("st", 4)])
E("s_barrier")
publish([4])
stamp()

E("s_load_dwordx2 s[4:5], s[0:1], 96\ns_load_dwordx2 s[8:9], s[0:1], 80")
E("v_lshrrev_b32 v2, 4, v0\nv_and_b32 v4, 15, v2\nv_lshrrev_b32 v5, 4, v2")
E("v_lshlrev_b32 v16, 17, v5\nv_lshl_add_u32 v16, v4, 4, v16")
E("v_mul_u32_u24 v17, 1792, v4\nv_lshrrev_b32 v6, 1, v5\nv_lshl_add_u32 v17, v6, 3, v17\nv_and_b32 v19, 1, v5")
E("v_lshl_add_u32 v14, v19, 7, v17\nv_lshl_add_u32 v17, v19, 5, v17\nv_lshlrev_b32 v19, 30, v19")
E("v_and_b32 v6, 1, v4\nv_lshlrev_b32 v6, 4, v6\nv_mov_b32 v7, 0x3f80\nv_lshlrev_b32 v7, v6, v7\nv_lshrrev_b32 v6, 1, v4")
for r_ in range(4):
    E("v_cmp_eq_u32 vcc, %d, v6\nv_cndmask_b32 v%d, 0, v7, vcc" % (r_, 40 + r_))
    E("v_cmp_eq_u32 vcc, %d, v6\nv_cndmask_b32 v%d, 0, v7, vcc" % (4 + r_, 44 + r_))
E("s_lshr_b32 s35, s3, 4\nv_mov_b32 v18, s%d" % (sClk + 1))
E("s_waitcnt lgkmcnt(0)")
E("s_lshl_b32 s99, s35, 21\ns_add_u32 s4, s4, s99\ns_addc_u32 s5, s5, 0\ns_mov_b32 s6, %d\ns_mov_b32 s7, 0x20000" % (16 * SLAB))
E("s_mov_b32 s10, %d\ns_mov_b32 s11, 0x20000" % (8 * 144 * 896 * 2))
E("s_and_b32 s16, s35, 7\ns_mul_i32 s16, s16, %d\ns_lshr_b32 s17, s35, 3\ns_mul_i32 s17, s17, 896\ns_add_u32 s16, s16, s17" % (144 * 1792))
E("s_lshl_b32 s17, s35, 4\nv_mov_b32 v8, s17")
E("s_lshl_b32 s19, s36, 2\ns_add_u32 s19, s19, s%d" % sW)
E("s_mov_b32 s21, 0\ns_mov_b32 s22, 0\ns_mov_b64 s[46:47], 0")
LIM = 2000
UD = [64, 176]


def uloads(u):
    E("s_lshl_b32 s20, s19, 10\ns_add_u32 s20, s20, %d" % (65536 * u))
    for p_ in range(4):
        for pc in range(4):
            E("buffer_load_dwordx4 %s, v16, s[4:7], s20 offen offset:%d %s" % (vr(UD[u] + 16 * p_ + 4 * pc), 256 * pc, LDP))
        if p_ < 3:
            E("s_add_u32 s20, s20, %d" % (4 * SLAB))


def flags_ok():
    E("v_subrev_co_u32 v32, vcc, s%d, v32\nv_subb_co_u32 v33, vcc, v33, v18, vcc\nv_cmp_eq_u32 vcc, 0, v33" % sClk)
    E("s_cmp_eq_u64 vcc, -1")


def spin(name, ok):
    E("L_%s:" % name)
    E("global_load_dwordx2 v[32:33], v31, s[14:15] sc1\ns_waitcnt vmcnt(0)")
    flags_ok()
    E("s_cbranch_scc1 %s" % ok)
    E("s_add_u32 s21, s21, 1\ns_cmp_lt_u32 s21, %d\ns_cbranch_scc1 L_%s\ns_branch L_slow" % (LIM, name))


vmwait(["poll"])
flags_ok()
E("s_cselect_b32 s23, 1, 0\ns_cbranch_scc0 L_late1")
uloads(0)
raw("s_waitcnt vmcnt(16)\ns_branch L_drained")
E("L_late1:")
E("s_waitcnt vmcnt(0)")
E("L_drained:")
stamp()
E("s_barrier")
publish([5, 6])
E("s_cmp_lg_u32 s%d, 0\ns_cbranch_scc1 L_noadd\ns_mov_b64 exec, 1\nv_mov_b32 v9, 1" % sW)
E("global_atomic_add v34, v8, v9, s[12:13] sc0")
E("s_mov_b64 exec, -1\nL_noadd:")
E("s_cmp_eq_u32 s23, 1\ns_cbranch_scc1 L_have1")
spin("spin1", "L_got1")
E("L_got1:")
uloads(0)
E("L_have1:")
stamp()
E("s_lshr_b32 s99, s36, 2\ns_add_u32 s99, s99, 4\ns_lshl_b32 s98, s36, 1\ns_sub_u32 s98, s98, 23\ns_min_u32 s98, s98, 6\ns_max_u32 s98, s98, 2\ns_cmp_ge_u32 s36, 12\ns_cselect_b32 s99, s98, s99")
E("s_lshl_b32 s99, s99, 8\nv_add_u32 v31, s99, v30")
spin("spin2", "L_second")
E("L_slow:")
E("s_mov_b32 s21, 0")
E("L_spin3:")
E("global_load_dword v32, v8, s[12:13] sc1\ns_waitcnt vmcnt(0)\nv_readfirstlane_b32 s99, v32")
E("s_cmp_eq_u32 s99, 16\ns_cbranch_scc1 L_both")
E("s_add_u32 s21, s21, 1\ns_cmp_lt_u32 s21, %d\ns_cbranch_scc1 L_spin3" % LIM)
E("s_lshl_b64 s[98:99], 1, s19\ns_mov_b64 exec, 1\nv_mov_b32 v32, s98\nv_mov_b32 v33, s99")
E("global_atomic_or_x2 v8, v[32:33], s[12:13] offset:8\ns_waitcnt vmcnt(0)\ns_mov_b64 exec, -1")
E("global_load_dword v32, v8, s[12:13] sc1\ns_waitcnt vmcnt(0)\nv_readfirstlane_b32 s99, v32")
E("s_cmp_eq_u32 s99, 16\ns_cbranch_scc0 L_next")
E("L_both:")
P.vmq = []
uloads(0)
E("L_second:")
stamp()
uloads(1)
for u in range(2):
    E("s_add_u32 s21, s19, %d" % (64 * u))
    if u == 1:
        E("s_cmp_ge_u32 s21, 112\ns_cbranch_scc1 L_t9")
    E("s_lshr_b32 s20, s21, 4\ns_lshl_b32 s20, s20, 7\ns_add_u32 s20, s20, s16")
    E("s_bfe_u32 s99, s21, 0x30001\ns_mul_i32 s99, s99, %d\ns_add_u32 s20, s20, s99" % (16 * 1792))
    E("s_and_b32 s99, s21, 1\ns_lshl_b32 s99, s99, 6\ns_add_u32 s%d, s20, s99" % (50 + u))
    E("s_bfe_u32 s99, s21, 0x10003\ns_lshl_b32 s99, s99, 5")
    E("v_xor_b32 v%d, s99, v17" % (12 + u))
E("s_branch L_sum")
E("L_t9:")
E("s_bfe_u32 s20, s21, 0x20002\ns_and_b32 s99, s21, 1\ns_lshl_b32 s99, s99, 1\ns_bfe_u32 s98, s21, 0x10001\ns_xor_b32 s98, s98, 1\ns_add_u32 s99, s99, s98\ns_lshl_b32 s99, s99, 5")
E("s_lshl_b32 s51, s20, 8\ns_add_u32 s51, s51, s99\ns_add_u32 s51, s51, s16\ns_add_u32 s51, s51, %d" % (128 * 1792))
E("v_mov_b32 v13, v14\ns_cmp_eq_u32 s20, 3\ns_cbranch_scc0 L_sum\nv_add_u32 v13, v19, v14")
E("L_sum:")
for u in range(2):
    for p_ in range(4):
        for pc in range(4):
            d = 48 + 8 * u + 4 * (pc >> 1)
            E(mfma(vr(d), vr(40 if (pc & 1) == 0 else 44), vr(UD[u] + 16 * p_ + 4 * pc), "0" if (p_ == 0 and (pc & 1) == 0) else vr(d)))
for u in range(2):
    for k_ in range(2):
        d = 48 + 8 * u + 4 * k_
        E("v_cvt_pk_bf16_f32 v%d, v%d, v%d\nv_cvt_pk_bf16_f32 v%d, v%d, v%d" % (d, d, d + 1, d + 1, d + 2, d + 3))
        E("buffer_store_dwordx2 v[%d:%d], v%d, s[8:11], s%d offen offset:%d" % (d, d + 1, 12 + u, 50 + u, 16 * k_))
E("L_next:")
E("s_cmp_lg_u32 s%d, 0\ns_cbranch_scc1 L_done" % sW)
E("s_cmp_lg_u32 s22, 0\ns_cbranch_scc1 L_more")
E("s_mov_b32 s22, 1\nv_readfirstlane_b32 s99, v34\ns_cmp_eq_u32 s99, 15\ns_cbranch_scc0 L_done")
E("global_load_dwordx2 v[32:33], v8, s[12:13] offset:8 sc1\ns_waitcnt vmcnt(0)\nv_readfirstlane_b32 s46, v32\nv_readfirstlane_b32 s47, v33")
E("L_more:")
E("s_cmp_eq_u64 s[46:47], 0\ns_cbranch_scc1 L_done")
E("s_ff1_i32_b64 s19, s[46:47]\ns_bitset0_b64 s[46:47], s19\ns_branch L_both")
E("L_done:")
if STAMP:
    E("s_waitcnt vmcnt(0)")
    stamp()
    if STAMP == 1:
        E("s_memtime s[94:95]\ns_waitcnt lgkmcnt(0)")
    E("v_mov_b32 v1, 0")
    E("s_cmp_lg_u32 s%d, 0\ns_cbranch_scc1 L_end" % sW)
    if STAMP == 7:
        E("v_lshrrev_b32 v2, 2, v0\nv_accvgpr_read_b32 v3, a199\nv_accvgpr_read_b32 v4, a198")
        E("s_mov_b64 exec, 0xffff\nglobal_store_dword v2, v3, s[%d:%d] offset:128\nglobal_store_dword v2, v4, s[%d:%d] offset:192" % (sWSB, sWSB + 1, sWSB, sWSB + 1))
    E("s_mov_b64 exec, 1")
    for k_ in range(16):
        E("v_mov_b32 v2, s%d\nv_mov_b32 v3, s%d" % (sStamp + 2 * k_, sStamp + 2 * k_ + 1))
        E("global_store_dwordx2 v1, v[2:3], s[%d:%d] offset:%d" % (sWSB, sWSB + 1, 8 * k_))
        E("s_nop 1")
E("L_end:\ns_endpgm")
main_ins = P.ins

R = Prog()
F = R.emit
for s_ in stubs:
    F(s_)
F("L_restart:\ns_waitcnt vmcnt(0) lgkmcnt(0)\ns_barrier\ns_mov_b32 s%d, 1\ns_branch L_start" % sPara)
for par in range(2):
    sc = P_base[par]
    F("L_fix%d:" % par)
    F("s_nop 15\ns_waitcnt lgkmcnt(0)")
    for T in range(5):
        s0 = S_(par, T)
        F("v_max3_f32 v%d, v%d, v%d, v%d\nv_max_f32 v%d, v%d, v%d" % (sc + T, s0, s0 + 1, s0 + 2, sc + T, sc + T, s0 + 3))
    F("v_mov_b32 v%d, 0xff800000\ns_cmp_eq_u32 s%d, 1\ns_cbranch_scc1 L_fix%d_a\nv_mov_b32 v%d, v%d\nL_fix%d_a:" % (sc + 5, sHas9, par, sc + 4, sc + 5, par))
    for T in range(5):
        for sw in ("v_permlane32_swap_b32", "v_permlane16_swap_b32"):
            F("v_mov_b32 v%d, v%d\ns_nop 1\n%s v%d, v%d\ns_nop 1\nv_max_f32 v%d, v%d, v%d" % (sc + 5, sc + T, sw, sc + T, sc + 5, sc + T, sc + T, sc + 5))
    F("s_mul_i32 s99, s%d, 1280\nv_add_u32 v%d, s99, v%d" % (sW, sc + 5, vMB))
    for T in range(5):
        F("ds_write_b32 v%d, v%d offset:%d" % (sc + 5, sc + T, 256 * T))
    F("s_waitcnt lgkmcnt(0)\ns_barrier")
    F("s_xor_b32 s99, s%d, 1\ns_mul_i32 s99, s99, 1280\nv_add_u32 v%d, s99, v%d" % (sW, sc + 5, vMB))
    for T in range(4):
        F("ds_read_b32 v%d, v%d offset:%d" % (sc + 6 + T, sc + 5, 256 * T))
    for w_ in range(4):
        F("ds_read_b32 v%d, v%d offset:%d" % (sc + 10 + w_, vMB, 1280 * w_ + 1024))
    F("s_waitcnt lgkmcnt(0)")
    for T in range(4):
        F("v_max3_f32 v%d, v%d, v%d, s%d" % (sc + T, sc + T, sc + 6 + T, sFloor))
    F("v_max3_f32 v%d, v%d, v%d, v%d\nv_max3_f32 v%d, v%d, v%d, s%d" % (sc + 4, sc + 10, sc + 11, sc + 12, sc + 4, sc + 4, sc + 13, sFloor))
    for T in range(5):
        for j in range(4):
            F("v_sub_f32 v%d, v%d, v%d" % (vNegM + 4 * T + j, vNegM + 4 * T + j, sc + T))
        if T == 4:
            F("s_cmp_eq_u32 s%d, 0\ns_cbranch_scc1 L_fix%d_b" % (sHas9, par))
        for j in range(4):
            F("v_sub_f32 v%d, v%d, v%d" % (S_(par, T) + j, S_(par, T) + j, sc + T))
    F("L_fix%d_b:" % par)
    F("s_cmp_eq_u32 s%d, 1\ns_cbranch_scc1 L_fix%d_c" % (sFirst, par))
    for T in range(5):
        F("v_sub_f32 v%d, 0, v%d\nv_exp_f32 v%d, v%d\ns_nop 0\nv_mul_f32 v%d, v%d, v%d\nv_accvgpr_write_b32 a%d, v%d"
          % (sc + T, sc + T, sc + T, sc + T, vL + T, vL + T, sc + T, aF + T, sc + T))
    F("L_fix%d_c:\ns_nop 3\ns_setpc_b64 s[%d:%d]" % (par, sRet, sRet + 1))
F("L_fixo:")
F("s_nop 15")
for T in range(4):
    F("v_accvgpr_read_b32 v%d, a%d" % (vTmp, aF + T))
    for j in range(32):
        F("v_mul_f32 v%d, v%d, v%d" % (vO + 32 * T + j, vTmp, vO + 32 * T + j))
F("v_accvgpr_read_b32 v%d, a%d" % (vTmp, aF + 4))
for j in range(32):
    F("v_accvgpr_read_b32 v%d, a%d\nv_mul_f32 v%d, v%d, v%d\nv_accvgpr_write_b32 a%d, v%d" % (vTmp + 1, aO9 + j, vTmp + 1, vTmp, vTmp + 1, aO9 + j, vTmp + 1))
F("s_nop 3\ns_setpc_b64 s[%d:%d]" % (sRet, sRet + 1))

KILL = OPT.get("kill", "").split(",") if OPT.get("kill") else []
if KILL:
    keep, inside = [], False
    for i in main_ins:
        if i.text.startswith("L_loop"): inside = True
        if "s_cbranch_scc1 L_loop" in i.text: inside = False
        drop = False
        if inside and "sLoop" not in i.text and ("s%d," % sLoop) not in i.text:
            if "dma" in KILL and (i.kind == "dma" or (i.kind == "wait" and "vmcnt" in i.text)): drop = True
            if "bar" in KILL and i.kind == "barrier": drop = True
            if "exp" in KILL and i.kind == "trans": drop = True
            if "valu" in KILL and i.kind == "valu": drop = True
            if "dsw" in KILL and i.kind == "dsw": drop = True
            if "ds" in KILL and i.kind in ("dsr", "dsw"): drop = True
            if "wait" in KILL and i.kind == "wait" and "lgkm" in i.text: drop = True
        if not drop: keep.append(i)
    main_ins = keep
rep = []
main_ins = pad_hazards(main_ins, rep)
rare_ins = pad_hazards(R.ins, None)
from collections import Counter
sys.stderr.write("hazard pads (main): %s\n" % dict(Counter(r_[0] for r_ in rep)))
if OPT.get("v") == "2":
    for r_ in rep:
        sys.stderr.write("  %s\n" % (r_,))
txt = lambda ins: "\n".join(("" if i.kind == "label" else "    ") + i.text for i in ins)
hdr = open("concat_heads__gqa_block_cached__mha_block_cached__near_ridge.s.ref").read().split("; Override launch")[0]
print(hdr.rstrip())
print("; @launch grid=(256,1,1) block=(256,1,1) lds=%d" % LDS_TOTAL)
print('.amdgcn_target "amdgcn-amd-amdhsa--gfx950"')
print(".text")
print(".globl %s\n.p2align 8\n.type %s,@function" % (KN, KN))
print(txt(main_ins))
print(txt(rare_ins))
print("L_codeend:")
print('.section .rodata,"a"')
print(""".p2align 6
.amdhsa_kernel %s
  .amdhsa_next_free_vgpr 512
  .amdhsa_next_free_sgpr 102
  .amdhsa_accum_offset 256
  .amdhsa_group_segment_fixed_size 0
  .amdhsa_kernarg_size 104
  .amdhsa_user_sgpr_count 2
  .amdhsa_user_sgpr_kernarg_segment_ptr 1
  .amdhsa_system_sgpr_workgroup_id_x 1
.end_amdhsa_kernel""" % KN)
```

```python
import sys, struct, math, re
sys.path.insert(0, "work")
from asmlib import *

OPT = dict(a.split("=") for a in sys.argv[1:] if "=" in a)
opt = lambda k, d: OPT.get(k, d).replace("_", " ")
NT = opt("nt", "nt")
WNT = opt("wnt", "")
STP = opt("st", "sc1")
LDP = opt("ld", "sc1")
STAMP = int(opt("stamp", "0"))
LEAD = int(opt("lead", "3"))
CAPS = [int(c) for c in opt("caps", opt("capv", "67"))]
CAPV = CAPS[0]
EARLY = int(opt("early", "10"))
PARA = int(opt("para", "0"))
LTHR = float(opt("lthr", str(2.0 ** 30)))

KN = "concat_heads__gqa_block_cached__mha_block_cached__near_ridge_kernel"
SLOT = 16384
KB, VB = 0, 65536
PX = 131072
MB = 151552
XB = 98304
QS = 81920
LDS_TOTAL = 163840
CSCALE = math.log2(math.e) / 16.0
BIG = 10 ** 6
SLAB = 131072
FLG = 0x2000000

fbits = lambda x: "0x%08x" % struct.unpack("<I", struct.pack("<f", x))[0]
vr = lambda n, k=4: "v[%d:%d]" % (n, n + k - 1)
ar = lambda n, k=4: "a[%d:%d]" % (n, n + k - 1)
srd = lambda n: "s[%d:%d]" % (n, n + 3)
mfma = lambda d, a, b, c: "v_mfma_f32_16x16x32_bf16 %s, %s, %s, %s" % (d, a, b, c)
rset = lambda k, n, c=4: {(k, n + i) for i in range(c)}

SRD_X, SRD_WQ, SRD_K, SRD_V, SRD_WO, SRD_WS = 4, 8, 12, 16, 20, 24
sW, sW4K, sR, sC = 28, 29, 30, 31
sOffK, sOffV, sTmpO, sLoop = 32, 33, 34, 35
sFloor, sFirst, sHas9, sPara = 36, 37, 38, 39
sRet = 40
sT0, sT1, sT2, sT3 = 42, 43, 44, 45
sXm0 = 46
sClk = 48
sWSB = 62
sStamp = 64
vDKV, vPW, vPR, vMB = 0, 1, 2, 3
vK = 4
vV = 8
vL = 24
vSc = 29
vTmp = 30
vP9 = 36
vNegM = 40
S_base = {0: 60, 1: 76}
vS9 = 92
P_base = {0: 96, 1: 112}
vO = 128
aQ = 0
aO9 = 160
aF = 192
aPOOL, NPOOL = 224, 8

S_ = lambda par, T: S_base[par] + 4 * T if T < 4 else vS9
P_ = lambda par, T: P_base[par] + 4 * T if T < 4 else vP9
Q_ = lambda T, s: aQ + 32 * T + 4 * s
O_ = lambda T, b: vO + 32 * T + 4 * b
own9 = lambda n, r: ((n >> 1) & 1) == r

P = Prog()
E = P.emit
stubs = []
nstamp = [0]


def raw(t):
    for l in t.split("\n"):
        P.ins.append(Ins(l.strip()))


def stamp(cond=True):
    if STAMP and cond and nstamp[0] < (16 if STAMP in (5, 6, 9) else 8):
        raw("s_memrealtime s[%d:%d]" % (sStamp + 2 * nstamp[0], sStamp + 2 * nstamp[0] + 1))
        nstamp[0] += 1


SCALAR = ("salu", "wait", "branch", "barrier", "nop", "smem")


def advance(t, ins):
    for I in ins:
        if I.kind == "label":
            continue
        if I.kind in SCALAR:
            t += 4 * (I.cost if I.kind == "nop" else 1)
        else:
            t = max(t, 8)
            if I.kind == "trans":
                t += 8
            elif I.kind == "dsw":
                t += 20 if ("b128" in I.op or "write2" in I.op) else (10 if "b64" in I.op else 6)
            elif I.op.startswith("v_pk_"):
                t += 20
            else:
                t += 4
    return t


class Item:
    def __init__(self, text, e=-1, d=BIG, tag=None, cost=None):
        self.text, self.e, self.d, self.tag = text, e, d, tag
        self.ins = [Ins("s_nop 0")] if callable(text) else [Ins(l.strip()) for l in text.split("\n") if l.strip()]
        self.lead_scalar = self.ins[0].kind in SCALAR

    def emit(self):
        self.text() if callable(self.text) else E(self.text, tag=self.tag)


PACK2 = int(opt("pack2", "1"))


def run_phase(mf, queues, name=""):
    qs = [list(q) for q in queues]
    for q in qs:
        for j in range(len(q) - 2, -1, -1):
            q[j].d = min(q[j].d, q[j + 1].d)
        for it in q:
            assert it.e <= it.d or it.d >= BIG, (name, it.text, it.e, it.d)
    lost = [0]
    n = len(mf)

    def pressure(g):
        return None

    def fill(g, t):
        while True:
            best = None
            for qi, q in enumerate(qs):
                if q and q[0].e <= g:
                    it = q[0]
                    forced = it.d <= g
                    te = advance(t, it.ins)
                    fits = te <= 16 or (t <= 8 and advance(4, it.ins) > 16)
                    if forced or fits:
                        key = (0 if forced else 1, 0 if (t == 4 and it.lead_scalar) else 1, it.d, qi)
                        if best is None or key < best[0]:
                            best = (key, qi, te)
            if best is None:
                break
            it = qs[best[1]].pop(0)
            w0 = P.nwaits
            nw = sum(1 for I in it.ins if I.kind == "wait")
            it.emit()
            t = best[2] + 4 * max(0, P.nwaits - w0 - nw)
        return t

    fill(-1, 100)
    for g, m in enumerate(mf):
        for t_ in m.get("pre", []):
            t_() if callable(t_) else E(t_)
        E(m["text"])
        t = 4
        if g + 1 < n and not mf[g + 1].get("pre"):
            nx = Ins(mf[g + 1]["text"])
            if P._need(P.dsq, nx.src) >= 0:
                P.wait_ds_regs(nx.src | mf[g + 1].get("waitfor", set()))
                t = 8
        t = fill(g, t)
        lost[0] += max(0, t - 16)
    left = 0
    for q in qs:
        for it in q:
            left += advance(8, it.ins) - 8
            it.emit()
    if OPT.get("v"):
        sys.stderr.write("phase %s: %d mfma, lost %d cyc, leftover %d cyc\n" % (name, n, lost[0], left))


pool_ctr = [0]


class Frags:
    def __init__(self, start):
        self.k = start
        self.fr = []
        self.first = []

    def new(self, mf, texts_fn, buf=None):
        if buf is None:
            buf = aPOOL + 4 * (self.k % NPOOL)
            self.k += 1
        self.fr.append((buf, texts_fn(buf)))
        self.first.append(len(mf))
        return buf

    def items(self, skip, lead, off=0, emin=-1):
        out = []
        for f in range(skip, len(self.fr)):
            e = max(emin, self.first[f - lead] + off) if f >= lead else emin
            d = (self.first[f - lead + 1] + off) if f >= lead else emin
            out.append(Item("\n".join(self.fr[f][1]), e, max(d, e)))
        return out


rd128 = lambda areg, off: (lambda b: ["ds_read_b128 %s, v%d offset:%d" % (ar(b), areg, off)])
rdtr = lambda a0, a1, o0, o1: (lambda b: ["ds_read_b64_tr_b16 %s, v%d offset:%d" % (ar(b, 2), a0, o0),
                                          "ds_read_b64_tr_b16 %s, v%d offset:%d" % (ar(b + 2, 2), a1, o1)])


def dma_kv(which, lds, tag, cap=True):
    s_srd, s_off = (SRD_K, sOffK) if which == "K" else (SRD_V, sOffV)
    res = []
    for m in range(4):
        t = "s_add_u32 m0, s%d, %d\n" % (sW4K, lds) if m == 0 else ""
        if cap and CAPV:
            t += "s_waitcnt vmcnt(%d)\n" % (CAPS[(4 * (which == "V") + m) % len(CAPS)] - 1)
        t += "buffer_load_dwordx4 v%d, %s, s%d offen offset:%d %s lds" % (vDKV, srd(s_srd), s_off, m * 1024, NT)
        res.append(t)
    res.append("s_add_u32 s%d, s%d, %d" % (s_off, s_off, SLOT))
    return [(r, tag) for r in res]


def spread(pieces, start, step):
    out, k = [], 0
    for (t, tag) in pieces:
        e = int(start + k * step)
        out.append(Item(t, e, e + max(1, int(step)), tag))
        if "buffer_load" in t:
            k += 1
    return out


def emit_pieces(pieces):
    for (t, tag) in pieces:
        E(t, tag=tag)


def vmwait(tags):
    c = P.vm_count_after(tags)
    if c is not None:
        E("s_waitcnt vmcnt(%d)" % min(63, c))


def drain_writes():
    pend = [k for k, (_, d) in enumerate(P.dsq) if d == set()]
    if pend:
        E("s_waitcnt lgkmcnt(%d)" % (len(P.dsq) - 1 - pend[-1]))


nchk = [0]


def cond_call(sub, has9):
    k = nchk[0]
    nchk[0] += 1
    stubs.append("L_rare%d:\ns_mov_b32 s%d, %d\ns_call_b64 s[%d:%d], %s\ns_branch L_back%d" % (k, sHas9, has9, sRet, sRet + 1, sub, k))
    return "s_cbranch_vccnz L_rare%d\nL_back%d:" % (k, k)


tiles_of = lambda n, r: [0, 1, 2, 3] + ([4] if own9(n, r) else [])


def qk_part(n, r, fr, mf):
    par = n & 1
    for s in range(8):
        b = fr.new(mf, rd128(vK + (s & 3), KB + (n & 3) * SLOT + (s >> 2) * 256))
        for T in tiles_of(n, r):
            mf.append(dict(text=mfma(vr(S_(par, T)), ar(b), ar(Q_(T, s)), vr(vNegM + 4 * T) if s == 0 else vr(S_(par, T)))))


def pv_part(n, r, fr, mf):
    par = n & 1
    for b_ in range(8):
        b = fr.new(mf, rdtr(vV + b_, vV + 8 + b_, (n & 3) * SLOT, (n & 3) * SLOT))
        for T in range(4):
            mf.append(dict(text=mfma(vr(O_(T, b_)), ar(b), vr(P_(par, T)), vr(O_(T, b_)))))
        if own9(n, r):
            mf.append(dict(text=mfma(ar(aO9 + 4 * b_), ar(b), vr(vP9), ar(aO9 + 4 * b_))))


tbank = [0]


def softmax_items(n, tiles, e, d):
    par = n & 1
    its = []
    for T in tiles:
        for h in range(2):
            t = vTmp + 2 * (tbank[0] % 3)
            tbank[0] += 1
            s0 = S_(par, T) + 2 * h
            its.append(Item("v_exp_f32 v%d, v%d" % (t, s0), e, d))
            its.append(Item("v_exp_f32 v%d, v%d" % (t + 1, s0 + 1), e, d))
            its.append(Item("v_add_f32 v%d, v%d, v%d" % (vL + T, vL + T, t), e, d))
            its.append(Item("v_cvt_pk_bf16_f32 v%d, v%d, v%d" % (P_(par, T) + h, t, t + 1), e, d))
            its.append(Item("v_add_f32 v%d, v%d, v%d" % (vL + T, vL + T, t + 1), e, d))
        if T < 4 and (T & 1):
            its.append(Item("ds_write2st64_b64 v%d, %s, %s offset0:%d offset1:%d"
                            % (vPW, vr(P_(par, T - 1), 2), vr(P_(par, T), 2), 5 * par + T - 1, 5 * par + T), e, d))
        if T == 4:
            its.append(Item("ds_write_b64 v%d, %s offset:%d" % (vPW, vr(vP9, 2), (5 * par + 4) * 512), e, d))
    return its


def partner_reads(n, r):
    return ["ds_read_b64 %s, v%d offset:%d" % (vr(P_(n & 1, T) + 2, 2), vPR, (5 * (n & 1) + T) * 512) for T in tiles_of(n, r)]


def split_tiles(n, r, everything=False):
    if everything:
        return tiles_of(n, r), []
    if own9(n, r) and not (n & 1):
        return [4, 0], [1, 2, 3]
    if own9(n, r):
        return [0, 1, 2], [3, 4]
    return [0, 1], [2, 3]


def pair(fr, mf, lo, hi):
    for f in range(lo, hi - 1, 2):
        mf[fr.first[f]]["waitfor"] = rset("a", fr.fr[f + 1][0])


def step(n, r, k0, dma_pre, dma_post, vm, pref, all_next=False):
    fr = Frags(k0)
    mf = []
    qk_part(n + 1, r, fr, mf)
    nq, fq = len(mf), len(fr.fr)
    pv_part(n, r, fr, mf)
    N = len(mf)
    bpos = nq - EARLY

    def barrier():
        P.wait_ds_regs(rset("a", fr.fr[fq - 1][0]))
        drain_writes()
        E("s_waitcnt vmcnt(%d)" % vm) if isinstance(vm, int) else vmwait(vm)
        E("s_barrier")

    rq = []
    for f in range(LEAD, len(fr.fr)):
        if f < fq:
            d = min(fr.first[f - LEAD + 1], bpos - 3)
            e = min(fr.first[f - LEAD], d)
        elif f - fq < LEAD:
            if f == fq:
                rq += [Item(t, bpos, bpos + 1 + j // 2) for j, t in enumerate(partner_reads(n, r))]
            e, d = bpos, bpos + 3 + (f - fq)
        else:
            e, d = fr.first[f - LEAD], fr.first[f - LEAD + 1]
        rq.append(Item("\n".join(fr.fr[f][1]), e, d))
    for j, t in enumerate(pref):
        e = fr.first[len(fr.fr) - LEAD + j]
        rq.append(Item("\n".join(t), e, min(N - 1, e + 3)))
    mf[bpos]["pre"] = [barrier]
    mf[nq]["pre"] = [lambda: E(cond_call("L_fix%d" % ((n + 1) & 1), int(own9(n + 1, r))))]
    vq = softmax_items(n, split_tiles(n, r)[1], -1, bpos - 2)
    first = split_tiles(n + 1, r, all_next)[0]
    for T in first:
        e = nq + 5
        if T == 4 and own9(n, r):
            e = N - 1
        vq += softmax_items(n + 1, [T], e, BIG)
    npre = len([1 for (t, _) in dma_pre if "buffer_load" in t])
    npost = len([1 for (t, _) in dma_post if "buffer_load" in t])
    dq = spread(dma_pre, 1, max(1, (bpos - 3) // max(1, npre))) + spread(dma_post, bpos + 4, max(1, (N - bpos - 6) // max(1, npost)))
    run_phase(mf, [rq, vq, dq], "step%d r%d" % (n, r))
    E(cond_call("L_fixo", 0))
    return fr.k


def qk_pref(n, r, k0):
    fr, mf = Frags(k0), []
    qk_part(n, r, fr, mf)
    return [fr.fr[f][1] for f in range(LEAD)]


def pv_pref(n, r, k0):
    fr, mf = Frags(k0), []
    pv_part(n, r, fr, mf)
    return [fr.fr[f][1] for f in range(LEAD)]


CPFL = 16
E("%s:" % KN)
E("s_cmp_ge_u32 s2, 256\ns_cbranch_scc1 L_end")
E("s_mov_b32 s%d, %d" % (sPara, PARA))
E("v_lshrrev_b32 v1, 6, v0\nv_readfirstlane_b32 s%d, v1" % sW)
stamp()
if STAMP == 1:
    E("s_memtime s[92:93]")
E("L_start:")
E("s_and_b32 s%d, s2, 7" % sT0)
E("s_lshr_b32 s%d, s2, 3" % sT1)
E("s_lshr_b32 s96, s%d, 4" % sT1)
E("s_lshr_b32 s97, s%d, 1\ns_and_b32 s97, s97, 7" % sT1)
E("s_and_b32 s98, s%d, 1\ns_lshl_b32 s99, s%d, 1\ns_add_u32 s98, s98, s99" % (sT1, sT0))
E("s_mul_i32 s99, s96, 40")
E("s_add_u32 s50, s0, s99\ns_addc_u32 s51, s1, 0")
E("s_load_dwordx2 s[4:5], s[50:51], 0")
E("s_load_dwordx2 s[8:9], s[50:51], 24")
E("s_load_dwordx2 s[12:13], s[50:51], 8")
E("s_load_dwordx2 s[16:17], s[50:51], 16")
E("s_load_dwordx2 s[20:21], s[50:51], 32")
E("s_load_dwordx2 s[24:25], s[0:1], 96")
if int(opt("tlb", "0")) or int(opt("ftouch", "0")):
    E("s_load_dwordx4 s[56:59], s[0:1], 80")
    E("s_load_dwordx2 s[60:61], s[0:1], 96")
if int(opt("cpf", "1")):
    E("s_getpc_b64 s[52:53]\nL_pc:\ns_lshr_b32 s99, s2, 3\nv_and_b32 v2, 63, v0\nv_lshlrev_b32 v2, 5, v2\nv_add_u32 v2, s99, v2\nv_lshlrev_b32 v2, 7, v2")
    E("s_cmp_lg_u32 s%d, 3\ns_cbranch_scc1 L_nocpf" % sW)
    raw("s_mov_b32 s46, L_codeend-L_pc-4")
    E("v_cmp_gt_u32 vcc, s46, v2\ns_and_saveexec_b64 s[100:101], vcc\ns_cbranch_execz L_cpf2")
    raw("global_load_dword a201, v2, s[52:53]")
    E("L_cpf2:\ns_mov_b64 exec, -1\nL_nocpf:")
hL, hW, hI, hG = 200, 201, 202, 203
vDX, vDWQ = 204, 205
vXR = 206
vW = 210
h0, h1, h2, h3, h4, h5 = 220, 221, 222, 223, 224, 225
E("v_mbcnt_lo_u32_b32 v%d, -1, 0\nv_mbcnt_hi_u32_b32 v%d, -1, v%d\nv_mov_b32 v%d, s%d" % (hL, hL, hL, hW, sW))
E("v_and_b32 v%d, 15, v%d\nv_lshrrev_b32 v%d, 4, v%d" % (hI, hL, hG, hL))
E("s_lshl_b32 s%d, s%d, 12\ns_lshr_b32 s%d, s%d, 1\ns_and_b32 s%d, s%d, 1" % (sW4K, sW, sR, sW, sC, sW))
E("v_lshrrev_b32 v%d, 3, v%d\nv_lshl_add_u32 v%d, v%d, 3, v%d\nv_mul_u32_u24 v%d, 896, v%d" % (h0, hL, h1, hW, h0, h1, h1))
E("v_and_b32 v%d, 7, v%d\nv_xor_b32 v%d, v%d, v%d\ns_lshl_b32 s99, s%d, 2\nv_xor_b32 v%d, s99, v%d" % (h2, hL, h3, h2, hG, sC, h3, h3))
E("v_lshl_add_u32 v%d, v%d, 4, v%d" % (vDX, h3, h1))
E("v_lshrrev_b32 v%d, 5, v%d\nv_and_b32 v%d, 31, v%d\nv_lshl_add_u32 v%d, v%d, 1, v%d" % (h0, hL, h1, hL, h3, hW, h0))
E("v_lshlrev_b32 v%d, 1, v%d\nv_xor_b32 v%d, v%d, v%d\nv_lshlrev_b32 v%d, 4, v%d" % (h3, h3, h3, h3, h1, h3, h3))
E("s_lshl_b32 s99, s%d, 3\ns_lshl_b32 s100, s%d, 1\ns_add_u32 s99, s99, s100\nv_add_u32 v%d, s99, v%d" % (sR, sC, h1, h0))
E("v_lshl_add_u32 v%d, v%d, 13, v%d" % (vDWQ, h1, h3))
E("v_lshl_add_u32 v%d, v%d, 3, v%d\nv_lshl_add_u32 v%d, v%d, 9, v%d" % (h1, hW, h0, vDKV, h1, h3))
E("s_mul_i32 s100, s97, 129024")
E("s_lshl_b32 s101, s98, 9")
E("s_lshl_b32 s%d, s%d, 10\ns_add_u32 s%d, s%d, %d" % (sXm0, sW, sXm0, sXm0, XB))
ROT = int(opt("rot", "0"))
if ROT >= 0:
    E("s_and_b32 s99, s98, 1\ns_mul_i32 s99, s99, %d\ns_and_b32 s54, s97, %d\ns_mul_i32 s54, s54, %d\ns_add_u32 s99, s99, s54"
      % (ROT, int(opt("rm", "3")), int(opt("rs", "2"))))
    E("s_cmp_ge_u32 s99, 7\ns_cselect_b32 s54, 7, 0\ns_sub_u32 s99, s99, s54")
    E("s_lshl_b32 s54, s99, 19\ns_lshl_b32 s55, s99, 7")
else:
    E("s_mov_b32 s54, 0\ns_mov_b32 s55, 0")
E("s_waitcnt lgkmcnt(0)")
stamp(STAMP == 6)
E("s_add_u32 s4, s4, s100\ns_addc_u32 s5, s5, 0\ns_mov_b32 s6, 129024\ns_mov_b32 s7, 0x20000")
E("s_add_u32 s8, s8, s101\ns_addc_u32 s9, s9, 0\ns_sub_u32 s10, %d, s101\ns_mov_b32 s11, 0x20000" % (448 * 8192))

WPI = {2: 0, 3: 1, 4: 4, 5: 2, 0: 3, 1: 5}
wslot = lambda N: WPI[N % 6] * SLOT


sWo, sXo = 54, 55


def dma_wq(s):
    res = []
    for m in range(4):
        so = (16 * (m & 1) + 4 * (m >> 1)) * 8192 - m * 1024
        t = "s_add_u32 m0, s%d, %d\n" % (sW4K, wslot(s)) if m == 0 else ""
        if m == 0:
            t += "buffer_load_dwordx4 v%d, %s, s%d offen %s lds" % (vDWQ, srd(SRD_WQ), sWo, WNT)
        else:
            t += "s_add_u32 s%d, s%d, %d\nbuffer_load_dwordx4 v%d, %s, s%d offen offset:%d %s lds" % (sTmpO, sWo, so, vDWQ, srd(SRD_WQ), sTmpO, m * 1024, WNT)
        res.append((t, ("W", s)))
    res.append(("s_add_u32 s%d, s%d, 0x40000\ns_cmp_eq_u32 s%d, %d\ns_cselect_b32 s%d, 0, s%d" % (sWo, sWo, sWo, 14 * 0x40000, sWo, sWo), None))
    return res


def dma_x(p):
    res = []
    for k in range(5):
        res.append(("s_add_u32 m0, s%d, %d\ns_add_u32 s%d, s%d, %d\nbuffer_load_dwordx4 v%d, %s, s%d offen %s lds"
                    % (sXm0, (p % 3) * 20480 + 4096 * k, sTmpO, sXo, 28672 * k, vDX, srd(SRD_X), sTmpO, WNT), ("X", p)))
    res.append(("s_add_u32 s%d, s%d, 128\ns_cmp_eq_u32 s%d, 896\ns_cselect_b32 s%d, 0, s%d" % (sXo, sXo, sXo, sXo, sXo), None))
    return res


def touches():
    t0, t1, t2 = 226, 227, 228
    E("v_lshl_add_u32 v%d, v%d, 2, v%d\nv_lshlrev_b32 v%d, 5, v%d\nv_bfe_u32 v%d, v%d, 2, 2\nv_add_u32 v%d, v%d, v%d" % (t0, hW, hG, t0, t0, t1, hL, t0, t0, t1))
    E("s_lshl_b32 s99, s97, 2\nv_add_u32 v%d, s99, v%d\nv_and_b32 v%d, 3, v%d\nv_lshlrev_b32 v%d, 7, v%d\nv_lshl_add_u32 v%d, v%d, 13, v%d"
      % (t0, t0, t1, hL, t1, t1, t0, t0, t1))
    E("buffer_load_dword a203, v%d, %s, %d offen" % (t0, srd(SRD_WQ), 0), tag="t")
    E("s_and_b32 s99, s98, 1\ns_mul_i32 s99, s99, %d\ns_mov_b32 s100, %d" % (72 * 896, (2 ** 32 + 71) // 72))
    for j in range(2):
        E("v_lshl_add_u32 v%d, v%d, 6, v%d\nv_add_u32 v%d, %d, v%d\nv_mul_hi_u32 v%d, s100, v%d\nv_mul_u32_u24 v%d, 72, v%d\nv_sub_u32 v%d, v%d, v%d"
          % (t0, hW, hL, t0, 144 + 256 * j, t0, t1, t0, t2, t1, t0, t0, t2))
        E("v_mul_u32_u24 v%d, 896, v%d\nv_lshl_add_u32 v%d, v%d, 7, v%d" % (t0, t0, t0, t1, t0))
        if j == 1:
            E("v_cmp_gt_u32 vcc, 7, v%d\nv_mov_b32 v%d, 0x40000000\nv_cndmask_b32 v%d, v%d, v%d, vcc" % (t1, t2, t0, t2, t0))
        E("buffer_load_dword a%d, v%d, %s, s99 offen" % (204 + j, t0, srd(SRD_X)), tag="t")


TOUCH = int(opt("touch", "0"))
emit_pieces(dma_x(0) + dma_wq(0) + dma_wq(1))
if TOUCH == 1:
    touches()
E("s_lshl_b32 s99, s97, 4\ns_add_u32 s99, s99, s98")
E("s_xor_b32 s100, s96, 1\ns_lshr_b32 s99, s99, s100")
if OPT.get("map") == "l2":
    E("s_and_b32 s99, s2, 7")
E("s_lshl_b32 s99, s99, 19")
E("s_add_u32 s12, s12, s99\ns_addc_u32 s13, s13, 0\ns_mov_b32 s14, 0x80000\ns_mov_b32 s15, 0x20000")
E("s_add_u32 s16, s16, s99\ns_addc_u32 s17, s17, 0\ns_mov_b32 s18, 0x80000\ns_mov_b32 s19, 0x20000")
E("s_mul_i32 s99, s98, %d" % (256 * 896))
E("s_add_u32 s20, s20, s99\ns_addc_u32 s21, s21, 0\ns_mov_b32 s22, %d\ns_mov_b32 s23, 0x20000" % (256 * 896))
if STAMP:
    E("s_lshl_b32 s99, s2, 8\ns_add_u32 s99, s99, 0x4000000\ns_add_u32 s%d, s24, s99\ns_addc_u32 s%d, s25, 0" % (sWSB, sWSB + 1))
E("s_lshl_b32 s99, s96, 3\ns_add_u32 s99, s99, s97\ns_lshl_b32 s99, s99, 4\ns_add_u32 s3, s99, s98")
E("s_lshl_b32 s99, s3, 17")
E("s_add_u32 s24, s24, s99\ns_addc_u32 s25, s25, 0\ns_mov_b32 s26, %d\ns_mov_b32 s27, 0x20000" % SLAB)
E("s_mov_b32 s%d, 0\ns_mov_b32 s%d, 0" % (sOffK, sOffV))
if int(opt("tlb", "0")):
    E("s_cmp_lg_u32 s%d, 2\ns_cbranch_scc1 L_notlb\ns_mov_b64 exec, 1\nv_mov_b32 v%d, 0" % (sW, h0))
    for sr in (SRD_K, SRD_V, SRD_WO, SRD_WS):
        raw("buffer_load_dword a202, v%d, %s, 0 offen" % (h0, srd(sr)))
    raw("global_load_dword a202, v%d, s[56:57]\nglobal_load_dword a202, v%d, s[58:59]" % (h0, h0))
    E("v_mov_b32 v%d, %d" % (h1, FLG + 0x10000))
    raw("global_load_dword a202, v%d, s[60:61]" % h1)
    E("s_mov_b64 exec, -1\nL_notlb:")


def rho(dst, i, t1):
    E("v_lshrrev_b32 v%d, 1, v%d\nv_and_b32 v%d, 3, v%d\nv_lshlrev_b32 v%d, 3, v%d" % (dst, i, dst, dst, dst, dst))
    E("v_lshrrev_b32 v%d, 3, v%d\nv_lshl_add_u32 v%d, v%d, 1, v%d" % (t1, i, dst, t1, dst))
    E("v_and_b32 v%d, 1, v%d\nv_add_u32 v%d, v%d, v%d" % (t1, i, dst, dst, t1))


E("v_lshrrev_b32 v%d, 1, v%d\nv_xor_b32 v%d, v%d, v%d\nv_lshlrev_b32 v%d, 7, v%d" % (h0, hI, h0, h0, hG, h1, hI))
E("v_add_u32 v%d, %d, v%d\ns_lshl_b32 s99, s%d, 13" % (h1, XB, h1, sR))
for par in range(2):
    E("v_xor_b32 v%d, %d, v%d\nv_lshl_add_u32 v%d, v%d, 4, v%d" % (h2, 4 * par, h0, h2, h2, h1))
    E("v_add_u32 v%d, s99, v%d\nv_add_u32 v%d, %d, v%d" % (vXR + par, h2, vXR + 2 + par, 128 * 128, h2))
E("v_lshrrev_b32 v%d, 2, v%d" % (h5, hL))
rho(h4, h5, h0)
E("v_lshlrev_b32 v%d, 9, v%d\nv_and_b32 v%d, 7, v%d\nv_and_b32 v%d, 3, v%d" % (h4, h4, h5, h5, h3, hL))
E("v_lshlrev_b32 v%d, 1, v%d\nv_xor_b32 v%d, v%d, v%d\ns_lshl_b32 s99, s%d, 3\nv_xor_b32 v%d, s99, v%d" % (h0, h5, h0, h0, h3, sR, h0, h0))
E("s_lshl_b32 s99, s%d, 8\nv_add_u32 v%d, s99, v%d" % (sC, h1, h4))
for b in range(4):
    E("v_xor_b32 v%d, %d, v%d\nv_lshl_add_u32 v%d, v%d, 4, v%d\nv_add_u32 v%d, 0x10000, v%d" % (h2, 4 * b, h0, vW + b, h2, h1, vW + 4 + b, vW + b))
emit_pieces(dma_x(1) + dma_wq(2))
E("s_lshl_b32 s99, s%d, 2\nv_xor_b32 v%d, s99, v%d" % (sR, h0, h5))
E("s_mul_i32 s99, s%d, 2304\ns_add_u32 s99, s99, %d\nv_add_u32 v%d, s99, v%d\nv_lshl_add_u32 v%d, v%d, 3, v%d" % (sC, VB, h1, h4, h1, h3, h1))
for b in range(8):
    E("v_xor_b32 v%d, %d, v%d\nv_lshl_add_u32 v%d, v%d, 5, v%d\nv_xor_b32 v%d, 0x800, v%d" % (h2, b, h0, vV + b, h2, h1, vV + 8 + b, vV + b))
rho(h4, hI, h0)
E("v_and_b32 v%d, 7, v%d\nv_lshlrev_b32 v%d, 1, v%d\nv_xor_b32 v%d, v%d, v%d" % (h0, hI, h0, h0, h0, h0, hG))
E("s_lshl_b32 s99, s%d, 11\nv_lshlrev_b32 v%d, 9, v%d\nv_add_u32 v%d, s99, v%d" % (sC, h1, h4, h1, h1))
for b in range(4):
    E("v_xor_b32 v%d, %d, v%d\nv_lshl_add_u32 v%d, v%d, 4, v%d" % (h2, 4 * b, h0, vK + b, h2, h1))
E("s_mul_i32 s99, s%d, 5120\ns_add_u32 s99, s99, %d\nv_lshlrev_b32 v%d, 3, v%d\nv_add_u32 v%d, s99, v%d" % (sW, PX, h0, hL, vPW, h0))
E("s_xor_b32 s99, s%d, 1\ns_mul_i32 s99, s99, 5120\ns_add_u32 s99, s99, %d\nv_add_u32 v%d, s99, v%d" % (sW, PX, vPR, h0))
E("v_lshlrev_b32 v%d, 2, v%d\nv_add_u32 v%d, %d, v%d" % (vMB, hL, vMB, MB, vMB))
emit_pieces(dma_wq(3))
if TOUCH == 2:
    touches()
stamp(STAMP == 6)

QAB = 28
QA = lambda T, sd, v: QAB + 32 * T + 4 * (2 * sd + v) if T < 4 else QAB + 128 + 4 * (2 * (sd - 2) + v)
aX = 0
X_ = lambda T, s: aX + 40 * ((s >> 1) & 1) + 20 * (s & 1) + 4 * T


def xreads(p):
    out = []
    for s in (2 * p, 2 * p + 1):
        for T in range(5):
            if T < 4:
                out.append("ds_read_b128 %s, v%d offset:%d" % (ar(X_(T, s)), vXR + (s & 1), (p % 3) * 20480 + T * 2048))
            else:
                out.append("ds_read_b128 %s, v%d offset:%d" % (ar(X_(T, s)), vXR + 2 + (s & 1), (p % 3) * 20480))
    return out


def build_qp(N, k0):
    fr = Frags(k0)
    mf = []
    win, off = wslot(N) >> 16, wslot(N) & 0xffff
    for sd in range(4):
        for v in range(2):
            a = vW + 4 * win + sd
            b = fr.new(mf, rdtr(a, a, off + 8 * v, off + 8 * v + 2048))
            for T in range(5 if sd >= 2 else 4):
                mf.append(dict(text=mfma(vr(QA(T, sd, v)), ar(b), ar(X_(T, N)), "0" if N == 0 else vr(QA(T, sd, v)))))
    return fr, mf


Kp = lambda n, cap=False: dma_kv("K", KB + (n & 3) * SLOT, ("K", n), cap)
Vp = lambda n, cap=False: dma_kv("V", VB + (n & 3) * SLOT, ("V", n), cap)
WOT = int(opt("wot", "99"))
KVT = int(opt("kvt", "0"))
late = {9: Kp(0), 10: Kp(1), 11: Vp(0), 12: Kp(2), 13: Kp(3)}
wplan = {0: [4], 1: [5], 2: [6, 7], 3: [8], 4: [9], 5: [10], 6: [11], 7: [12], 8: [13]}
zero_q = ["v_mov_b32 v%d, 0" % r for r in range(172, 200)] + ["v_mov_b32 v%d, 0" % r for r in range(226, 256)] + \
         ["v_accvgpr_write_b32 a%d, 0" % r for r in range(aO9, aO9 + 32)]
vmwait([("X", 0), ("W", 1)])
E("s_barrier")
stamp(STAMP == 6)
for t in xreads(0):
    E(t)
k = 0
for N in range(14):
    fr, mf = build_qp(N, k)
    n = len(mf)
    if N > 0:
        vmwait([("W", min(N + 1, 13))] + ([("X", (N + 1) // 2)] if (N & 1) and N < 12 else []))
        E("s_barrier")
    rq = fr.items(0 if N == 0 else LEAD, LEAD)
    if N < 13:
        nf, _ = build_qp(N + 1, fr.k)
        for j in range(LEAD):
            e = fr.first[len(fr.fr) - LEAD + j]
            rq.append(Item("\n".join(nf.fr[j][1]), e, e + 3))
    pieces = []
    for W in wplan.get(N, []):
        pieces += dma_wq(W)
    if N == WOT:
        pieces += [("s_lshr_b32 s99, s3, 4\ns_and_b32 s99, s99, 7\ns_lshl_b32 s99, s99, 2", None),
                   ("s_add_u32 s99, s99, s%d\ns_mul_i32 s99, s99, %d\nv_lshlrev_b32 v%d, 7, v%d" % (sW, 56 * 128, h5, hL), None),
                   ("s_mov_b32 exec_hi, 0x00ffffff\nbuffer_load_dword a200, v%d, %s, s99 offen\ns_mov_b32 exec_hi, -1" % (h5, srd(SRD_WO)), "t")]
    pieces += late.get(N, [])
    if KVT and N >= 14 - KVT:
        j = N - (14 - KVT)
        if j == 0:
            pieces += [("v_lshlrev_b32 v%d, 7, v%d\ns_lshl_b32 s53, s%d, 13" % (h5, hL, sW), None)]
        base = (5 if (j & 1) == 0 else 2) * SLOT + (j >> 1) * 32768
        pieces += [("s_add_u32 s99, s53, %d\nbuffer_load_dword a%d, v%d, %s, s99 offen" % (base, 206 + j, h5, srd(SRD_K if (j & 1) == 0 else SRD_V)), "t")]
    if N == 0:
        pieces += dma_x(2)
    elif (N & 1) == 0 and N // 2 + 2 < 7:
        pieces += dma_x(N // 2 + 2)
    nd = len([1 for (t, _) in pieces if "buffer_load" in t])
    dq = spread(pieces, 0, max(2.5, min(4.0, (n - 2) / max(1, nd))))
    xq = [Item(t, 0, 24) for t in xreads((N + 1) // 2)] if (N & 1) and N < 12 else []
    zq = [Item(t, 0, BIG) for t in zero_q[9 * (N - 1):9 * N]] if 1 <= N <= 10 else []
    run_phase(mf, [rq, xq, dq, zq], "qp%d" % N)
    k = fr.k
    stamp(STAMP == 6 and (N & 1) and N < 13)
stamp(STAMP in (5, 6))
E("s_barrier")
E("s_mov_b32 s100, %s\ns_mov_b32 s101, %s" % (fbits(CSCALE), fbits(CSCALE)))
E("s_lshl_b32 s99, s%d, 15\ns_lshl_b32 s96, s%d, 12\ns_add_u32 s99, s99, s96\ns_lshl_b32 s97, s%d, 11\ns_add_u32 s99, s99, s97\ns_add_u32 s99, s99, %d"
  % (sR, sC, sR, QS))
E("v_lshlrev_b32 v%d, 4, v%d\nv_add_u32 v%d, s99, v%d\nv_xor_b32 v%d, 0x800, v%d" % (h0, hL, h1, h0, h2, h1))
E("s_xor_b32 s97, s97, 0x800\ns_add_u32 s96, s96, s97\ns_add_u32 s96, s96, %d\nv_add_u32 v%d, s96, v%d" % (QS + 65536, h3, h0))
for T in (4, 0, 1, 2, 3):
    for sd in (range(4) if T < 4 else (2, 3)):
        a = QA(T, sd, 0)
        for j in range(4):
            E("v_pk_mul_f32 %s, %s, s[100:101]" % (vr(a + 2 * j, 2), vr(a + 2 * j, 2)))
        for j in range(4):
            E("v_cvt_pk_bf16_f32 v%d, v%d, v%d" % (a + j, a + 2 * j, a + 2 * j + 1))
        if T < 4:
            E("ds_write_b128 v%d, %s offset:%d" % (h1 if sd < 2 else h2, vr(a), T * 8192 + (sd & 1) * 1024))
        else:
            E("ds_write_b128 v%d, %s offset:%d" % (h3, vr(a), (sd & 1) * 1024))
E("s_lshl_b32 s99, s%d, 15\ns_add_u32 s99, s99, %d\nv_add_u32 v%d, s99, v%d\nv_add_u32 v%d, %d, v%d" % (sR, QS, h1, h0, h2, QS + 65536, h0))
E("s_memrealtime s[%d:%d]" % (sClk, sClk + 1))
vmwait([("K", 1)])
E("s_waitcnt lgkmcnt(0)")
E("s_barrier")
qreads = []
for s in range(8):
    for T in range(5):
        qreads.append("ds_read_b128 %s, v%d offset:%d" % (ar(Q_(T, s)), h1 if T < 4 else h2, (T * 8192 if T < 4 else 0) + s * 1024))
for r_ in range(vL, vL + 5):
    E("v_mov_b32 v%d, 0" % r_)
E("s_mov_b32 s%d, 0\ns_mov_b32 s%d, 0" % (sFloor, sFirst))
stamp()

late_zero = ["v_mov_b32 v%d, 0" % r for r in list(range(128, 172)) + list(range(200, 226))]
E("s_cmp_eq_u32 s%d, 1\ns_cbranch_scc1 L_att1" % sR)

OBUF = [VB, KB, KB + 32768, VB + 32768]
OLDS = lambda q: OBUF[(q >> 1) & 3] + (q & 1) * SLOT
vDWO = vSc


def dma_wo(q):
    sg, a = q >> 1, q & 1
    res = []
    for m in range(4):
        t = "s_add_u32 m0, s%d, %d\n" % (sW4K, OLDS(q)) if m == 0 else ""
        res.append((t + "s_mov_b32 s%d, %d\nbuffer_load_dwordx4 v%d, %s, s%d offen offset:%d %s lds"
                    % (sTmpO, a * 114688 + m * 6144 + 128 * sg, vDWO, srd(SRD_WO), sTmpO, m * 1024, opt("ont", "nt")), ("O", q)))
    return res


OFo = lambda T, kk: 64 + 16 * T + 4 * kk
OFp = lambda T, kk: 0 + 16 * T + 4 * kk
aOF9 = 64
aHOLD = 96
TB = list(range(40, 56))
vST, vST9, wA, wB, rA, rB = 4, 5, 6, 7, 1, 2
vRI = vL
acc_ = lambda sg, T: (8, 16, 56, 32)[T] if sg == 0 else 128 + 32 * ((sg - 1) % 3) + 8 * T
acc9 = lambda sg: 224 + 4 * (sg % 4)
v9st = 240
O9S, LX, O9P = PX, PX + 16384, 155648


def tail_setup():
    t = ["v_mbcnt_lo_u32_b32 v0, -1, 0\nv_mbcnt_hi_u32_b32 v0, -1, v0",
         "s_load_dwordx2 s[12:13], s[0:1], 88\ns_load_dwordx2 s[14:15], s[0:1], 96" if False else "s_nop 0",
         "v_lshrrev_b32 v3, 2, v0\nv_lshlrev_b32 v3, 7, v3", "v_and_b32 v30, 3, v0\nv_lshl_add_u32 v3, v30, 3, v3",
         "s_lshl_b32 s99, s%d, 1\ns_xor_b32 s99, s99, s%d\nv_bfe_u32 v30, v0, 3, 2" % (sC, sR), "v_xor_b32 v30, s99, v30",
         "v_lshl_add_u32 v30, v30, 5, v3\nv_xor_b32 v31, 32, v30"]
    for kk in range(4):
        t.append("s_lshl_b32 s98, s%d, 1\ns_xor_b32 s98, s98, %d\ns_lshl_b32 s98, s98, 12" % (sR, kk))
        t.append("s_lshl_b32 s99, s%d, 14\ns_add_u32 s99, s99, s98\ns_add_u32 s99, s99, %d" % (sC, VB))
        for nt in range(2):
            t.append("v_add_u32 v%d, s99, v%d\nv_xor_b32 v%d, 0x4000, v%d" % (TB[2 * kk + nt], 30 + nt, TB[8 + 2 * kk + nt], TB[2 * kk + nt]))
    for T in range(5):
        t.append("v_mov_b32 v30, v%d\nv_mov_b32 v31, v%d" % (vL + T, vL + T))
        t.append("s_nop 0\nv_permlane32_swap_b32 v30, v31")
        t.append("v_add_f32 v30, v30, v31\nv_mov_b32 v31, v30")
        t.append("s_nop 0\nv_permlane16_swap_b32 v30, v31")
        t.append("v_add_f32 v%d, v30, v31" % (vL + T))
    t.append("v_and_b32 v3, 15, v0\nv_lshlrev_b32 v3, 2, v3")
    t.append("s_mul_i32 s99, s%d, 320\ns_add_u32 s99, s99, %d\nv_add_u32 v30, s99, v3" % (sW, LX))
    t += ["ds_write_b32 v30, v%d offset:%d" % (vL + T, 64 * T) for T in range(5)]
    t.append("v_lshlrev_b32 v0, 4, v0")
    t.append("s_lshl_b32 s99, s%d, 16\ns_lshl_b32 s98, s%d, 12\ns_add_u32 s99, s99, s98" % (sR, sC))
    t.append("s_lshl_b32 s98, s%d, 11\ns_add_u32 s99, s99, s98\ns_add_u32 s99, s99, 32768" % sR)
    t.append("v_add_u32 v%d, s99, v0\nv_xor_b32 v%d, 0x800, v%d" % (wA, wB, wA))
    t.append("v_xor_b32 v%d, 0x1000, v%d\nv_xor_b32 v%d, 0x1000, v%d" % (rA, wA, rB, wB))
    t.append("s_lshl_b32 s99, s%d, 13\ns_lshl_b32 s98, s%d, 10\ns_add_u32 s99, s99, s98" % (sR, sC))
    t.append("v_add_u32 v%d, s99, v0" % vST)
    t.append("s_lshl_b32 s99, s%d, 10\nv_add_u32 v%d, s99, v0" % (sW, vST9))
    return t


saved = (list(P.dsq), list(P.vmq), nstamp[0])
for r in range(2):
    P.dsq, P.vmq = list(saved[0]), list(saved[1])
    nstamp[0] = saved[2]
    if r == 1:
        E("L_att1:")
    fr, mf = Frags(0), []
    qk_part(0, r, fr, mf)
    for m_ in mf:
        m_["text"] = re.sub(r", v\[(*SKIP)(*F)|$^", "", m_["text"]) if False else m_["text"]
    for T in tiles_of(0, r):
        mf[[i_ for i_, m_ in enumerate(mf) if m_["text"].endswith(vr(vNegM + 4 * T))][0]]["text"] = \
            mfma(vr(S_(0, T)), ar(fr.fr[0][0]), ar(Q_(T, 0)), "0")
    qq = []
    for f in range(8):
        e = -1 if f < 2 else fr.first[f - 2]
        d = -1 if f < 2 else fr.first[f - 1] - 1
        qq += [Item(t, e, d) for t in fr.fr[f][1] + qreads[5 * f:5 * f + 5]]
    lz = [t for t in late_zero if int(t.split()[1][1:-1]) not in (h1, h2)]
    run_phase(mf, [qq, [Item(t, 0, BIG) for t in lz]], "qk0")
    E("v_mov_b32 v%d, 0\nv_mov_b32 v%d, 0" % (h1, h2))
    stamp(STAMP == 9)
    sc = P_base[0]
    tl = tiles_of(0, r)
    for T in tl:
        s0 = S_(0, T)
        E("v_max3_f32 v%d, v%d, v%d, v%d\nv_max_f32 v%d, v%d, v%d" % (sc + T, s0, s0 + 1, s0 + 2, sc + T, sc + T, s0 + 3))
    for sw in ("v_permlane32_swap_b32", "v_permlane16_swap_b32"):
        for T in tl:
            E("v_mov_b32 v%d, v%d" % (sc + 8 + T, sc + T))
        for T in tl:
            E("%s v%d, v%d" % (sw, sc + T, sc + 8 + T))
        for T in tl:
            E("v_max_f32 v%d, v%d, v%d" % (sc + T, sc + T, sc + 8 + T))
    E("s_mul_i32 s99, s%d, 1280\nv_add_u32 v%d, s99, v%d" % (sW, sc + 5, vMB))
    for T in tl:
        E("ds_write_b32 v%d, v%d offset:%d" % (sc + 5, sc + T, 4096 + 256 * T))
    E("s_xor_b32 s99, s%d, 1\ns_mul_i32 s99, s99, 1280\nv_add_u32 v%d, s99, v%d" % (sW, sc + 5, vMB))
    E("s_waitcnt lgkmcnt(0)\ns_barrier")
    for T in range(4):
        E("ds_read_b32 v%d, v%d offset:%d" % (sc + 8 + T, sc + 5, 4096 + 256 * T))
    for w_ in range(2):
        E("ds_read_b32 v%d, v%d offset:%d" % (sc + 12 + w_, vMB, 4096 + 1280 * w_ + 1024))
    E("s_cmp_eq_u32 s%d, 0\ns_cselect_b64 vcc, 0, -1" % sPara)
    emit_pieces(Vp(1) + Kp(4))
    for T in (split_tiles(0, r)[0] + split_tiles(0, r)[1] + ([] if 4 in tl else [4])):
        if T < 4:
            E("v_max_f32 v%d, v%d, v%d" % (sc + T, sc + T, sc + 8 + T))
        else:
            E("v_max_f32 v%d, v%d, v%d" % (sc + 4, sc + 12, sc + 13))
        for j in range(4):
            E("v_sub_f32 v%d, 0, v%d" % (vNegM + 4 * T + j, sc + T))
        if T in tl:
            for j in range(4):
                E("v_sub_f32 v%d, v%d, v%d" % (S_(0, T) + j, S_(0, T) + j, sc + T))
    stamp(STAMP == 9)
    stamp(STAMP == 9)
    if STAMP == 1:
        E("s_memtime s[88:89]\ns_memrealtime s[84:85]\ns_waitcnt lgkmcnt(0)")
    tbank[0] = 0
    for it in softmax_items(0, split_tiles(0, r)[0], -1, BIG):
        it.emit()
    E("s_mov_b32 s%d, 0" % sLoop)
    drain_writes()
    k = 8
    for t in qk_pref(1, r, k):
        E("\n".join(t))
    tbank[0] = 0
    if STAMP == 9:
        stamp()
        for n in range(4):
            for t in (qk_pref(1, r, k) if n == 0 else []):
                E("\n".join(t))
            k = step(n, r, k, Vp(n + 2, True), Kp(n + 5, True), 16, qk_pref(n + 2, r, k + 16))
            raw("s_memrealtime s[%d:%d]" % (sStamp + 2 * nstamp[0], sStamp + 2 * nstamp[0] + 1))
            nstamp[0] += 1
        E("s_waitcnt lgkmcnt(0)")
        for t in qk_pref(1, r, k):
            E("\n".join(t))
        E("s_mov_b32 s%d, 1" % sLoop)
    entry = [set(d) for (_, d) in P.dsq]
    E("L_loop%d:" % r)
    for n in range(4):
        k = step(n, r, k, Vp(n + 2, True), Kp(n + 5, True), 16, qk_pref(n + 2, r, k + 16))
    now = [set(d) for (_, d) in P.dsq if d]
    assert now == entry, (now, entry)
    drain_writes()
    if STAMP == 7:
        raw("s_memrealtime s[80:81]\ns_memtime s[82:83]\ns_waitcnt lgkmcnt(0)\ns_lshl_b64 exec, 1, s%d\n"
            "v_accvgpr_write_b32 a199, s80\nv_accvgpr_write_b32 a198, s82\ns_mov_b64 exec, -1" % sLoop)
    E("s_add_u32 s%d, s%d, 1\ns_cmp_lt_u32 s%d, 6\ns_cbranch_scc1 L_loop%d" % (sLoop, sLoop, sLoop, r))
    if STAMP == 1:
        raw("s_memtime s[90:91]\ns_memrealtime s[86:87]")
        E("s_waitcnt lgkmcnt(0)")
    for n in range(24, 31):
        pre = Vp(n + 2, True) if n + 2 < 32 else []
        post = Kp(n + 5, True) if n + 5 < 32 else []
        if n >= 27:
            post = dma_wo({27: 2, 28: 3, 29: 0, 30: 1}[n])
        if n == int(opt("wot2", "30")):
            post = post + [("s_lshr_b32 s99, s3, 4\ns_and_b32 s99, s99, 7\ns_lshl_b32 s99, s99, 2", None),
                           ("s_add_u32 s99, s99, s%d\ns_mul_i32 s99, s99, %d\nv_subrev_u32 v%d, %d, v%d" % (sW, 56 * 128, vDKV, MB, vMB), None),
                           ("v_lshlrev_b32 v%d, 5, v%d" % (vDKV, vDKV), None),
                           ("s_mov_b32 exec_hi, 0x00ffffff\nbuffer_load_dword a200, v%d, %s, s99 offen %s\ns_mov_b32 exec_hi, -1"
                            % (vDKV, srd(SRD_WO), opt("tnt", "")), "t")]
            if int(opt("ftouch", "0")):
                post = post + [("s_lshr_b32 s99, s3, 4\ns_lshl_b32 s99, s99, 11\ns_add_u32 s99, s99, %d" % FLG, None),
                               ("v_mov_b32 v%d, s99\nv_mov_b32 v%d, 0" % (vDKV, vK), None),
                               ("s_mov_b64 exec, 1\nglobal_load_dword a201, v%d, s[60:61] sc1\ns_mov_b64 exec, -1" % vDKV, "t"),
                               ("s_mov_b64 exec, 1\nbuffer_load_dword a202, v%d, %s, 0 offen sc1\ns_mov_b64 exec, -1" % (vK, srd(SRD_WS)), "t"),
                               ("s_mov_b64 exec, 1\nglobal_load_dword a203, v%d, s[56:57]\ns_mov_b64 exec, -1" % vK, "t")]
        vm = 16 if n < 26 else [("K", min(n + 2, 31)), ("V", n if n < 30 else 31)]
        pref = qk_pref(n + 2, r, k + 16) if n < 30 else pv_pref(31, r, k + 16)
        if n == 27:
            t0 = vTmp
            E("v_mbcnt_lo_u32_b32 v%d, -1, 0\nv_mbcnt_hi_u32_b32 v%d, -1, v%d" % (t0, t0, t0))
            E("v_lshrrev_b32 v%d, 4, v%d\nv_lshlrev_b32 v%d, 1, v%d\nv_xor_b32 v%d, v%d, v%d\nv_and_b32 v%d, 7, v%d\nv_lshlrev_b32 v%d, 4, v%d"
              % (vSc, t0, vSc, vSc, vSc, vSc, t0, vSc, vSc, vSc, vSc))
            E("v_lshrrev_b32 v%d, 3, v%d\nv_mul_u32_u24 v%d, 896, v%d\nv_add_u32 v%d, v%d, v%d\ns_mul_i32 s99, s%d, %d\nv_add_u32 v%d, s99, v%d"
              % (t0, t0, t0, t0, vSc, vSc, t0, sW, 32 * 896, vSc, vSc))
        k = step(n, r, k, pre, post, vm, pref, all_next=(n == 30))
    drain_writes()
    E("s_barrier")
    for t in partner_reads(31, r):
        E(t)
    fr, mf = Frags(k), []
    pv_part(31, r, fr, mf)
    run_phase(mf, [fr.items(LEAD, LEAD), [Item(t, 2, BIG) for t in tail_setup()]], "pv31")
    if r == 0:
        E("s_branch L_oproj")
E("L_oproj:")
stamp()
E("s_memrealtime s[96:97]")
vmwait([("O", 1)])
E("s_waitcnt lgkmcnt(0)")
E("s_barrier")


def hold_of(sg, a_, kk):
    return aHOLD + 32 * sg + 4 * (4 * a_ + kk)


def stage_part(sg, a_, fr, mf, kfirst, prev_buf):
    buf = OBUF[sg & 3]
    dwin = ((buf & ~0xffff) - (prev_buf & ~0xffff)) & 0xffffffff
    off = buf & 0xffff
    for kk in range(4):
        for nt in range(2):
            rg = TB[8 * a_ + 2 * kk + nt]
            hold = hold_of(sg, a_, kk) if (sg < 2 and nt == 1) else None
            pre_ = ["v_add_u32 v%d, 0x%x, v%d" % (rg, dwin, rg)] if dwin else []
            bb = fr.new(mf, (lambda p_, f_: (lambda b: p_ + f_(b)))(pre_, rdtr(rg, rg, off, off + 2048)), hold)
            kfirst.setdefault((sg, a_, kk), len(mf))
            z = (a_ == 0 and kk == 0)
            for T in range(4):
                d = acc_(sg, T) + 4 * nt
                mf.append(dict(text=mfma(vr(d), ar(bb), vr(OFo(T, kk)) if a_ == 0 else ar(OFp(T, kk)), "0" if z else vr(d))))
            if nt == 1 and sg >= 2:
                j = 4 * a_ + kk
                mf.append(dict(text=mfma(vr(acc9(sg)), ar(bb), ar(aOF9 + 4 * j), "0" if z else vr(acc9(sg)))))
                if sg == 2:
                    for s9 in range(2):
                        mf.append(dict(text=mfma(vr(acc9(s9)), ar(hold_of(s9, a_, kk)), ar(aOF9 + 4 * j), "0" if j == 0 else vr(acc9(s9)))))


def build_stage(sg, k0):
    fr, mf, kfirst = Frags(k0), [], {}
    if sg == 0:
        for (s_, a_) in ((0, 0), (1, 0), (0, 1), (1, 1)):
            stage_part(s_, a_, fr, mf, kfirst, OBUF[0])
    else:
        for a_ in range(2):
            stage_part(sg, a_, fr, mf, kfirst, OBUF[(sg - 1) & 3])
    return fr, mf, kfirst


def conv_items(kk, e, d):
    return [Item("v_cvt_pk_bf16_f32 v%d, v%d, v%d" % (OFo(T, kk) + j, O_(T, 2 * kk) + 2 * j, O_(T, 2 * kk) + 2 * j + 1), e, d)
            for T in range(4) for j in range(4)]


def out_items(sg, e0, step_, nine):
    its = []
    for T in range(4):
        e = e0 + T * step_
        a0 = acc_(sg, T)
        for j in range(8):
            its.append(Item("v_mul_f32 v%d, v%d, v%d" % (a0 + j, vRI + T, a0 + j), e, BIG))
        for j in range(4):
            its.append(Item("v_cvt_pk_bf16_f32 v%d, v%d, v%d" % (a0 + j, a0 + 2 * j, a0 + 2 * j + 1), e, BIG))
        its.append(Item("s_mov_b32 s%d, %d\nbuffer_store_dwordx4 %s, v%d, %s, s%d offen offset:%d %s"
                        % (sT1, sg * 16384 + (T >> 1) * 4096, vr(a0), vST, srd(SRD_WS), sT1, (T & 1) * 2048, STP), e, BIG, ("st", sg)))
    e = e0 + 4 * step_
    for s9 in nine:
        a0, d = acc9(s9), v9st + 2 * (s9 & 1)
        for j in range(4):
            its.append(Item("v_mul_f32 v%d, v%d, v%d" % (a0 + j, vRI + 4, a0 + j), e, BIG))
        its.append(Item("v_cvt_pk_bf16_f32 v%d, v%d, v%d\nv_cvt_pk_bf16_f32 v%d, v%d, v%d" % (d, a0, a0 + 1, d + 1, a0 + 2, a0 + 3), e, BIG))
        if s9 == 6:
            its.append(Item("v_mov_b32 v%d, 0\nv_mov_b32 v%d, 0" % (v9st + 2, v9st + 3), e, BIG))
        if (s9 & 1) or s9 == 6:
            its.append(Item("s_mov_b32 s%d, %d\nbuffer_store_dwordx4 %s, v%d, %s, s%d offen %s"
                            % (sT1, 114688 + 4096 * (s9 >> 1), vr(v9st), vST9, srd(SRD_WS), sT1, STP), e, BIG, ("st", sg)))
    return its


npub = [0]


def publish(parts):
    k_ = npub[0]
    npub[0] += 1
    E("s_cmp_lg_u32 s%d, 0\ns_cbranch_scc1 L_nopub%d" % (sW, k_))
    E("s_mov_b64 exec, 0x%x\nv_mov_b32 v2, s96\nv_mov_b32 v3, s97\ns_mov_b64 exec, 0xffff" % ((2 << max(parts)) - 1))
    raw("global_store_dwordx2 v1, v[2:3], s[14:15] sc1")
    E("s_mov_b64 exec, -1")
    E("L_nopub%d:" % k_)


fr0 = build_stage(0, 0)[0]
for f in range(LEAD):
    E("\n".join(fr0.fr[f][1]))
for it in conv_items(0, -1, BIG):
    it.emit()
k = 0
issue_plan = {2: [6, 7, 8, 9], 3: [10, 11], 4: [12, 13]} if opt("plan", "1") == "0" else {2: [6, 7, 8], 3: [9, 10], 4: [11, 12], 5: [13]}
for sg in (0, 2, 3, 4, 5, 6):
    fr, mf, kfirst = build_stage(sg, k)
    N = len(mf)
    stamp(STAMP == 5)
    bpos = N - EARLY
    rq = fr.items(LEAD, LEAD)
    nxt = 2 if sg == 0 else sg + 1
    pieces = []
    for q in issue_plan.get(sg, []):
        pieces += dma_wo(q)
    dq = spread(pieces, 0, 3)
    if opt("plan", "1") != "0" and pieces:
        nq_ = len(issue_plan[sg])
        sa, sb = int(opt("dsa", "4")), int(opt("dsb", "7"))
        dq = spread(pieces[:4 * (nq_ - 1)] if sg < 5 else pieces, 0, sa) + (spread(pieces[4 * (nq_ - 1):], sa * 4 * (nq_ - 1) + 8, sb) if sg < 5 else [])
    if sg < 6:
        nf = build_stage(nxt, fr.k)[0]
        for it in rq:
            it.d = min(it.d, bpos - 3)
            it.e = min(it.e, it.d)
        for j in range(LEAD):
            rq.append(Item("\n".join(nf.fr[j][1]), bpos, bpos + 2 + 2 * j))

    def stage_barrier(sg=sg, fr=fr, nxt=nxt):
        P.wait_ds_regs(rset("a", fr.fr[-1][0]))
        drain_writes()
        pub = ({3: [0, 1], 4: [2], 5: [3]} if opt("publate", "0") == "0" else {4: [0, 1], 5: [2]}).get(sg, [])
        vmwait([("O", 2 * nxt + 1)] + [("st", p_) for p_ in pub])
        E("s_barrier")
        if pub:
            publish(pub)
    if sg < 6:
        mf[bpos]["pre"] = [stage_barrier]
    cq, xq, wq_ = [], [], []
    if sg == 0:
        M = kfirst[(0, 1, 0)] - 8
        M2 = M + 18
        wq_.append(Item("v_add_u32 v31, s%d, v0\nv_add_u32 v31, %d, v31" % (sW4K, O9S), -1, M - 1))
        wq_ += [Item("ds_write_b128 v31, %s offset:%d" % (ar(aO9 + 4 * b_), 1024 * b_), -1, M - 1) for b_ in range(4)]
        for kk in range(4):
            if kk:
                cq += conv_items(kk, -1, kfirst[(0, 0, kk)] - 2)
            wq_ += [Item("ds_write_b128 v%d, %s offset:%d" % (wA + (kk >> 1), vr(OFo(T, kk)), T * 8192 + (kk & 1) * 1024),
                         kfirst[(0, 0, kk)] - 1 if kk else -1, M - 1) for T in range(4)]

        def mid_barrier():
            drain_writes()
            E("s_barrier")

        def mid2_barrier():
            P.wait_ds_regs(rset("a", OFp(3, 3)))
            E("s_barrier")
        mf[M]["pre"] = [mid_barrier]
        mf[M2]["pre"] = [mid2_barrier]
        j = 0
        for kk in range(4):
            for T in range(4):
                wq_.append(Item("ds_read_b128 %s, v%d offset:%d" % (ar(OFp(T, kk)), rA + (kk >> 1), T * 8192 + (kk & 1) * 1024),
                                M, M + j // 2 + (2 if kk else 0)))
                j += 1
        dq = spread(dma_wo(4) + dma_wo(5), M2, 3)
        lq = ["s_xor_b32 s99, s%d, 1\ns_mul_i32 s99, s99, 320\ns_add_u32 s99, s99, %d\nv_add_u32 v30, s99, v3\nv_add_u32 v3, %d, v3" % (sW, LX, LX + 256)]
        lq += ["ds_read_b32 v%d, v30 offset:%d" % (244 + T, 64 * T) for T in range(4)]
        lq += ["ds_read_b32 v%d, v3 offset:%d" % (248 + w_, 320 * w_) for w_ in range(4)]
        lq += ["v_add_f32 v%d, v%d, v%d" % (vL + T, vL + T, 244 + T) for T in range(4)]
        lq += ["v_add_f32 v248, v248, v249\nv_add_f32 v250, v250, v251", "v_add_f32 v%d, v248, v250" % (vL + 4),
               "v_add_f32 v244, v%d, v%d\nv_add_f32 v245, v%d, v%d" % (vL, vL + 1, vL + 2, vL + 3),
               "v_add_f32 v244, v244, v245\nv_add_f32 v244, v244, v%d" % (vL + 4),
               "s_mov_b32 s99, %s\nv_cmp_nge_f32 vcc, s99, v244" % fbits(LTHR),
               "s_lshl_b32 s98, s%d, 2\ns_add_u32 s98, s98, %d\nv_mov_b32 v245, s98" % (sW, LX + 2048),
               "s_cmp_lg_u64 vcc, 0\ns_cselect_b32 s99, 1, 0\nv_mov_b32 v244, s99",
               "ds_write_b32 v245, v244"]
        xq = [Item(t, kfirst[(1, 0, 0)], M - 1) for t in lq]
        xq += [Item("v_rcp_f32 v%d, v%d" % (vRI + T, vL + T), kfirst[(1, 0, 0)], BIG) for T in range(5)]
        t9 = ["s_xor_b32 s99, s%d, 0x2000\ns_add_u32 s99, s99, %d\nv_add_u32 v31, s99, v0" % (sW4K, O9S)]
        t9 += ["ds_read_b128 %s, v31 offset:%d" % (vr(176 + 4 * b_), 1024 * b_) for b_ in range(4)]
        t9 += ["v_mov_b32 v30, %d\nds_read_b128 v[244:247], v30" % (LX + 2048)]
        t9 += ["v_accvgpr_read_b32 v%d, a%d" % (160 + j, aO9 + 16 + j) for j in range(16)]
        t9 += ["v_or3_b32 v244, v244, v245, v246\nv_or_b32 v244, v244, v247", "s_nop 0\nv_readfirstlane_b32 s99, v244",
               "s_nop 1\ns_andn2_b32 s99, s99, s%d\ns_cbranch_scc1 L_restart" % sPara]
        t9 += ["v_add_f32 v%d, v%d, v%d" % (160 + j, 160 + j, 176 + j) for j in range(16)]
        t9 += ["v_cvt_pk_bf16_f32 v%d, v%d, v%d" % (160 + j, 160 + 2 * j, 161 + 2 * j) for j in range(8)]
        t9 += ["s_lshl_b32 s99, s%d, 12\ns_xor_b32 s98, s%d, 1\ns_lshl_b32 s98, s98, 11" % (sC, sR),
               "s_add_u32 s99, s99, s98\ns_add_u32 s99, s99, %d\nv_add_u32 v31, s99, v0" % O9P]
        t9 += ["ds_write_b128 v31, %s offset:%d" % (vr(160 + 4 * j), 1024 * j) for j in range(2)]
        xq += [Item(t, M + 8, bpos - 1) for t in t9]
        for a_ in range(2):
            for kh in range(2):
                xq.append(Item("s_xor_b32 s99, s%d, %d\ns_lshl_b32 s99, s99, 12\ns_xor_b32 s98, s%d, %d" % (sC, a_, sR, kh), bpos, BIG))
                xq.append(Item("s_lshl_b32 s98, s98, 11\ns_add_u32 s99, s99, s98\ns_add_u32 s99, s99, %d" % O9P, bpos, BIG))
                xq.append(Item("v_add_u32 v31, s99, v0\nds_read_b128 %s, v31" % ar(aOF9 + 16 * a_ + 8 * kh), bpos, BIG))
                xq.append(Item("ds_read_b128 %s, v31 offset:1024" % ar(aOF9 + 16 * a_ + 8 * kh + 4), bpos, BIG))
        cq += out_items(0, kfirst[(1, 1, 0)] + 5, 5, [])
    elif sg == 2:
        cq = out_items(1, int(opt("se0", "5")), int(opt("sst", "11")) + 3, [])
        xq = [Item("s_load_dwordx2 s[12:13], s[0:1], 88\ns_load_dwordx2 s[14:15], s[0:1], 96\ns_waitcnt lgkmcnt(0)", 30, 30),
              Item("s_lshr_b32 s99, s3, 4\ns_lshl_b32 s99, s99, 11\ns_add_u32 s99, s99, %d" % FLG, 31, 40),
              Item("s_add_u32 s14, s14, s99\ns_addc_u32 s15, s15, 0", 31, 40),
              Item("s_and_b32 s99, s3, 15\ns_lshl_b32 s99, s99, 7\nv_lshrrev_b32 v1, 1, v0", 31, 44),
              Item("v_add_u32 v1, s99, v1\nv_mov_b32 v2, 0", 31, 44), Item("v_mov_b32 v3, 0", 31, 44)]
    else:
        cq = out_items(sg - 1, int(opt("se0", "5")), int(opt("sst", "11")), [0, 1, 2] if sg == 3 else [sg - 1])
    if sg == 6:
        xq = [Item("s_and_b32 s36, s3, 15\ns_lshr_b32 s99, s36, 2\ns_lshl_b32 s99, s99, 3", 40, 50),
              Item("v_lshrrev_b32 v30, 6, v0\nv_lshlrev_b32 v30, 7, v30", 40, 50), Item("v_add_u32 v31, s99, v30", 40, 50),
              Item("global_load_dwordx2 v[32:33], v31, s[14:15] sc1", 60, 62, "poll")]
    run_phase(mf, [rq, dq, cq, wq_, xq], "st%d" % sg)
    k = fr.k
for it in out_items(6, 0, 0, [6]):
    it.emit()
if int(opt("pub4", "0")):
    vmwait([("st", 4)])
    E("s_barrier")
    publish([4])
stamp()

E("s_load_dwordx2 s[4:5], s[0:1], 96\ns_load_dwordx2 s[8:9], s[0:1], 80")
E("v_lshrrev_b32 v5, 4, v0\nv_and_b32 v4, 15, v5\nv_lshrrev_b32 v5, 4, v5")
E("v_lshlrev_b32 v16, 17, v5\nv_lshl_add_u32 v16, v4, 4, v16")
E("v_mul_u32_u24 v17, 1792, v4\nv_lshrrev_b32 v6, 1, v5\nv_lshl_add_u32 v17, v6, 3, v17\nv_and_b32 v19, 1, v5")
E("v_lshl_add_u32 v14, v19, 7, v17\nv_lshl_add_u32 v17, v19, 5, v17\nv_lshlrev_b32 v19, 30, v19")
E("v_and_b32 v6, 1, v4\nv_lshlrev_b32 v6, 4, v6\nv_mov_b32 v7, 0x3f80\nv_lshlrev_b32 v7, v6, v7\nv_lshrrev_b32 v6, 1, v4")
for r_ in range(4):
    E("v_cmp_eq_u32 vcc, %d, v6\nv_cndmask_b32 v%d, 0, v7, vcc" % (r_, 40 + r_))
    E("v_cmp_eq_u32 vcc, %d, v6\nv_cndmask_b32 v%d, 0, v7, vcc" % (4 + r_, 44 + r_))
E("s_lshr_b32 s35, s3, 4\nv_mov_b32 v18, s%d" % (sClk + 1))
E("s_waitcnt lgkmcnt(0)")
E("s_lshl_b32 s99, s35, 21\ns_add_u32 s4, s4, s99\ns_addc_u32 s5, s5, 0\ns_mov_b32 s6, %d\ns_mov_b32 s7, 0x20000" % (16 * SLAB))
E("s_mov_b32 s10, %d\ns_mov_b32 s11, 0x20000" % (8 * 144 * 896 * 2))
E("s_and_b32 s16, s35, 7\ns_mul_i32 s16, s16, %d\ns_lshr_b32 s17, s35, 3\ns_mul_i32 s17, s17, 896\ns_add_u32 s16, s16, s17" % (144 * 1792))
E("s_lshl_b32 s17, s35, 4\nv_mov_b32 v8, s17")
E("s_lshl_b32 s19, s36, 2\ns_add_u32 s19, s19, s%d" % sW)
E("s_mov_b32 s21, 0\ns_mov_b32 s22, 0\ns_mov_b64 s[46:47], 0")
LIM = int(opt("lim", "2000"))
UD = [64, 176]


def uloads(u):
    E("s_lshl_b32 s20, s19, 10\ns_add_u32 s20, s20, %d" % (65536 * u))
    for p_ in range(4):
        for pc in range(4):
            E("buffer_load_dwordx4 %s, v16, s[4:7], s20 offen offset:%d %s" % (vr(UD[u] + 16 * p_ + 4 * pc), 256 * pc, LDP))
        if p_ < 3:
            E("s_add_u32 s20, s20, %d" % (4 * SLAB))


def flags_ok():
    E("v_subrev_co_u32 v32, vcc, s%d, v32\nv_subb_co_u32 v33, vcc, v33, v18, vcc\nv_cmp_eq_u32 vcc, 0, v33" % sClk)
    E("s_cmp_eq_u64 vcc, -1")


SLP = int(opt("slp", "0"))


def spin(name):
    E("s_cmp_lg_u32 s%d, 0\ns_cbranch_scc1 L_%s_j" % (sW, name))
    E("L_%s:" % name)
    E("global_load_dwordx2 v[32:33], v31, s[14:15] sc1\ns_waitcnt vmcnt(0)")
    E("L_%s_c:" % name)
    flags_ok()
    E("s_cselect_b32 s99, 1, 0\ns_cbranch_scc1 L_%s_d" % name)
    if SLP:
        E("s_sleep %d" % SLP)
    E("s_add_u32 s21, s21, 1\ns_cmp_lt_u32 s21, %d\ns_cbranch_scc1 L_%s" % (LIM, name))
    E("L_%s_d:" % name)
    E("v_mov_b32 v35, s99\nds_write_b32 v36, v35 offset:%d\ns_waitcnt lgkmcnt(0)" % (4 * (name == "spin2")))
    E("L_%s_j:" % name)
    E("s_barrier\nds_read_b32 v35, v36 offset:%d\ns_waitcnt lgkmcnt(0)\nv_readfirstlane_b32 s99, v35" % (4 * (name == "spin2")))
    E("s_cmp_eq_u32 s99, 1")


E("v_mov_b32 v36, %d" % (LX + 3072))
E("s_waitcnt vmcnt(0)")
E("L_drained:")
stamp()
E("s_barrier")
publish([5, 6])
E("s_cmp_eq_u32 s%d, 0\ns_cbranch_scc1 L_spin1_c" % sW)
spin("spin1")
E("s_cselect_b32 s23, 1, 0\ns_cbranch_scc0 L_have1")
uloads(0)
E("L_have1:")
stamp()
E("s_cmp_lg_u32 s%d, 0\ns_cbranch_scc1 L_noadd\ns_mov_b64 exec, 1\nv_mov_b32 v9, 1" % sW)
E("global_atomic_add v34, v8, v9, s[12:13] sc0")
E("s_mov_b64 exec, -1\nL_noadd:")
E("s_lshr_b32 s99, s36, 2\ns_add_u32 s99, s99, 4\ns_lshl_b32 s98, s36, 1\ns_sub_u32 s98, s98, 23\ns_min_u32 s98, s98, 6\ns_max_u32 s98, s98, 2\ns_cmp_ge_u32 s36, 12\ns_cselect_b32 s99, s98, s99")
E("s_lshl_b32 s99, s99, 3\nv_add_u32 v31, s99, v30")
spin("spin2")
E("s_cselect_b32 s99, s23, 0\ns_cmp_eq_u32 s99, 1\ns_cbranch_scc1 L_second")
E("L_slow:")
E("s_mov_b32 s21, 0")
E("L_spin3:")
E("global_load_dword v32, v8, s[12:13] sc1\ns_waitcnt vmcnt(0)\nv_readfirstlane_b32 s99, v32")
E("s_cmp_eq_u32 s99, 16\ns_cbranch_scc1 L_both")
E("s_add_u32 s21, s21, 1\ns_cmp_lt_u32 s21, %d\ns_cbranch_scc1 L_spin3" % LIM)
E("s_lshl_b64 s[98:99], 1, s19\ns_mov_b64 exec, 1\nv_mov_b32 v32, s98\nv_mov_b32 v33, s99")
E("global_atomic_or_x2 v8, v[32:33], s[12:13] offset:8\ns_waitcnt vmcnt(0)\ns_mov_b64 exec, -1")
E("global_load_dword v32, v8, s[12:13] sc1\ns_waitcnt vmcnt(0)\nv_readfirstlane_b32 s99, v32")
E("s_cmp_eq_u32 s99, 16\ns_cbranch_scc0 L_next")
E("L_both:")
P.vmq = []
uloads(0)
E("L_second:")
stamp()
uloads(1)
for u in range(2):
    E("s_add_u32 s21, s19, %d" % (64 * u))
    if u == 1:
        E("s_cmp_ge_u32 s21, 112\ns_cbranch_scc1 L_t9")
    E("s_lshr_b32 s20, s21, 4\ns_lshl_b32 s20, s20, 7\ns_add_u32 s20, s20, s16")
    E("s_bfe_u32 s99, s21, 0x30001\ns_mul_i32 s99, s99, %d\ns_add_u32 s20, s20, s99" % (16 * 1792))
    E("s_and_b32 s99, s21, 1\ns_lshl_b32 s99, s99, 6\ns_add_u32 s%d, s20, s99" % (50 + u))
    E("s_bfe_u32 s99, s21, 0x10003\ns_lshl_b32 s99, s99, 5")
    E("v_xor_b32 v%d, s99, v17" % (12 + u))
E("s_branch L_sum")
E("L_t9:")
E("s_bfe_u32 s20, s21, 0x20002\ns_and_b32 s99, s21, 1\ns_lshl_b32 s99, s99, 1\ns_bfe_u32 s98, s21, 0x10001\ns_xor_b32 s98, s98, 1\ns_add_u32 s99, s99, s98\ns_lshl_b32 s99, s99, 5")
E("s_lshl_b32 s51, s20, 8\ns_add_u32 s51, s51, s99\ns_add_u32 s51, s51, s16\ns_add_u32 s51, s51, %d" % (128 * 1792))
E("v_mov_b32 v13, v14\ns_cmp_eq_u32 s20, 3\ns_cbranch_scc0 L_sum\nv_add_u32 v13, v19, v14")
E("L_sum:")
for u in range(2):
    for p_ in range(4):
        for pc in range(4):
            d = 48 + 8 * u + 4 * (pc >> 1)
            E(mfma(vr(d), vr(40 if (pc & 1) == 0 else 44), vr(UD[u] + 16 * p_ + 4 * pc), "0" if (p_ == 0 and (pc & 1) == 0) else vr(d)))
for u in range(2):
    for k_ in range(2):
        d = 48 + 8 * u + 4 * k_
        E("v_cvt_pk_bf16_f32 v%d, v%d, v%d\nv_cvt_pk_bf16_f32 v%d, v%d, v%d" % (d, d, d + 1, d + 1, d + 2, d + 3))
        E("buffer_store_dwordx2 v[%d:%d], v%d, s[8:11], s%d offen offset:%d %s" % (d, d + 1, 12 + u, 50 + u, 16 * k_, opt("ost", "")))
E("L_next:")
E("s_cmp_lg_u32 s%d, 0\ns_cbranch_scc1 L_done" % sW)
E("s_cmp_lg_u32 s22, 0\ns_cbranch_scc1 L_more")
E("s_mov_b32 s22, 1\nv_readfirstlane_b32 s99, v34\ns_cmp_eq_u32 s99, 15\ns_cbranch_scc0 L_done")
E("global_load_dwordx2 v[32:33], v8, s[12:13] offset:8 sc1\ns_waitcnt vmcnt(0)\nv_readfirstlane_b32 s46, v32\nv_readfirstlane_b32 s47, v33")
E("L_more:")
E("s_cmp_eq_u64 s[46:47], 0\ns_cbranch_scc1 L_done")
E("s_ff1_i32_b64 s19, s[46:47]\ns_bitset0_b64 s[46:47], s19\ns_branch L_both")
E("L_done:")
if STAMP:
    E("s_waitcnt vmcnt(0)")
    stamp()
    E("s_waitcnt lgkmcnt(0)")
    if STAMP == 1:
        E("s_memtime s[94:95]\ns_waitcnt lgkmcnt(0)")
    E("v_mov_b32 v1, 0")
    E("s_cmp_lg_u32 s%d, 0\ns_cbranch_scc1 L_end" % sW)
    if STAMP == 7:
        E("v_lshrrev_b32 v2, 2, v0\nv_accvgpr_read_b32 v3, a199\nv_accvgpr_read_b32 v4, a198")
        E("s_mov_b64 exec, 0xffff\nglobal_store_dword v2, v3, s[%d:%d] offset:128\nglobal_store_dword v2, v4, s[%d:%d] offset:192" % (sWSB, sWSB + 1, sWSB, sWSB + 1))
    E("s_mov_b64 exec, 1")
    for k_ in range(16):
        E("v_mov_b32 v2, s%d\nv_mov_b32 v3, s%d" % (sStamp + 2 * k_, sStamp + 2 * k_ + 1))
        E("global_store_dwordx2 v1, v[2:3], s[%d:%d] offset:%d" % (sWSB, sWSB + 1, 8 * k_))
        E("s_nop 1")
E("L_end:\ns_endpgm")
main_ins = P.ins

R = Prog()
F = R.emit
for s_ in stubs:
    F(s_)
F("L_restart:\ns_waitcnt vmcnt(0) lgkmcnt(0)\ns_barrier\ns_mov_b32 s%d, 1\ns_branch L_start" % sPara)
for par in range(2):
    sc = P_base[par]
    F("L_fix%d:" % par)
    F("s_nop 15\ns_waitcnt lgkmcnt(0)")
    for T in range(5):
        s0 = S_(par, T)
        F("v_max3_f32 v%d, v%d, v%d, v%d\nv_max_f32 v%d, v%d, v%d" % (sc + T, s0, s0 + 1, s0 + 2, sc + T, sc + T, s0 + 3))
    F("v_mov_b32 v%d, 0xff800000\ns_cmp_eq_u32 s%d, 1\ns_cbranch_scc1 L_fix%d_a\nv_mov_b32 v%d, v%d\nL_fix%d_a:" % (sc + 5, sHas9, par, sc + 4, sc + 5, par))
    for T in range(5):
        for sw in ("v_permlane32_swap_b32", "v_permlane16_swap_b32"):
            F("v_mov_b32 v%d, v%d\ns_nop 1\n%s v%d, v%d\ns_nop 1\nv_max_f32 v%d, v%d, v%d" % (sc + 5, sc + T, sw, sc + T, sc + 5, sc + T, sc + T, sc + 5))
    F("s_mul_i32 s99, s%d, 1280\nv_add_u32 v%d, s99, v%d" % (sW, sc + 5, vMB))
    for T in range(5):
        F("ds_write_b32 v%d, v%d offset:%d" % (sc + 5, sc + T, 256 * T))
    F("s_waitcnt lgkmcnt(0)\ns_barrier")
    F("s_xor_b32 s99, s%d, 1\ns_mul_i32 s99, s99, 1280\nv_add_u32 v%d, s99, v%d" % (sW, sc + 5, vMB))
    for T in range(4):
        F("ds_read_b32 v%d, v%d offset:%d" % (sc + 6 + T, sc + 5, 256 * T))
    for w_ in range(4):
        F("ds_read_b32 v%d, v%d offset:%d" % (sc + 10 + w_, vMB, 1280 * w_ + 1024))
    F("s_waitcnt lgkmcnt(0)")
    for T in range(4):
        F("v_max3_f32 v%d, v%d, v%d, s%d" % (sc + T, sc + T, sc + 6 + T, sFloor))
    F("v_max3_f32 v%d, v%d, v%d, v%d\nv_max3_f32 v%d, v%d, v%d, s%d" % (sc + 4, sc + 10, sc + 11, sc + 12, sc + 4, sc + 4, sc + 13, sFloor))
    for T in range(5):
        for j in range(4):
            F("v_sub_f32 v%d, v%d, v%d" % (vNegM + 4 * T + j, vNegM + 4 * T + j, sc + T))
        if T == 4:
            F("s_cmp_eq_u32 s%d, 0\ns_cbranch_scc1 L_fix%d_b" % (sHas9, par))
        for j in range(4):
            F("v_sub_f32 v%d, v%d, v%d" % (S_(par, T) + j, S_(par, T) + j, sc + T))
    F("L_fix%d_b:" % par)
    F("s_cmp_eq_u32 s%d, 1\ns_cbranch_scc1 L_fix%d_c" % (sFirst, par))
    for T in range(5):
        F("v_sub_f32 v%d, 0, v%d\nv_exp_f32 v%d, v%d\ns_nop 0\nv_mul_f32 v%d, v%d, v%d\nv_accvgpr_write_b32 a%d, v%d"
          % (sc + T, sc + T, sc + T, sc + T, vL + T, vL + T, sc + T, aF + T, sc + T))
    F("L_fix%d_c:\ns_nop 3\ns_setpc_b64 s[%d:%d]" % (par, sRet, sRet + 1))
F("L_fixo:")
F("s_nop 15")
for T in range(4):
    F("v_accvgpr_read_b32 v%d, a%d" % (vTmp, aF + T))
    for j in range(32):
        F("v_mul_f32 v%d, v%d, v%d" % (vO + 32 * T + j, vTmp, vO + 32 * T + j))
F("v_accvgpr_read_b32 v%d, a%d" % (vTmp, aF + 4))
for j in range(32):
    F("v_accvgpr_read_b32 v%d, a%d\nv_mul_f32 v%d, v%d, v%d\nv_accvgpr_write_b32 a%d, v%d" % (vTmp + 1, aO9 + j, vTmp + 1, vTmp, vTmp + 1, aO9 + j, vTmp + 1))
F("s_nop 3\ns_setpc_b64 s[%d:%d]" % (sRet, sRet + 1))

KILL = OPT.get("kill", "").split(",") if OPT.get("kill") else []
if KILL:
    keep, inside = [], False
    for i in main_ins:
        if i.text.startswith("L_loop"): inside = True
        if "s_cbranch_scc1 L_loop" in i.text: inside = False
        drop = False
        if inside and "sLoop" not in i.text and ("s%d," % sLoop) not in i.text:
            if "dma" in KILL and (i.kind == "dma" or (i.kind == "wait" and "vmcnt" in i.text)): drop = True
            if "bar" in KILL and i.kind == "barrier": drop = True
            if "exp" in KILL and i.kind == "trans": drop = True
            if "valu" in KILL and i.kind == "valu": drop = True
            if "dsw" in KILL and i.kind == "dsw": drop = True
            if "ds" in KILL and i.kind in ("dsr", "dsw"): drop = True
            if "wait" in KILL and i.kind == "wait" and "lgkm" in i.text: drop = True
        if not drop: keep.append(i)
    main_ins = keep
TK = OPT.get("tkill", "").split(",") if OPT.get("tkill") else []
if TK:
    keep, inside = [], False
    for i in main_ins:
        if i.text.startswith("L_oproj"): inside = True
        if i.text.startswith("L_drained"): inside = False
        drop = False
        if inside:
            if "st" in TK and i.kind == "vst" and "dwordx4" in i.op: drop = True
            if "wo" in TK and i.kind == "dma": drop = True
            if "dsw" in TK and i.kind == "dsw" and "b128" in i.op: drop = True
            if "mul" in TK and (i.op.startswith("v_mul_f32") or i.op.startswith("v_cvt_pk")): drop = True
            if "bar" in TK and i.kind == "barrier" and False: drop = True
        if not drop: keep.append(i)
    main_ins = keep
rep = []
main_ins = pad_hazards(main_ins, rep)
rare_ins = pad_hazards(R.ins, None)
from collections import Counter
sys.stderr.write("hazard pads (main): %s\n" % dict(Counter(r_[0] for r_ in rep)))
if OPT.get("v") == "2":
    for r_ in rep:
        sys.stderr.write("  %s\n" % (r_,))
txt = lambda ins: "\n".join(("" if i.kind == "label" else "    ") + i.text for i in ins)
hdr = open("concat_heads__gqa_block_cached__mha_block_cached__near_ridge.s.ref").read().split("; Override launch")[0]
print(hdr.rstrip())
print("; @launch grid=(256,1,1) block=(256,1,1) lds=%d" % LDS_TOTAL)
print('.amdgcn_target "amdgcn-amd-amdhsa--gfx950"')
print(".text")
print(".globl %s\n.p2align 8\n.type %s,@function" % (KN, KN))
body = txt(main_ins) + "\n" + txt(rare_ins) + "\nL_codeend:"
if OPT.get("split"):
    pa, pb = OPT["split"].split(",")
    first, rest = body.split("\n", 1)

    def variant(t, pol, cap):
        t = re.sub(r"(buffer_load_dwordx4 v0, s\[\d+:\d+\], s\d+ offen offset:\d+) nt lds", r"\1 %s lds" % pol.replace("_", " "), t)
        if cap:
            t = re.sub(r"s_waitcnt vmcnt\(%d\)\n(\s+buffer_load_dwordx4 v0,)" % (CAPV - 1), r"s_waitcnt vmcnt(%d)\n\1" % (int(cap) - 1), t)
        return t
    bcopy = re.sub(r"\bL_(\w+)", r"L_\1_B", variant(rest, pb, OPT.get("capb")))
    body = first + "\n    s_bitcmp1_b32 s2, 7\n    s_cbranch_scc0 L_entry_A\n    s_getpc_b64 s[4:5]\nL_jb:\n    s_add_u32 s4, s4, L_entry_B-L_jb\n    s_addc_u32 s5, s5, 0\n    s_setpc_b64 s[4:5]\nL_entry_A:\n" + \
        variant(rest, pa, OPT.get("capa")) + "\n.p2align 6\nL_entry_B:\n" + bcopy
print(body)
print('.section .rodata,"a"')
print(""".p2align 6
.amdhsa_kernel %s
  .amdhsa_next_free_vgpr 512
  .amdhsa_next_free_sgpr 102
  .amdhsa_accum_offset 256
  .amdhsa_group_segment_fixed_size 0
  .amdhsa_kernarg_size 104
  .amdhsa_user_sgpr_count 2
  .amdhsa_user_sgpr_kernarg_segment_ptr 1
  .amdhsa_system_sgpr_workgroup_id_x 1
.end_amdhsa_kernel""" % KN)
```

```python
import sys, struct, math, re
sys.path.insert(0, "work")
from asmlib import *

OPT = dict(a.split("=") for a in sys.argv[1:] if "=" in a)
opt = lambda k, d: OPT.get(k, d).replace("_", " ")
NT = opt("nt", "nt")
WNT = opt("wnt", "")
STP = opt("st", "sc1")
LDP = opt("ld", "sc1")
STAMP = int(opt("stamp", "0"))
LEAD = int(opt("lead", "3"))
CAPS = [int(c) for c in opt("caps", opt("capv", "7767"))]
CAPV = CAPS[0]
EARLY = int(opt("early", "10"))
PARA = int(opt("para", "0"))
LTHR = float(opt("lthr", str(2.0 ** 30)))

KN = "concat_heads__gqa_block_cached__mha_block_cached__near_ridge_kernel"
SLOT = 16384
KB, VB = 0, 65536
PX = 131072
MB = 151552
XB = 98304
QS = 81920
LDS_TOTAL = 163840
CSCALE = math.log2(math.e) / 16.0
BIG = 10 ** 6
SLAB = 131072
FLG = 0x2000000

fbits = lambda x: "0x%08x" % struct.unpack("<I", struct.pack("<f", x))[0]
vr = lambda n, k=4: "v[%d:%d]" % (n, n + k - 1)
ar = lambda n, k=4: "a[%d:%d]" % (n, n + k - 1)
srd = lambda n: "s[%d:%d]" % (n, n + 3)
mfma = lambda d, a, b, c: "v_mfma_f32_16x16x32_bf16 %s, %s, %s, %s" % (d, a, b, c)
rset = lambda k, n, c=4: {(k, n + i) for i in range(c)}

SRD_X, SRD_WQ, SRD_K, SRD_V, SRD_WO, SRD_WS = 4, 8, 12, 16, 20, 24
sW, sW4K, sR, sC = 28, 29, 30, 31
sOffK, sOffV, sTmpO, sLoop = 32, 33, 34, 35
sFloor, sFirst, sHas9, sPara = 36, 37, 38, 39
sRet = 40
sT0, sT1, sT2, sT3 = 42, 43, 44, 45
sXm0 = 46
sClk = 48
sWSB = 62
sStamp = 64
vDKV, vPW, vPR, vMB = 0, 1, 2, 3
vK = 4
vV = 8
vL = 24
vSc = 29
vTmp = 30
vP9 = 36
vNegM = 40
S_base = {0: 60, 1: 76}
vS9 = 92
P_base = {0: 96, 1: 112}
vO = 128
aQ = 0
aO9 = 160
aF = 192
aPOOL, NPOOL = 224, 8

S_ = lambda par, T: S_base[par] + 4 * T if T < 4 else vS9
P_ = lambda par, T: P_base[par] + 4 * T if T < 4 else vP9
Q_ = lambda T, s: aQ + 32 * T + 4 * s
O_ = lambda T, b: vO + 32 * T + 4 * b
own9 = lambda n, r: ((n >> 1) & 1) == r

P = Prog()
E = P.emit
stubs = []
nstamp = [0]


def raw(t):
    for l in t.split("\n"):
        P.ins.append(Ins(l.strip()))


def stamp(cond=True):
    if STAMP and cond and nstamp[0] < (16 if STAMP in (5, 6, 9) else 8):
        raw("s_memrealtime s[%d:%d]" % (sStamp + 2 * nstamp[0], sStamp + 2 * nstamp[0] + 1))
        nstamp[0] += 1


SCALAR = ("salu", "wait", "branch", "barrier", "nop", "smem")


def advance(t, ins):
    for I in ins:
        if I.kind == "label":
            continue
        if I.kind in SCALAR:
            t += 4 * (I.cost if I.kind == "nop" else 1)
        else:
            t = max(t, 8)
            if I.kind == "trans":
                t += 8
            elif I.kind == "dsw":
                t += 20 if ("b128" in I.op or "write2" in I.op) else (10 if "b64" in I.op else 6)
            elif I.op.startswith("v_pk_"):
                t += 20
            else:
                t += 4
    return t


class Item:
    def __init__(self, text, e=-1, d=BIG, tag=None, cost=None):
        self.text, self.e, self.d, self.tag = text, e, d, tag
        self.ins = [Ins("s_nop 0")] if callable(text) else [Ins(l.strip()) for l in text.split("\n") if l.strip()]
        self.lead_scalar = self.ins[0].kind in SCALAR

    def emit(self):
        self.text() if callable(self.text) else E(self.text, tag=self.tag)


PACK2 = int(opt("pack2", "1"))


def run_phase(mf, queues, name="", carry=()):
    qs = [list(q) for q in queues]
    for q in qs:
        for j in range(len(q) - 2, -1, -1):
            q[j].d = min(q[j].d, q[j + 1].d)
        for it in q:
            assert it.e <= it.d or it.d >= BIG, (name, it.text, it.e, it.d)
    lost = [0]
    n = len(mf)

    def pressure(g):
        return None

    def fill(g, t):
        while True:
            best = None
            for qi, q in enumerate(qs):
                if q and q[0].e <= g:
                    it = q[0]
                    forced = it.d <= g
                    te = advance(t, it.ins)
                    fits = te <= 16 or (t <= 8 and advance(4, it.ins) > 16)
                    if forced or fits:
                        key = (0 if forced else 1, 0 if (t == 4 and it.lead_scalar) else 1, it.d, qi)
                        if best is None or key < best[0]:
                            best = (key, qi, te)
            if best is None:
                break
            it = qs[best[1]].pop(0)
            w0 = P.nwaits
            nw = sum(1 for I in it.ins if I.kind == "wait")
            it.emit()
            t = best[2] + 4 * max(0, P.nwaits - w0 - nw)
        return t

    fill(-1, 100)
    for g, m in enumerate(mf):
        for t_ in m.get("pre", []):
            t_() if callable(t_) else E(t_)
        E(m["text"])
        t = 4
        if g + 1 < n and not mf[g + 1].get("pre"):
            nx = Ins(mf[g + 1]["text"])
            if P._need(P.dsq, nx.src) >= 0:
                P.wait_ds_regs(nx.src | mf[g + 1].get("waitfor", set()))
                t = 8
        t = fill(g, t)
        lost[0] += max(0, t - 16)
    left = 0
    rest = []
    for qi, q in enumerate(qs):
        if qi in carry:
            rest += q
            continue
        for it in q:
            left += advance(8, it.ins) - 8
            it.emit()
    if OPT.get("v"):
        sys.stderr.write("phase %s: %d mfma, lost %d cyc, leftover %d cyc\n" % (name, n, lost[0], left))
    return rest


pool_ctr = [0]


class Frags:
    def __init__(self, start):
        self.k = start
        self.fr = []
        self.first = []

    def new(self, mf, texts_fn, buf=None):
        if buf is None:
            buf = aPOOL + 4 * (self.k % NPOOL)
            self.k += 1
        self.fr.append((buf, texts_fn(buf)))
        self.first.append(len(mf))
        return buf

    def items(self, skip, lead, off=0, emin=-1):
        out = []
        for f in range(skip, len(self.fr)):
            e = max(emin, self.first[f - lead] + off) if f >= lead else emin
            d = (self.first[f - lead + 1] + off) if f >= lead else emin
            out.append(Item("\n".join(self.fr[f][1]), e, max(d, e)))
        return out


rd128 = lambda areg, off: (lambda b: ["ds_read_b128 %s, v%d offset:%d" % (ar(b), areg, off)])
rdtr = lambda a0, a1, o0, o1: (lambda b: ["ds_read_b64_tr_b16 %s, v%d offset:%d" % (ar(b, 2), a0, o0),
                                          "ds_read_b64_tr_b16 %s, v%d offset:%d" % (ar(b + 2, 2), a1, o1)])


def dma_kv(which, lds, tag, cap=True):
    s_srd, s_off = (SRD_K, sOffK) if which == "K" else (SRD_V, sOffV)
    res = []
    for m in range(4):
        t = "s_add_u32 m0, s%d, %d\n" % (sW4K, lds) if m == 0 else ""
        if cap and CAPV:
            t += "s_waitcnt vmcnt(%d)\n" % (CAPS[(4 * (which == "V") + m) % len(CAPS)] - 1)
        t += "buffer_load_dwordx4 v%d, %s, s%d offen offset:%d %s lds" % (vDKV, srd(s_srd), s_off, m * 1024, NT)
        res.append(t)
    res.append("s_add_u32 s%d, s%d, %d" % (s_off, s_off, SLOT))
    return [(r, tag) for r in res]


def spread(pieces, start, step):
    out, k = [], 0
    for (t, tag) in pieces:
        e = int(start + k * step)
        out.append(Item(t, e, e + max(1, int(step)), tag))
        if "buffer_load" in t:
            k += 1
    return out


def emit_pieces(pieces):
    for (t, tag) in pieces:
        E(t, tag=tag)


def vmwait(tags):
    c = P.vm_count_after(tags)
    if c is not None:
        E("s_waitcnt vmcnt(%d)" % min(63, c))


def drain_writes():
    pend = [k for k, (_, d) in enumerate(P.dsq) if d == set()]
    if pend:
        E("s_waitcnt lgkmcnt(%d)" % (len(P.dsq) - 1 - pend[-1]))


nchk = [0]


def cond_call(sub, has9):
    k = nchk[0]
    nchk[0] += 1
    stubs.append("L_rare%d:\ns_mov_b32 s%d, %d\ns_call_b64 s[%d:%d], %s\ns_branch L_back%d" % (k, sHas9, has9, sRet, sRet + 1, sub, k))
    return "s_cbranch_vccnz L_rare%d\nL_back%d:" % (k, k)


tiles_of = lambda n, r: [0, 1, 2, 3] + ([4] if own9(n, r) else [])


def qk_part(n, r, fr, mf):
    par = n & 1
    for s in range(8):
        b = fr.new(mf, rd128(vK + (s & 3), KB + (n & 3) * SLOT + (s >> 2) * 256))
        for T in tiles_of(n, r):
            mf.append(dict(text=mfma(vr(S_(par, T)), ar(b), ar(Q_(T, s)), vr(vNegM + 4 * T) if s == 0 else vr(S_(par, T)))))


def pv_part(n, r, fr, mf):
    par = n & 1
    for b_ in range(8):
        b = fr.new(mf, rdtr(vV + b_, vV + 8 + b_, (n & 3) * SLOT, (n & 3) * SLOT))
        for T in range(4):
            mf.append(dict(text=mfma(vr(O_(T, b_)), ar(b), vr(P_(par, T)), vr(O_(T, b_)))))
        if own9(n, r):
            mf.append(dict(text=mfma(ar(aO9 + 4 * b_), ar(b), vr(vP9), ar(aO9 + 4 * b_))))


tbank = [0]
DOT2 = int(opt("dot2", "0"))
sOnes = 47


def softmax_items(n, tiles, e, d):
    par = n & 1
    its = []
    for T in tiles:
        for h in range(2):
            t = vTmp + 2 * (tbank[0] % 3)
            tbank[0] += 1
            s0 = S_(par, T) + 2 * h
            its.append(Item("v_exp_f32 v%d, v%d" % (t, s0), e, d))
            its.append(Item("v_exp_f32 v%d, v%d" % (t + 1, s0 + 1), e, d))
            if DOT2:
                its.append(Item("s_nop 0\nv_cvt_pk_bf16_f32 v%d, v%d, v%d" % (P_(par, T) + h, t, t + 1), e, d))
                its.append(Item("v_dot2c_f32_bf16 v%d, s%d, v%d" % (vL + T, sOnes, P_(par, T) + h), e, d))
                continue
            its.append(Item("v_add_f32 v%d, v%d, v%d" % (vL + T, vL + T, t), e, d))
            its.append(Item("v_cvt_pk_bf16_f32 v%d, v%d, v%d" % (P_(par, T) + h, t, t + 1), e, d))
            its.append(Item("v_add_f32 v%d, v%d, v%d" % (vL + T, vL + T, t + 1), e, d))
        if T < 4 and (T & 1):
            its.append(Item("ds_write2st64_b64 v%d, %s, %s offset0:%d offset1:%d"
                            % (vPW, vr(P_(par, T - 1), 2), vr(P_(par, T), 2), 5 * par + T - 1, 5 * par + T), e, d))
        if T == 4:
            its.append(Item("ds_write_b64 v%d, %s offset:%d" % (vPW, vr(vP9, 2), (5 * par + 4) * 512), e, d))
    return its


def partner_reads(n, r):
    return ["ds_read_b64 %s, v%d offset:%d" % (vr(P_(n & 1, T) + 2, 2), vPR, (5 * (n & 1) + T) * 512) for T in tiles_of(n, r)]


def split_tiles(n, r, everything=False):
    if everything:
        return tiles_of(n, r), []
    if own9(n, r) and not (n & 1):
        return [4, 0], [1, 2, 3]
    if own9(n, r):
        return [0, 1, 2], [3, 4]
    return [0, 1], [2, 3]


def pair(fr, mf, lo, hi):
    for f in range(lo, hi - 1, 2):
        mf[fr.first[f]]["waitfor"] = rset("a", fr.fr[f + 1][0])


def step(n, r, k0, dma_pre, dma_post, vm, pref, all_next=False):
    fr = Frags(k0)
    mf = []
    qk_part(n + 1, r, fr, mf)
    nq, fq = len(mf), len(fr.fr)
    pv_part(n, r, fr, mf)
    N = len(mf)
    bpos = nq - EARLY

    def barrier():
        P.wait_ds_regs(rset("a", fr.fr[fq - 1][0]))
        drain_writes()
        E("s_waitcnt vmcnt(%d)" % vm) if isinstance(vm, int) else vmwait(vm)
        E("s_barrier")

    rq = []
    for f in range(LEAD, len(fr.fr)):
        if f < fq:
            d = min(fr.first[f - LEAD + 1], bpos - 3)
            e = min(fr.first[f - LEAD], d)
        elif f - fq < LEAD:
            if f == fq:
                rq += [Item(t, bpos, bpos + 1 + j // 2) for j, t in enumerate(partner_reads(n, r))]
            e, d = bpos, bpos + 3 + (f - fq)
        else:
            e, d = fr.first[f - LEAD], fr.first[f - LEAD + 1]
        rq.append(Item("\n".join(fr.fr[f][1]), e, d))
    for j, t in enumerate(pref):
        e = fr.first[len(fr.fr) - LEAD + j]
        rq.append(Item("\n".join(t), e, min(N - 1, e + 3)))
    mf[bpos]["pre"] = [barrier]
    mf[nq]["pre"] = [lambda: E(cond_call("L_fix%d" % ((n + 1) & 1), int(own9(n + 1, r))))]
    vq = softmax_items(n, split_tiles(n, r)[1], -1, bpos - 2)
    first = split_tiles(n + 1, r, all_next)[0]
    for T in first:
        e = nq + 5
        if T == 4 and own9(n, r):
            e = N - 1
        vq += softmax_items(n + 1, [T], e, BIG)
    npre = len([1 for (t, _) in dma_pre if "buffer_load" in t])
    npost = len([1 for (t, _) in dma_post if "buffer_load" in t])
    dq = spread(dma_pre, 1, max(1, (bpos - 3) // max(1, npre))) + spread(dma_post, bpos + 4, max(1, (N - bpos - 6) // max(1, npost)))
    run_phase(mf, [rq, vq, dq], "step%d r%d" % (n, r))
    E(cond_call("L_fixo", 0))
    return fr.k


def qk_pref(n, r, k0):
    fr, mf = Frags(k0), []
    qk_part(n, r, fr, mf)
    return [fr.fr[f][1] for f in range(LEAD)]


def pv_pref(n, r, k0):
    fr, mf = Frags(k0), []
    pv_part(n, r, fr, mf)
    return [fr.fr[f][1] for f in range(LEAD)]


CPFL = 16
E("%s:" % KN)
E("s_cmp_ge_u32 s2, 256\ns_cbranch_scc1 L_end")
E("s_mov_b32 s%d, %d" % (sPara, PARA))
E("s_memrealtime s[%d:%d]" % (sClk, sClk + 1))
E("v_lshrrev_b32 v1, 6, v0\nv_readfirstlane_b32 s%d, v1" % sW)
stamp()
if STAMP == 1:
    E("s_memtime s[92:93]")
E("L_start:")
E("s_and_b32 s%d, s2, 7" % sT0)
E("s_lshr_b32 s%d, s2, 3" % sT1)
E("s_lshr_b32 s96, s%d, 4" % sT1)
E("s_lshr_b32 s97, s%d, 1\ns_and_b32 s97, s97, 7" % sT1)
E("s_and_b32 s98, s%d, 1\ns_lshl_b32 s99, s%d, 1\ns_add_u32 s98, s98, s99" % (sT1, sT0))
E("s_mul_i32 s99, s96, 40")
E("s_add_u32 s50, s0, s99\ns_addc_u32 s51, s1, 0")
E("s_load_dwordx2 s[4:5], s[50:51], 0")
E("s_load_dwordx2 s[8:9], s[50:51], 24")
E("s_load_dwordx2 s[12:13], s[50:51], 8")
E("s_load_dwordx2 s[16:17], s[50:51], 16")
E("s_load_dwordx2 s[20:21], s[50:51], 32")
E("s_load_dwordx2 s[24:25], s[0:1], 96")
if int(opt("tlb", "0")) or int(opt("ftouch", "0")):
    E("s_load_dwordx4 s[56:59], s[0:1], 80")
    E("s_load_dwordx2 s[60:61], s[0:1], 96")
if int(opt("cpf", "1")):
    E("s_getpc_b64 s[52:53]\nL_pc:\ns_lshr_b32 s99, s2, 3\nv_and_b32 v2, 63, v0\nv_lshlrev_b32 v2, 5, v2\nv_add_u32 v2, s99, v2\nv_lshlrev_b32 v2, 7, v2")
    E("s_cmp_lg_u32 s%d, 3\ns_cbranch_scc1 L_nocpf" % sW)
    raw("s_mov_b32 s46, L_codeend-L_pc-4")
    E("v_cmp_gt_u32 vcc, s46, v2\ns_and_saveexec_b64 s[100:101], vcc\ns_cbranch_execz L_cpf2")
    raw("global_load_dword a201, v2, s[52:53]")
    E("L_cpf2:\ns_mov_b64 exec, -1\nL_nocpf:")
hL, hW, hI, hG = 200, 201, 202, 203
vDX, vDWQ = 204, 205
vXR = 206
vW = 210
h0, h1, h2, h3, h4, h5 = 220, 221, 222, 223, 224, 225
E("v_mbcnt_lo_u32_b32 v%d, -1, 0\nv_mbcnt_hi_u32_b32 v%d, -1, v%d\nv_mov_b32 v%d, s%d" % (hL, hL, hL, hW, sW))
E("v_and_b32 v%d, 15, v%d\nv_lshrrev_b32 v%d, 4, v%d" % (hI, hL, hG, hL))
E("s_lshl_b32 s%d, s%d, 12\ns_lshr_b32 s%d, s%d, 1\ns_and_b32 s%d, s%d, 1" % (sW4K, sW, sR, sW, sC, sW))
E("v_lshrrev_b32 v%d, 3, v%d\nv_lshl_add_u32 v%d, v%d, 3, v%d\nv_mul_u32_u24 v%d, 896, v%d" % (h0, hL, h1, hW, h0, h1, h1))
E("v_and_b32 v%d, 7, v%d\nv_xor_b32 v%d, v%d, v%d\ns_lshl_b32 s99, s%d, 2\nv_xor_b32 v%d, s99, v%d" % (h2, hL, h3, h2, hG, sC, h3, h3))
E("v_lshl_add_u32 v%d, v%d, 4, v%d" % (vDX, h3, h1))
E("v_lshrrev_b32 v%d, 5, v%d\nv_and_b32 v%d, 31, v%d\nv_lshl_add_u32 v%d, v%d, 1, v%d" % (h0, hL, h1, hL, h3, hW, h0))
E("v_lshlrev_b32 v%d, 1, v%d\nv_xor_b32 v%d, v%d, v%d\nv_lshlrev_b32 v%d, 4, v%d" % (h3, h3, h3, h3, h1, h3, h3))
E("s_lshl_b32 s99, s%d, 3\ns_lshl_b32 s100, s%d, 1\ns_add_u32 s99, s99, s100\nv_add_u32 v%d, s99, v%d" % (sR, sC, h1, h0))
E("v_lshl_add_u32 v%d, v%d, 13, v%d" % (vDWQ, h1, h3))
E("v_lshl_add_u32 v%d, v%d, 3, v%d\nv_lshl_add_u32 v%d, v%d, 9, v%d" % (h1, hW, h0, vDKV, h1, h3))
E("s_mul_i32 s100, s97, 129024")
E("s_lshl_b32 s101, s98, 9")
E("s_lshl_b32 s%d, s%d, 10\ns_add_u32 s%d, s%d, %d" % (sXm0, sW, sXm0, sXm0, XB))
ROT = int(opt("rot", "0"))
if ROT >= 0:
    E("s_and_b32 s99, s98, 1\ns_mul_i32 s99, s99, %d\ns_and_b32 s54, s97, %d\ns_mul_i32 s54, s54, %d\ns_add_u32 s99, s99, s54"
      % (ROT, int(opt("rm", "3")), int(opt("rs", "2"))))
    E("s_cmp_ge_u32 s99, 7\ns_cselect_b32 s54, 7, 0\ns_sub_u32 s99, s99, s54")
    E("s_lshl_b32 s54, s99, 19\ns_lshl_b32 s55, s99, 7")
else:
    E("s_mov_b32 s54, 0\ns_mov_b32 s55, 0")
E("s_waitcnt lgkmcnt(0)")
stamp(STAMP == 6)
E("s_add_u32 s4, s4, s100\ns_addc_u32 s5, s5, 0\ns_mov_b32 s6, 129024\ns_mov_b32 s7, 0x20000")
E("s_add_u32 s8, s8, s101\ns_addc_u32 s9, s9, 0\ns_sub_u32 s10, %d, s101\ns_mov_b32 s11, 0x20000" % (448 * 8192))

WPI = {2: 0, 3: 1, 4: 4, 5: 2, 0: 3, 1: 5}
wslot = lambda N: WPI[N % 6] * SLOT


sWo, sXo = 54, 55


def dma_wq(s):
    res = []
    for m in range(4):
        so = (16 * (m & 1) + 4 * (m >> 1)) * 8192 - m * 1024
        t = "s_add_u32 m0, s%d, %d\n" % (sW4K, wslot(s)) if m == 0 else ""
        if m == 0:
            t += "buffer_load_dwordx4 v%d, %s, s%d offen %s lds" % (vDWQ, srd(SRD_WQ), sWo, WNT)
        else:
            t += "s_add_u32 s%d, s%d, %d\nbuffer_load_dwordx4 v%d, %s, s%d offen offset:%d %s lds" % (sTmpO, sWo, so, vDWQ, srd(SRD_WQ), sTmpO, m * 1024, WNT)
        res.append((t, ("W", s)))
    res.append(("s_add_u32 s%d, s%d, 0x40000\ns_cmp_eq_u32 s%d, %d\ns_cselect_b32 s%d, 0, s%d" % (sWo, sWo, sWo, 14 * 0x40000, sWo, sWo), None))
    return res


def dma_x(p):
    res = []
    for k in range(5):
        res.append(("s_add_u32 m0, s%d, %d\ns_add_u32 s%d, s%d, %d\nbuffer_load_dwordx4 v%d, %s, s%d offen %s lds"
                    % (sXm0, (p % 3) * 20480 + 4096 * k, sTmpO, sXo, 28672 * k, vDX, srd(SRD_X), sTmpO, WNT), ("X", p)))
    res.append(("s_add_u32 s%d, s%d, 128\ns_cmp_eq_u32 s%d, 896\ns_cselect_b32 s%d, 0, s%d" % (sXo, sXo, sXo, sXo, sXo), None))
    return res


def touches():
    t0, t1, t2 = 226, 227, 228
    E("v_lshl_add_u32 v%d, v%d, 2, v%d\nv_lshlrev_b32 v%d, 5, v%d\nv_bfe_u32 v%d, v%d, 2, 2\nv_add_u32 v%d, v%d, v%d" % (t0, hW, hG, t0, t0, t1, hL, t0, t0, t1))
    E("s_lshl_b32 s99, s97, 2\nv_add_u32 v%d, s99, v%d\nv_and_b32 v%d, 3, v%d\nv_lshlrev_b32 v%d, 7, v%d\nv_lshl_add_u32 v%d, v%d, 13, v%d"
      % (t0, t0, t1, hL, t1, t1, t0, t0, t1))
    E("buffer_load_dword a203, v%d, %s, %d offen" % (t0, srd(SRD_WQ), 0), tag="t")
    E("s_and_b32 s99, s98, 1\ns_mul_i32 s99, s99, %d\ns_mov_b32 s100, %d" % (72 * 896, (2 ** 32 + 71) // 72))
    for j in range(2):
        E("v_lshl_add_u32 v%d, v%d, 6, v%d\nv_add_u32 v%d, %d, v%d\nv_mul_hi_u32 v%d, s100, v%d\nv_mul_u32_u24 v%d, 72, v%d\nv_sub_u32 v%d, v%d, v%d"
          % (t0, hW, hL, t0, 144 + 256 * j, t0, t1, t0, t2, t1, t0, t0, t2))
        E("v_mul_u32_u24 v%d, 896, v%d\nv_lshl_add_u32 v%d, v%d, 7, v%d" % (t0, t0, t0, t1, t0))
        if j == 1:
            E("v_cmp_gt_u32 vcc, 7, v%d\nv_mov_b32 v%d, 0x40000000\nv_cndmask_b32 v%d, v%d, v%d, vcc" % (t1, t2, t0, t2, t0))
        E("buffer_load_dword a%d, v%d, %s, s99 offen" % (204 + j, t0, srd(SRD_X)), tag="t")


TOUCH = int(opt("touch", "0"))
emit_pieces(dma_x(0) + dma_wq(0) + dma_wq(1))
if TOUCH == 1:
    touches()
E("s_lshl_b32 s99, s97, 4\ns_add_u32 s99, s99, s98")
E("s_xor_b32 s100, s96, 1\ns_lshr_b32 s99, s99, s100")
if OPT.get("map") == "l2":
    E("s_and_b32 s99, s2, 7")
E("s_lshl_b32 s99, s99, 19")
E("s_add_u32 s12, s12, s99\ns_addc_u32 s13, s13, 0\ns_mov_b32 s14, 0x80000\ns_mov_b32 s15, 0x20000")
E("s_add_u32 s16, s16, s99\ns_addc_u32 s17, s17, 0\ns_mov_b32 s18, 0x80000\ns_mov_b32 s19, 0x20000")
E("s_mul_i32 s99, s98, %d" % (256 * 896))
E("s_add_u32 s20, s20, s99\ns_addc_u32 s21, s21, 0\ns_mov_b32 s22, %d\ns_mov_b32 s23, 0x20000" % (256 * 896))
if STAMP:
    E("s_lshl_b32 s99, s2, 8\ns_add_u32 s99, s99, 0x4000000\ns_add_u32 s%d, s24, s99\ns_addc_u32 s%d, s25, 0" % (sWSB, sWSB + 1))
E("s_lshl_b32 s99, s96, 3\ns_add_u32 s99, s99, s97\ns_lshl_b32 s99, s99, 4\ns_add_u32 s3, s99, s98")
E("s_lshl_b32 s99, s3, 17")
E("s_add_u32 s24, s24, s99\ns_addc_u32 s25, s25, 0\ns_mov_b32 s26, %d\ns_mov_b32 s27, 0x20000" % SLAB)
E("s_mov_b32 s%d, 0\ns_mov_b32 s%d, 0" % (sOffK, sOffV))
if int(opt("tlb", "0")):
    E("s_cmp_lg_u32 s%d, 2\ns_cbranch_scc1 L_notlb\ns_mov_b64 exec, 1\nv_mov_b32 v%d, 0" % (sW, h0))
    for sr in (SRD_K, SRD_V, SRD_WO, SRD_WS):
        raw("buffer_load_dword a202, v%d, %s, 0 offen" % (h0, srd(sr)))
    raw("global_load_dword a202, v%d, s[56:57]\nglobal_load_dword a202, v%d, s[58:59]" % (h0, h0))
    E("v_mov_b32 v%d, %d" % (h1, FLG + 0x10000))
    raw("global_load_dword a202, v%d, s[60:61]" % h1)
    E("s_mov_b64 exec, -1\nL_notlb:")


def rho(dst, i, t1):
    E("v_lshrrev_b32 v%d, 1, v%d\nv_and_b32 v%d, 3, v%d\nv_lshlrev_b32 v%d, 3, v%d" % (dst, i, dst, dst, dst, dst))
    E("v_lshrrev_b32 v%d, 3, v%d\nv_lshl_add_u32 v%d, v%d, 1, v%d" % (t1, i, dst, t1, dst))
    E("v_and_b32 v%d, 1, v%d\nv_add_u32 v%d, v%d, v%d" % (t1, i, dst, dst, t1))


E("v_lshrrev_b32 v%d, 1, v%d\nv_xor_b32 v%d, v%d, v%d\nv_lshlrev_b32 v%d, 7, v%d" % (h0, hI, h0, h0, hG, h1, hI))
E("v_add_u32 v%d, %d, v%d\ns_lshl_b32 s99, s%d, 13" % (h1, XB, h1, sR))
for par in range(2):
    E("v_xor_b32 v%d, %d, v%d\nv_lshl_add_u32 v%d, v%d, 4, v%d" % (h2, 4 * par, h0, h2, h2, h1))
    E("v_add_u32 v%d, s99, v%d\nv_add_u32 v%d, %d, v%d" % (vXR + par, h2, vXR + 2 + par, 128 * 128, h2))
E("v_lshrrev_b32 v%d, 2, v%d" % (h5, hL))
rho(h4, h5, h0)
E("v_lshlrev_b32 v%d, 9, v%d\nv_and_b32 v%d, 7, v%d\nv_and_b32 v%d, 3, v%d" % (h4, h4, h5, h5, h3, hL))
E("v_lshlrev_b32 v%d, 1, v%d\nv_xor_b32 v%d, v%d, v%d\ns_lshl_b32 s99, s%d, 3\nv_xor_b32 v%d, s99, v%d" % (h0, h5, h0, h0, h3, sR, h0, h0))
E("s_lshl_b32 s99, s%d, 8\nv_add_u32 v%d, s99, v%d" % (sC, h1, h4))
for b in range(4):
    E("v_xor_b32 v%d, %d, v%d\nv_lshl_add_u32 v%d, v%d, 4, v%d\nv_add_u32 v%d, 0x10000, v%d" % (h2, 4 * b, h0, vW + b, h2, h1, vW + 4 + b, vW + b))
emit_pieces(dma_x(1) + dma_wq(2))
E("s_lshl_b32 s99, s%d, 2\nv_xor_b32 v%d, s99, v%d" % (sR, h0, h5))
E("s_mul_i32 s99, s%d, 2304\ns_add_u32 s99, s99, %d\nv_add_u32 v%d, s99, v%d\nv_lshl_add_u32 v%d, v%d, 3, v%d" % (sC, VB, h1, h4, h1, h3, h1))
for b in range(8):
    E("v_xor_b32 v%d, %d, v%d\nv_lshl_add_u32 v%d, v%d, 5, v%d\nv_xor_b32 v%d, 0x800, v%d" % (h2, b, h0, vV + b, h2, h1, vV + 8 + b, vV + b))
rho(h4, hI, h0)
E("v_and_b32 v%d, 7, v%d\nv_lshlrev_b32 v%d, 1, v%d\nv_xor_b32 v%d, v%d, v%d" % (h0, hI, h0, h0, h0, h0, hG))
E("s_lshl_b32 s99, s%d, 11\nv_lshlrev_b32 v%d, 9, v%d\nv_add_u32 v%d, s99, v%d" % (sC, h1, h4, h1, h1))
for b in range(4):
    E("v_xor_b32 v%d, %d, v%d\nv_lshl_add_u32 v%d, v%d, 4, v%d" % (h2, 4 * b, h0, vK + b, h2, h1))
E("s_mul_i32 s99, s%d, 5120\ns_add_u32 s99, s99, %d\nv_lshlrev_b32 v%d, 3, v%d\nv_add_u32 v%d, s99, v%d" % (sW, PX, h0, hL, vPW, h0))
E("s_xor_b32 s99, s%d, 1\ns_mul_i32 s99, s99, 5120\ns_add_u32 s99, s99, %d\nv_add_u32 v%d, s99, v%d" % (sW, PX, vPR, h0))
E("v_lshlrev_b32 v%d, 2, v%d\nv_add_u32 v%d, %d, v%d" % (vMB, hL, vMB, MB, vMB))
emit_pieces(dma_wq(3))
if TOUCH == 2:
    touches()
stamp(STAMP == 6)

QAB = 28
QA = lambda T, sd, v: QAB + 32 * T + 4 * (2 * sd + v) if T < 4 else QAB + 128 + 4 * (2 * (sd - 2) + v)
aX = 0
X_ = lambda T, s: aX + 40 * ((s >> 1) & 1) + 20 * (s & 1) + 4 * T


def xreads(p):
    out = []
    for s in (2 * p, 2 * p + 1):
        for T in range(5):
            if T < 4:
                out.append("ds_read_b128 %s, v%d offset:%d" % (ar(X_(T, s)), vXR + (s & 1), (p % 3) * 20480 + T * 2048))
            else:
                out.append("ds_read_b128 %s, v%d offset:%d" % (ar(X_(T, s)), vXR + 2 + (s & 1), (p % 3) * 20480))
    return out


def build_qp(N, k0):
    fr = Frags(k0)
    mf = []
    win, off = wslot(N) >> 16, wslot(N) & 0xffff
    for sd in range(4):
        for v in range(2):
            a = vW + 4 * win + sd
            b = fr.new(mf, rdtr(a, a, off + 8 * v, off + 8 * v + 2048))
            for T in range(5 if sd >= 2 else 4):
                mf.append(dict(text=mfma(vr(QA(T, sd, v)), ar(b), ar(X_(T, N)), "0" if N == 0 else vr(QA(T, sd, v)))))
    return fr, mf


Kp = lambda n, cap=False: dma_kv("K", KB + (n & 3) * SLOT, ("K", n), cap)
Vp = lambda n, cap=False: dma_kv("V", VB + (n & 3) * SLOT, ("V", n), cap)
WOT = int(opt("wot", "99"))
KVT = int(opt("kvt", "0"))
late = {9: Kp(0), 10: Kp(1), 11: Vp(0), 12: Kp(2), 13: Kp(3)}
wplan = {0: [4], 1: [5], 2: [6, 7], 3: [8], 4: [9], 5: [10], 6: [11], 7: [12], 8: [13]}
zero_q = ["v_mov_b32 v%d, 0" % r for r in range(172, 200)] + ["v_mov_b32 v%d, 0" % r for r in range(226, 256)] + \
         ["v_accvgpr_write_b32 a%d, 0" % r for r in range(aO9, aO9 + 32)]
vmwait([("X", 0), ("W", 1)])
E("s_barrier")
stamp(STAMP == 6)
for t in xreads(0):
    E(t)
k = 0
for N in range(14):
    fr, mf = build_qp(N, k)
    n = len(mf)
    if N > 0:
        vmwait([("W", min(N + 1, 13))] + ([("X", (N + 1) // 2)] if (N & 1) and N < 12 else []))
        E("s_barrier")
    rq = fr.items(0 if N == 0 else LEAD, LEAD)
    if N < 13:
        nf, _ = build_qp(N + 1, fr.k)
        for j in range(LEAD):
            e = fr.first[len(fr.fr) - LEAD + j]
            rq.append(Item("\n".join(nf.fr[j][1]), e, e + 3))
    pieces = []
    for W in wplan.get(N, []):
        pieces += dma_wq(W)
    if N == WOT:
        pieces += [("s_lshr_b32 s99, s3, 4\ns_and_b32 s99, s99, 7\ns_lshl_b32 s99, s99, 2", None),
                   ("s_add_u32 s99, s99, s%d\ns_mul_i32 s99, s99, %d\nv_lshlrev_b32 v%d, 7, v%d" % (sW, 56 * 128, h5, hL), None),
                   ("s_mov_b32 exec_hi, 0x00ffffff\nbuffer_load_dword a200, v%d, %s, s99 offen\ns_mov_b32 exec_hi, -1" % (h5, srd(SRD_WO)), "t")]
    pieces += late.get(N, [])
    if KVT and N >= 14 - KVT:
        j = N - (14 - KVT)
        if j == 0:
            pieces += [("v_lshlrev_b32 v%d, 7, v%d\ns_lshl_b32 s53, s%d, 13" % (h5, hL, sW), None)]
        base = (5 if (j & 1) == 0 else 2) * SLOT + (j >> 1) * 32768
        pieces += [("s_add_u32 s99, s53, %d\nbuffer_load_dword a%d, v%d, %s, s99 offen" % (base, 206 + j, h5, srd(SRD_K if (j & 1) == 0 else SRD_V)), "t")]
    if N == 0:
        pieces += dma_x(2)
    elif (N & 1) == 0 and N // 2 + 2 < 7:
        pieces += dma_x(N // 2 + 2)
    nd = len([1 for (t, _) in pieces if "buffer_load" in t])
    dq = spread(pieces, 0, max(2.5, min(4.0, (n - 2) / max(1, nd))))
    xq = [Item(t, 0, 24) for t in xreads((N + 1) // 2)] if (N & 1) and N < 12 else []
    zq = [Item(t, 0, BIG) for t in zero_q[9 * (N - 1):9 * N]] if 1 <= N <= 10 else []
    run_phase(mf, [rq, xq, dq, zq], "qp%d" % N)
    k = fr.k
    stamp(STAMP == 6 and (N & 1) and N < 13)
stamp(STAMP in (5, 6))
E("s_barrier")
E("s_mov_b32 s100, %s\ns_mov_b32 s101, %s" % (fbits(CSCALE), fbits(CSCALE)))
E("s_lshl_b32 s99, s%d, 15\ns_lshl_b32 s96, s%d, 12\ns_add_u32 s99, s99, s96\ns_lshl_b32 s97, s%d, 11\ns_add_u32 s99, s99, s97\ns_add_u32 s99, s99, %d"
  % (sR, sC, sR, QS))
E("v_lshlrev_b32 v%d, 4, v%d\nv_add_u32 v%d, s99, v%d\nv_xor_b32 v%d, 0x800, v%d" % (h0, hL, h1, h0, h2, h1))
E("s_xor_b32 s97, s97, 0x800\ns_add_u32 s96, s96, s97\ns_add_u32 s96, s96, %d\nv_add_u32 v%d, s96, v%d" % (QS + 65536, h3, h0))
for T in (4, 0, 1, 2, 3):
    for sd in (range(4) if T < 4 else (2, 3)):
        a = QA(T, sd, 0)
        for j in range(4):
            E("v_pk_mul_f32 %s, %s, s[100:101]" % (vr(a + 2 * j, 2), vr(a + 2 * j, 2)))
        for j in range(4):
            E("v_cvt_pk_bf16_f32 v%d, v%d, v%d" % (a + j, a + 2 * j, a + 2 * j + 1))
        if T < 4:
            E("ds_write_b128 v%d, %s offset:%d" % (h1 if sd < 2 else h2, vr(a), T * 8192 + (sd & 1) * 1024))
        else:
            E("ds_write_b128 v%d, %s offset:%d" % (h3, vr(a), (sd & 1) * 1024))
E("s_lshl_b32 s99, s%d, 15\ns_add_u32 s99, s99, %d\nv_add_u32 v%d, s99, v%d\nv_add_u32 v%d, %d, v%d" % (sR, QS, h1, h0, h2, QS + 65536, h0))
vmwait([("K", 1)])
E("s_waitcnt lgkmcnt(0)")
E("s_barrier")
qreads = []
for s in range(8):
    for T in range(5):
        qreads.append("ds_read_b128 %s, v%d offset:%d" % (ar(Q_(T, s)), h1 if T < 4 else h2, (T * 8192 if T < 4 else 0) + s * 1024))
for r_ in range(vL, vL + 5):
    E("v_mov_b32 v%d, 0" % r_)
E("s_mov_b32 s%d, 0\ns_mov_b32 s%d, 0" % (sFloor, sFirst))
stamp()

E("s_mov_b32 s%d, 0x3f803f80" % sOnes)
late_zero = ["v_mov_b32 v%d, 0" % r for r in list(range(128, 172)) + list(range(200, 226))]
E("s_cmp_eq_u32 s%d, 1\ns_cbranch_scc1 L_att1" % sR)

OBUF = [VB, KB, KB + 32768, VB + 32768]
OLDS = lambda q: OBUF[(q >> 1) & 3] + (q & 1) * SLOT
vDWO = vSc


def dma_wo(q):
    sg, a = q >> 1, q & 1
    res = []
    for m in range(4):
        t = "s_add_u32 m0, s%d, %d\n" % (sW4K, OLDS(q)) if m == 0 else ""
        res.append((t + "s_mov_b32 s%d, %d\nbuffer_load_dwordx4 v%d, %s, s%d offen offset:%d %s lds"
                    % (sTmpO, a * 114688 + m * 6144 + 128 * sg, vDWO, srd(SRD_WO), sTmpO, m * 1024, opt("ont", "nt")), ("O", q)))
    return res


OFo = lambda T, kk: 64 + 16 * T + 4 * kk
OFp = lambda T, kk: 0 + 16 * T + 4 * kk
aOF9 = 64
aHOLD = 96
TB = list(range(40, 56))
vST, vST9, wA, wB, rA, rB = 4, 5, 6, 7, 1, 2
vRI = vL
acc_ = lambda sg, T: (8, 16, 56, 32)[T] if sg == 0 else 128 + 32 * ((sg - 1) % 3) + 8 * T
acc9 = lambda sg: 224 + 4 * (sg % 4)
v9st = 240
O9S, LX, O9P = PX, PX + 16384, 155648


def tail_setup():
    t = ["v_mbcnt_lo_u32_b32 v0, -1, 0\nv_mbcnt_hi_u32_b32 v0, -1, v0",
         "s_load_dwordx2 s[12:13], s[0:1], 88\ns_load_dwordx2 s[14:15], s[0:1], 96" if False else "s_nop 0",
         "v_lshrrev_b32 v3, 2, v0\nv_lshlrev_b32 v3, 7, v3", "v_and_b32 v30, 3, v0\nv_lshl_add_u32 v3, v30, 3, v3",
         "s_lshl_b32 s99, s%d, 1\ns_xor_b32 s99, s99, s%d\nv_bfe_u32 v30, v0, 3, 2" % (sC, sR), "v_xor_b32 v30, s99, v30",
         "v_lshl_add_u32 v30, v30, 5, v3\nv_xor_b32 v31, 32, v30"]
    for kk in range(4):
        t.append("s_lshl_b32 s98, s%d, 1\ns_xor_b32 s98, s98, %d\ns_lshl_b32 s98, s98, 12" % (sR, kk))
        t.append("s_lshl_b32 s99, s%d, 14\ns_add_u32 s99, s99, s98\ns_add_u32 s99, s99, %d" % (sC, VB))
        for nt in range(2):
            t.append("v_add_u32 v%d, s99, v%d\nv_xor_b32 v%d, 0x4000, v%d" % (TB[2 * kk + nt], 30 + nt, TB[8 + 2 * kk + nt], TB[2 * kk + nt]))
    for T in range(5):
        t.append("v_mov_b32 v30, v%d\nv_mov_b32 v31, v%d" % (vL + T, vL + T))
        t.append("s_nop 0\nv_permlane32_swap_b32 v30, v31")
        t.append("v_add_f32 v30, v30, v31\nv_mov_b32 v31, v30")
        t.append("s_nop 0\nv_permlane16_swap_b32 v30, v31")
        t.append("v_add_f32 v%d, v30, v31" % (vL + T))
    t.append("v_and_b32 v3, 15, v0\nv_lshlrev_b32 v3, 2, v3")
    t.append("s_mul_i32 s99, s%d, 320\ns_add_u32 s99, s99, %d\nv_add_u32 v30, s99, v3" % (sW, LX))
    t += ["ds_write_b32 v30, v%d offset:%d" % (vL + T, 64 * T) for T in range(5)]
    t.append("v_lshlrev_b32 v0, 4, v0")
    t.append("s_lshl_b32 s99, s%d, 16\ns_lshl_b32 s98, s%d, 12\ns_add_u32 s99, s99, s98" % (sR, sC))
    t.append("s_lshl_b32 s98, s%d, 11\ns_add_u32 s99, s99, s98\ns_add_u32 s99, s99, 32768" % sR)
    t.append("v_add_u32 v%d, s99, v0\nv_xor_b32 v%d, 0x800, v%d" % (wA, wB, wA))
    return t


def tail_setup2():
    t = []
    t.append("v_xor_b32 v%d, 0x1000, v%d\nv_xor_b32 v%d, 0x1000, v%d" % (rA, wA, rB, wB))
    t.append("s_lshl_b32 s99, s%d, 13\ns_lshl_b32 s98, s%d, 10\ns_add_u32 s99, s99, s98" % (sR, sC))
    t.append("v_add_u32 v%d, s99, v0" % vST)
    t.append("s_lshl_b32 s99, s%d, 10\nv_add_u32 v%d, s99, v0" % (sW, vST9))
    return t


saved = (list(P.dsq), list(P.vmq), nstamp[0])
for r in range(2):
    P.dsq, P.vmq = list(saved[0]), list(saved[1])
    nstamp[0] = saved[2]
    if r == 1:
        E("L_att1:")
    fr, mf = Frags(0), []
    qk_part(0, r, fr, mf)
    for m_ in mf:
        m_["text"] = re.sub(r", v\[(*SKIP)(*F)|$^", "", m_["text"]) if False else m_["text"]
    for T in tiles_of(0, r):
        mf[[i_ for i_, m_ in enumerate(mf) if m_["text"].endswith(vr(vNegM + 4 * T))][0]]["text"] = \
            mfma(vr(S_(0, T)), ar(fr.fr[0][0]), ar(Q_(T, 0)), "0")
    qq = []
    for f in range(8):
        e = -1 if f < 2 else fr.first[f - 2]
        d = -1 if f < 2 else fr.first[f - 1] - 1
        qq += [Item(t, e, d) for t in fr.fr[f][1] + qreads[5 * f:5 * f + 5]]
    lz = [t for t in late_zero if int(t.split()[1][1:-1]) not in (h1, h2)]
    run_phase(mf, [qq, [Item(t, 0, BIG) for t in lz]], "qk0")
    E("v_mov_b32 v%d, 0\nv_mov_b32 v%d, 0" % (h1, h2))
    stamp(STAMP == 9)
    sc = P_base[0]
    tl = tiles_of(0, r)
    for T in tl:
        s0 = S_(0, T)
        E("v_max3_f32 v%d, v%d, v%d, v%d\nv_max_f32 v%d, v%d, v%d" % (sc + T, s0, s0 + 1, s0 + 2, sc + T, sc + T, s0 + 3))
    for sw in ("v_permlane32_swap_b32", "v_permlane16_swap_b32"):
        for T in tl:
            E("v_mov_b32 v%d, v%d" % (sc + 8 + T, sc + T))
        for T in tl:
            E("%s v%d, v%d" % (sw, sc + T, sc + 8 + T))
        for T in tl:
            E("v_max_f32 v%d, v%d, v%d" % (sc + T, sc + T, sc + 8 + T))
    E("s_mul_i32 s99, s%d, 1280\nv_add_u32 v%d, s99, v%d" % (sW, sc + 5, vMB))
    for T in tl:
        E("ds_write_b32 v%d, v%d offset:%d" % (sc + 5, sc + T, 4096 + 256 * T))
    E("s_xor_b32 s99, s%d, 1\ns_mul_i32 s99, s99, 1280\nv_add_u32 v%d, s99, v%d" % (sW, sc + 5, vMB))
    E("s_waitcnt lgkmcnt(0)\ns_barrier")
    for T in range(4):
        E("ds_read_b32 v%d, v%d offset:%d" % (sc + 8 + T, sc + 5, 4096 + 256 * T))
    for w_ in range(2):
        E("ds_read_b32 v%d, v%d offset:%d" % (sc + 12 + w_, vMB, 4096 + 1280 * w_ + 1024))
    E("s_cmp_eq_u32 s%d, 0\ns_cselect_b64 vcc, 0, -1" % sPara)
    emit_pieces(Vp(1) + Kp(4))
    for T in (split_tiles(0, r)[0] + split_tiles(0, r)[1] + ([] if 4 in tl else [4])):
        if T < 4:
            E("v_max_f32 v%d, v%d, v%d" % (sc + T, sc + T, sc + 8 + T))
        else:
            E("v_max_f32 v%d, v%d, v%d" % (sc + 4, sc + 12, sc + 13))
        for j in range(4):
            E("v_sub_f32 v%d, 0, v%d" % (vNegM + 4 * T + j, sc + T))
        if T in tl:
            for j in range(4):
                E("v_sub_f32 v%d, v%d, v%d" % (S_(0, T) + j, S_(0, T) + j, sc + T))
    stamp(STAMP == 9)
    stamp(STAMP == 9)
    if STAMP == 1:
        E("s_memtime s[88:89]\ns_memrealtime s[84:85]\ns_waitcnt lgkmcnt(0)")
    tbank[0] = 0
    for it in softmax_items(0, split_tiles(0, r)[0], -1, BIG):
        it.emit()
    E("s_mov_b32 s%d, 0" % sLoop)
    drain_writes()
    k = 8
    for t in qk_pref(1, r, k):
        E("\n".join(t))
    tbank[0] = 0
    if STAMP == 9:
        stamp()
        for n in range(4):
            for t in (qk_pref(1, r, k) if n == 0 else []):
                E("\n".join(t))
            k = step(n, r, k, Vp(n + 2, True), Kp(n + 5, True), 16, qk_pref(n + 2, r, k + 16))
            raw("s_memrealtime s[%d:%d]" % (sStamp + 2 * nstamp[0], sStamp + 2 * nstamp[0] + 1))
            nstamp[0] += 1
        E("s_waitcnt lgkmcnt(0)")
        for t in qk_pref(1, r, k):
            E("\n".join(t))
        E("s_mov_b32 s%d, 1" % sLoop)
    RAMP = opt("ramp", "")
    if RAMP:
        save_caps = list(CAPS)
        for ch in RAMP:
            CAPS[:] = [int(ch)]
            for n in range(4):
                k = step(n, r, k, Vp(n + 2, True), Kp(n + 5, True), 16, qk_pref(n + 2, r, k + 16))
            drain_writes()
        CAPS[:] = save_caps
        E("s_waitcnt lgkmcnt(0)\ns_mov_b32 s%d, %d" % (sLoop, len(RAMP)))
        for t in qk_pref(1, r, k):
            E("\n".join(t))
    entry = [set(d) for (_, d) in P.dsq]
    E("L_loop%d:" % r)
    for n in range(4):
        k = step(n, r, k, Vp(n + 2, True), Kp(n + 5, True), 16, qk_pref(n + 2, r, k + 16))
    now = [set(d) for (_, d) in P.dsq if d]
    assert now == entry, (now, entry)
    drain_writes()
    if STAMP == 7:
        raw("s_memrealtime s[80:81]\ns_memtime s[82:83]\ns_waitcnt lgkmcnt(0)\ns_lshl_b64 exec, 1, s%d\n"
            "v_accvgpr_write_b32 a199, s80\nv_accvgpr_write_b32 a198, s82\ns_mov_b64 exec, -1" % sLoop)
    E("s_add_u32 s%d, s%d, 1\ns_cmp_lt_u32 s%d, 6\ns_cbranch_scc1 L_loop%d" % (sLoop, sLoop, sLoop, r))
    if STAMP == 1:
        raw("s_memtime s[90:91]\ns_memrealtime s[86:87]")
        E("s_waitcnt lgkmcnt(0)")
    for n in range(24, 31):
        pre = Vp(n + 2, True) if n + 2 < 32 else []
        post = Kp(n + 5, True) if n + 5 < 32 else []
        if n >= 27:
            post = dma_wo({27: 2, 28: 3, 29: 0, 30: 1}[n])
        if n == int(opt("wot2", "30")):
            post = post + [("s_lshr_b32 s99, s3, 4\ns_and_b32 s99, s99, 7\ns_lshl_b32 s99, s99, 2", None),
                           ("s_add_u32 s99, s99, s%d\ns_mul_i32 s99, s99, %d\nv_subrev_u32 v%d, %d, v%d" % (sW, 56 * 128, vDKV, MB, vMB), None),
                           ("v_lshlrev_b32 v%d, 5, v%d" % (vDKV, vDKV), None),
                           ("s_mov_b32 exec_hi, 0x00ffffff\nbuffer_load_dword a200, v%d, %s, s99 offen %s\ns_mov_b32 exec_hi, -1"
                            % (vDKV, srd(SRD_WO), opt("tnt", "")), "t")]
            if int(opt("ftouch", "0")):
                post = post + [("s_lshr_b32 s99, s3, 4\ns_lshl_b32 s99, s99, 11\ns_add_u32 s99, s99, %d" % FLG, None),
                               ("v_mov_b32 v%d, s99\nv_mov_b32 v%d, 0" % (vDKV, vK), None),
                               ("s_mov_b64 exec, 1\nglobal_load_dword a201, v%d, s[60:61] sc1\ns_mov_b64 exec, -1" % vDKV, "t"),
                               ("s_mov_b64 exec, 1\nbuffer_load_dword a202, v%d, %s, 0 offen sc1\ns_mov_b64 exec, -1" % (vK, srd(SRD_WS)), "t"),
                               ("s_mov_b64 exec, 1\nglobal_load_dword a203, v%d, s[56:57]\ns_mov_b64 exec, -1" % vK, "t")]
        vm = 16 if n < 26 else [("K", min(n + 2, 31)), ("V", n if n < 30 else 31)]
        pref = qk_pref(n + 2, r, k + 16) if n < 30 else pv_pref(31, r, k + 16)
        if n == 27:
            t0 = vTmp
            E("v_mbcnt_lo_u32_b32 v%d, -1, 0\nv_mbcnt_hi_u32_b32 v%d, -1, v%d" % (t0, t0, t0))
            E("v_lshrrev_b32 v%d, 4, v%d\nv_lshlrev_b32 v%d, 1, v%d\nv_xor_b32 v%d, v%d, v%d\nv_and_b32 v%d, 7, v%d\nv_lshlrev_b32 v%d, 4, v%d"
              % (vSc, t0, vSc, vSc, vSc, vSc, t0, vSc, vSc, vSc, vSc))
            E("v_lshrrev_b32 v%d, 3, v%d\nv_mul_u32_u24 v%d, 896, v%d\nv_add_u32 v%d, v%d, v%d\ns_mul_i32 s99, s%d, %d\nv_add_u32 v%d, s99, v%d"
              % (t0, t0, t0, t0, vSc, vSc, t0, sW, 32 * 896, vSc, vSc))
        k = step(n, r, k, pre, post, vm, pref, all_next=(n == 30))
    drain_writes()
    E("s_barrier")
    for t in partner_reads(31, r):
        E(t)
    fr, mf = Frags(k), []
    pv_part(31, r, fr, mf)
    run_phase(mf, [fr.items(LEAD, LEAD), [Item(t, 2, BIG) for t in tail_setup()]], "pv31")
    if r == 0:
        E("s_branch L_oproj")
E("L_oproj:")
stamp()
E("s_memrealtime s[96:97]")
vmwait([("O", 1)])
E("s_waitcnt lgkmcnt(0)")
E("s_barrier")


def hold_of(sg, a_, kk):
    return aHOLD + 32 * sg + 4 * (4 * a_ + kk)


def stage_part(sg, a_, fr, mf, kfirst, prev_buf):
    buf = OBUF[sg & 3]
    dwin = ((buf & ~0xffff) - (prev_buf & ~0xffff)) & 0xffffffff
    off = buf & 0xffff
    for kk in range(4):
        for nt in range(2):
            rg = TB[8 * a_ + 2 * kk + nt]
            hold = hold_of(sg, a_, kk) if (sg < 2 and nt == 1) else None
            pre_ = ["v_add_u32 v%d, 0x%x, v%d" % (rg, dwin, rg)] if dwin else []
            bb = fr.new(mf, (lambda p_, f_: (lambda b: p_ + f_(b)))(pre_, rdtr(rg, rg, off, off + 2048)), hold)
            kfirst.setdefault((sg, a_, kk), len(mf))
            z = (a_ == 0 and kk == 0)
            for T in range(4):
                d = acc_(sg, T) + 4 * nt
                mf.append(dict(text=mfma(vr(d), ar(bb), vr(OFo(T, kk)) if a_ == 0 else ar(OFp(T, kk)), "0" if z else vr(d))))
            if nt == 1 and sg >= 2:
                j = 4 * a_ + kk
                mf.append(dict(text=mfma(vr(acc9(sg)), ar(bb), ar(aOF9 + 4 * j), "0" if z else vr(acc9(sg)))))
                if sg == 2:
                    for s9 in range(2):
                        mf.append(dict(text=mfma(vr(acc9(s9)), ar(hold_of(s9, a_, kk)), ar(aOF9 + 4 * j), "0" if j == 0 else vr(acc9(s9)))))


def build_stage(sg, k0):
    fr, mf, kfirst = Frags(k0), [], {}
    if sg == 0:
        for (s_, a_) in ((0, 0), (1, 0), (0, 1), (1, 1)):
            stage_part(s_, a_, fr, mf, kfirst, OBUF[0])
    else:
        for a_ in range(2):
            stage_part(sg, a_, fr, mf, kfirst, OBUF[(sg - 1) & 3])
    return fr, mf, kfirst


def conv_items(kk, e, d):
    return [Item("v_cvt_pk_bf16_f32 v%d, v%d, v%d" % (OFo(T, kk) + j, O_(T, 2 * kk) + 2 * j, O_(T, 2 * kk) + 2 * j + 1), e, d)
            for T in range(4) for j in range(4)]


def out_items(sg, e0, step_, nine):
    its = []
    for T in range(4):
        e = e0 + T * step_
        a0 = acc_(sg, T)
        for j in range(8):
            its.append(Item("v_mul_f32 v%d, v%d, v%d" % (a0 + j, vRI + T, a0 + j), e, BIG))
        for j in range(4):
            its.append(Item("v_cvt_pk_bf16_f32 v%d, v%d, v%d" % (a0 + j, a0 + 2 * j, a0 + 2 * j + 1), e, BIG))
        its.append(Item("s_mov_b32 s%d, %d\nbuffer_store_dwordx4 %s, v%d, %s, s%d offen offset:%d %s"
                        % (sT1, sg * 16384 + (T >> 1) * 4096, vr(a0), vST, srd(SRD_WS), sT1, (T & 1) * 2048, STP), e, BIG, ("st", sg)))
    e = e0 + 4 * step_
    for s9 in nine:
        a0, d = acc9(s9), v9st + 2 * (s9 & 1)
        for j in range(4):
            its.append(Item("v_mul_f32 v%d, v%d, v%d" % (a0 + j, vRI + 4, a0 + j), e, BIG))
        its.append(Item("v_cvt_pk_bf16_f32 v%d, v%d, v%d\nv_cvt_pk_bf16_f32 v%d, v%d, v%d" % (d, a0, a0 + 1, d + 1, a0 + 2, a0 + 3), e, BIG))
        if s9 == 6:
            its.append(Item("v_mov_b32 v%d, 0\nv_mov_b32 v%d, 0" % (v9st + 2, v9st + 3), e, BIG))
        if (s9 & 1) or s9 == 6:
            its.append(Item("s_mov_b32 s%d, %d\nbuffer_store_dwordx4 %s, v%d, %s, s%d offen %s"
                            % (sT1, 114688 + 4096 * (s9 >> 1), vr(v9st), vST9, srd(SRD_WS), sT1, STP), e, BIG, ("st", sg)))
    return its


npub = [0]


def publish(parts):
    k_ = npub[0]
    npub[0] += 1
    E("s_cmp_lg_u32 s%d, 0\ns_cbranch_scc1 L_nopub%d" % (sW, k_))
    E("s_mov_b64 exec, 0x%x\nv_mov_b32 v2, s96\nv_mov_b32 v3, s97\ns_mov_b64 exec, 0xffff" % ((2 << max(parts)) - 1))
    raw("global_store_dwordx2 v1, v[2:3], s[14:15] sc1")
    E("s_mov_b64 exec, -1")
    E("L_nopub%d:" % k_)


fr0 = build_stage(0, 0)[0]
for f in range(LEAD):
    E("\n".join(fr0.fr[f][1]))
for it in conv_items(0, -1, BIG):
    it.emit()
k = 0
carried = []
issue_plan = {2: [6, 7, 8, 9], 3: [10, 11], 4: [12, 13]} if opt("plan", "1") == "0" else {2: [6, 7, 8], 3: [9, 10], 4: [11, 12], 5: [13]}
for sg in (0, 2, 3, 4, 5, 6):
    fr, mf, kfirst = build_stage(sg, k)
    N = len(mf)
    stamp(STAMP == 5)
    bpos = N - EARLY
    rq = fr.items(LEAD, LEAD)
    nxt = 2 if sg == 0 else sg + 1
    pieces = []
    for q in issue_plan.get(sg, []):
        pieces += dma_wo(q)
    dq = spread(pieces, 0, 3)
    if opt("plan", "1") != "0" and pieces:
        nq_ = len(issue_plan[sg])
        sa, sb = int(opt("dsa", "4")), int(opt("dsb", "7"))
        dq = spread(pieces[:4 * (nq_ - 1)] if sg < 5 else pieces, 0, sa) + (spread(pieces[4 * (nq_ - 1):], sa * 4 * (nq_ - 1) + 8, sb) if sg < 5 else [])
    if sg < 6:
        nf = build_stage(nxt, fr.k)[0]
        for it in rq:
            it.d = min(it.d, bpos - 3)
            it.e = min(it.e, it.d)
        for j in range(LEAD):
            rq.append(Item("\n".join(nf.fr[j][1]), bpos, bpos + 2 + 2 * j))

    def stage_barrier(sg=sg, fr=fr, nxt=nxt):
        P.wait_ds_regs(rset("a", fr.fr[-1][0]))
        drain_writes()
        pub = ({3: [0, 1], 4: [2], 5: [3]} if opt("publate", "0") == "0" else {4: [0, 1], 5: [2]}).get(sg, [])
        vmwait([("O", 2 * nxt + 1)] + [("st", p_) for p_ in pub])
        E("s_barrier")
        if pub:
            publish(pub)
    if sg < 6:
        mf[bpos]["pre"] = [stage_barrier]
    cq, xq, wq_ = [], [], []
    if sg == 0:
        M = kfirst[(0, 1, 0)] - 8
        M2 = M + 18
        wq_.append(Item("v_add_u32 v31, s%d, v0\nv_add_u32 v31, %d, v31" % (sW4K, O9S), -1, M - 1))
        wq_ += [Item("ds_write_b128 v31, %s offset:%d" % (ar(aO9 + 4 * b_), 1024 * b_), -1, M - 1) for b_ in range(4)]
        for kk in range(4):
            if kk:
                cq += conv_items(kk, -1, kfirst[(0, 0, kk)] - 2)
            wq_ += [Item("ds_write_b128 v%d, %s offset:%d" % (wA + (kk >> 1), vr(OFo(T, kk)), T * 8192 + (kk & 1) * 1024),
                         kfirst[(0, 0, kk)] - 1 if kk else -1, M - 1) for T in range(4)]

        def mid_barrier():
            drain_writes()
            E("s_barrier")

        def mid2_barrier():
            P.wait_ds_regs(rset("a", OFp(3, 3)))
            E("s_barrier")
        mf[M]["pre"] = [mid_barrier]
        mf[M2]["pre"] = [mid2_barrier]
        j = 0
        for kk in range(4):
            for T in range(4):
                wq_.append(Item("ds_read_b128 %s, v%d offset:%d" % (ar(OFp(T, kk)), rA + (kk >> 1), T * 8192 + (kk & 1) * 1024),
                                M, M + j // 2 + (2 if kk else 0)))
                j += 1
        dq = spread(dma_wo(4) + dma_wo(5), M2, 3)
        lq = ["s_xor_b32 s99, s%d, 1\ns_mul_i32 s99, s99, 320\ns_add_u32 s99, s99, %d\nv_add_u32 v30, s99, v3\nv_add_u32 v3, %d, v3" % (sW, LX, LX + 256)]
        lq += ["ds_read_b32 v%d, v30 offset:%d" % (244 + T, 64 * T) for T in range(4)]
        lq += ["ds_read_b32 v%d, v3 offset:%d" % (248 + w_, 320 * w_) for w_ in range(4)]
        lq += ["v_add_f32 v%d, v%d, v%d" % (vL + T, vL + T, 244 + T) for T in range(4)]
        lq += ["v_add_f32 v248, v248, v249\nv_add_f32 v250, v250, v251", "v_add_f32 v%d, v248, v250" % (vL + 4),
               "v_add_f32 v244, v%d, v%d\nv_add_f32 v245, v%d, v%d" % (vL, vL + 1, vL + 2, vL + 3),
               "v_add_f32 v244, v244, v245\nv_add_f32 v244, v244, v%d" % (vL + 4),
               "s_mov_b32 s99, %s\nv_cmp_nge_f32 vcc, s99, v244" % fbits(LTHR),
               "s_lshl_b32 s98, s%d, 2\ns_add_u32 s98, s98, %d\nv_mov_b32 v245, s98" % (sW, LX + 2048),
               "s_cmp_lg_u64 vcc, 0\ns_cselect_b32 s99, 1, 0\nv_mov_b32 v244, s99",
               "ds_write_b32 v245, v244"]
        xq = [Item(t, kfirst[(1, 0, 0)], M - 1) for t in tail_setup2() + lq]
        xq += [Item("v_rcp_f32 v%d, v%d" % (vRI + T, vL + T), kfirst[(1, 0, 0)], BIG) for T in range(5)]
        t9 = ["s_xor_b32 s99, s%d, 0x2000\ns_add_u32 s99, s99, %d\nv_add_u32 v31, s99, v0" % (sW4K, O9S)]
        t9 += ["ds_read_b128 %s, v31 offset:%d" % (vr(176 + 4 * b_), 1024 * b_) for b_ in range(4)]
        t9 += ["v_mov_b32 v30, %d\nds_read_b128 v[244:247], v30" % (LX + 2048)]
        t9 += ["v_accvgpr_read_b32 v%d, a%d" % (160 + j, aO9 + 16 + j) for j in range(16)]
        t9 += ["v_or3_b32 v244, v244, v245, v246\nv_or_b32 v244, v244, v247", "s_nop 0\nv_readfirstlane_b32 s99, v244",
               "s_nop 1\ns_andn2_b32 s99, s99, s%d\ns_cbranch_scc1 L_restart" % sPara]
        t9 += ["v_add_f32 v%d, v%d, v%d" % (160 + j, 160 + j, 176 + j) for j in range(16)]
        t9 += ["v_cvt_pk_bf16_f32 v%d, v%d, v%d" % (160 + j, 160 + 2 * j, 161 + 2 * j) for j in range(8)]
        t9 += ["s_lshl_b32 s99, s%d, 12\ns_xor_b32 s98, s%d, 1\ns_lshl_b32 s98, s98, 11" % (sC, sR),
               "s_add_u32 s99, s99, s98\ns_add_u32 s99, s99, %d\nv_add_u32 v31, s99, v0" % O9P]
        t9 += ["ds_write_b128 v31, %s offset:%d" % (vr(160 + 4 * j), 1024 * j) for j in range(2)]
        xq += [Item(t, M + 8, bpos - 1) for t in t9]
        for a_ in range(2):
            for kh in range(2):
                xq.append(Item("s_xor_b32 s99, s%d, %d\ns_lshl_b32 s99, s99, 12\ns_xor_b32 s98, s%d, %d" % (sC, a_, sR, kh), bpos, BIG))
                xq.append(Item("s_lshl_b32 s98, s98, 11\ns_add_u32 s99, s99, s98\ns_add_u32 s99, s99, %d" % O9P, bpos, BIG))
                xq.append(Item("v_add_u32 v31, s99, v0\nds_read_b128 %s, v31" % ar(aOF9 + 16 * a_ + 8 * kh), bpos, BIG))
                xq.append(Item("ds_read_b128 %s, v31 offset:1024" % ar(aOF9 + 16 * a_ + 8 * kh + 4), bpos, BIG))
        cq += out_items(0, kfirst[(1, 1, 0)] + 5, 5, [])
    elif sg == 2:
        cq = out_items(1, int(opt("se0", "5")), int(opt("sst", "11")) + 3, [])
        xq = [Item("s_load_dwordx2 s[12:13], s[0:1], 88\ns_load_dwordx2 s[14:15], s[0:1], 96\ns_waitcnt lgkmcnt(0)", 30, 30),
              Item("s_lshr_b32 s99, s3, 4\ns_lshl_b32 s99, s99, 11\ns_add_u32 s99, s99, %d" % FLG, 31, 40),
              Item("s_add_u32 s14, s14, s99\ns_addc_u32 s15, s15, 0", 31, 40),
              Item("s_and_b32 s99, s3, 15\ns_lshl_b32 s99, s99, 7\nv_lshrrev_b32 v1, 1, v0", 31, 44),
              Item("v_add_u32 v1, s99, v1\nv_mov_b32 v2, 0", 31, 44), Item("v_mov_b32 v3, 0", 31, 44)]
    else:
        cq = out_items(sg - 1, int(opt("se0", "5")), int(opt("sst", "11")), [0, 1, 2] if sg == 3 else [sg - 1])
    if sg == 6:
        xq = [Item("s_and_b32 s36, s3, 15\ns_lshr_b32 s99, s36, 2\ns_lshl_b32 s99, s99, 3", 40, 50),
              Item("v_lshrrev_b32 v30, 6, v0\nv_lshlrev_b32 v30, 7, v30", 40, 50), Item("v_add_u32 v31, s99, v30", 40, 50),
              Item("global_load_dwordx2 v[32:33], v31, s[14:15] sc1", 60, 62, "poll")]
    for it in carried:
        it.e = -1
    if sg == 0:
        nine_rd = xq[-16:]
        xq = xq[:-16] + nine_rd[:8]
        pend9 = nine_rd[8:]
    if sg == 2:
        for it in pend9:
            it.e, it.d = -1, kfirst[(2, 1, 0)] - 4
        wq_ = pend9
    carried = run_phase(mf, [rq, dq, carried + cq, wq_, xq], "st%d" % sg, carry=(2,) if sg == 0 else ())
    k = fr.k
for it in out_items(6, 0, 0, [6]):
    it.emit()
if int(opt("pub4", "0")):
    vmwait([("st", 4)])
    E("s_barrier")
    publish([4])
stamp()

E("s_load_dwordx2 s[4:5], s[0:1], 96\ns_load_dwordx2 s[8:9], s[0:1], 80")
E("v_lshrrev_b32 v5, 4, v0\nv_and_b32 v4, 15, v5\nv_lshrrev_b32 v5, 4, v5")
E("v_lshlrev_b32 v16, 17, v5\nv_lshl_add_u32 v16, v4, 4, v16")
E("v_mul_u32_u24 v17, 1792, v4\nv_lshrrev_b32 v6, 1, v5\nv_lshl_add_u32 v17, v6, 3, v17\nv_and_b32 v19, 1, v5")
E("v_lshl_add_u32 v14, v19, 7, v17\nv_lshl_add_u32 v17, v19, 5, v17\nv_lshlrev_b32 v19, 30, v19")
E("v_and_b32 v6, 1, v4\nv_lshlrev_b32 v6, 4, v6\nv_mov_b32 v7, 0x3f80\nv_lshlrev_b32 v7, v6, v7\nv_lshrrev_b32 v6, 1, v4")
for r_ in range(4):
    E("v_cmp_eq_u32 vcc, %d, v6\nv_cndmask_b32 v%d, 0, v7, vcc" % (r_, 40 + r_))
    E("v_cmp_eq_u32 vcc, %d, v6\nv_cndmask_b32 v%d, 0, v7, vcc" % (4 + r_, 44 + r_))
E("s_lshr_b32 s35, s3, 4\nv_mov_b32 v18, s%d" % (sClk + 1))
E("s_waitcnt lgkmcnt(0)")
E("s_lshl_b32 s99, s35, 21\ns_add_u32 s4, s4, s99\ns_addc_u32 s5, s5, 0\ns_mov_b32 s6, %d\ns_mov_b32 s7, 0x20000" % (16 * SLAB))
E("s_mov_b32 s10, %d\ns_mov_b32 s11, 0x20000" % (8 * 144 * 896 * 2))
E("s_and_b32 s16, s35, 7\ns_mul_i32 s16, s16, %d\ns_lshr_b32 s17, s35, 3\ns_mul_i32 s17, s17, 896\ns_add_u32 s16, s16, s17" % (144 * 1792))
E("s_lshl_b32 s17, s35, 4\nv_mov_b32 v8, s17")
E("s_lshl_b32 s19, s36, 2\ns_add_u32 s19, s19, s%d" % sW)
E("s_mov_b32 s21, 0\ns_mov_b32 s22, 0\ns_mov_b64 s[46:47], 0")
LIM = int(opt("lim", "2000"))
UD = [64, 176]


def uloads(u):
    E("s_lshl_b32 s20, s19, 10\ns_add_u32 s20, s20, %d" % (65536 * u))
    for p_ in range(4):
        for pc in range(4):
            E("buffer_load_dwordx4 %s, v16, s[4:7], s20 offen offset:%d %s" % (vr(UD[u] + 16 * p_ + 4 * pc), 256 * pc, LDP))
        if p_ < 3:
            E("s_add_u32 s20, s20, %d" % (4 * SLAB))


def flags_ok():
    E("v_subrev_co_u32 v32, vcc, s%d, v32\nv_subb_co_u32 v33, vcc, v33, v18, vcc\nv_cmp_eq_u32 vcc, 0, v33" % sClk)
    E("s_cmp_eq_u64 vcc, -1")


SLP = int(opt("slp", "0"))


def spin(name):
    E("s_cmp_lg_u32 s%d, 0\ns_cbranch_scc1 L_%s_j" % (sW, name))
    E("L_%s:" % name)
    E("global_load_dwordx2 v[32:33], v31, s[14:15] sc1\ns_waitcnt vmcnt(0)")
    E("L_%s_c:" % name)
    flags_ok()
    E("s_cselect_b32 s99, 1, 0\ns_cbranch_scc1 L_%s_d" % name)
    if SLP:
        E("s_sleep %d" % SLP)
    E("s_add_u32 s21, s21, 1\ns_cmp_lt_u32 s21, %d\ns_cbranch_scc1 L_%s" % (LIM, name))
    E("L_%s_d:" % name)
    E("v_mov_b32 v35, s99\nds_write_b32 v36, v35 offset:%d\ns_waitcnt lgkmcnt(0)" % (4 * (name == "spin2")))
    E("L_%s_j:" % name)
    E("s_barrier\nds_read_b32 v35, v36 offset:%d\ns_waitcnt lgkmcnt(0)\nv_readfirstlane_b32 s99, v35" % (4 * (name == "spin2")))
    E("s_cmp_eq_u32 s99, 1")


E("v_mov_b32 v36, %d" % (LX + 3072))
E("s_waitcnt vmcnt(0)")
E("L_drained:")
stamp()
E("s_barrier")
publish([5, 6])
E("s_cmp_eq_u32 s%d, 0\ns_cbranch_scc1 L_spin1_c" % sW)
spin("spin1")
E("s_cselect_b32 s23, 1, 0\ns_cbranch_scc0 L_have1")
uloads(0)
E("L_have1:")
stamp()
E("s_cmp_lg_u32 s%d, 0\ns_cbranch_scc1 L_noadd\ns_mov_b64 exec, 1\nv_mov_b32 v9, 1" % sW)
E("global_atomic_add v34, v8, v9, s[12:13] sc0")
E("s_mov_b64 exec, -1\nL_noadd:")
E("s_lshr_b32 s99, s36, 2\ns_add_u32 s99, s99, 4\ns_lshl_b32 s98, s36, 1\ns_sub_u32 s98, s98, 23\ns_min_u32 s98, s98, 6\ns_max_u32 s98, s98, 2\ns_cmp_ge_u32 s36, 12\ns_cselect_b32 s99, s98, s99")
E("s_lshl_b32 s99, s99, 3\nv_add_u32 v31, s99, v30")
spin("spin2")
E("s_cselect_b32 s99, s23, 0\ns_cmp_eq_u32 s99, 1\ns_cbranch_scc1 L_second")
E("L_slow:")
E("s_mov_b32 s21, 0")
E("L_spin3:")
E("global_load_dword v32, v8, s[12:13] sc1\ns_waitcnt vmcnt(0)\nv_readfirstlane_b32 s99, v32")
E("s_cmp_eq_u32 s99, 16\ns_cbranch_scc1 L_both")
E("s_add_u32 s21, s21, 1\ns_cmp_lt_u32 s21, %d\ns_cbranch_scc1 L_spin3" % LIM)
E("s_lshl_b64 s[98:99], 1, s19\ns_mov_b64 exec, 1\nv_mov_b32 v32, s98\nv_mov_b32 v33, s99")
E("global_atomic_or_x2 v8, v[32:33], s[12:13] offset:8\ns_waitcnt vmcnt(0)\ns_mov_b64 exec, -1")
E("global_load_dword v32, v8, s[12:13] sc1\ns_waitcnt vmcnt(0)\nv_readfirstlane_b32 s99, v32")
E("s_cmp_eq_u32 s99, 16\ns_cbranch_scc0 L_next")
E("L_both:")
P.vmq = []
uloads(0)
E("L_second:")
stamp()
uloads(1)
for u in range(2):
    E("s_add_u32 s21, s19, %d" % (64 * u))
    if u == 1:
        E("s_cmp_ge_u32 s21, 112\ns_cbranch_scc1 L_t9")
    E("s_lshr_b32 s20, s21, 4\ns_lshl_b32 s20, s20, 7\ns_add_u32 s20, s20, s16")
    E("s_bfe_u32 s99, s21, 0x30001\ns_mul_i32 s99, s99, %d\ns_add_u32 s20, s20, s99" % (16 * 1792))
    E("s_and_b32 s99, s21, 1\ns_lshl_b32 s99, s99, 6\ns_add_u32 s%d, s20, s99" % (50 + u))
    E("s_bfe_u32 s99, s21, 0x10003\ns_lshl_b32 s99, s99, 5")
    E("v_xor_b32 v%d, s99, v17" % (12 + u))
E("s_branch L_sum")
E("L_t9:")
E("s_bfe_u32 s20, s21, 0x20002\ns_and_b32 s99, s21, 1\ns_lshl_b32 s99, s99, 1\ns_bfe_u32 s98, s21, 0x10001\ns_xor_b32 s98, s98, 1\ns_add_u32 s99, s99, s98\ns_lshl_b32 s99, s99, 5")
E("s_lshl_b32 s51, s20, 8\ns_add_u32 s51, s51, s99\ns_add_u32 s51, s51, s16\ns_add_u32 s51, s51, %d" % (128 * 1792))
E("v_mov_b32 v13, v14\ns_cmp_eq_u32 s20, 3\ns_cbranch_scc0 L_sum\nv_add_u32 v13, v19, v14")
E("L_sum:")
for u in range(2):
    for p_ in range(4):
        for pc in range(4):
            d = 48 + 8 * u + 4 * (pc >> 1)
            E(mfma(vr(d), vr(40 if (pc & 1) == 0 else 44), vr(UD[u] + 16 * p_ + 4 * pc), "0" if (p_ == 0 and (pc & 1) == 0) else vr(d)))
for u in range(2):
    for k_ in range(2):
        d = 48 + 8 * u + 4 * k_
        E("v_cvt_pk_bf16_f32 v%d, v%d, v%d\nv_cvt_pk_bf16_f32 v%d, v%d, v%d" % (d, d, d + 1, d + 1, d + 2, d + 3))
        E("buffer_store_dwordx2 v[%d:%d], v%d, s[8:11], s%d offen offset:%d %s" % (d, d + 1, 12 + u, 50 + u, 16 * k_, opt("ost", "")))
E("L_next:")
E("s_cmp_lg_u32 s%d, 0\ns_cbranch_scc1 L_done" % sW)
E("s_cmp_lg_u32 s22, 0\ns_cbranch_scc1 L_more")
E("s_mov_b32 s22, 1\nv_readfirstlane_b32 s99, v34\ns_cmp_eq_u32 s99, 15\ns_cbranch_scc0 L_done")
E("global_load_dwordx2 v[32:33], v8, s[12:13] offset:8 sc1\ns_waitcnt vmcnt(0)\nv_readfirstlane_b32 s46, v32\nv_readfirstlane_b32 s47, v33")
E("L_more:")
E("s_cmp_eq_u64 s[46:47], 0\ns_cbranch_scc1 L_done")
E("s_ff1_i32_b64 s19, s[46:47]\ns_bitset0_b64 s[46:47], s19\ns_branch L_both")
E("L_done:")
if STAMP:
    E("s_waitcnt vmcnt(0)")
    stamp()
    E("s_waitcnt lgkmcnt(0)")
    if STAMP == 1:
        E("s_memtime s[94:95]\ns_waitcnt lgkmcnt(0)")
    E("v_mov_b32 v1, 0")
    E("s_cmp_lg_u32 s%d, 0\ns_cbranch_scc1 L_end" % sW)
    if STAMP == 7:
        E("v_lshrrev_b32 v2, 2, v0\nv_accvgpr_read_b32 v3, a199\nv_accvgpr_read_b32 v4, a198")
        E("s_mov_b64 exec, 0xffff\nglobal_store_dword v2, v3, s[%d:%d] offset:128\nglobal_store_dword v2, v4, s[%d:%d] offset:192" % (sWSB, sWSB + 1, sWSB, sWSB + 1))
    E("s_mov_b64 exec, 1")
    for k_ in range(16):
        E("v_mov_b32 v2, s%d\nv_mov_b32 v3, s%d" % (sStamp + 2 * k_, sStamp + 2 * k_ + 1))
        E("global_store_dwordx2 v1, v[2:3], s[%d:%d] offset:%d" % (sWSB, sWSB + 1, 8 * k_))
        E("s_nop 1")
E("L_end:\ns_endpgm")
main_ins = P.ins

R = Prog()
F = R.emit
for s_ in stubs:
    F(s_)
F("L_restart:\ns_waitcnt vmcnt(0) lgkmcnt(0)\ns_barrier\ns_mov_b32 s%d, 1\ns_branch L_start" % sPara)
for par in range(2):
    sc = P_base[par]
    F("L_fix%d:" % par)
    F("s_nop 15\ns_waitcnt lgkmcnt(0)")
    for T in range(5):
        s0 = S_(par, T)
        F("v_max3_f32 v%d, v%d, v%d, v%d\nv_max_f32 v%d, v%d, v%d" % (sc + T, s0, s0 + 1, s0 + 2, sc + T, sc + T, s0 + 3))
    F("v_mov_b32 v%d, 0xff800000\ns_cmp_eq_u32 s%d, 1\ns_cbranch_scc1 L_fix%d_a\nv_mov_b32 v%d, v%d\nL_fix%d_a:" % (sc + 5, sHas9, par, sc + 4, sc + 5, par))
    for T in range(5):
        for sw in ("v_permlane32_swap_b32", "v_permlane16_swap_b32"):
            F("v_mov_b32 v%d, v%d\ns_nop 1\n%s v%d, v%d\ns_nop 1\nv_max_f32 v%d, v%d, v%d" % (sc + 5, sc + T, sw, sc + T, sc + 5, sc + T, sc + T, sc + 5))
    F("s_mul_i32 s99, s%d, 1280\nv_add_u32 v%d, s99, v%d" % (sW, sc + 5, vMB))
    for T in range(5):
        F("ds_write_b32 v%d, v%d offset:%d" % (sc + 5, sc + T, 256 * T))
    F("s_waitcnt lgkmcnt(0)\ns_barrier")
    F("s_xor_b32 s99, s%d, 1\ns_mul_i32 s99, s99, 1280\nv_add_u32 v%d, s99, v%d" % (sW, sc + 5, vMB))
    for T in range(4):
        F("ds_read_b32 v%d, v%d offset:%d" % (sc + 6 + T, sc + 5, 256 * T))
    for w_ in range(4):
        F("ds_read_b32 v%d, v%d offset:%d" % (sc + 10 + w_, vMB, 1280 * w_ + 1024))
    F("s_waitcnt lgkmcnt(0)")
    for T in range(4):
        F("v_max3_f32 v%d, v%d, v%d, s%d" % (sc + T, sc + T, sc + 6 + T, sFloor))
    F("v_max3_f32 v%d, v%d, v%d, v%d\nv_max3_f32 v%d, v%d, v%d, s%d" % (sc + 4, sc + 10, sc + 11, sc + 12, sc + 4, sc + 4, sc + 13, sFloor))
    for T in range(5):
        for j in range(4):
            F("v_sub_f32 v%d, v%d, v%d" % (vNegM + 4 * T + j, vNegM + 4 * T + j, sc + T))
        if T == 4:
            F("s_cmp_eq_u32 s%d, 0\ns_cbranch_scc1 L_fix%d_b" % (sHas9, par))
        for j in range(4):
            F("v_sub_f32 v%d, v%d, v%d" % (S_(par, T) + j, S_(par, T) + j, sc + T))
    F("L_fix%d_b:" % par)
    F("s_cmp_eq_u32 s%d, 1\ns_cbranch_scc1 L_fix%d_c" % (sFirst, par))
    for T in range(5):
        F("v_sub_f32 v%d, 0, v%d\nv_exp_f32 v%d, v%d\ns_nop 0\nv_mul_f32 v%d, v%d, v%d\nv_accvgpr_write_b32 a%d, v%d"
          % (sc + T, sc + T, sc + T, sc + T, vL + T, vL + T, sc + T, aF + T, sc + T))
    F("L_fix%d_c:\ns_nop 3\ns_setpc_b64 s[%d:%d]" % (par, sRet, sRet + 1))
F("L_fixo:")
F("s_nop 15")
for T in range(4):
    F("v_accvgpr_read_b32 v%d, a%d" % (vTmp, aF + T))
    for j in range(32):
        F("v_mul_f32 v%d, v%d, v%d" % (vO + 32 * T + j, vTmp, vO + 32 * T + j))
F("v_accvgpr_read_b32 v%d, a%d" % (vTmp, aF + 4))
for j in range(32):
    F("v_accvgpr_read_b32 v%d, a%d\nv_mul_f32 v%d, v%d, v%d\nv_accvgpr_write_b32 a%d, v%d" % (vTmp + 1, aO9 + j, vTmp + 1, vTmp, vTmp + 1, aO9 + j, vTmp + 1))
F("s_nop 3\ns_setpc_b64 s[%d:%d]" % (sRet, sRet + 1))

KILL = OPT.get("kill", "").split(",") if OPT.get("kill") else []
if KILL:
    keep, inside = [], False
    for i in main_ins:
        if i.text.startswith("L_loop"): inside = True
        if "s_cbranch_scc1 L_loop" in i.text: inside = False
        drop = False
        if inside and "sLoop" not in i.text and ("s%d," % sLoop) not in i.text:
            if "dma" in KILL and (i.kind == "dma" or (i.kind == "wait" and "vmcnt" in i.text)): drop = True
            if "bar" in KILL and i.kind == "barrier": drop = True
            if "exp" in KILL and i.kind == "trans": drop = True
            if "valu" in KILL and i.kind == "valu": drop = True
            if "dsw" in KILL and i.kind == "dsw": drop = True
            if "ds" in KILL and i.kind in ("dsr", "dsw"): drop = True
            if "wait" in KILL and i.kind == "wait" and "lgkm" in i.text: drop = True
        if not drop: keep.append(i)
    main_ins = keep
TK = OPT.get("tkill", "").split(",") if OPT.get("tkill") else []
if TK:
    keep, inside = [], False
    for i in main_ins:
        if i.text.startswith("L_oproj"): inside = True
        if i.text.startswith("L_drained"): inside = False
        drop = False
        if inside:
            if "st" in TK and i.kind == "vst" and "dwordx4" in i.op: drop = True
            if "wo" in TK and i.kind == "dma": drop = True
            if "dsw" in TK and i.kind == "dsw" and "b128" in i.op: drop = True
            if "mul" in TK and (i.op.startswith("v_mul_f32") or i.op.startswith("v_cvt_pk")): drop = True
            if "bar" in TK and i.kind == "barrier" and False: drop = True
        if not drop: keep.append(i)
    main_ins = keep
rep = []
main_ins = pad_hazards(main_ins, rep)
rare_ins = pad_hazards(R.ins, None)
from collections import Counter
sys.stderr.write("hazard pads (main): %s\n" % dict(Counter(r_[0] for r_ in rep)))
if OPT.get("v") == "2":
    for r_ in rep:
        sys.stderr.write("  %s\n" % (r_,))
txt = lambda ins: "\n".join(("" if i.kind == "label" else "    ") + i.text for i in ins)
hdr = open("concat_heads__gqa_block_cached__mha_block_cached__near_ridge.s.ref").read().split("; Override launch")[0]
print(hdr.rstrip())
print("; @launch grid=(256,1,1) block=(256,1,1) lds=%d" % LDS_TOTAL)
print('.amdgcn_target "amdgcn-amd-amdhsa--gfx950"')
print(".text")
print(".globl %s\n.p2align 8\n.type %s,@function" % (KN, KN))
body = txt(main_ins) + "\n" + txt(rare_ins) + "\nL_codeend:"
if OPT.get("split"):
    pa, pb = OPT["split"].split(",")
    first, rest = body.split("\n", 1)

    def variant(t, pol, cap):
        t = re.sub(r"(buffer_load_dwordx4 v0, s\[\d+:\d+\], s\d+ offen offset:\d+) nt lds", r"\1 %s lds" % pol.replace("_", " "), t)
        if cap:
            t = re.sub(r"s_waitcnt vmcnt\(%d\)\n(\s+buffer_load_dwordx4 v0,)" % (CAPV - 1), r"s_waitcnt vmcnt(%d)\n\1" % (int(cap) - 1), t)
        return t
    bcopy = re.sub(r"\bL_(\w+)", r"L_\1_B", variant(rest, pb, OPT.get("capb")))
    body = first + "\n    s_bitcmp1_b32 s2, 7\n    s_cbranch_scc0 L_entry_A\n    s_getpc_b64 s[4:5]\nL_jb:\n    s_add_u32 s4, s4, L_entry_B-L_jb\n    s_addc_u32 s5, s5, 0\n    s_setpc_b64 s[4:5]\nL_entry_A:\n" + \
        variant(rest, pa, OPT.get("capa")) + "\n.p2align 6\nL_entry_B:\n" + bcopy
print(body)
print('.section .rodata,"a"')
print(""".p2align 6
.amdhsa_kernel %s
  .amdhsa_next_free_vgpr 512
  .amdhsa_next_free_sgpr 102
  .amdhsa_accum_offset 256
  .amdhsa_group_segment_fixed_size 0
  .amdhsa_kernarg_size 104
  .amdhsa_user_sgpr_count 2
  .amdhsa_user_sgpr_kernarg_segment_ptr 1
  .amdhsa_system_sgpr_workgroup_id_x 1
.end_amdhsa_kernel""" % KN)
```

```python
import sys, struct, math, re
sys.path.insert(0, "work")
from asmlib import *

OPT = dict(a.split("=") for a in sys.argv[1:] if "=" in a)
opt = lambda k, d: OPT.get(k, d).replace("_", " ")
NT = opt("nt", "nt")
WNT = opt("wnt", "")
STP = opt("st", "sc1")
LDP = opt("ld", "sc1")
STAMP = int(opt("stamp", "0"))
LEAD = int(opt("lead", "3"))
CAPS = [int(c) for c in opt("caps", opt("capv", "67"))]
CAPV = CAPS[0]
EARLY = int(opt("early", "10"))
PARA = int(opt("para", "0"))
LTHR = float(opt("lthr", str(2.0 ** 30)))

KN = "concat_heads__gqa_block_cached__mha_block_cached__near_ridge_kernel"
SLOT = 16384
KB, VB = 0, 65536
PX = 131072
MB = 151552
XB = 98304
QS = 81920
LDS_TOTAL = 163840
CSCALE = math.log2(math.e) / 16.0
BIG = 10 ** 6
SLAB = 131072
FLG = 0x2000000

fbits = lambda x: "0x%08x" % struct.unpack("<I", struct.pack("<f", x))[0]
vr = lambda n, k=4: "v[%d:%d]" % (n, n + k - 1)
ar = lambda n, k=4: "a[%d:%d]" % (n, n + k - 1)
srd = lambda n: "s[%d:%d]" % (n, n + 3)
mfma = lambda d, a, b, c: "v_mfma_f32_16x16x32_bf16 %s, %s, %s, %s" % (d, a, b, c)
rset = lambda k, n, c=4: {(k, n + i) for i in range(c)}

SRD_X, SRD_WQ, SRD_K, SRD_V, SRD_WO, SRD_WS = 4, 8, 12, 16, 20, 24
sW, sW4K, sR, sC = 28, 29, 30, 31
sOffK, sOffV, sTmpO, sLoop = 32, 33, 34, 35
sFloor, sFirst, sHas9, sPara = 36, 37, 38, 39
sRet = 40
sT0, sT1, sT2, sT3 = 42, 43, 44, 45
sXm0 = 46
sClk = 48
sWSB = 62
sStamp = 64
vDKV, vPW, vPR, vMB = 0, 1, 2, 3
vK = 4
vV = 8
vL = 24
vSc = 29
vTmp = 30
vP9 = 36
vNegM = 40
S_base = {0: 60, 1: 76}
vS9 = 92
P_base = {0: 96, 1: 112}
vO = 128
aQ = 0
aO9 = 160
aF = 192
aPOOL, NPOOL = 224, 8

S_ = lambda par, T: S_base[par] + 4 * T if T < 4 else vS9
P_ = lambda par, T: P_base[par] + 4 * T if T < 4 else vP9
Q_ = lambda T, s: aQ + 32 * T + 4 * s
O_ = lambda T, b: vO + 32 * T + 4 * b
own9 = lambda n, r: ((n >> 1) & 1) == r

P = Prog()
E = P.emit
stubs = []
nstamp = [0]


def raw(t):
    for l in t.split("\n"):
        P.ins.append(Ins(l.strip()))


def stamp(cond=True):
    if STAMP and cond and nstamp[0] < (16 if STAMP in (5, 6, 9) else 8):
        raw("s_memrealtime s[%d:%d]" % (sStamp + 2 * nstamp[0], sStamp + 2 * nstamp[0] + 1))
        nstamp[0] += 1


SCALAR = ("salu", "wait", "branch", "barrier", "nop", "smem")


def advance(t, ins):
    for I in ins:
        if I.kind == "label":
            continue
        if I.kind in SCALAR:
            t += 4 * (I.cost if I.kind == "nop" else 1)
        else:
            t = max(t, 8)
            if I.kind == "trans":
                t += 8
            elif I.kind == "dsw":
                t += 20 if ("b128" in I.op or "write2" in I.op) else (10 if "b64" in I.op else 6)
            elif I.op.startswith("v_pk_"):
                t += 20
            else:
                t += 4
    return t


class Item:
    def __init__(self, text, e=-1, d=BIG, tag=None, cost=None):
        self.text, self.e, self.d, self.tag = text, e, d, tag
        self.ins = [Ins("s_nop 0")] if callable(text) else [Ins(l.strip()) for l in text.split("\n") if l.strip()]
        self.lead_scalar = self.ins[0].kind in SCALAR

    def emit(self):
        self.text() if callable(self.text) else E(self.text, tag=self.tag)


PACK2 = int(opt("pack2", "1"))


def run_phase(mf, queues, name="", carry=()):
    qs = [list(q) for q in queues]
    for q in qs:
        for j in range(len(q) - 2, -1, -1):
            q[j].d = min(q[j].d, q[j + 1].d)
        for it in q:
            assert it.e <= it.d or it.d >= BIG, (name, it.text, it.e, it.d)
    lost = [0]
    n = len(mf)

    def pressure(g):
        return None

    def fill(g, t):
        while True:
            best = None
            for qi, q in enumerate(qs):
                if q and q[0].e <= g:
                    it = q[0]
                    forced = it.d <= g
                    te = advance(t, it.ins)
                    fits = te <= 16 or (t <= 8 and advance(4, it.ins) > 16)
                    if forced or fits:
                        key = (0 if forced else 1, 0 if (t == 4 and it.lead_scalar) else 1, it.d, qi)
                        if best is None or key < best[0]:
                            best = (key, qi, te)
            if best is None:
                break
            it = qs[best[1]].pop(0)
            w0 = P.nwaits
            nw = sum(1 for I in it.ins if I.kind == "wait")
            it.emit()
            t = best[2] + 4 * max(0, P.nwaits - w0 - nw)
        return t

    fill(-1, 100)
    for g, m in enumerate(mf):
        for t_ in m.get("pre", []):
            t_() if callable(t_) else E(t_)
        E(m["text"])
        t = 4
        if g + 1 < n and not mf[g + 1].get("pre"):
            nx = Ins(mf[g + 1]["text"])
            if P._need(P.dsq, nx.src) >= 0:
                P.wait_ds_regs(nx.src | mf[g + 1].get("waitfor", set()))
                t = 8
        t = fill(g, t)
        lost[0] += max(0, t - 16)
    left = 0
    rest = []
    for qi, q in enumerate(qs):
        if qi in carry:
            rest += q
            continue
        for it in q:
            left += advance(8, it.ins) - 8
            it.emit()
    if OPT.get("v"):
        sys.stderr.write("phase %s: %d mfma, lost %d cyc, leftover %d cyc\n" % (name, n, lost[0], left))
    return rest


pool_ctr = [0]


class Frags:
    def __init__(self, start):
        self.k = start
        self.fr = []
        self.first = []

    def new(self, mf, texts_fn, buf=None):
        if buf is None:
            buf = aPOOL + 4 * (self.k % NPOOL)
            self.k += 1
        self.fr.append((buf, texts_fn(buf)))
        self.first.append(len(mf))
        return buf

    def items(self, skip, lead, off=0, emin=-1):
        out = []
        for f in range(skip, len(self.fr)):
            e = max(emin, self.first[f - lead] + off) if f >= lead else emin
            d = (self.first[f - lead + 1] + off) if f >= lead else emin
            out.append(Item("\n".join(self.fr[f][1]), e, max(d, e)))
        return out


rd128 = lambda areg, off: (lambda b: ["ds_read_b128 %s, v%d offset:%d" % (ar(b), areg, off)])
rdtr = lambda a0, a1, o0, o1: (lambda b: ["ds_read_b64_tr_b16 %s, v%d offset:%d" % (ar(b, 2), a0, o0),
                                          "ds_read_b64_tr_b16 %s, v%d offset:%d" % (ar(b + 2, 2), a1, o1)])


def dma_kv(which, lds, tag, cap=True):
    s_srd, s_off = (SRD_K, sOffK) if which == "K" else (SRD_V, sOffV)
    res = []
    for m in range(4):
        t = "s_add_u32 m0, s%d, %d\n" % (sW4K, lds) if m == 0 else ""
        if cap and CAPV:
            t += "s_waitcnt vmcnt(%d)\n" % (CAPS[(4 * (which == "V") + m) % len(CAPS)] - 1)
        t += "buffer_load_dwordx4 v%d, %s, s%d offen offset:%d %s lds" % (vDKV, srd(s_srd), s_off, m * 1024, NT)
        res.append(t)
    STR = int(opt("stride", "1"))
    if STR == 1:
        res.append("s_add_u32 s%d, s%d, %d" % (s_off, s_off, SLOT))
    else:
        res.append("s_add_u32 s%d, s%d, %d\ns_cmp_ge_u32 s%d, 0x80000\ns_cselect_b32 s53, %d, 0" % (s_off, s_off, SLOT * STR, s_off, 0x80000 - SLOT))
        res.append("s_sub_u32 s%d, s%d, s53" % (s_off, s_off))
    return [(r, tag) for r in res]


def spread(pieces, start, step):
    out, k = [], 0
    for (t, tag) in pieces:
        e = int(start + k * step)
        out.append(Item(t, e, e + max(1, int(step)), tag))
        if "buffer_load" in t:
            k += 1
    return out


def emit_pieces(pieces):
    for (t, tag) in pieces:
        E(t, tag=tag)


def vmwait(tags):
    c = P.vm_count_after(tags)
    if c is not None:
        E("s_waitcnt vmcnt(%d)" % min(63, c))


def drain_writes():
    pend = [k for k, (_, d) in enumerate(P.dsq) if d == set()]
    if pend:
        E("s_waitcnt lgkmcnt(%d)" % (len(P.dsq) - 1 - pend[-1]))


nchk = [0]


def cond_call(sub, has9):
    k = nchk[0]
    nchk[0] += 1
    stubs.append("L_rare%d:\ns_mov_b32 s%d, %d\ns_call_b64 s[%d:%d], %s\ns_branch L_back%d" % (k, sHas9, has9, sRet, sRet + 1, sub, k))
    return "s_cbranch_vccnz L_rare%d\nL_back%d:" % (k, k)


tiles_of = lambda n, r: [0, 1, 2, 3] + ([4] if own9(n, r) else [])


QKG = int(opt("qkg", "1"))
PVG = int(opt("pvg", "1"))


def qk_part(n, r, fr, mf):
    par = n & 1
    for s0 in range(0, 8, QKG):
        bs = [fr.new(mf, rd128(vK + (s & 3), KB + (n & 3) * SLOT + (s >> 2) * 256)) for s in range(s0, s0 + QKG)]
        for T in tiles_of(n, r):
            for j, s in enumerate(range(s0, s0 + QKG)):
                mf.append(dict(text=mfma(vr(S_(par, T)), ar(bs[j]), ar(Q_(T, s)), vr(vNegM + 4 * T) if s == 0 else vr(S_(par, T)))))


def pv_part(n, r, fr, mf):
    par = n & 1
    for b0 in range(0, 8, PVG):
        bs = [fr.new(mf, rdtr(vV + b_, vV + 8 + b_, (n & 3) * SLOT, (n & 3) * SLOT)) for b_ in range(b0, b0 + PVG)]
        for T in tiles_of(n, r):
            for j, b_ in enumerate(range(b0, b0 + PVG)):
                if T < 4:
                    mf.append(dict(text=mfma(vr(O_(T, b_)), ar(bs[j]), vr(P_(par, T)), vr(O_(T, b_)))))
                else:
                    mf.append(dict(text=mfma(ar(aO9 + 4 * b_), ar(bs[j]), vr(vP9), ar(aO9 + 4 * b_))))


tbank = [0]
DOT2 = int(opt("dot2", "0"))
sOnes = 47


def softmax_items(n, tiles, e, d):
    par = n & 1
    its = []
    for T in tiles:
        for h in range(2):
            t = vTmp + 2 * (tbank[0] % 3)
            tbank[0] += 1
            s0 = S_(par, T) + 2 * h
            its.append(Item("v_exp_f32 v%d, v%d" % (t, s0), e, d))
            its.append(Item("v_exp_f32 v%d, v%d" % (t + 1, s0 + 1), e, d))
            if DOT2:
                its.append(Item("s_nop 0\nv_cvt_pk_bf16_f32 v%d, v%d, v%d" % (P_(par, T) + h, t, t + 1), e, d))
                its.append(Item("v_dot2c_f32_bf16 v%d, s%d, v%d" % (vL + T, sOnes, P_(par, T) + h), e, d))
                continue
            its.append(Item("v_add_f32 v%d, v%d, v%d" % (vL + T, vL + T, t), e, d))
            its.append(Item("v_cvt_pk_bf16_f32 v%d, v%d, v%d" % (P_(par, T) + h, t, t + 1), e, d))
            its.append(Item("v_add_f32 v%d, v%d, v%d" % (vL + T, vL + T, t + 1), e, d))
        if T < 4 and (T & 1):
            its.append(Item("ds_write2st64_b64 v%d, %s, %s offset0:%d offset1:%d"
                            % (vPW, vr(P_(par, T - 1), 2), vr(P_(par, T), 2), 5 * par + T - 1, 5 * par + T), e, d))
        if T == 4:
            its.append(Item("ds_write_b64 v%d, %s offset:%d" % (vPW, vr(vP9, 2), (5 * par + 4) * 512), e, d))
    return its


def partner_reads(n, r):
    return ["ds_read_b64 %s, v%d offset:%d" % (vr(P_(n & 1, T) + 2, 2), vPR, (5 * (n & 1) + T) * 512) for T in tiles_of(n, r)]


def split_tiles(n, r, everything=False):
    if everything:
        return tiles_of(n, r), []
    if own9(n, r) and not (n & 1):
        return [4, 0], [1, 2, 3]
    if own9(n, r):
        return [0, 1, 2], [3, 4]
    return [0, 1], [2, 3]


def pair(fr, mf, lo, hi):
    for f in range(lo, hi - 1, 2):
        mf[fr.first[f]]["waitfor"] = rset("a", fr.fr[f + 1][0])


def step(n, r, k0, dma_pre, dma_post, vm, pref, all_next=False):
    fr = Frags(k0)
    mf = []
    qk_part(n + 1, r, fr, mf)
    nq, fq = len(mf), len(fr.fr)
    pv_part(n, r, fr, mf)
    N = len(mf)
    bpos = nq - EARLY

    def barrier():
        P.wait_ds_regs(rset("a", fr.fr[fq - 1][0]))
        drain_writes()
        E("s_waitcnt vmcnt(%d)" % vm) if isinstance(vm, int) else vmwait(vm)
        E("s_barrier")

    rq = []
    for f in range(LEAD, len(fr.fr)):
        if f < fq:
            d = min(fr.first[f - LEAD + 1], bpos - 3)
            e = min(fr.first[f - LEAD], d)
        elif f - fq < LEAD:
            if f == fq:
                rq += [Item(t, bpos, bpos + 1 + j // 2) for j, t in enumerate(partner_reads(n, r))]
            e, d = bpos, bpos + 3 + (f - fq)
        else:
            e, d = fr.first[f - LEAD], fr.first[f - LEAD + 1]
        rq.append(Item("\n".join(fr.fr[f][1]), e, d))
    for j, t in enumerate(pref):
        e = fr.first[len(fr.fr) - LEAD + j]
        rq.append(Item("\n".join(t), e, min(N - 1, e + 3)))
    mf[bpos]["pre"] = [barrier]
    mf[nq]["pre"] = [lambda: E(cond_call("L_fix%d" % ((n + 1) & 1), int(own9(n + 1, r))))]
    vq = softmax_items(n, split_tiles(n, r)[1], -1, bpos - 2)
    first = split_tiles(n + 1, r, all_next)[0]
    for T in first:
        e = nq + 5
        if T == 4 and own9(n, r):
            e = N - 1
        vq += softmax_items(n + 1, [T], e, BIG)
    npre = len([1 for (t, _) in dma_pre if "buffer_load" in t])
    npost = len([1 for (t, _) in dma_post if "buffer_load" in t])
    dq = spread(dma_pre, 1, max(1, (bpos - 3) // max(1, npre))) + spread(dma_post, bpos + 4, max(1, (N - bpos - 6) // max(1, npost)))
    run_phase(mf, [rq, vq, dq], "step%d r%d" % (n, r))
    E(cond_call("L_fixo", 0))
    return fr.k


def qk_pref(n, r, k0):
    fr, mf = Frags(k0), []
    qk_part(n, r, fr, mf)
    return [fr.fr[f][1] for f in range(LEAD)]


def pv_pref(n, r, k0):
    fr, mf = Frags(k0), []
    pv_part(n, r, fr, mf)
    return [fr.fr[f][1] for f in range(LEAD)]


CPFL = 16
E("%s:" % KN)
E("s_cmp_ge_u32 s2, 256\ns_cbranch_scc1 L_end")
E("s_mov_b32 s%d, %d" % (sPara, PARA))
E("s_memrealtime s[%d:%d]" % (sClk, sClk + 1))
E("v_lshrrev_b32 v1, 6, v0\nv_readfirstlane_b32 s%d, v1" % sW)
stamp()
if STAMP == 1:
    E("s_memtime s[92:93]")
E("L_start:")
E("s_and_b32 s%d, s2, 7" % sT0)
E("s_lshr_b32 s%d, s2, 3" % sT1)
E("s_lshr_b32 s96, s%d, 4" % sT1)
E("s_lshr_b32 s97, s%d, 1\ns_and_b32 s97, s97, 7" % sT1)
E("s_and_b32 s98, s%d, 1\ns_lshl_b32 s99, s%d, 1\ns_add_u32 s98, s98, s99" % (sT1, sT0))
E("s_mul_i32 s99, s96, 40")
E("s_add_u32 s50, s0, s99\ns_addc_u32 s51, s1, 0")
E("s_load_dwordx2 s[4:5], s[50:51], 0")
E("s_load_dwordx2 s[8:9], s[50:51], 24")
E("s_load_dwordx2 s[12:13], s[50:51], 8")
E("s_load_dwordx2 s[16:17], s[50:51], 16")
E("s_load_dwordx2 s[20:21], s[50:51], 32")
E("s_load_dwordx2 s[24:25], s[0:1], 96")
if int(opt("tlb", "0")) or int(opt("ftouch", "0")):
    E("s_load_dwordx4 s[56:59], s[0:1], 80")
    E("s_load_dwordx2 s[60:61], s[0:1], 96")
if int(opt("cpf", "1")):
    E("s_getpc_b64 s[52:53]\nL_pc:\ns_lshr_b32 s99, s2, 3\nv_and_b32 v2, 63, v0\nv_lshlrev_b32 v2, 5, v2\nv_add_u32 v2, s99, v2\nv_lshlrev_b32 v2, 7, v2")
    E("s_cmp_lg_u32 s%d, 3\ns_cbranch_scc1 L_nocpf" % sW)
    raw("s_mov_b32 s46, L_codeend-L_pc-4")
    E("v_cmp_gt_u32 vcc, s46, v2\ns_and_saveexec_b64 s[100:101], vcc\ns_cbranch_execz L_cpf2")
    raw("global_load_dword a201, v2, s[52:53]")
    E("L_cpf2:\ns_mov_b64 exec, -1\nL_nocpf:")
hL, hW, hI, hG = 200, 201, 202, 203
vDX, vDWQ = 204, 205
vXR = 206
vW = 210
h0, h1, h2, h3, h4, h5 = 220, 221, 222, 223, 224, 225
E("v_mbcnt_lo_u32_b32 v%d, -1, 0\nv_mbcnt_hi_u32_b32 v%d, -1, v%d\nv_mov_b32 v%d, s%d" % (hL, hL, hL, hW, sW))
E("v_and_b32 v%d, 15, v%d\nv_lshrrev_b32 v%d, 4, v%d" % (hI, hL, hG, hL))
E("s_lshl_b32 s%d, s%d, 12\ns_lshr_b32 s%d, s%d, 1\ns_and_b32 s%d, s%d, 1" % (sW4K, sW, sR, sW, sC, sW))
E("v_lshrrev_b32 v%d, 3, v%d\nv_lshl_add_u32 v%d, v%d, 3, v%d\nv_mul_u32_u24 v%d, 896, v%d" % (h0, hL, h1, hW, h0, h1, h1))
E("v_and_b32 v%d, 7, v%d\nv_xor_b32 v%d, v%d, v%d\ns_lshl_b32 s99, s%d, 2\nv_xor_b32 v%d, s99, v%d" % (h2, hL, h3, h2, hG, sC, h3, h3))
E("v_lshl_add_u32 v%d, v%d, 4, v%d" % (vDX, h3, h1))
E("v_lshrrev_b32 v%d, 5, v%d\nv_and_b32 v%d, 31, v%d\nv_lshl_add_u32 v%d, v%d, 1, v%d" % (h0, hL, h1, hL, h3, hW, h0))
E("v_lshlrev_b32 v%d, 1, v%d\nv_xor_b32 v%d, v%d, v%d\nv_lshlrev_b32 v%d, 4, v%d" % (h3, h3, h3, h3, h1, h3, h3))
E("s_lshl_b32 s99, s%d, 3\ns_lshl_b32 s100, s%d, 1\ns_add_u32 s99, s99, s100\nv_add_u32 v%d, s99, v%d" % (sR, sC, h1, h0))
E("v_lshl_add_u32 v%d, v%d, 13, v%d" % (vDWQ, h1, h3))
E("v_lshl_add_u32 v%d, v%d, 3, v%d\nv_lshl_add_u32 v%d, v%d, 9, v%d" % (h1, hW, h0, vDKV, h1, h3))
E("s_mul_i32 s100, s97, 129024")
E("s_lshl_b32 s101, s98, 9")
E("s_lshl_b32 s%d, s%d, 10\ns_add_u32 s%d, s%d, %d" % (sXm0, sW, sXm0, sXm0, XB))
ROT = int(opt("rot", "0"))
if ROT >= 0:
    E("s_and_b32 s99, s98, 1\ns_mul_i32 s99, s99, %d\ns_and_b32 s54, s97, %d\ns_mul_i32 s54, s54, %d\ns_add_u32 s99, s99, s54"
      % (ROT, int(opt("rm", "3")), int(opt("rs", "2"))))
    E("s_cmp_ge_u32 s99, 7\ns_cselect_b32 s54, 7, 0\ns_sub_u32 s99, s99, s54")
    E("s_lshl_b32 s54, s99, 19\ns_lshl_b32 s55, s99, 7")
else:
    E("s_mov_b32 s54, 0\ns_mov_b32 s55, 0")
E("s_waitcnt lgkmcnt(0)")
stamp(STAMP == 6)
E("s_add_u32 s4, s4, s100\ns_addc_u32 s5, s5, 0\ns_mov_b32 s6, 129024\ns_mov_b32 s7, 0x20000")
E("s_add_u32 s8, s8, s101\ns_addc_u32 s9, s9, 0\ns_sub_u32 s10, %d, s101\ns_mov_b32 s11, 0x20000" % (448 * 8192))

WPI = {2: 0, 3: 1, 4: 4, 5: 2, 0: 3, 1: 5}
wslot = lambda N: WPI[N % 6] * SLOT


sWo, sXo = 54, 55


def dma_wq(s):
    res = []
    for m in range(4):
        so = (16 * (m & 1) + 4 * (m >> 1)) * 8192 - m * 1024
        t = "s_add_u32 m0, s%d, %d\n" % (sW4K, wslot(s)) if m == 0 else ""
        if m == 0:
            t += "buffer_load_dwordx4 v%d, %s, s%d offen %s lds" % (vDWQ, srd(SRD_WQ), sWo, WNT)
        else:
            t += "s_add_u32 s%d, s%d, %d\nbuffer_load_dwordx4 v%d, %s, s%d offen offset:%d %s lds" % (sTmpO, sWo, so, vDWQ, srd(SRD_WQ), sTmpO, m * 1024, WNT)
        res.append((t, ("W", s)))
    res.append(("s_add_u32 s%d, s%d, 0x40000\ns_cmp_eq_u32 s%d, %d\ns_cselect_b32 s%d, 0, s%d" % (sWo, sWo, sWo, 14 * 0x40000, sWo, sWo), None))
    return res


def dma_x(p):
    res = []
    for k in range(5):
        res.append(("s_add_u32 m0, s%d, %d\ns_add_u32 s%d, s%d, %d\nbuffer_load_dwordx4 v%d, %s, s%d offen %s lds"
                    % (sXm0, (p % 3) * 20480 + 4096 * k, sTmpO, sXo, 28672 * k, vDX, srd(SRD_X), sTmpO, WNT), ("X", p)))
    res.append(("s_add_u32 s%d, s%d, 128\ns_cmp_eq_u32 s%d, 896\ns_cselect_b32 s%d, 0, s%d" % (sXo, sXo, sXo, sXo, sXo), None))
    return res


def touches():
    t0, t1, t2 = 226, 227, 228
    E("v_lshl_add_u32 v%d, v%d, 2, v%d\nv_lshlrev_b32 v%d, 5, v%d\nv_bfe_u32 v%d, v%d, 2, 2\nv_add_u32 v%d, v%d, v%d" % (t0, hW, hG, t0, t0, t1, hL, t0, t0, t1))
    E("s_lshl_b32 s99, s97, 2\nv_add_u32 v%d, s99, v%d\nv_and_b32 v%d, 3, v%d\nv_lshlrev_b32 v%d, 7, v%d\nv_lshl_add_u32 v%d, v%d, 13, v%d"
      % (t0, t0, t1, hL, t1, t1, t0, t0, t1))
    E("buffer_load_dword a203, v%d, %s, %d offen" % (t0, srd(SRD_WQ), 0), tag="t")
    E("s_and_b32 s99, s98, 1\ns_mul_i32 s99, s99, %d\ns_mov_b32 s100, %d" % (72 * 896, (2 ** 32 + 71) // 72))
    for j in range(2):
        E("v_lshl_add_u32 v%d, v%d, 6, v%d\nv_add_u32 v%d, %d, v%d\nv_mul_hi_u32 v%d, s100, v%d\nv_mul_u32_u24 v%d, 72, v%d\nv_sub_u32 v%d, v%d, v%d"
          % (t0, hW, hL, t0, 144 + 256 * j, t0, t1, t0, t2, t1, t0, t0, t2))
        E("v_mul_u32_u24 v%d, 896, v%d\nv_lshl_add_u32 v%d, v%d, 7, v%d" % (t0, t0, t0, t1, t0))
        if j == 1:
            E("v_cmp_gt_u32 vcc, 7, v%d\nv_mov_b32 v%d, 0x40000000\nv_cndmask_b32 v%d, v%d, v%d, vcc" % (t1, t2, t0, t2, t0))
        E("buffer_load_dword a%d, v%d, %s, s99 offen" % (204 + j, t0, srd(SRD_X)), tag="t")


TOUCH = int(opt("touch", "0"))
emit_pieces(dma_x(0) + dma_wq(0) + dma_wq(1))
if TOUCH == 1:
    touches()
E("s_lshl_b32 s99, s97, 4\ns_add_u32 s99, s99, s98")
E("s_xor_b32 s100, s96, 1\ns_lshr_b32 s99, s99, s100")
if OPT.get("map") == "l2":
    E("s_and_b32 s99, s2, 7")
E("s_lshl_b32 s99, s99, 19")
E("s_add_u32 s12, s12, s99\ns_addc_u32 s13, s13, 0\ns_mov_b32 s14, 0x80000\ns_mov_b32 s15, 0x20000")
E("s_add_u32 s16, s16, s99\ns_addc_u32 s17, s17, 0\ns_mov_b32 s18, 0x80000\ns_mov_b32 s19, 0x20000")
E("s_mul_i32 s99, s98, %d" % (256 * 896))
E("s_add_u32 s20, s20, s99\ns_addc_u32 s21, s21, 0\ns_mov_b32 s22, %d\ns_mov_b32 s23, 0x20000" % (256 * 896))
if STAMP:
    E("s_lshl_b32 s99, s2, 8\ns_add_u32 s99, s99, 0x4000000\ns_add_u32 s%d, s24, s99\ns_addc_u32 s%d, s25, 0" % (sWSB, sWSB + 1))
E("s_lshl_b32 s99, s96, 3\ns_add_u32 s99, s99, s97\ns_lshl_b32 s99, s99, 4\ns_add_u32 s3, s99, s98")
E("s_lshl_b32 s99, s3, 17")
E("s_add_u32 s24, s24, s99\ns_addc_u32 s25, s25, 0\ns_mov_b32 s26, %d\ns_mov_b32 s27, 0x20000" % SLAB)
E("s_mov_b32 s%d, 0\ns_mov_b32 s%d, 0" % (sOffK, sOffV))
if int(opt("tlb", "0")):
    E("s_cmp_lg_u32 s%d, 2\ns_cbranch_scc1 L_notlb\ns_mov_b64 exec, 1\nv_mov_b32 v%d, 0" % (sW, h0))
    for sr in (SRD_K, SRD_V, SRD_WO, SRD_WS):
        raw("buffer_load_dword a202, v%d, %s, 0 offen" % (h0, srd(sr)))
    raw("global_load_dword a202, v%d, s[56:57]\nglobal_load_dword a202, v%d, s[58:59]" % (h0, h0))
    E("v_mov_b32 v%d, %d" % (h1, FLG + 0x10000))
    raw("global_load_dword a202, v%d, s[60:61]" % h1)
    E("s_mov_b64 exec, -1\nL_notlb:")


def rho(dst, i, t1):
    E("v_lshrrev_b32 v%d, 1, v%d\nv_and_b32 v%d, 3, v%d\nv_lshlrev_b32 v%d, 3, v%d" % (dst, i, dst, dst, dst, dst))
    E("v_lshrrev_b32 v%d, 3, v%d\nv_lshl_add_u32 v%d, v%d, 1, v%d" % (t1, i, dst, t1, dst))
    E("v_and_b32 v%d, 1, v%d\nv_add_u32 v%d, v%d, v%d" % (t1, i, dst, dst, t1))


E("v_lshrrev_b32 v%d, 1, v%d\nv_xor_b32 v%d, v%d, v%d\nv_lshlrev_b32 v%d, 7, v%d" % (h0, hI, h0, h0, hG, h1, hI))
E("v_add_u32 v%d, %d, v%d\ns_lshl_b32 s99, s%d, 13" % (h1, XB, h1, sR))
for par in range(2):
    E("v_xor_b32 v%d, %d, v%d\nv_lshl_add_u32 v%d, v%d, 4, v%d" % (h2, 4 * par, h0, h2, h2, h1))
    E("v_add_u32 v%d, s99, v%d\nv_add_u32 v%d, %d, v%d" % (vXR + par, h2, vXR + 2 + par, 128 * 128, h2))
E("v_lshrrev_b32 v%d, 2, v%d" % (h5, hL))
rho(h4, h5, h0)
E("v_lshlrev_b32 v%d, 9, v%d\nv_and_b32 v%d, 7, v%d\nv_and_b32 v%d, 3, v%d" % (h4, h4, h5, h5, h3, hL))
E("v_lshlrev_b32 v%d, 1, v%d\nv_xor_b32 v%d, v%d, v%d\ns_lshl_b32 s99, s%d, 3\nv_xor_b32 v%d, s99, v%d" % (h0, h5, h0, h0, h3, sR, h0, h0))
E("s_lshl_b32 s99, s%d, 8\nv_add_u32 v%d, s99, v%d" % (sC, h1, h4))
for b in range(4):
    E("v_xor_b32 v%d, %d, v%d\nv_lshl_add_u32 v%d, v%d, 4, v%d\nv_add_u32 v%d, 0x10000, v%d" % (h2, 4 * b, h0, vW + b, h2, h1, vW + 4 + b, vW + b))
emit_pieces(dma_x(1) + dma_wq(2))
E("s_lshl_b32 s99, s%d, 2\nv_xor_b32 v%d, s99, v%d" % (sR, h0, h5))
E("s_mul_i32 s99, s%d, 2304\ns_add_u32 s99, s99, %d\nv_add_u32 v%d, s99, v%d\nv_lshl_add_u32 v%d, v%d, 3, v%d" % (sC, VB, h1, h4, h1, h3, h1))
for b in range(8):
    E("v_xor_b32 v%d, %d, v%d\nv_lshl_add_u32 v%d, v%d, 5, v%d\nv_xor_b32 v%d, 0x800, v%d" % (h2, b, h0, vV + b, h2, h1, vV + 8 + b, vV + b))
rho(h4, hI, h0)
E("v_and_b32 v%d, 7, v%d\nv_lshlrev_b32 v%d, 1, v%d\nv_xor_b32 v%d, v%d, v%d" % (h0, hI, h0, h0, h0, h0, hG))
E("s_lshl_b32 s99, s%d, 11\nv_lshlrev_b32 v%d, 9, v%d\nv_add_u32 v%d, s99, v%d" % (sC, h1, h4, h1, h1))
for b in range(4):
    E("v_xor_b32 v%d, %d, v%d\nv_lshl_add_u32 v%d, v%d, 4, v%d" % (h2, 4 * b, h0, vK + b, h2, h1))
E("s_mul_i32 s99, s%d, 5120\ns_add_u32 s99, s99, %d\nv_lshlrev_b32 v%d, 3, v%d\nv_add_u32 v%d, s99, v%d" % (sW, PX, h0, hL, vPW, h0))
E("s_xor_b32 s99, s%d, 1\ns_mul_i32 s99, s99, 5120\ns_add_u32 s99, s99, %d\nv_add_u32 v%d, s99, v%d" % (sW, PX, vPR, h0))
E("v_lshlrev_b32 v%d, 2, v%d\nv_add_u32 v%d, %d, v%d" % (vMB, hL, vMB, MB, vMB))
emit_pieces(dma_wq(3))
if TOUCH == 2:
    touches()
stamp(STAMP == 6)

QAB = 28
QA = lambda T, sd, v: QAB + 32 * T + 4 * (2 * sd + v) if T < 4 else QAB + 128 + 4 * (2 * (sd - 2) + v)
aX = 0
X_ = lambda T, s: aX + 40 * ((s >> 1) & 1) + 20 * (s & 1) + 4 * T


def xreads(p):
    out = []
    for s in (2 * p, 2 * p + 1):
        for T in range(5):
            if T < 4:
                out.append("ds_read_b128 %s, v%d offset:%d" % (ar(X_(T, s)), vXR + (s & 1), (p % 3) * 20480 + T * 2048))
            else:
                out.append("ds_read_b128 %s, v%d offset:%d" % (ar(X_(T, s)), vXR + 2 + (s & 1), (p % 3) * 20480))
    return out


def build_qp(N, k0):
    fr = Frags(k0)
    mf = []
    win, off = wslot(N) >> 16, wslot(N) & 0xffff
    for sd in range(4):
        for v in range(2):
            a = vW + 4 * win + sd
            b = fr.new(mf, rdtr(a, a, off + 8 * v, off + 8 * v + 2048))
            for T in range(5 if sd >= 2 else 4):
                mf.append(dict(text=mfma(vr(QA(T, sd, v)), ar(b), ar(X_(T, N)), "0" if N == 0 else vr(QA(T, sd, v)))))
    return fr, mf


Kp = lambda n, cap=False: dma_kv("K", KB + (n & 3) * SLOT, ("K", n), cap)
Vp = lambda n, cap=False: dma_kv("V", VB + (n & 3) * SLOT, ("V", n), cap)
WOT = int(opt("wot", "99"))
KVT = int(opt("kvt", "0"))
late = {9: Kp(0), 10: Kp(1), 11: Vp(0), 12: Kp(2), 13: Kp(3)}
wplan = {0: [4], 1: [5], 2: [6, 7], 3: [8], 4: [9], 5: [10], 6: [11], 7: [12], 8: [13]}
zero_q = ["v_mov_b32 v%d, 0" % r for r in range(172, 200)] + ["v_mov_b32 v%d, 0" % r for r in range(226, 256)] + \
         ["v_accvgpr_write_b32 a%d, 0" % r for r in range(aO9, aO9 + 32)]
vmwait([("X", 0), ("W", 1)])
E("s_barrier")
stamp(STAMP == 6)
for t in xreads(0):
    E(t)
k = 0
for N in range(14):
    fr, mf = build_qp(N, k)
    n = len(mf)
    if N > 0:
        vmwait([("W", min(N + 1, 13))] + ([("X", (N + 1) // 2)] if (N & 1) and N < 12 else []))
        E("s_barrier")
    rq = fr.items(0 if N == 0 else LEAD, LEAD)
    if N < 13:
        nf, _ = build_qp(N + 1, fr.k)
        for j in range(LEAD):
            e = fr.first[len(fr.fr) - LEAD + j]
            rq.append(Item("\n".join(nf.fr[j][1]), e, e + 3))
    pieces = []
    for W in wplan.get(N, []):
        pieces += dma_wq(W)
    if N == WOT:
        pieces += [("s_lshr_b32 s99, s3, 4\ns_and_b32 s99, s99, 7\ns_lshl_b32 s99, s99, 2", None),
                   ("s_add_u32 s99, s99, s%d\ns_mul_i32 s99, s99, %d\nv_lshlrev_b32 v%d, 7, v%d" % (sW, 56 * 128, h5, hL), None),
                   ("s_mov_b32 exec_hi, 0x00ffffff\nbuffer_load_dword a200, v%d, %s, s99 offen\ns_mov_b32 exec_hi, -1" % (h5, srd(SRD_WO)), "t")]
    pieces += late.get(N, [])
    if KVT and N >= 14 - KVT:
        j = N - (14 - KVT)
        if j == 0:
            pieces += [("v_lshlrev_b32 v%d, 7, v%d\ns_lshl_b32 s53, s%d, 13" % (h5, hL, sW), None)]
        base = (5 if (j & 1) == 0 else 2) * SLOT + (j >> 1) * 32768
        pieces += [("s_add_u32 s99, s53, %d\nbuffer_load_dword a%d, v%d, %s, s99 offen" % (base, 206 + j, h5, srd(SRD_K if (j & 1) == 0 else SRD_V)), "t")]
    if N == 0:
        pieces += dma_x(2)
    elif (N & 1) == 0 and N // 2 + 2 < 7:
        pieces += dma_x(N // 2 + 2)
    nd = len([1 for (t, _) in pieces if "buffer_load" in t])
    dq = spread(pieces, 0, max(2.5, min(4.0, (n - 2) / max(1, nd))))
    xq = [Item(t, 0, 24) for t in xreads((N + 1) // 2)] if (N & 1) and N < 12 else []
    zq = [Item(t, 0, BIG) for t in zero_q[9 * (N - 1):9 * N]] if 1 <= N <= 10 else []
    run_phase(mf, [rq, xq, dq, zq], "qp%d" % N)
    k = fr.k
    stamp(STAMP == 6 and (N & 1) and N < 13)
stamp(STAMP in (5, 6))
E("s_barrier")
E("s_mov_b32 s100, %s\ns_mov_b32 s101, %s" % (fbits(CSCALE), fbits(CSCALE)))
E("s_lshl_b32 s99, s%d, 15\ns_lshl_b32 s96, s%d, 12\ns_add_u32 s99, s99, s96\ns_lshl_b32 s97, s%d, 11\ns_add_u32 s99, s99, s97\ns_add_u32 s99, s99, %d"
  % (sR, sC, sR, QS))
E("v_lshlrev_b32 v%d, 4, v%d\nv_add_u32 v%d, s99, v%d\nv_xor_b32 v%d, 0x800, v%d" % (h0, hL, h1, h0, h2, h1))
E("s_xor_b32 s97, s97, 0x800\ns_add_u32 s96, s96, s97\ns_add_u32 s96, s96, %d\nv_add_u32 v%d, s96, v%d" % (QS + 65536, h3, h0))
for T in (4, 0, 1, 2, 3):
    for sd in (range(4) if T < 4 else (2, 3)):
        a = QA(T, sd, 0)
        for j in range(4):
            E("v_pk_mul_f32 %s, %s, s[100:101]" % (vr(a + 2 * j, 2), vr(a + 2 * j, 2)))
        for j in range(4):
            E("v_cvt_pk_bf16_f32 v%d, v%d, v%d" % (a + j, a + 2 * j, a + 2 * j + 1))
        if T < 4:
            E("ds_write_b128 v%d, %s offset:%d" % (h1 if sd < 2 else h2, vr(a), T * 8192 + (sd & 1) * 1024))
        else:
            E("ds_write_b128 v%d, %s offset:%d" % (h3, vr(a), (sd & 1) * 1024))
E("s_lshl_b32 s99, s%d, 15\ns_add_u32 s99, s99, %d\nv_add_u32 v%d, s99, v%d\nv_add_u32 v%d, %d, v%d" % (sR, QS, h1, h0, h2, QS + 65536, h0))
vmwait([("K", 1)])
E("s_waitcnt lgkmcnt(0)")
E("s_barrier")
qreads = []
for s in range(8):
    for T in range(5):
        qreads.append("ds_read_b128 %s, v%d offset:%d" % (ar(Q_(T, s)), h1 if T < 4 else h2, (T * 8192 if T < 4 else 0) + s * 1024))
for r_ in range(vL, vL + 5):
    E("v_mov_b32 v%d, 0" % r_)
E("s_mov_b32 s%d, 0\ns_mov_b32 s%d, 0" % (sFloor, sFirst))
stamp()

E("s_mov_b32 s%d, 0x3f803f80" % sOnes)
late_zero = ["v_mov_b32 v%d, 0" % r for r in list(range(128, 172)) + list(range(200, 226))]
E("s_cmp_eq_u32 s%d, 1\ns_cbranch_scc1 L_att1" % sR)

OBUF = [VB, KB, KB + 32768, VB + 32768]
OLDS = lambda q: OBUF[(q >> 1) & 3] + (q & 1) * SLOT
vDWO = vSc


def dma_wo(q):
    sg, a = q >> 1, q & 1
    res = []
    for m in range(4):
        t = "s_add_u32 m0, s%d, %d\n" % (sW4K, OLDS(q)) if m == 0 else ""
        res.append((t + "s_mov_b32 s%d, %d\nbuffer_load_dwordx4 v%d, %s, s%d offen offset:%d %s lds"
                    % (sTmpO, a * 114688 + m * 6144 + 128 * sg, vDWO, srd(SRD_WO), sTmpO, m * 1024, opt("ont", "nt")), ("O", q)))
    return res


OFo = lambda T, kk: 64 + 16 * T + 4 * kk
OFp = lambda T, kk: 0 + 16 * T + 4 * kk
aOF9 = 64
aHOLD = 96
TB = list(range(40, 56))
vST, vST9, wA, wB, rA, rB = 4, 5, 6, 7, 1, 2
vRI = vL
acc_ = lambda sg, T: (8, 16, 56, 32)[T] if sg == 0 else 128 + 32 * ((sg - 1) % 3) + 8 * T
acc9 = lambda sg: 224 + 4 * (sg % 4)
v9st = 240
O9S, LX, O9P = PX, PX + 16384, 155648


def tail_setup():
    t = ["v_mbcnt_lo_u32_b32 v0, -1, 0\nv_mbcnt_hi_u32_b32 v0, -1, v0",
         "s_load_dwordx2 s[12:13], s[0:1], 88\ns_load_dwordx2 s[14:15], s[0:1], 96" if False else "s_nop 0",
         "v_lshrrev_b32 v3, 2, v0\nv_lshlrev_b32 v3, 7, v3", "v_and_b32 v30, 3, v0\nv_lshl_add_u32 v3, v30, 3, v3",
         "s_lshl_b32 s99, s%d, 1\ns_xor_b32 s99, s99, s%d\nv_bfe_u32 v30, v0, 3, 2" % (sC, sR), "v_xor_b32 v30, s99, v30",
         "v_lshl_add_u32 v30, v30, 5, v3\nv_xor_b32 v31, 32, v30"]
    for kk in range(4):
        t.append("s_lshl_b32 s98, s%d, 1\ns_xor_b32 s98, s98, %d\ns_lshl_b32 s98, s98, 12" % (sR, kk))
        t.append("s_lshl_b32 s99, s%d, 14\ns_add_u32 s99, s99, s98\ns_add_u32 s99, s99, %d" % (sC, VB))
        for nt in range(2):
            t.append("v_add_u32 v%d, s99, v%d\nv_xor_b32 v%d, 0x4000, v%d" % (TB[2 * kk + nt], 30 + nt, TB[8 + 2 * kk + nt], TB[2 * kk + nt]))
    for T in range(5):
        t.append("v_mov_b32 v30, v%d\nv_mov_b32 v31, v%d" % (vL + T, vL + T))
        t.append("s_nop 0\nv_permlane32_swap_b32 v30, v31")
        t.append("v_add_f32 v30, v30, v31\nv_mov_b32 v31, v30")
        t.append("s_nop 0\nv_permlane16_swap_b32 v30, v31")
        t.append("v_add_f32 v%d, v30, v31" % (vL + T))
    t.append("v_and_b32 v3, 15, v0\nv_lshlrev_b32 v3, 2, v3")
    t.append("s_mul_i32 s99, s%d, 320\ns_add_u32 s99, s99, %d\nv_add_u32 v30, s99, v3" % (sW, LX))
    t += ["ds_write_b32 v30, v%d offset:%d" % (vL + T, 64 * T) for T in range(5)]
    t.append("v_lshlrev_b32 v0, 4, v0")
    t.append("s_lshl_b32 s99, s%d, 16\ns_lshl_b32 s98, s%d, 12\ns_add_u32 s99, s99, s98" % (sR, sC))
    t.append("s_lshl_b32 s98, s%d, 11\ns_add_u32 s99, s99, s98\ns_add_u32 s99, s99, 32768" % sR)
    t.append("v_add_u32 v%d, s99, v0\nv_xor_b32 v%d, 0x800, v%d" % (wA, wB, wA))
    return t


def tail_setup2():
    t = []
    t.append("v_xor_b32 v%d, 0x1000, v%d\nv_xor_b32 v%d, 0x1000, v%d" % (rA, wA, rB, wB))
    t.append("s_lshl_b32 s99, s%d, 13\ns_lshl_b32 s98, s%d, 10\ns_add_u32 s99, s99, s98" % (sR, sC))
    t.append("v_add_u32 v%d, s99, v0" % vST)
    t.append("s_lshl_b32 s99, s%d, 10\nv_add_u32 v%d, s99, v0" % (sW, vST9))
    return t


saved = (list(P.dsq), list(P.vmq), nstamp[0])
for r in range(2):
    P.dsq, P.vmq = list(saved[0]), list(saved[1])
    nstamp[0] = saved[2]
    if r == 1:
        E("L_att1:")
    fr, mf = Frags(0), []
    qk_part(0, r, fr, mf)
    for m_ in mf:
        m_["text"] = re.sub(r", v\[(*SKIP)(*F)|$^", "", m_["text"]) if False else m_["text"]
    for T in tiles_of(0, r):
        mf[[i_ for i_, m_ in enumerate(mf) if m_["text"].endswith(vr(vNegM + 4 * T))][0]]["text"] = \
            mfma(vr(S_(0, T)), ar(fr.fr[0][0]), ar(Q_(T, 0)), "0")
    qq = []
    for f in range(8):
        e = -1 if f < 2 else fr.first[f - 2]
        d = -1 if f < 2 else fr.first[f - 1] - 1
        qq += [Item(t, e, d) for t in fr.fr[f][1] + qreads[5 * f:5 * f + 5]]
    lz = [t for t in late_zero if int(t.split()[1][1:-1]) not in (h1, h2)]
    run_phase(mf, [qq, [Item(t, 0, BIG) for t in lz]], "qk0")
    E("v_mov_b32 v%d, 0\nv_mov_b32 v%d, 0" % (h1, h2))
    stamp(STAMP == 9)
    sc = P_base[0]
    tl = tiles_of(0, r)
    for T in tl:
        s0 = S_(0, T)
        E("v_max3_f32 v%d, v%d, v%d, v%d\nv_max_f32 v%d, v%d, v%d" % (sc + T, s0, s0 + 1, s0 + 2, sc + T, sc + T, s0 + 3))
    for sw in ("v_permlane32_swap_b32", "v_permlane16_swap_b32"):
        for T in tl:
            E("v_mov_b32 v%d, v%d" % (sc + 8 + T, sc + T))
        for T in tl:
            E("%s v%d, v%d" % (sw, sc + T, sc + 8 + T))
        for T in tl:
            E("v_max_f32 v%d, v%d, v%d" % (sc + T, sc + T, sc + 8 + T))
    E("s_mul_i32 s99, s%d, 1280\nv_add_u32 v%d, s99, v%d" % (sW, sc + 5, vMB))
    for T in tl:
        E("ds_write_b32 v%d, v%d offset:%d" % (sc + 5, sc + T, 4096 + 256 * T))
    E("s_xor_b32 s99, s%d, 1\ns_mul_i32 s99, s99, 1280\nv_add_u32 v%d, s99, v%d" % (sW, sc + 5, vMB))
    E("s_waitcnt lgkmcnt(0)\ns_barrier")
    for T in range(4):
        E("ds_read_b32 v%d, v%d offset:%d" % (sc + 8 + T, sc + 5, 4096 + 256 * T))
    for w_ in range(2):
        E("ds_read_b32 v%d, v%d offset:%d" % (sc + 12 + w_, vMB, 4096 + 1280 * w_ + 1024))
    E("s_cmp_eq_u32 s%d, 0\ns_cselect_b64 vcc, 0, -1" % sPara)
    emit_pieces(Vp(1) + Kp(4))
    for T in (split_tiles(0, r)[0] + split_tiles(0, r)[1] + ([] if 4 in tl else [4])):
        if T < 4:
            E("v_max_f32 v%d, v%d, v%d" % (sc + T, sc + T, sc + 8 + T))
        else:
            E("v_max_f32 v%d, v%d, v%d" % (sc + 4, sc + 12, sc + 13))
        for j in range(4):
            E("v_sub_f32 v%d, 0, v%d" % (vNegM + 4 * T + j, sc + T))
        if T in tl:
            for j in range(4):
                E("v_sub_f32 v%d, v%d, v%d" % (S_(0, T) + j, S_(0, T) + j, sc + T))
    stamp(STAMP == 9)
    stamp(STAMP == 9)
    if STAMP == 1:
        E("s_memtime s[88:89]\ns_memrealtime s[84:85]\ns_waitcnt lgkmcnt(0)")
    tbank[0] = 0
    for it in softmax_items(0, split_tiles(0, r)[0], -1, BIG):
        it.emit()
    E("s_mov_b32 s%d, 0" % sLoop)
    drain_writes()
    k = 8
    for t in qk_pref(1, r, k):
        E("\n".join(t))
    tbank[0] = 0
    if STAMP == 9:
        stamp()
        for n in range(4):
            for t in (qk_pref(1, r, k) if n == 0 else []):
                E("\n".join(t))
            k = step(n, r, k, Vp(n + 2, True), Kp(n + 5, True), 16, qk_pref(n + 2, r, k + 16))
            raw("s_memrealtime s[%d:%d]" % (sStamp + 2 * nstamp[0], sStamp + 2 * nstamp[0] + 1))
            nstamp[0] += 1
        E("s_waitcnt lgkmcnt(0)")
        for t in qk_pref(1, r, k):
            E("\n".join(t))
        E("s_mov_b32 s%d, 1" % sLoop)
    RAMP = opt("ramp", "")
    if RAMP:
        save_caps = list(CAPS)
        for ch in RAMP:
            CAPS[:] = [int(ch)]
            for n in range(4):
                k = step(n, r, k, Vp(n + 2, True), Kp(n + 5, True), 16, qk_pref(n + 2, r, k + 16))
            drain_writes()
        CAPS[:] = save_caps
        E("s_waitcnt lgkmcnt(0)\ns_mov_b32 s%d, %d" % (sLoop, len(RAMP)))
        for t in qk_pref(1, r, k):
            E("\n".join(t))
    entry = [set(d) for (_, d) in P.dsq]
    E("L_loop%d:" % r)
    for n in range(4):
        k = step(n, r, k, Vp(n + 2, True), Kp(n + 5, True), 16, qk_pref(n + 2, r, k + 16))
    now = [set(d) for (_, d) in P.dsq if d]
    assert now == entry, (now, entry)
    drain_writes()
    if STAMP == 7:
        raw("s_memrealtime s[80:81]\ns_memtime s[82:83]\ns_waitcnt lgkmcnt(0)\ns_lshl_b64 exec, 1, s%d\n"
            "v_accvgpr_write_b32 a199, s80\nv_accvgpr_write_b32 a198, s82\ns_mov_b64 exec, -1" % sLoop)
    E("s_add_u32 s%d, s%d, 1\ns_cmp_lt_u32 s%d, 6\ns_cbranch_scc1 L_loop%d" % (sLoop, sLoop, sLoop, r))
    if STAMP == 1:
        raw("s_memtime s[90:91]\ns_memrealtime s[86:87]")
        E("s_waitcnt lgkmcnt(0)")
    for n in range(24, 31):
        pre = Vp(n + 2, True) if n + 2 < 32 else []
        post = Kp(n + 5, True) if n + 5 < 32 else []
        if n >= 27:
            post = dma_wo({27: 2, 28: 3, 29: 0, 30: 1}[n])
        if n == int(opt("wot2", "30")):
            post = post + [("s_lshr_b32 s99, s3, 4\ns_and_b32 s99, s99, 7\ns_lshl_b32 s99, s99, 2", None),
                           ("s_add_u32 s99, s99, s%d\ns_mul_i32 s99, s99, %d\nv_subrev_u32 v%d, %d, v%d" % (sW, 56 * 128, vDKV, MB, vMB), None),
                           ("v_lshlrev_b32 v%d, 5, v%d" % (vDKV, vDKV), None),
                           ("s_mov_b32 exec_hi, 0x00ffffff\nbuffer_load_dword a200, v%d, %s, s99 offen %s\ns_mov_b32 exec_hi, -1"
                            % (vDKV, srd(SRD_WO), opt("tnt", "")), "t")]
            if int(opt("ftouch", "0")):
                post = post + [("s_lshr_b32 s99, s3, 4\ns_lshl_b32 s99, s99, 11\ns_add_u32 s99, s99, %d" % FLG, None),
                               ("v_mov_b32 v%d, s99\nv_mov_b32 v%d, 0" % (vDKV, vK), None),
                               ("s_mov_b64 exec, 1\nglobal_load_dword a201, v%d, s[60:61] sc1\ns_mov_b64 exec, -1" % vDKV, "t"),
                               ("s_mov_b64 exec, 1\nbuffer_load_dword a202, v%d, %s, 0 offen sc1\ns_mov_b64 exec, -1" % (vK, srd(SRD_WS)), "t"),
                               ("s_mov_b64 exec, 1\nglobal_load_dword a203, v%d, s[56:57]\ns_mov_b64 exec, -1" % vK, "t")]
        vm = 16 if n < 26 else [("K", min(n + 2, 31)), ("V", n if n < 30 else 31)]
        pref = qk_pref(n + 2, r, k + 16) if n < 30 else pv_pref(31, r, k + 16)
        if n == 27:
            t0 = vTmp
            E("v_mbcnt_lo_u32_b32 v%d, -1, 0\nv_mbcnt_hi_u32_b32 v%d, -1, v%d" % (t0, t0, t0))
            E("v_lshrrev_b32 v%d, 4, v%d\nv_lshlrev_b32 v%d, 1, v%d\nv_xor_b32 v%d, v%d, v%d\nv_and_b32 v%d, 7, v%d\nv_lshlrev_b32 v%d, 4, v%d"
              % (vSc, t0, vSc, vSc, vSc, vSc, t0, vSc, vSc, vSc, vSc))
            E("v_lshrrev_b32 v%d, 3, v%d\nv_mul_u32_u24 v%d, 896, v%d\nv_add_u32 v%d, v%d, v%d\ns_mul_i32 s99, s%d, %d\nv_add_u32 v%d, s99, v%d"
              % (t0, t0, t0, t0, vSc, vSc, t0, sW, 32 * 896, vSc, vSc))
        k = step(n, r, k, pre, post, vm, pref, all_next=(n == 30))
    drain_writes()
    E("s_barrier")
    for t in partner_reads(31, r):
        E(t)
    fr, mf = Frags(k), []
    pv_part(31, r, fr, mf)
    run_phase(mf, [fr.items(LEAD, LEAD), [Item(t, 2, BIG) for t in tail_setup()]], "pv31")
    if r == 0:
        E("s_branch L_oproj")
E("L_oproj:")
stamp()
E("s_memrealtime s[96:97]")
vmwait([("O", 1)])
E("s_waitcnt lgkmcnt(0)")
E("s_barrier")


def hold_of(sg, a_, kk):
    return aHOLD + 32 * sg + 4 * (4 * a_ + kk)


def stage_part(sg, a_, fr, mf, kfirst, prev_buf):
    buf = OBUF[sg & 3]
    dwin = ((buf & ~0xffff) - (prev_buf & ~0xffff)) & 0xffffffff
    off = buf & 0xffff
    for kk in range(4):
        for nt in range(2):
            rg = TB[8 * a_ + 2 * kk + nt]
            hold = hold_of(sg, a_, kk) if (sg < 2 and nt == 1) else None
            pre_ = ["v_add_u32 v%d, 0x%x, v%d" % (rg, dwin, rg)] if dwin else []
            bb = fr.new(mf, (lambda p_, f_: (lambda b: p_ + f_(b)))(pre_, rdtr(rg, rg, off, off + 2048)), hold)
            kfirst.setdefault((sg, a_, kk), len(mf))
            z = (a_ == 0 and kk == 0)
            for T in range(4):
                d = acc_(sg, T) + 4 * nt
                mf.append(dict(text=mfma(vr(d), ar(bb), vr(OFo(T, kk)) if a_ == 0 else ar(OFp(T, kk)), "0" if z else vr(d))))
            if nt == 1 and sg >= 2:
                j = 4 * a_ + kk
                mf.append(dict(text=mfma(vr(acc9(sg)), ar(bb), ar(aOF9 + 4 * j), "0" if z else vr(acc9(sg)))))
                if sg == 2:
                    for s9 in range(2):
                        mf.append(dict(text=mfma(vr(acc9(s9)), ar(hold_of(s9, a_, kk)), ar(aOF9 + 4 * j), "0" if j == 0 else vr(acc9(s9)))))


tdone = {}
TMAJ = int(opt("tmaj", "0"))
L6 = [160 + 4 * j for j in range(8)]


def build_stage(sg, k0):
    fr, mf, kfirst = Frags(k0), [], {}
    if sg == 0:
        for (s_, a_) in ((0, 0), (1, 0), (0, 1), (1, 1)):
            stage_part(s_, a_, fr, mf, kfirst, OBUF[0])
    elif sg == 6 and TMAJ:
        off = OBUF[2] & 0xffff
        bufs = {}
        for a_ in range(2):
            for kk in range(4):
                for nt in range(2):
                    rg = TB[8 * a_ + 2 * kk + nt]
                    j = 8 * a_ + 2 * kk + nt
                    hold = None if j < 8 else L6[j - 8]
                    bufs[(a_, kk, nt)] = fr.new(mf, rdtr(rg, rg, off, off + 2048), hold)
                    d = acc_(sg, 0) + 4 * nt
                    z = (a_ == 0 and kk == 0)
                    mf.append(dict(text=mfma(vr(d), ar(bufs[(a_, kk, nt)]), vr(OFo(0, kk)) if a_ == 0 else ar(OFp(0, kk)), "0" if z else vr(d))))
                    if nt == 1:
                        mf.append(dict(text=mfma(vr(acc9(sg)), ar(bufs[(a_, kk, nt)]), ar(aOF9 + 4 * (4 * a_ + kk)), "0" if z else vr(acc9(sg)))))
        tdone[0] = len(mf) - 1
        for T in range(1, 4):
            for a_ in range(2):
                for kk in range(4):
                    for nt in range(2):
                        d = acc_(sg, T) + 4 * nt
                        z = (a_ == 0 and kk == 0)
                        mf.append(dict(text=mfma(vr(d), vr(0) if False else ar(bufs[(a_, kk, nt)]), vr(OFo(T, kk)) if a_ == 0 else ar(OFp(T, kk)), "0" if z else vr(d))))
            tdone[T] = len(mf) - 1
    else:
        for a_ in range(2):
            stage_part(sg, a_, fr, mf, kfirst, OBUF[(sg - 1) & 3])
    return fr, mf, kfirst


def conv_items(kk, e, d):
    return [Item("v_cvt_pk_bf16_f32 v%d, v%d, v%d" % (OFo(T, kk) + j, O_(T, 2 * kk) + 2 * j, O_(T, 2 * kk) + 2 * j + 1), e, d)
            for T in range(4) for j in range(4)]


def out_items(sg, e0, step_, nine, tiles=(0, 1, 2, 3)):
    its = []
    for T in tiles:
        e = e0 + T * step_
        a0 = acc_(sg, T)
        for j in range(8):
            its.append(Item("v_mul_f32 v%d, v%d, v%d" % (a0 + j, vRI + T, a0 + j), e, BIG))
        for j in range(4):
            its.append(Item("v_cvt_pk_bf16_f32 v%d, v%d, v%d" % (a0 + j, a0 + 2 * j, a0 + 2 * j + 1), e, BIG))
        its.append(Item("s_mov_b32 s%d, %d\nbuffer_store_dwordx4 %s, v%d, %s, s%d offen offset:%d %s"
                        % (sT1, sg * 16384 + (T >> 1) * 4096, vr(a0), vST, srd(SRD_WS), sT1, (T & 1) * 2048, STP), e, BIG, ("st", sg)))
    e = e0 + 4 * step_
    for s9 in nine:
        a0, d = acc9(s9), v9st + 2 * (s9 & 1)
        for j in range(4):
            its.append(Item("v_mul_f32 v%d, v%d, v%d" % (a0 + j, vRI + 4, a0 + j), e, BIG))
        its.append(Item("v_cvt_pk_bf16_f32 v%d, v%d, v%d\nv_cvt_pk_bf16_f32 v%d, v%d, v%d" % (d, a0, a0 + 1, d + 1, a0 + 2, a0 + 3), e, BIG))
        if s9 == 6:
            its.append(Item("v_mov_b32 v%d, 0\nv_mov_b32 v%d, 0" % (v9st + 2, v9st + 3), e, BIG))
        if (s9 & 1) or s9 == 6:
            its.append(Item("s_mov_b32 s%d, %d\nbuffer_store_dwordx4 %s, v%d, %s, s%d offen %s"
                            % (sT1, 114688 + 4096 * (s9 >> 1), vr(v9st), vST9, srd(SRD_WS), sT1, STP), e, BIG, ("st", sg)))
    return its


npub = [0]


def publish(parts):
    k_ = npub[0]
    npub[0] += 1
    E("s_cmp_lg_u32 s%d, 0\ns_cbranch_scc1 L_nopub%d" % (sW, k_))
    E("s_mov_b64 exec, 0x%x\nv_mov_b32 v2, s96\nv_mov_b32 v3, s97\ns_mov_b64 exec, 0xffff" % ((2 << max(parts)) - 1))
    raw("global_store_dwordx2 v1, v[2:3], s[14:15] sc1")
    E("s_mov_b64 exec, -1")
    E("L_nopub%d:" % k_)


fr0 = build_stage(0, 0)[0]
for f in range(LEAD):
    E("\n".join(fr0.fr[f][1]))
for it in conv_items(0, -1, BIG):
    it.emit()
k = 0
carried = []
issue_plan = {2: [6, 7, 8, 9], 3: [10, 11], 4: [12, 13]} if opt("plan", "1") == "0" else {2: [6, 7, 8], 3: [9, 10], 4: [11, 12], 5: [13]}
for sg in (0, 2, 3, 4, 5, 6):
    fr, mf, kfirst = build_stage(sg, k)
    N = len(mf)
    stamp(STAMP == 5)
    bpos = N - EARLY
    rq = fr.items(LEAD, LEAD)
    if sg == 6 and TMAJ:
        rq = [Item("\n".join(fr.fr[f][1]), -1, max(-1, fr.first[f] - 8)) for f in range(5, 16)]
    nxt = 2 if sg == 0 else sg + 1
    pieces = []
    for q in issue_plan.get(sg, []):
        pieces += dma_wo(q)
    dq = spread(pieces, 0, 3)
    if opt("plan", "1") != "0" and pieces:
        nq_ = len(issue_plan[sg])
        sa, sb = int(opt("dsa", "4")), int(opt("dsb", "7"))
        dq = spread(pieces[:4 * (nq_ - 1)] if sg < 5 else pieces, 0, sa) + (spread(pieces[4 * (nq_ - 1):], sa * 4 * (nq_ - 1) + 8, sb) if sg < 5 else [])
    if sg < 6:
        nf = build_stage(nxt, fr.k)[0]
        for it in rq:
            it.d = min(it.d, bpos - 3)
            it.e = min(it.e, it.d)
        for j in range(5 if (sg == 5 and TMAJ) else LEAD):
            rq.append(Item("\n".join(nf.fr[j][1]), bpos + max(0, 4 * (j - 3)), bpos + 1 + 2 * j))

    def stage_barrier(sg=sg, fr=fr, nxt=nxt):
        P.wait_ds_regs(rset("a", fr.fr[-1][0]))
        drain_writes()
        pub = {"0": {3: [0, 1], 4: [2], 5: [3]}, "1": {3: [0], 4: [1, 2], 5: [3]}, "2": {5: [3]}}[opt("publate", "0")].get(sg, [])
        vmwait([("O", 2 * nxt + 1)] + [("st", p_) for p_ in pub])
        E("s_barrier")
        if pub:
            publish(pub)
    if sg < 6:
        mf[bpos]["pre"] = [stage_barrier]
    cq, xq, wq_ = [], [], []
    if sg == 0:
        M = kfirst[(0, 1, 0)] - 8
        M2 = M + 18
        wq_.append(Item("v_add_u32 v31, s%d, v0\nv_add_u32 v31, %d, v31" % (sW4K, O9S), -1, M - 1))
        wq_ += [Item("ds_write_b128 v31, %s offset:%d" % (ar(aO9 + 4 * b_), 1024 * b_), -1, M - 1) for b_ in range(4)]
        for kk in range(4):
            if kk:
                cq += conv_items(kk, -1, kfirst[(0, 0, kk)] - 2)
            wq_ += [Item("ds_write_b128 v%d, %s offset:%d" % (wA + (kk >> 1), vr(OFo(T, kk)), T * 8192 + (kk & 1) * 1024),
                         kfirst[(0, 0, kk)] - 1 if kk else -1, M - 1) for T in range(4)]

        def mid_barrier():
            drain_writes()
            E("s_barrier")

        def mid2_barrier():
            P.wait_ds_regs(rset("a", OFp(3, 3)))
            E("s_barrier")
        mf[M]["pre"] = [mid_barrier]
        mf[M2]["pre"] = [mid2_barrier]
        j = 0
        for kk in range(4):
            for T in range(4):
                wq_.append(Item("ds_read_b128 %s, v%d offset:%d" % (ar(OFp(T, kk)), rA + (kk >> 1), T * 8192 + (kk & 1) * 1024),
                                M, M + j // 2 + (2 if kk else 0)))
                j += 1
        dq = spread(dma_wo(4) + dma_wo(5), M2, 3)
        lq = ["s_xor_b32 s99, s%d, 1\ns_mul_i32 s99, s99, 320\ns_add_u32 s99, s99, %d\nv_add_u32 v30, s99, v3\nv_add_u32 v3, %d, v3" % (sW, LX, LX + 256)]
        lq += ["ds_read_b32 v%d, v30 offset:%d" % (244 + T, 64 * T) for T in range(4)]
        lq += ["ds_read_b32 v%d, v3 offset:%d" % (248 + w_, 320 * w_) for w_ in range(4)]
        lq += ["v_add_f32 v%d, v%d, v%d" % (vL + T, vL + T, 244 + T) for T in range(4)]
        lq += ["v_add_f32 v248, v248, v249\nv_add_f32 v250, v250, v251", "v_add_f32 v%d, v248, v250" % (vL + 4),
               "v_add_f32 v244, v%d, v%d\nv_add_f32 v245, v%d, v%d" % (vL, vL + 1, vL + 2, vL + 3),
               "v_add_f32 v244, v244, v245\nv_add_f32 v244, v244, v%d" % (vL + 4),
               "s_mov_b32 s99, %s\nv_cmp_nge_f32 vcc, s99, v244" % fbits(LTHR),
               "s_lshl_b32 s98, s%d, 2\ns_add_u32 s98, s98, %d\nv_mov_b32 v245, s98" % (sW, LX + 2048),
               "s_cmp_lg_u64 vcc, 0\ns_cselect_b32 s99, 1, 0\nv_mov_b32 v244, s99",
               "ds_write_b32 v245, v244"]
        xq = [Item(t, kfirst[(1, 0, 0)], M - 1) for t in tail_setup2() + lq]
        xq += [Item("v_rcp_f32 v%d, v%d" % (vRI + T, vL + T), kfirst[(1, 0, 0)], BIG) for T in range(5)]
        t9 = ["s_xor_b32 s99, s%d, 0x2000\ns_add_u32 s99, s99, %d\nv_add_u32 v31, s99, v0" % (sW4K, O9S)]
        t9 += ["ds_read_b128 %s, v31 offset:%d" % (vr(176 + 4 * b_), 1024 * b_) for b_ in range(4)]
        t9 += ["v_mov_b32 v30, %d\nds_read_b128 v[244:247], v30" % (LX + 2048)]
        t9 += ["v_accvgpr_read_b32 v%d, a%d" % (160 + j, aO9 + 16 + j) for j in range(16)]
        t9 += ["v_or3_b32 v244, v244, v245, v246\nv_or_b32 v244, v244, v247", "s_nop 0\nv_readfirstlane_b32 s99, v244",
               "s_nop 1\ns_andn2_b32 s99, s99, s%d\ns_cbranch_scc1 L_restart" % sPara]
        t9 += ["v_add_f32 v%d, v%d, v%d" % (160 + j, 160 + j, 176 + j) for j in range(16)]
        t9 += ["v_cvt_pk_bf16_f32 v%d, v%d, v%d" % (160 + j, 160 + 2 * j, 161 + 2 * j) for j in range(8)]
        t9 += ["s_lshl_b32 s99, s%d, 12\ns_xor_b32 s98, s%d, 1\ns_lshl_b32 s98, s98, 11" % (sC, sR),
               "s_add_u32 s99, s99, s98\ns_add_u32 s99, s99, %d\nv_add_u32 v31, s99, v0" % O9P]
        t9 += ["ds_write_b128 v31, %s offset:%d" % (vr(160 + 4 * j), 1024 * j) for j in range(2)]
        xq += [Item(t, M + 8, bpos - 1) for t in t9]
        for a_ in range(2):
            for kh in range(2):
                xq.append(Item("s_xor_b32 s99, s%d, %d\ns_lshl_b32 s99, s99, 12\ns_xor_b32 s98, s%d, %d" % (sC, a_, sR, kh), bpos, BIG))
                xq.append(Item("s_lshl_b32 s98, s98, 11\ns_add_u32 s99, s99, s98\ns_add_u32 s99, s99, %d" % O9P, bpos, BIG))
                xq.append(Item("v_add_u32 v31, s99, v0\nds_read_b128 %s, v31" % ar(aOF9 + 16 * a_ + 8 * kh), bpos, BIG))
                xq.append(Item("ds_read_b128 %s, v31 offset:1024" % ar(aOF9 + 16 * a_ + 8 * kh + 4), bpos, BIG))
        cq += out_items(0, kfirst[(1, 1, 0)] + 5, 5, [])
    elif sg == 2:
        cq = out_items(1, int(opt("se0", "5")), int(opt("sst", "11")) + 3, [])
        xq = [Item("s_load_dwordx2 s[12:13], s[0:1], 88\ns_load_dwordx2 s[14:15], s[0:1], 96\ns_waitcnt lgkmcnt(0)", 30, 30),
              Item("s_lshr_b32 s99, s3, 4\ns_lshl_b32 s99, s99, 11\ns_add_u32 s99, s99, %d" % FLG, 31, 40),
              Item("s_add_u32 s14, s14, s99\ns_addc_u32 s15, s15, 0", 31, 40),
              Item("s_and_b32 s99, s3, 15\ns_lshl_b32 s99, s99, 7\nv_lshrrev_b32 v1, 1, v0", 31, 44),
              Item("v_add_u32 v1, s99, v1\nv_mov_b32 v2, 0", 31, 44), Item("v_mov_b32 v3, 0", 31, 44)]
    else:
        cq = out_items(sg - 1, int(opt("se0", "5")), int(opt("sst", "11")), [0, 1, 2] if sg == 3 else [sg - 1])
    if sg == 6 and TMAJ:
        cq = out_items(5, 10, 3, [5]) + out_items(6, tdone[0] + 5, 0, [6], [0])
        for T in (1, 2):
            cq += out_items(6, tdone[T] + 5, 0, [], [T])
    if sg == 6:
        xq = [Item("s_and_b32 s36, s3, 15\ns_lshr_b32 s99, s36, 2\ns_max_u32 s99, s99, %d\ns_lshl_b32 s99, s99, 3" % int(opt("gate1", "3")), 40, 50),
              Item("v_lshrrev_b32 v30, 6, v0\nv_lshlrev_b32 v30, 7, v30", 40, 50), Item("v_add_u32 v31, s99, v30", 40, 50),
              Item("global_load_dwordx2 v[32:33], v31, s[14:15] sc1", 60, 62, "poll")]
    for it in carried:
        it.e = -1
    if sg == 0:
        nine_rd = xq[-16:]
        xq = xq[:-16] + nine_rd[:8]
        pend9 = nine_rd[8:]
    if sg == 2:
        for it in pend9:
            it.e, it.d = -1, kfirst[(2, 1, 0)] - 4
        wq_ = pend9
    carried = run_phase(mf, [rq, dq, carried + cq, wq_, xq], "st%d" % sg, carry=(2,) if (sg == 0 and int(opt("carry", "0"))) else ())
    k = fr.k
for it in (out_items(6, 0, 0, [], [3]) if TMAJ else out_items(6, 0, 0, [6])):
    it.emit()
if int(opt("pub4", "0")):
    vmwait([("st", 4)])
    E("s_barrier")
    publish([4])
stamp()

E("s_load_dwordx2 s[4:5], s[0:1], 96\ns_load_dwordx2 s[8:9], s[0:1], 80")
E("v_lshrrev_b32 v5, 4, v0\nv_and_b32 v4, 15, v5\nv_lshrrev_b32 v5, 4, v5")
E("v_lshlrev_b32 v16, 17, v5\nv_lshl_add_u32 v16, v4, 4, v16")
E("v_mul_u32_u24 v17, 1792, v4\nv_lshrrev_b32 v6, 1, v5\nv_lshl_add_u32 v17, v6, 3, v17\nv_and_b32 v19, 1, v5")
E("v_lshl_add_u32 v14, v19, 7, v17\nv_lshl_add_u32 v17, v19, 5, v17\nv_lshlrev_b32 v19, 30, v19")
E("v_and_b32 v6, 1, v4\nv_lshlrev_b32 v6, 4, v6\nv_mov_b32 v7, 0x3f80\nv_lshlrev_b32 v7, v6, v7\nv_lshrrev_b32 v6, 1, v4")
for r_ in range(4):
    E("v_cmp_eq_u32 vcc, %d, v6\nv_cndmask_b32 v%d, 0, v7, vcc" % (r_, 40 + r_))
    E("v_cmp_eq_u32 vcc, %d, v6\nv_cndmask_b32 v%d, 0, v7, vcc" % (4 + r_, 44 + r_))
E("s_lshr_b32 s35, s3, 4\nv_mov_b32 v18, s%d" % (sClk + 1))
E("s_waitcnt lgkmcnt(0)")
E("s_lshl_b32 s99, s35, 21\ns_add_u32 s4, s4, s99\ns_addc_u32 s5, s5, 0\ns_mov_b32 s6, %d\ns_mov_b32 s7, 0x20000" % (16 * SLAB))
E("s_mov_b32 s10, %d\ns_mov_b32 s11, 0x20000" % (8 * 144 * 896 * 2))
E("s_and_b32 s16, s35, 7\ns_mul_i32 s16, s16, %d\ns_lshr_b32 s17, s35, 3\ns_mul_i32 s17, s17, 896\ns_add_u32 s16, s16, s17" % (144 * 1792))
E("s_lshl_b32 s17, s35, 4\nv_mov_b32 v8, s17")
E("s_lshl_b32 s19, s36, 2\ns_add_u32 s19, s19, s%d" % sW)
E("s_mov_b32 s21, 0\ns_mov_b32 s22, 0\ns_mov_b64 s[46:47], 0")
LIM = int(opt("lim", "2000"))
UD = [64, 176]


def uloads(u):
    E("s_lshl_b32 s20, s19, 10\ns_add_u32 s20, s20, %d" % (65536 * u))
    for p_ in range(4):
        for pc in range(4):
            E("buffer_load_dwordx4 %s, v16, s[4:7], s20 offen offset:%d %s" % (vr(UD[u] + 16 * p_ + 4 * pc), 256 * pc, LDP))
        if p_ < 3:
            E("s_add_u32 s20, s20, %d" % (4 * SLAB))


def flags_ok():
    E("v_subrev_co_u32 v32, vcc, s%d, v32\nv_subb_co_u32 v33, vcc, v33, v18, vcc\nv_cmp_eq_u32 vcc, 0, v33" % sClk)
    E("s_cmp_eq_u64 vcc, -1")


SLP = int(opt("slp", "0"))


def spin(name):
    E("s_cmp_lg_u32 s%d, 0\ns_cbranch_scc1 L_%s_j" % (sW, name))
    E("L_%s:" % name)
    E("global_load_dwordx2 v[32:33], v31, s[14:15] sc1\ns_waitcnt vmcnt(0)")
    E("L_%s_c:" % name)
    flags_ok()
    E("s_cselect_b32 s99, 1, 0\ns_cbranch_scc1 L_%s_d" % name)
    if SLP:
        E("s_sleep %d" % SLP)
    E("s_add_u32 s21, s21, 1\ns_cmp_lt_u32 s21, %d\ns_cbranch_scc1 L_%s" % (LIM, name))
    E("L_%s_d:" % name)
    E("v_mov_b32 v35, s99\nds_write_b32 v36, v35 offset:%d\ns_waitcnt lgkmcnt(0)" % (4 * (name == "spin2")))
    E("L_%s_j:" % name)
    E("s_barrier\nds_read_b32 v35, v36 offset:%d\ns_waitcnt lgkmcnt(0)\nv_readfirstlane_b32 s99, v35" % (4 * (name == "spin2")))
    E("s_cmp_eq_u32 s99, 1")


E("v_mov_b32 v36, %d" % (LX + 3072))
E("s_waitcnt vmcnt(0)")
E("L_drained:")
stamp()
E("s_barrier")
publish([5, 6])
E("s_cmp_eq_u32 s%d, 0\ns_cbranch_scc1 L_spin1_c" % sW)
spin("spin1")
E("s_cselect_b32 s23, 1, 0\ns_cbranch_scc0 L_have1")
uloads(0)
E("L_have1:")
stamp()
E("s_cmp_lg_u32 s%d, 0\ns_cbranch_scc1 L_noadd\ns_mov_b64 exec, 1\nv_mov_b32 v9, 1" % sW)
E("global_atomic_add v34, v8, v9, s[12:13] sc0")
E("s_mov_b64 exec, -1\nL_noadd:")
E("s_lshr_b32 s99, s36, 2\ns_add_u32 s99, s99, 4\ns_lshl_b32 s98, s36, 1\ns_sub_u32 s98, s98, 23\ns_min_u32 s98, s98, 6\ns_max_u32 s98, s98, 2\ns_cmp_ge_u32 s36, 12\ns_cselect_b32 s99, s98, s99")
E("s_lshl_b32 s99, s99, 3\nv_add_u32 v31, s99, v30")
spin("spin2")
E("s_cselect_b32 s99, s23, 0\ns_cmp_eq_u32 s99, 1\ns_cbranch_scc1 L_second")
E("L_slow:")
E("s_mov_b32 s21, 0")
E("L_spin3:")
E("global_load_dword v32, v8, s[12:13] sc1\ns_waitcnt vmcnt(0)\nv_readfirstlane_b32 s99, v32")
E("s_cmp_eq_u32 s99, 16\ns_cbranch_scc1 L_both")
E("s_add_u32 s21, s21, 1\ns_cmp_lt_u32 s21, %d\ns_cbranch_scc1 L_spin3" % LIM)
E("s_lshl_b64 s[98:99], 1, s19\ns_mov_b64 exec, 1\nv_mov_b32 v32, s98\nv_mov_b32 v33, s99")
E("global_atomic_or_x2 v8, v[32:33], s[12:13] offset:8\ns_waitcnt vmcnt(0)\ns_mov_b64 exec, -1")
E("global_load_dword v32, v8, s[12:13] sc1\ns_waitcnt vmcnt(0)\nv_readfirstlane_b32 s99, v32")
E("s_cmp_eq_u32 s99, 16\ns_cbranch_scc0 L_next")
E("L_both:")
P.vmq = []
uloads(0)
E("L_second:")
stamp()
uloads(1)
for u in range(2):
    E("s_add_u32 s21, s19, %d" % (64 * u))
    if u == 1:
        E("s_cmp_ge_u32 s21, 112\ns_cbranch_scc1 L_t9")
    E("s_lshr_b32 s20, s21, 4\ns_lshl_b32 s20, s20, 7\ns_add_u32 s20, s20, s16")
    E("s_bfe_u32 s99, s21, 0x30001\ns_mul_i32 s99, s99, %d\ns_add_u32 s20, s20, s99" % (16 * 1792))
    E("s_and_b32 s99, s21, 1\ns_lshl_b32 s99, s99, 6\ns_add_u32 s%d, s20, s99" % (50 + u))
    E("s_bfe_u32 s99, s21, 0x10003\ns_lshl_b32 s99, s99, 5")
    E("v_xor_b32 v%d, s99, v17" % (12 + u))
E("s_branch L_sum")
E("L_t9:")
E("s_bfe_u32 s20, s21, 0x20002\ns_and_b32 s99, s21, 1\ns_lshl_b32 s99, s99, 1\ns_bfe_u32 s98, s21, 0x10001\ns_xor_b32 s98, s98, 1\ns_add_u32 s99, s99, s98\ns_lshl_b32 s99, s99, 5")
E("s_lshl_b32 s51, s20, 8\ns_add_u32 s51, s51, s99\ns_add_u32 s51, s51, s16\ns_add_u32 s51, s51, %d" % (128 * 1792))
E("v_mov_b32 v13, v14\ns_cmp_eq_u32 s20, 3\ns_cbranch_scc0 L_sum\nv_add_u32 v13, v19, v14")
E("L_sum:")
for u in range(2):
    for p_ in range(4):
        for pc in range(4):
            d = 48 + 8 * u + 4 * (pc >> 1)
            E(mfma(vr(d), vr(40 if (pc & 1) == 0 else 44), vr(UD[u] + 16 * p_ + 4 * pc), "0" if (p_ == 0 and (pc & 1) == 0) else vr(d)))
for u in range(2):
    for k_ in range(2):
        d = 48 + 8 * u + 4 * k_
        E("v_cvt_pk_bf16_f32 v%d, v%d, v%d\nv_cvt_pk_bf16_f32 v%d, v%d, v%d" % (d, d, d + 1, d + 1, d + 2, d + 3))
        E("buffer_store_dwordx2 v[%d:%d], v%d, s[8:11], s%d offen offset:%d %s" % (d, d + 1, 12 + u, 50 + u, 16 * k_, opt("ost", "")))
E("L_next:")
E("s_cmp_lg_u32 s%d, 0\ns_cbranch_scc1 L_done" % sW)
E("s_cmp_lg_u32 s22, 0\ns_cbranch_scc1 L_more")
E("s_mov_b32 s22, 1\nv_readfirstlane_b32 s99, v34\ns_cmp_eq_u32 s99, 15\ns_cbranch_scc0 L_done")
E("global_load_dwordx2 v[32:33], v8, s[12:13] offset:8 sc1\ns_waitcnt vmcnt(0)\nv_readfirstlane_b32 s46, v32\nv_readfirstlane_b32 s47, v33")
E("L_more:")
E("s_cmp_eq_u64 s[46:47], 0\ns_cbranch_scc1 L_done")
E("s_ff1_i32_b64 s19, s[46:47]\ns_bitset0_b64 s[46:47], s19\ns_branch L_both")
E("L_done:")
if STAMP:
    E("s_waitcnt vmcnt(0)")
    stamp()
    E("s_waitcnt lgkmcnt(0)")
    if STAMP == 1:
        E("s_memtime s[94:95]\ns_waitcnt lgkmcnt(0)")
    E("v_mov_b32 v1, 0")
    E("s_cmp_lg_u32 s%d, 0\ns_cbranch_scc1 L_end" % sW)
    if STAMP == 7:
        E("v_lshrrev_b32 v2, 2, v0\nv_accvgpr_read_b32 v3, a199\nv_accvgpr_read_b32 v4, a198")
        E("s_mov_b64 exec, 0xffff\nglobal_store_dword v2, v3, s[%d:%d] offset:128\nglobal_store_dword v2, v4, s[%d:%d] offset:192" % (sWSB, sWSB + 1, sWSB, sWSB + 1))
    E("s_mov_b64 exec, 1")
    for k_ in range(16):
        E("v_mov_b32 v2, s%d\nv_mov_b32 v3, s%d" % (sStamp + 2 * k_, sStamp + 2 * k_ + 1))
        E("global_store_dwordx2 v1, v[2:3], s[%d:%d] offset:%d" % (sWSB, sWSB + 1, 8 * k_))
        E("s_nop 1")
E("L_end:\ns_endpgm")
main_ins = P.ins

R = Prog()
F = R.emit
for s_ in stubs:
    F(s_)
F("L_restart:\ns_waitcnt vmcnt(0) lgkmcnt(0)\ns_barrier\ns_mov_b32 s%d, 1\ns_branch L_start" % sPara)
for par in range(2):
    sc = P_base[par]
    F("L_fix%d:" % par)
    F("s_nop 15\ns_waitcnt lgkmcnt(0)")
    for T in range(5):
        s0 = S_(par, T)
        F("v_max3_f32 v%d, v%d, v%d, v%d\nv_max_f32 v%d, v%d, v%d" % (sc + T, s0, s0 + 1, s0 + 2, sc + T, sc + T, s0 + 3))
    F("v_mov_b32 v%d, 0xff800000\ns_cmp_eq_u32 s%d, 1\ns_cbranch_scc1 L_fix%d_a\nv_mov_b32 v%d, v%d\nL_fix%d_a:" % (sc + 5, sHas9, par, sc + 4, sc + 5, par))
    for T in range(5):
        for sw in ("v_permlane32_swap_b32", "v_permlane16_swap_b32"):
            F("v_mov_b32 v%d, v%d\ns_nop 1\n%s v%d, v%d\ns_nop 1\nv_max_f32 v%d, v%d, v%d" % (sc + 5, sc + T, sw, sc + T, sc + 5, sc + T, sc + T, sc + 5))
    F("s_mul_i32 s99, s%d, 1280\nv_add_u32 v%d, s99, v%d" % (sW, sc + 5, vMB))
    for T in range(5):
        F("ds_write_b32 v%d, v%d offset:%d" % (sc + 5, sc + T, 256 * T))
    F("s_waitcnt lgkmcnt(0)\ns_barrier")
    F("s_xor_b32 s99, s%d, 1\ns_mul_i32 s99, s99, 1280\nv_add_u32 v%d, s99, v%d" % (sW, sc + 5, vMB))
    for T in range(4):
        F("ds_read_b32 v%d, v%d offset:%d" % (sc + 6 + T, sc + 5, 256 * T))
    for w_ in range(4):
        F("ds_read_b32 v%d, v%d offset:%d" % (sc + 10 + w_, vMB, 1280 * w_ + 1024))
    F("s_waitcnt lgkmcnt(0)")
    for T in range(4):
        F("v_max3_f32 v%d, v%d, v%d, s%d" % (sc + T, sc + T, sc + 6 + T, sFloor))
    F("v_max3_f32 v%d, v%d, v%d, v%d\nv_max3_f32 v%d, v%d, v%d, s%d" % (sc + 4, sc + 10, sc + 11, sc + 12, sc + 4, sc + 4, sc + 13, sFloor))
    for T in range(5):
        for j in range(4):
            F("v_sub_f32 v%d, v%d, v%d" % (vNegM + 4 * T + j, vNegM + 4 * T + j, sc + T))
        if T == 4:
            F("s_cmp_eq_u32 s%d, 0\ns_cbranch_scc1 L_fix%d_b" % (sHas9, par))
        for j in range(4):
            F("v_sub_f32 v%d, v%d, v%d" % (S_(par, T) + j, S_(par, T) + j, sc + T))
    F("L_fix%d_b:" % par)
    F("s_cmp_eq_u32 s%d, 1\ns_cbranch_scc1 L_fix%d_c" % (sFirst, par))
    for T in range(5):
        F("v_sub_f32 v%d, 0, v%d\nv_exp_f32 v%d, v%d\ns_nop 0\nv_mul_f32 v%d, v%d, v%d\nv_accvgpr_write_b32 a%d, v%d"
          % (sc + T, sc + T, sc + T, sc + T, vL + T, vL + T, sc + T, aF + T, sc + T))
    F("L_fix%d_c:\ns_nop 3\ns_setpc_b64 s[%d:%d]" % (par, sRet, sRet + 1))
F("L_fixo:")
F("s_nop 15")
for T in range(4):
    F("v_accvgpr_read_b32 v%d, a%d" % (vTmp, aF + T))
    for j in range(32):
        F("v_mul_f32 v%d, v%d, v%d" % (vO + 32 * T + j, vTmp, vO + 32 * T + j))
F("v_accvgpr_read_b32 v%d, a%d" % (vTmp, aF + 4))
for j in range(32):
    F("v_accvgpr_read_b32 v%d, a%d\nv_mul_f32 v%d, v%d, v%d\nv_accvgpr_write_b32 a%d, v%d" % (vTmp + 1, aO9 + j, vTmp + 1, vTmp, vTmp + 1, aO9 + j, vTmp + 1))
F("s_nop 3\ns_setpc_b64 s[%d:%d]" % (sRet, sRet + 1))

KILL = OPT.get("kill", "").split(",") if OPT.get("kill") else []
if KILL:
    keep, inside = [], False
    for i in main_ins:
        if i.text.startswith("L_loop"): inside = True
        if "s_cbranch_scc1 L_loop" in i.text: inside = False
        drop = False
        if inside and "sLoop" not in i.text and ("s%d," % sLoop) not in i.text:
            if "dma" in KILL and (i.kind == "dma" or (i.kind == "wait" and "vmcnt" in i.text)): drop = True
            if "bar" in KILL and i.kind == "barrier": drop = True
            if "exp" in KILL and i.kind == "trans": drop = True
            if "valu" in KILL and i.kind == "valu": drop = True
            if "dsw" in KILL and i.kind == "dsw": drop = True
            if "ds" in KILL and i.kind in ("dsr", "dsw"): drop = True
            if "wait" in KILL and i.kind == "wait" and "lgkm" in i.text: drop = True
        if not drop: keep.append(i)
    main_ins = keep
TK = OPT.get("tkill", "").split(",") if OPT.get("tkill") else []
if TK:
    keep, inside = [], False
    for i in main_ins:
        if i.text.startswith("L_oproj"): inside = True
        if i.text.startswith("L_drained"): inside = False
        drop = False
        if inside:
            if "st" in TK and i.kind == "vst" and "dwordx4" in i.op: drop = True
            if "wo" in TK and i.kind == "dma": drop = True
            if "dsw" in TK and i.kind == "dsw" and "b128" in i.op: drop = True
            if "mul" in TK and (i.op.startswith("v_mul_f32") or i.op.startswith("v_cvt_pk")): drop = True
            if "bar" in TK and i.kind == "barrier" and False: drop = True
        if not drop: keep.append(i)
    main_ins = keep
rep = []
main_ins = pad_hazards(main_ins, rep)
rare_ins = pad_hazards(R.ins, None)
from collections import Counter
sys.stderr.write("hazard pads (main): %s\n" % dict(Counter(r_[0] for r_ in rep)))
if OPT.get("v") == "2":
    for r_ in rep:
        sys.stderr.write("  %s\n" % (r_,))
txt = lambda ins: "\n".join(("" if i.kind == "label" else "    ") + i.text for i in ins)
hdr = open("concat_heads__gqa_block_cached__mha_block_cached__near_ridge.s.ref").read().split("; Override launch")[0]
print(hdr.rstrip())
print("; @launch grid=(256,1,1) block=(256,1,1) lds=%d" % LDS_TOTAL)
print('.amdgcn_target "amdgcn-amd-amdhsa--gfx950"')
print(".text")
print(".globl %s\n.p2align 8\n.type %s,@function" % (KN, KN))
body = txt(main_ins) + "\n" + txt(rare_ins) + "\nL_codeend:"
if OPT.get("split"):
    pa, pb = OPT["split"].split(",")
    first, rest = body.split("\n", 1)

    def variant(t, pol, cap):
        t = re.sub(r"(buffer_load_dwordx4 v0, s\[\d+:\d+\], s\d+ offen offset:\d+) nt lds", r"\1 %s lds" % pol.replace("_", " "), t)
        if cap:
            t = re.sub(r"s_waitcnt vmcnt\(%d\)\n(\s+buffer_load_dwordx4 v0,)" % (CAPV - 1), r"s_waitcnt vmcnt(%d)\n\1" % (int(cap) - 1), t)
        return t
    bcopy = re.sub(r"\bL_(\w+)", r"L_\1_B", variant(rest, pb, OPT.get("capb")))
    body = first + "\n    s_bitcmp1_b32 s2, 7\n    s_cbranch_scc0 L_entry_A\n    s_getpc_b64 s[4:5]\nL_jb:\n    s_add_u32 s4, s4, L_entry_B-L_jb\n    s_addc_u32 s5, s5, 0\n    s_setpc_b64 s[4:5]\nL_entry_A:\n" + \
        variant(rest, pa, OPT.get("capa")) + "\n.p2align 6\nL_entry_B:\n" + bcopy
print(body)
print('.section .rodata,"a"')
print(""".p2align 6
.amdhsa_kernel %s
  .amdhsa_next_free_vgpr 512
  .amdhsa_next_free_sgpr 102
  .amdhsa_accum_offset 256
  .amdhsa_group_segment_fixed_size 0
  .amdhsa_kernarg_size 104
  .amdhsa_user_sgpr_count 2
  .amdhsa_user_sgpr_kernarg_segment_ptr 1
  .amdhsa_system_sgpr_workgroup_id_x 1
.end_amdhsa_kernel""" % KN)
```

```python
import sys, struct, math, re
sys.path.insert(0, "work")
from asmlib import *

OPT = dict(a.split("=") for a in sys.argv[1:] if "=" in a)
opt = lambda k, d: OPT.get(k, d).replace("_", " ")
NT = opt("nt", "nt")
WNT = opt("wnt", "")
STP = opt("st", "sc1")
LDP = opt("ld", "sc1")
STAMP = int(opt("stamp", "0"))
LEAD = int(opt("lead", "3"))
CAPS = [int(c) for c in opt("caps", opt("capv", "67"))]
CAPV = CAPS[0]
EARLY = int(opt("early", "10"))
PARA = int(opt("para", "0"))
LTHR = float(opt("lthr", str(2.0 ** 30)))

KN = "concat_heads__gqa_block_cached__mha_block_cached__near_ridge_kernel"
SLOT = 16384
KB, VB = 0, 65536
PX = 131072
MB = 151552
XB = 98304
QS = 81920
LDS_TOTAL = 163840
CSCALE = math.log2(math.e) / 16.0
BIG = 10 ** 6
SLAB = 131072
FLG = 0x2000000

fbits = lambda x: "0x%08x" % struct.unpack("<I", struct.pack("<f", x))[0]
vr = lambda n, k=4: "v[%d:%d]" % (n, n + k - 1)
ar = lambda n, k=4: "a[%d:%d]" % (n, n + k - 1)
srd = lambda n: "s[%d:%d]" % (n, n + 3)
mfma = lambda d, a, b, c: "v_mfma_f32_16x16x32_bf16 %s, %s, %s, %s" % (d, a, b, c)
rset = lambda k, n, c=4: {(k, n + i) for i in range(c)}

SRD_X, SRD_WQ, SRD_K, SRD_V, SRD_WO, SRD_WS = 4, 8, 12, 16, 20, 24
sW, sW4K, sR, sC = 28, 29, 30, 31
sOffK, sOffV, sTmpO, sLoop = 32, 33, 34, 35
sFloor, sFirst, sHas9, sPara = 36, 37, 38, 39
sRet = 40
sT0, sT1, sT2, sT3 = 42, 43, 44, 45
sXm0 = 46
sClk = 48
sWSB = 62
sStamp = 64
vDKV, vPW, vPR, vMB = 0, 1, 2, 3
vK = 4
vV = 8
vL = 24
vSc = 29
vTmp = 30
vP9 = 36
vNegM = 40
S_base = {0: 60, 1: 76}
vS9 = 92
P_base = {0: 96, 1: 112}
vO = 128
aQ = 0
aO9 = 160
aF = 192
aPOOL, NPOOL = 224, 8

S_ = lambda par, T: S_base[par] + 4 * T if T < 4 else vS9
P_ = lambda par, T: P_base[par] + 4 * T if T < 4 else vP9
Q_ = lambda T, s: aQ + 32 * T + 4 * s
O_ = lambda T, b: vO + 32 * T + 4 * b
own9 = lambda n, r: ((n >> 1) & 1) == r

P = Prog()
E = P.emit
stubs = []
nstamp = [0]


def raw(t):
    for l in t.split("\n"):
        P.ins.append(Ins(l.strip()))


def stamp(cond=True):
    if STAMP and cond and nstamp[0] < (16 if STAMP in (5, 6, 9) else 8):
        raw("s_memrealtime s[%d:%d]" % (sStamp + 2 * nstamp[0], sStamp + 2 * nstamp[0] + 1))
        nstamp[0] += 1


SCALAR = ("salu", "wait", "branch", "barrier", "nop", "smem")


def advance(t, ins):
    for I in ins:
        if I.kind == "label":
            continue
        if I.kind in SCALAR:
            t += 4 * (I.cost if I.kind == "nop" else 1)
        else:
            t = max(t, 8)
            if I.kind == "trans":
                t += 8
            elif I.kind == "dsw":
                t += 20 if ("b128" in I.op or "write2" in I.op) else (10 if "b64" in I.op else 6)
            elif I.op.startswith("v_pk_"):
                t += 20
            else:
                t += 4
    return t


class Item:
    def __init__(self, text, e=-1, d=BIG, tag=None, cost=None):
        self.text, self.e, self.d, self.tag = text, e, d, tag
        self.ins = [Ins("s_nop 0")] if callable(text) else [Ins(l.strip()) for l in text.split("\n") if l.strip()]
        self.lead_scalar = self.ins[0].kind in SCALAR

    def emit(self):
        self.text() if callable(self.text) else E(self.text, tag=self.tag)


PACK2 = int(opt("pack2", "1"))


def run_phase(mf, queues, name="", carry=()):
    qs = [list(q) for q in queues]
    for q in qs:
        for j in range(len(q) - 2, -1, -1):
            q[j].d = min(q[j].d, q[j + 1].d)
        for it in q:
            assert it.e <= it.d or it.d >= BIG, (name, it.text, it.e, it.d)
    lost = [0]
    n = len(mf)

    def pressure(g):
        return None

    def fill(g, t):
        while True:
            best = None
            for qi, q in enumerate(qs):
                if q and q[0].e <= g:
                    it = q[0]
                    forced = it.d <= g
                    te = advance(t, it.ins)
                    fits = te <= 16 or (t <= 8 and advance(4, it.ins) > 16)
                    if forced or fits:
                        key = (0 if forced else 1, 0 if (t == 4 and it.lead_scalar) else 1, it.d, qi)
                        if best is None or key < best[0]:
                            best = (key, qi, te)
            if best is None:
                break
            it = qs[best[1]].pop(0)
            w0 = P.nwaits
            nw = sum(1 for I in it.ins if I.kind == "wait")
            it.emit()
            t = best[2] + 4 * max(0, P.nwaits - w0 - nw)
        return t

    fill(-1, 100)
    for g, m in enumerate(mf):
        for t_ in m.get("pre", []):
            t_() if callable(t_) else E(t_)
        E(m["text"])
        t = 4
        if g + 1 < n and not mf[g + 1].get("pre"):
            nx = Ins(mf[g + 1]["text"])
            if P._need(P.dsq, nx.src) >= 0:
                P.wait_ds_regs(nx.src | mf[g + 1].get("waitfor", set()))
                t = 8
        t = fill(g, t)
        lost[0] += max(0, t - 16)
    left = 0
    rest = []
    for qi, q in enumerate(qs):
        if qi in carry:
            rest += q
            continue
        for it in q:
            left += advance(8, it.ins) - 8
            it.emit()
    if OPT.get("v"):
        sys.stderr.write("phase %s: %d mfma, lost %d cyc, leftover %d cyc\n" % (name, n, lost[0], left))
    return rest


pool_ctr = [0]


class Frags:
    def __init__(self, start):
        self.k = start
        self.fr = []
        self.first = []

    def new(self, mf, texts_fn, buf=None):
        if buf is None:
            buf = aPOOL + 4 * (self.k % NPOOL)
            self.k += 1
        self.fr.append((buf, texts_fn(buf)))
        self.first.append(len(mf))
        return buf

    def items(self, skip, lead, off=0, emin=-1):
        out = []
        for f in range(skip, len(self.fr)):
            e = max(emin, self.first[f - lead] + off) if f >= lead else emin
            d = (self.first[f - lead + 1] + off) if f >= lead else emin
            out.append(Item("\n".join(self.fr[f][1]), e, max(d, e)))
        return out


rd128 = lambda areg, off: (lambda b: ["ds_read_b128 %s, v%d offset:%d" % (ar(b), areg, off)])
rdtr = lambda a0, a1, o0, o1: (lambda b: ["ds_read_b64_tr_b16 %s, v%d offset:%d" % (ar(b, 2), a0, o0),
                                          "ds_read_b64_tr_b16 %s, v%d offset:%d" % (ar(b + 2, 2), a1, o1)])


def dma_kv(which, lds, tag, cap=True):
    s_srd, s_off = (SRD_K, sOffK) if which == "K" else (SRD_V, sOffV)
    res = []
    for m in range(4):
        t = "s_add_u32 m0, s%d, %d\n" % (sW4K, lds) if m == 0 else ""
        if cap and CAPV:
            t += "s_waitcnt vmcnt(%d)\n" % (CAPS[(4 * (which == "V") + m) % len(CAPS)] - 1)
        t += "buffer_load_dwordx4 v%d, %s, s%d offen offset:%d %s lds" % (vDKV, srd(s_srd), s_off, m * 1024, NT)
        res.append(t)
    STR = int(opt("stride", "1"))
    if STR == 1:
        res.append("s_add_u32 s%d, s%d, %d" % (s_off, s_off, SLOT))
    else:
        res.append("s_add_u32 s%d, s%d, %d\ns_cmp_ge_u32 s%d, 0x80000\ns_cselect_b32 s53, %d, 0" % (s_off, s_off, SLOT * STR, s_off, 0x80000 - SLOT))
        res.append("s_sub_u32 s%d, s%d, s53" % (s_off, s_off))
    return [(r, tag) for r in res]


def spread(pieces, start, step):
    out, k = [], 0
    for (t, tag) in pieces:
        e = int(start + k * step)
        out.append(Item(t, e, e + max(1, int(step)), tag))
        if "buffer_load" in t:
            k += 1
    return out


def emit_pieces(pieces):
    for (t, tag) in pieces:
        E(t, tag=tag)


def vmwait(tags):
    c = P.vm_count_after(tags)
    if c is not None:
        E("s_waitcnt vmcnt(%d)" % min(63, c))


def drain_writes():
    pend = [k for k, (_, d) in enumerate(P.dsq) if d == set()]
    if pend:
        E("s_waitcnt lgkmcnt(%d)" % (len(P.dsq) - 1 - pend[-1]))


nchk = [0]


def cond_call(sub, has9):
    k = nchk[0]
    nchk[0] += 1
    stubs.append("L_rare%d:\ns_mov_b32 s%d, %d\ns_call_b64 s[%d:%d], %s\ns_branch L_back%d" % (k, sHas9, has9, sRet, sRet + 1, sub, k))
    return "s_cbranch_vccnz L_rare%d\nL_back%d:" % (k, k)


tiles_of = lambda n, r: [0, 1, 2, 3] + ([4] if own9(n, r) else [])


QKG = int(opt("qkg", "1"))
PVG = int(opt("pvg", "1"))


def qk_part(n, r, fr, mf):
    par = n & 1
    for s0 in range(0, 8, QKG):
        bs = [fr.new(mf, rd128(vK + (s & 3), KB + (n & 3) * SLOT + (s >> 2) * 256)) for s in range(s0, s0 + QKG)]
        for T in tiles_of(n, r):
            for j, s in enumerate(range(s0, s0 + QKG)):
                mf.append(dict(text=mfma(vr(S_(par, T)), ar(bs[j]), ar(Q_(T, s)), vr(vNegM + 4 * T) if s == 0 else vr(S_(par, T)))))


def pv_part(n, r, fr, mf):
    par = n & 1
    for b0 in range(0, 8, PVG):
        bs = [fr.new(mf, rdtr(vV + b_, vV + 8 + b_, (n & 3) * SLOT, (n & 3) * SLOT)) for b_ in range(b0, b0 + PVG)]
        for T in tiles_of(n, r):
            for j, b_ in enumerate(range(b0, b0 + PVG)):
                if T < 4:
                    mf.append(dict(text=mfma(vr(O_(T, b_)), ar(bs[j]), vr(P_(par, T)), vr(O_(T, b_)))))
                else:
                    mf.append(dict(text=mfma(ar(aO9 + 4 * b_), ar(bs[j]), vr(vP9), ar(aO9 + 4 * b_))))


tbank = [0]
DOT2 = int(opt("dot2", "0"))
sOnes = 47


def softmax_items(n, tiles, e, d):
    par = n & 1
    its = []
    for T in tiles:
        for h in range(2):
            t = vTmp + 2 * (tbank[0] % 3)
            tbank[0] += 1
            s0 = S_(par, T) + 2 * h
            its.append(Item("v_exp_f32 v%d, v%d" % (t, s0), e, d))
            its.append(Item("v_exp_f32 v%d, v%d" % (t + 1, s0 + 1), e, d))
            if DOT2:
                its.append(Item("s_nop 0\nv_cvt_pk_bf16_f32 v%d, v%d, v%d" % (P_(par, T) + h, t, t + 1), e, d))
                its.append(Item("v_dot2c_f32_bf16 v%d, s%d, v%d" % (vL + T, sOnes, P_(par, T) + h), e, d))
                continue
            its.append(Item("v_add_f32 v%d, v%d, v%d" % (vL + T, vL + T, t), e, d))
            its.append(Item("v_cvt_pk_bf16_f32 v%d, v%d, v%d" % (P_(par, T) + h, t, t + 1), e, d))
            its.append(Item("v_add_f32 v%d, v%d, v%d" % (vL + T, vL + T, t + 1), e, d))
        if T < 4 and (T & 1):
            its.append(Item("ds_write2st64_b64 v%d, %s, %s offset0:%d offset1:%d"
                            % (vPW, vr(P_(par, T - 1), 2), vr(P_(par, T), 2), 5 * par + T - 1, 5 * par + T), e, d))
        if T == 4:
            its.append(Item("ds_write_b64 v%d, %s offset:%d" % (vPW, vr(vP9, 2), (5 * par + 4) * 512), e, d))
    return its


def partner_reads(n, r):
    return ["ds_read_b64 %s, v%d offset:%d" % (vr(P_(n & 1, T) + 2, 2), vPR, (5 * (n & 1) + T) * 512) for T in tiles_of(n, r)]


def split_tiles(n, r, everything=False):
    if everything:
        return tiles_of(n, r), []
    if own9(n, r) and not (n & 1):
        return [4, 0], [1, 2, 3]
    if own9(n, r):
        return [0, 1, 2], [3, 4]
    return [0, 1], [2, 3]


def pair(fr, mf, lo, hi):
    for f in range(lo, hi - 1, 2):
        mf[fr.first[f]]["waitfor"] = rset("a", fr.fr[f + 1][0])


def step(n, r, k0, dma_pre, dma_post, vm, pref, all_next=False):
    fr = Frags(k0)
    mf = []
    qk_part(n + 1, r, fr, mf)
    nq, fq = len(mf), len(fr.fr)
    pv_part(n, r, fr, mf)
    N = len(mf)
    bpos = nq - EARLY

    def barrier():
        P.wait_ds_regs(rset("a", fr.fr[fq - 1][0]))
        drain_writes()
        E("s_waitcnt vmcnt(%d)" % vm) if isinstance(vm, int) else vmwait(vm)
        E("s_barrier")

    rq = []
    for f in range(LEAD, len(fr.fr)):
        if f < fq:
            d = min(fr.first[f - LEAD + 1], bpos - 3)
            e = min(fr.first[f - LEAD], d)
        elif f - fq < LEAD:
            if f == fq:
                rq += [Item(t, bpos, bpos + 1 + j // 2) for j, t in enumerate(partner_reads(n, r))]
            e, d = bpos, bpos + 3 + (f - fq)
        else:
            e, d = fr.first[f - LEAD], fr.first[f - LEAD + 1]
        rq.append(Item("\n".join(fr.fr[f][1]), e, d))
    for j, t in enumerate(pref):
        e = fr.first[len(fr.fr) - LEAD + j]
        rq.append(Item("\n".join(t), e, min(N - 1, e + 3)))
    mf[bpos]["pre"] = [barrier]
    mf[nq]["pre"] = [lambda: E(cond_call("L_fix%d" % ((n + 1) & 1), int(own9(n + 1, r))))]
    vq = softmax_items(n, split_tiles(n, r)[1], -1, bpos - 2)
    first = split_tiles(n + 1, r, all_next)[0]
    for T in first:
        e = nq + 5
        if T == 4 and own9(n, r):
            e = N - 1
        vq += softmax_items(n + 1, [T], e, BIG)
    npre = len([1 for (t, _) in dma_pre if "buffer_load" in t])
    npost = len([1 for (t, _) in dma_post if "buffer_load" in t])
    dq = spread(dma_pre, 1, max(1, (bpos - 3) // max(1, npre))) + spread(dma_post, bpos + 4, max(1, (N - bpos - 6) // max(1, npost)))
    run_phase(mf, [rq, vq, dq], "step%d r%d" % (n, r))
    E(cond_call("L_fixo", 0))
    return fr.k


def qk_pref(n, r, k0):
    fr, mf = Frags(k0), []
    qk_part(n, r, fr, mf)
    return [fr.fr[f][1] for f in range(LEAD)]


def pv_pref(n, r, k0):
    fr, mf = Frags(k0), []
    pv_part(n, r, fr, mf)
    return [fr.fr[f][1] for f in range(LEAD)]


CPFL = 16
E("%s:" % KN)
E("s_cmp_ge_u32 s2, 256\ns_cbranch_scc1 L_end")
E("s_mov_b32 s%d, %d" % (sPara, PARA))
E("s_memrealtime s[%d:%d]" % (sClk, sClk + 1))
E("v_lshrrev_b32 v1, 6, v0\nv_readfirstlane_b32 s%d, v1" % sW)
stamp()
if STAMP == 1:
    E("s_memtime s[92:93]")
E("L_start:")
E("s_and_b32 s%d, s2, 7" % sT0)
E("s_lshr_b32 s%d, s2, 3" % sT1)
E("s_lshr_b32 s96, s%d, 4" % sT1)
E("s_lshr_b32 s97, s%d, 1\ns_and_b32 s97, s97, 7" % sT1)
E("s_and_b32 s98, s%d, 1\ns_lshl_b32 s99, s%d, 1\ns_add_u32 s98, s98, s99" % (sT1, sT0))
E("s_mul_i32 s99, s96, 40")
E("s_add_u32 s50, s0, s99\ns_addc_u32 s51, s1, 0")
E("s_load_dwordx2 s[4:5], s[50:51], 0")
E("s_load_dwordx2 s[8:9], s[50:51], 24")
E("s_load_dwordx2 s[12:13], s[50:51], 8")
E("s_load_dwordx2 s[16:17], s[50:51], 16")
E("s_load_dwordx2 s[20:21], s[50:51], 32")
E("s_load_dwordx2 s[24:25], s[0:1], 96")
if int(opt("tlb", "0")) or int(opt("ftouch", "0")):
    E("s_load_dwordx4 s[56:59], s[0:1], 80")
    E("s_load_dwordx2 s[60:61], s[0:1], 96")
if int(opt("cpf", "1")):
    E("s_getpc_b64 s[52:53]\nL_pc:\ns_lshr_b32 s99, s2, 3\nv_and_b32 v2, 63, v0\nv_lshlrev_b32 v2, 5, v2\nv_add_u32 v2, s99, v2\nv_lshlrev_b32 v2, 7, v2")
    E("s_cmp_lg_u32 s%d, 3\ns_cbranch_scc1 L_nocpf" % sW)
    raw("s_mov_b32 s46, L_codeend-L_pc-4")
    E("v_cmp_gt_u32 vcc, s46, v2\ns_and_saveexec_b64 s[100:101], vcc\ns_cbranch_execz L_cpf2")
    raw("global_load_dword a201, v2, s[52:53]")
    E("L_cpf2:\ns_mov_b64 exec, -1\nL_nocpf:")
hL, hW, hI, hG = 200, 201, 202, 203
vDX, vDWQ = 204, 205
vXR = 206
vW = 210
h0, h1, h2, h3, h4, h5 = 220, 221, 222, 223, 224, 225
E("v_mbcnt_lo_u32_b32 v%d, -1, 0\nv_mbcnt_hi_u32_b32 v%d, -1, v%d\nv_mov_b32 v%d, s%d" % (hL, hL, hL, hW, sW))
E("v_and_b32 v%d, 15, v%d\nv_lshrrev_b32 v%d, 4, v%d" % (hI, hL, hG, hL))
E("s_lshl_b32 s%d, s%d, 12\ns_lshr_b32 s%d, s%d, 1\ns_and_b32 s%d, s%d, 1" % (sW4K, sW, sR, sW, sC, sW))
E("v_lshrrev_b32 v%d, 3, v%d\nv_lshl_add_u32 v%d, v%d, 3, v%d\nv_mul_u32_u24 v%d, 896, v%d" % (h0, hL, h1, hW, h0, h1, h1))
E("v_and_b32 v%d, 7, v%d\nv_xor_b32 v%d, v%d, v%d\ns_lshl_b32 s99, s%d, 2\nv_xor_b32 v%d, s99, v%d" % (h2, hL, h3, h2, hG, sC, h3, h3))
E("v_lshl_add_u32 v%d, v%d, 4, v%d" % (vDX, h3, h1))
E("v_lshrrev_b32 v%d, 5, v%d\nv_and_b32 v%d, 31, v%d\nv_lshl_add_u32 v%d, v%d, 1, v%d" % (h0, hL, h1, hL, h3, hW, h0))
E("v_lshlrev_b32 v%d, 1, v%d\nv_xor_b32 v%d, v%d, v%d\nv_lshlrev_b32 v%d, 4, v%d" % (h3, h3, h3, h3, h1, h3, h3))
E("s_lshl_b32 s99, s%d, 3\ns_lshl_b32 s100, s%d, 1\ns_add_u32 s99, s99, s100\nv_add_u32 v%d, s99, v%d" % (sR, sC, h1, h0))
E("v_lshl_add_u32 v%d, v%d, 13, v%d" % (vDWQ, h1, h3))
E("v_lshl_add_u32 v%d, v%d, 3, v%d\nv_lshl_add_u32 v%d, v%d, 9, v%d" % (h1, hW, h0, vDKV, h1, h3))
E("s_mul_i32 s100, s97, 129024")
E("s_lshl_b32 s101, s98, 9")
E("s_lshl_b32 s%d, s%d, 10\ns_add_u32 s%d, s%d, %d" % (sXm0, sW, sXm0, sXm0, XB))
ROT = int(opt("rot", "0"))
if ROT >= 0:
    E("s_and_b32 s99, s98, 1\ns_mul_i32 s99, s99, %d\ns_and_b32 s54, s97, %d\ns_mul_i32 s54, s54, %d\ns_add_u32 s99, s99, s54"
      % (ROT, int(opt("rm", "3")), int(opt("rs", "2"))))
    E("s_cmp_ge_u32 s99, 7\ns_cselect_b32 s54, 7, 0\ns_sub_u32 s99, s99, s54")
    E("s_lshl_b32 s54, s99, 19\ns_lshl_b32 s55, s99, 7")
else:
    E("s_mov_b32 s54, 0\ns_mov_b32 s55, 0")
E("s_waitcnt lgkmcnt(0)")
stamp(STAMP == 6)
E("s_add_u32 s4, s4, s100\ns_addc_u32 s5, s5, 0\ns_mov_b32 s6, 129024\ns_mov_b32 s7, 0x20000")
E("s_add_u32 s8, s8, s101\ns_addc_u32 s9, s9, 0\ns_sub_u32 s10, %d, s101\ns_mov_b32 s11, 0x20000" % (448 * 8192))

WPI = {2: 0, 3: 1, 4: 4, 5: 2, 0: 3, 1: 5}
wslot = lambda N: WPI[N % 6] * SLOT


sWo, sXo = 54, 55


def dma_wq(s):
    res = []
    for m in range(4):
        so = (16 * (m & 1) + 4 * (m >> 1)) * 8192 - m * 1024
        t = "s_add_u32 m0, s%d, %d\n" % (sW4K, wslot(s)) if m == 0 else ""
        if m == 0:
            t += "buffer_load_dwordx4 v%d, %s, s%d offen %s lds" % (vDWQ, srd(SRD_WQ), sWo, WNT)
        else:
            t += "s_add_u32 s%d, s%d, %d\nbuffer_load_dwordx4 v%d, %s, s%d offen offset:%d %s lds" % (sTmpO, sWo, so, vDWQ, srd(SRD_WQ), sTmpO, m * 1024, WNT)
        res.append((t, ("W", s)))
    res.append(("s_add_u32 s%d, s%d, 0x40000\ns_cmp_eq_u32 s%d, %d\ns_cselect_b32 s%d, 0, s%d" % (sWo, sWo, sWo, 14 * 0x40000, sWo, sWo), None))
    return res


def dma_x(p):
    res = []
    for k in range(5):
        res.append(("s_add_u32 m0, s%d, %d\ns_add_u32 s%d, s%d, %d\nbuffer_load_dwordx4 v%d, %s, s%d offen %s lds"
                    % (sXm0, (p % 3) * 20480 + 4096 * k, sTmpO, sXo, 28672 * k, vDX, srd(SRD_X), sTmpO, WNT), ("X", p)))
    res.append(("s_add_u32 s%d, s%d, 128\ns_cmp_eq_u32 s%d, 896\ns_cselect_b32 s%d, 0, s%d" % (sXo, sXo, sXo, sXo, sXo), None))
    return res


def touches():
    t0, t1, t2 = 226, 227, 228
    E("v_lshl_add_u32 v%d, v%d, 2, v%d\nv_lshlrev_b32 v%d, 5, v%d\nv_bfe_u32 v%d, v%d, 2, 2\nv_add_u32 v%d, v%d, v%d" % (t0, hW, hG, t0, t0, t1, hL, t0, t0, t1))
    E("s_lshl_b32 s99, s97, 2\nv_add_u32 v%d, s99, v%d\nv_and_b32 v%d, 3, v%d\nv_lshlrev_b32 v%d, 7, v%d\nv_lshl_add_u32 v%d, v%d, 13, v%d"
      % (t0, t0, t1, hL, t1, t1, t0, t0, t1))
    E("buffer_load_dword a203, v%d, %s, %d offen" % (t0, srd(SRD_WQ), 0), tag="t")
    E("s_and_b32 s99, s98, 1\ns_mul_i32 s99, s99, %d\ns_mov_b32 s100, %d" % (72 * 896, (2 ** 32 + 71) // 72))
    for j in range(2):
        E("v_lshl_add_u32 v%d, v%d, 6, v%d\nv_add_u32 v%d, %d, v%d\nv_mul_hi_u32 v%d, s100, v%d\nv_mul_u32_u24 v%d, 72, v%d\nv_sub_u32 v%d, v%d, v%d"
          % (t0, hW, hL, t0, 144 + 256 * j, t0, t1, t0, t2, t1, t0, t0, t2))
        E("v_mul_u32_u24 v%d, 896, v%d\nv_lshl_add_u32 v%d, v%d, 7, v%d" % (t0, t0, t0, t1, t0))
        if j == 1:
            E("v_cmp_gt_u32 vcc, 7, v%d\nv_mov_b32 v%d, 0x40000000\nv_cndmask_b32 v%d, v%d, v%d, vcc" % (t1, t2, t0, t2, t0))
        E("buffer_load_dword a%d, v%d, %s, s99 offen" % (204 + j, t0, srd(SRD_X)), tag="t")


TOUCH = int(opt("touch", "0"))
emit_pieces(dma_x(0) + dma_wq(0) + dma_wq(1))
if TOUCH == 1:
    touches()
E("s_lshl_b32 s99, s97, 4\ns_add_u32 s99, s99, s98")
E("s_xor_b32 s100, s96, 1\ns_lshr_b32 s99, s99, s100")
if OPT.get("map") == "l2":
    E("s_and_b32 s99, s2, 7")
E("s_lshl_b32 s99, s99, 19")
E("s_add_u32 s12, s12, s99\ns_addc_u32 s13, s13, 0\ns_mov_b32 s14, 0x80000\ns_mov_b32 s15, 0x20000")
E("s_add_u32 s16, s16, s99\ns_addc_u32 s17, s17, 0\ns_mov_b32 s18, 0x80000\ns_mov_b32 s19, 0x20000")
E("s_mul_i32 s99, s98, %d" % (256 * 896))
E("s_add_u32 s20, s20, s99\ns_addc_u32 s21, s21, 0\ns_mov_b32 s22, %d\ns_mov_b32 s23, 0x20000" % (256 * 896))
if STAMP:
    E("s_lshl_b32 s99, s2, 8\ns_add_u32 s99, s99, 0x4000000\ns_add_u32 s%d, s24, s99\ns_addc_u32 s%d, s25, 0" % (sWSB, sWSB + 1))
E("s_lshl_b32 s99, s96, 3\ns_add_u32 s99, s99, s97\ns_lshl_b32 s99, s99, 4\ns_add_u32 s3, s99, s98")
E("s_lshl_b32 s99, s3, 17")
E("s_add_u32 s24, s24, s99\ns_addc_u32 s25, s25, 0\ns_mov_b32 s26, %d\ns_mov_b32 s27, 0x20000" % SLAB)
E("s_mov_b32 s%d, 0\ns_mov_b32 s%d, 0" % (sOffK, sOffV))
if int(opt("tlb", "0")):
    E("s_cmp_lg_u32 s%d, 2\ns_cbranch_scc1 L_notlb\ns_mov_b64 exec, 1\nv_mov_b32 v%d, 0" % (sW, h0))
    for sr in (SRD_K, SRD_V, SRD_WO, SRD_WS):
        raw("buffer_load_dword a202, v%d, %s, 0 offen" % (h0, srd(sr)))
    raw("global_load_dword a202, v%d, s[56:57]\nglobal_load_dword a202, v%d, s[58:59]" % (h0, h0))
    E("v_mov_b32 v%d, %d" % (h1, FLG + 0x10000))
    raw("global_load_dword a202, v%d, s[60:61]" % h1)
    E("s_mov_b64 exec, -1\nL_notlb:")


def rho(dst, i, t1):
    E("v_lshrrev_b32 v%d, 1, v%d\nv_and_b32 v%d, 3, v%d\nv_lshlrev_b32 v%d, 3, v%d" % (dst, i, dst, dst, dst, dst))
    E("v_lshrrev_b32 v%d, 3, v%d\nv_lshl_add_u32 v%d, v%d, 1, v%d" % (t1, i, dst, t1, dst))
    E("v_and_b32 v%d, 1, v%d\nv_add_u32 v%d, v%d, v%d" % (t1, i, dst, dst, t1))


E("v_lshrrev_b32 v%d, 1, v%d\nv_xor_b32 v%d, v%d, v%d\nv_lshlrev_b32 v%d, 7, v%d" % (h0, hI, h0, h0, hG, h1, hI))
E("v_add_u32 v%d, %d, v%d\ns_lshl_b32 s99, s%d, 13" % (h1, XB, h1, sR))
for par in range(2):
    E("v_xor_b32 v%d, %d, v%d\nv_lshl_add_u32 v%d, v%d, 4, v%d" % (h2, 4 * par, h0, h2, h2, h1))
    E("v_add_u32 v%d, s99, v%d\nv_add_u32 v%d, %d, v%d" % (vXR + par, h2, vXR + 2 + par, 128 * 128, h2))
E("v_lshrrev_b32 v%d, 2, v%d" % (h5, hL))
rho(h4, h5, h0)
E("v_lshlrev_b32 v%d, 9, v%d\nv_and_b32 v%d, 7, v%d\nv_and_b32 v%d, 3, v%d" % (h4, h4, h5, h5, h3, hL))
E("v_lshlrev_b32 v%d, 1, v%d\nv_xor_b32 v%d, v%d, v%d\ns_lshl_b32 s99, s%d, 3\nv_xor_b32 v%d, s99, v%d" % (h0, h5, h0, h0, h3, sR, h0, h0))
E("s_lshl_b32 s99, s%d, 8\nv_add_u32 v%d, s99, v%d" % (sC, h1, h4))
for b in range(4):
    E("v_xor_b32 v%d, %d, v%d\nv_lshl_add_u32 v%d, v%d, 4, v%d\nv_add_u32 v%d, 0x10000, v%d" % (h2, 4 * b, h0, vW + b, h2, h1, vW + 4 + b, vW + b))
emit_pieces(dma_x(1) + dma_wq(2))
E("s_lshl_b32 s99, s%d, 2\nv_xor_b32 v%d, s99, v%d" % (sR, h0, h5))
E("s_mul_i32 s99, s%d, 2304\ns_add_u32 s99, s99, %d\nv_add_u32 v%d, s99, v%d\nv_lshl_add_u32 v%d, v%d, 3, v%d" % (sC, VB, h1, h4, h1, h3, h1))
for b in range(8):
    E("v_xor_b32 v%d, %d, v%d\nv_lshl_add_u32 v%d, v%d, 5, v%d\nv_xor_b32 v%d, 0x800, v%d" % (h2, b, h0, vV + b, h2, h1, vV + 8 + b, vV + b))
rho(h4, hI, h0)
E("v_and_b32 v%d, 7, v%d\nv_lshlrev_b32 v%d, 1, v%d\nv_xor_b32 v%d, v%d, v%d" % (h0, hI, h0, h0, h0, h0, hG))
E("s_lshl_b32 s99, s%d, 11\nv_lshlrev_b32 v%d, 9, v%d\nv_add_u32 v%d, s99, v%d" % (sC, h1, h4, h1, h1))
for b in range(4):
    E("v_xor_b32 v%d, %d, v%d\nv_lshl_add_u32 v%d, v%d, 4, v%d" % (h2, 4 * b, h0, vK + b, h2, h1))
E("s_mul_i32 s99, s%d, 5120\ns_add_u32 s99, s99, %d\nv_lshlrev_b32 v%d, 3, v%d\nv_add_u32 v%d, s99, v%d" % (sW, PX, h0, hL, vPW, h0))
E("s_xor_b32 s99, s%d, 1\ns_mul_i32 s99, s99, 5120\ns_add_u32 s99, s99, %d\nv_add_u32 v%d, s99, v%d" % (sW, PX, vPR, h0))
E("v_lshlrev_b32 v%d, 2, v%d\nv_add_u32 v%d, %d, v%d" % (vMB, hL, vMB, MB, vMB))
emit_pieces(dma_wq(3))
if TOUCH == 2:
    touches()
stamp(STAMP == 6)

QAB = 28
QA = lambda T, sd, v: QAB + 32 * T + 4 * (2 * sd + v) if T < 4 else QAB + 128 + 4 * (2 * (sd - 2) + v)
aX = 0
X_ = lambda T, s: aX + 40 * ((s >> 1) & 1) + 20 * (s & 1) + 4 * T


def xreads(p):
    out = []
    for s in (2 * p, 2 * p + 1):
        for T in range(5):
            if T < 4:
                out.append("ds_read_b128 %s, v%d offset:%d" % (ar(X_(T, s)), vXR + (s & 1), (p % 3) * 20480 + T * 2048))
            else:
                out.append("ds_read_b128 %s, v%d offset:%d" % (ar(X_(T, s)), vXR + 2 + (s & 1), (p % 3) * 20480))
    return out


def build_qp(N, k0):
    fr = Frags(k0)
    mf = []
    win, off = wslot(N) >> 16, wslot(N) & 0xffff
    for sd in range(4):
        for v in range(2):
            a = vW + 4 * win + sd
            b = fr.new(mf, rdtr(a, a, off + 8 * v, off + 8 * v + 2048))
            for T in range(5 if sd >= 2 else 4):
                mf.append(dict(text=mfma(vr(QA(T, sd, v)), ar(b), ar(X_(T, N)), "0" if N == 0 else vr(QA(T, sd, v)))))
    return fr, mf


Kp = lambda n, cap=False: dma_kv("K", KB + (n & 3) * SLOT, ("K", n), cap)
Vp = lambda n, cap=False: dma_kv("V", VB + (n & 3) * SLOT, ("V", n), cap)
WOT = int(opt("wot", "99"))
KVT = int(opt("kvt", "0"))
late = {9: Kp(0), 10: Kp(1), 11: Vp(0), 12: Kp(2), 13: Kp(3)}
wplan = {0: [4], 1: [5], 2: [6, 7], 3: [8], 4: [9], 5: [10], 6: [11], 7: [12], 8: [13]}
zero_q = ["v_mov_b32 v%d, 0" % r for r in range(172, 200)] + ["v_mov_b32 v%d, 0" % r for r in range(226, 256)] + \
         ["v_accvgpr_write_b32 a%d, 0" % r for r in range(aO9, aO9 + 32)]
vmwait([("X", 0), ("W", 1)])
E("s_barrier")
stamp(STAMP == 6)
for t in xreads(0):
    E(t)
k = 0
for N in range(14):
    fr, mf = build_qp(N, k)
    n = len(mf)
    if N > 0:
        vmwait([("W", min(N + 1, 13))] + ([("X", (N + 1) // 2)] if (N & 1) and N < 12 else []))
        E("s_barrier")
    rq = fr.items(0 if N == 0 else LEAD, LEAD)
    if N < 13:
        nf, _ = build_qp(N + 1, fr.k)
        for j in range(LEAD):
            e = fr.first[len(fr.fr) - LEAD + j]
            rq.append(Item("\n".join(nf.fr[j][1]), e, e + 3))
    pieces = []
    for W in wplan.get(N, []):
        pieces += dma_wq(W)
    if N == WOT:
        pieces += [("s_lshr_b32 s99, s3, 4\ns_and_b32 s99, s99, 7\ns_lshl_b32 s99, s99, 2", None),
                   ("s_add_u32 s99, s99, s%d\ns_mul_i32 s99, s99, %d\nv_lshlrev_b32 v%d, 7, v%d" % (sW, 56 * 128, h5, hL), None),
                   ("s_mov_b32 exec_hi, 0x00ffffff\nbuffer_load_dword a200, v%d, %s, s99 offen\ns_mov_b32 exec_hi, -1" % (h5, srd(SRD_WO)), "t")]
    pieces += late.get(N, [])
    if KVT and N >= 14 - KVT:
        j = N - (14 - KVT)
        if j == 0:
            pieces += [("v_lshlrev_b32 v%d, 7, v%d\ns_lshl_b32 s53, s%d, 13" % (h5, hL, sW), None)]
        base = (5 if (j & 1) == 0 else 2) * SLOT + (j >> 1) * 32768
        pieces += [("s_add_u32 s99, s53, %d\nbuffer_load_dword a%d, v%d, %s, s99 offen" % (base, 206 + j, h5, srd(SRD_K if (j & 1) == 0 else SRD_V)), "t")]
    if N == 0:
        pieces += dma_x(2)
    elif (N & 1) == 0 and N // 2 + 2 < 7:
        pieces += dma_x(N // 2 + 2)
    nd = len([1 for (t, _) in pieces if "buffer_load" in t])
    dq = spread(pieces, 0, max(2.5, min(4.0, (n - 2) / max(1, nd))))
    xq = [Item(t, 0, 24) for t in xreads((N + 1) // 2)] if (N & 1) and N < 12 else []
    zq = [Item(t, 0, BIG) for t in zero_q[9 * (N - 1):9 * N]] if 1 <= N <= 10 else []
    run_phase(mf, [rq, xq, dq, zq], "qp%d" % N)
    k = fr.k
    stamp(STAMP == 6 and (N & 1) and N < 13)
stamp(STAMP in (5, 6))
E("s_barrier")
E("s_mov_b32 s100, %s\ns_mov_b32 s101, %s" % (fbits(CSCALE), fbits(CSCALE)))
E("s_lshl_b32 s99, s%d, 15\ns_lshl_b32 s96, s%d, 12\ns_add_u32 s99, s99, s96\ns_lshl_b32 s97, s%d, 11\ns_add_u32 s99, s99, s97\ns_add_u32 s99, s99, %d"
  % (sR, sC, sR, QS))
E("v_lshlrev_b32 v%d, 4, v%d\nv_add_u32 v%d, s99, v%d\nv_xor_b32 v%d, 0x800, v%d" % (h0, hL, h1, h0, h2, h1))
E("s_xor_b32 s97, s97, 0x800\ns_add_u32 s96, s96, s97\ns_add_u32 s96, s96, %d\nv_add_u32 v%d, s96, v%d" % (QS + 65536, h3, h0))
for T in (4, 0, 1, 2, 3):
    for sd in (range(4) if T < 4 else (2, 3)):
        a = QA(T, sd, 0)
        for j in range(4):
            E("v_pk_mul_f32 %s, %s, s[100:101]" % (vr(a + 2 * j, 2), vr(a + 2 * j, 2)))
        for j in range(4):
            E("v_cvt_pk_bf16_f32 v%d, v%d, v%d" % (a + j, a + 2 * j, a + 2 * j + 1))
        if T < 4:
            E("ds_write_b128 v%d, %s offset:%d" % (h1 if sd < 2 else h2, vr(a), T * 8192 + (sd & 1) * 1024))
        else:
            E("ds_write_b128 v%d, %s offset:%d" % (h3, vr(a), (sd & 1) * 1024))
E("s_lshl_b32 s99, s%d, 15\ns_add_u32 s99, s99, %d\nv_add_u32 v%d, s99, v%d\nv_add_u32 v%d, %d, v%d" % (sR, QS, h1, h0, h2, QS + 65536, h0))
vmwait([("K", 1)])
E("s_waitcnt lgkmcnt(0)")
E("s_barrier")
qreads = []
for s in range(8):
    for T in range(5):
        qreads.append("ds_read_b128 %s, v%d offset:%d" % (ar(Q_(T, s)), h1 if T < 4 else h2, (T * 8192 if T < 4 else 0) + s * 1024))
for r_ in range(vL, vL + 5):
    E("v_mov_b32 v%d, 0" % r_)
E("s_mov_b32 s%d, 0\ns_mov_b32 s%d, 0" % (sFloor, sFirst))
stamp()

E("s_mov_b32 s%d, 0x3f803f80" % sOnes)
late_zero = ["v_mov_b32 v%d, 0" % r for r in list(range(128, 172)) + list(range(200, 226))]
E("s_cmp_eq_u32 s%d, 1\ns_cbranch_scc1 L_att1" % sR)

OBUF = [VB, KB, KB + 32768, VB + 32768]
OLDS = lambda q: OBUF[(q >> 1) & 3] + (q & 1) * SLOT
vDWO = vSc


def dma_wo(q):
    sg, a = q >> 1, q & 1
    res = []
    for m in range(4):
        t = "s_add_u32 m0, s%d, %d\n" % (sW4K, OLDS(q)) if m == 0 else ""
        res.append((t + "s_mov_b32 s%d, %d\nbuffer_load_dwordx4 v%d, %s, s%d offen offset:%d %s lds"
                    % (sTmpO, a * 114688 + m * 6144 + 128 * sg, vDWO, srd(SRD_WO), sTmpO, m * 1024, opt("ont", "nt")), ("O", q)))
    return res


OFo = lambda T, kk: 64 + 16 * T + 4 * kk
OFp = lambda T, kk: 0 + 16 * T + 4 * kk
aOF9 = 64
aHOLD = 96
TB = list(range(40, 56))
vST, vST9, wA, wB, rA, rB = 4, 5, 6, 7, 1, 2
vRI = vL
acc_ = lambda sg, T: (8, 16, 56, 32)[T] if sg == 0 else 128 + 32 * ((sg - 1) % 3) + 8 * T
acc9 = lambda sg: 224 + 4 * (sg % 4)
v9st = 240
O9S, LX, O9P = PX, PX + 16384, 155648


def tail_setup():
    t = ["v_mbcnt_lo_u32_b32 v0, -1, 0\nv_mbcnt_hi_u32_b32 v0, -1, v0",
         "s_load_dwordx2 s[12:13], s[0:1], 88\ns_load_dwordx2 s[14:15], s[0:1], 96" if False else "s_nop 0",
         "v_lshrrev_b32 v3, 2, v0\nv_lshlrev_b32 v3, 7, v3", "v_and_b32 v30, 3, v0\nv_lshl_add_u32 v3, v30, 3, v3",
         "s_lshl_b32 s99, s%d, 1\ns_xor_b32 s99, s99, s%d\nv_bfe_u32 v30, v0, 3, 2" % (sC, sR), "v_xor_b32 v30, s99, v30",
         "v_lshl_add_u32 v30, v30, 5, v3\nv_xor_b32 v31, 32, v30"]
    for kk in range(4):
        t.append("s_lshl_b32 s98, s%d, 1\ns_xor_b32 s98, s98, %d\ns_lshl_b32 s98, s98, 12" % (sR, kk))
        t.append("s_lshl_b32 s99, s%d, 14\ns_add_u32 s99, s99, s98\ns_add_u32 s99, s99, %d" % (sC, VB))
        for nt in range(2):
            t.append("v_add_u32 v%d, s99, v%d\nv_xor_b32 v%d, 0x4000, v%d" % (TB[2 * kk + nt], 30 + nt, TB[8 + 2 * kk + nt], TB[2 * kk + nt]))
    for T in range(5):
        t.append("v_mov_b32 v30, v%d\nv_mov_b32 v31, v%d" % (vL + T, vL + T))
        t.append("s_nop 0\nv_permlane32_swap_b32 v30, v31")
        t.append("v_add_f32 v30, v30, v31\nv_mov_b32 v31, v30")
        t.append("s_nop 0\nv_permlane16_swap_b32 v30, v31")
        t.append("v_add_f32 v%d, v30, v31" % (vL + T))
    t.append("v_and_b32 v3, 15, v0\nv_lshlrev_b32 v3, 2, v3")
    t.append("s_mul_i32 s99, s%d, 320\ns_add_u32 s99, s99, %d\nv_add_u32 v30, s99, v3" % (sW, LX))
    t += ["ds_write_b32 v30, v%d offset:%d" % (vL + T, 64 * T) for T in range(5)]
    t.append("v_lshlrev_b32 v0, 4, v0")
    t.append("s_lshl_b32 s99, s%d, 16\ns_lshl_b32 s98, s%d, 12\ns_add_u32 s99, s99, s98" % (sR, sC))
    t.append("s_lshl_b32 s98, s%d, 11\ns_add_u32 s99, s99, s98\ns_add_u32 s99, s99, 32768" % sR)
    t.append("v_add_u32 v%d, s99, v0\nv_xor_b32 v%d, 0x800, v%d" % (wA, wB, wA))
    return t


def tail_setup2():
    t = []
    t.append("v_xor_b32 v%d, 0x1000, v%d\nv_xor_b32 v%d, 0x1000, v%d" % (rA, wA, rB, wB))
    t.append("s_lshl_b32 s99, s%d, 13\ns_lshl_b32 s98, s%d, 10\ns_add_u32 s99, s99, s98" % (sR, sC))
    t.append("v_add_u32 v%d, s99, v0" % vST)
    t.append("s_lshl_b32 s99, s%d, 10\nv_add_u32 v%d, s99, v0" % (sW, vST9))
    return t


saved = (list(P.dsq), list(P.vmq), nstamp[0])
for r in range(2):
    P.dsq, P.vmq = list(saved[0]), list(saved[1])
    nstamp[0] = saved[2]
    if r == 1:
        E("L_att1:")
    fr, mf = Frags(0), []
    qk_part(0, r, fr, mf)
    for m_ in mf:
        m_["text"] = re.sub(r", v\[(*SKIP)(*F)|$^", "", m_["text"]) if False else m_["text"]
    for T in tiles_of(0, r):
        mf[[i_ for i_, m_ in enumerate(mf) if m_["text"].endswith(vr(vNegM + 4 * T))][0]]["text"] = \
            mfma(vr(S_(0, T)), ar(fr.fr[0][0]), ar(Q_(T, 0)), "0")
    qq = []
    for f in range(8):
        e = -1 if f < 2 else fr.first[f - 2]
        d = -1 if f < 2 else fr.first[f - 1] - 1
        qq += [Item(t, e, d) for t in fr.fr[f][1] + qreads[5 * f:5 * f + 5]]
    lz = [t for t in late_zero if int(t.split()[1][1:-1]) not in (h1, h2)]
    run_phase(mf, [qq, [Item(t, 0, BIG) for t in lz]], "qk0")
    E("v_mov_b32 v%d, 0\nv_mov_b32 v%d, 0" % (h1, h2))
    stamp(STAMP == 9)
    sc = P_base[0]
    tl = tiles_of(0, r)
    for T in tl:
        s0 = S_(0, T)
        E("v_max3_f32 v%d, v%d, v%d, v%d\nv_max_f32 v%d, v%d, v%d" % (sc + T, s0, s0 + 1, s0 + 2, sc + T, sc + T, s0 + 3))
    for sw in ("v_permlane32_swap_b32", "v_permlane16_swap_b32"):
        for T in tl:
            E("v_mov_b32 v%d, v%d" % (sc + 8 + T, sc + T))
        for T in tl:
            E("%s v%d, v%d" % (sw, sc + T, sc + 8 + T))
        for T in tl:
            E("v_max_f32 v%d, v%d, v%d" % (sc + T, sc + T, sc + 8 + T))
    E("s_mul_i32 s99, s%d, 1280\nv_add_u32 v%d, s99, v%d" % (sW, sc + 5, vMB))
    for T in tl:
        E("ds_write_b32 v%d, v%d offset:%d" % (sc + 5, sc + T, 4096 + 256 * T))
    E("s_xor_b32 s99, s%d, 1\ns_mul_i32 s99, s99, 1280\nv_add_u32 v%d, s99, v%d" % (sW, sc + 5, vMB))
    E("s_waitcnt lgkmcnt(0)\ns_barrier")
    for T in range(4):
        E("ds_read_b32 v%d, v%d offset:%d" % (sc + 8 + T, sc + 5, 4096 + 256 * T))
    for w_ in range(2):
        E("ds_read_b32 v%d, v%d offset:%d" % (sc + 12 + w_, vMB, 4096 + 1280 * w_ + 1024))
    E("s_cmp_eq_u32 s%d, 0\ns_cselect_b64 vcc, 0, -1" % sPara)
    emit_pieces(Vp(1) + Kp(4))
    for T in (split_tiles(0, r)[0] + split_tiles(0, r)[1] + ([] if 4 in tl else [4])):
        if T < 4:
            E("v_max_f32 v%d, v%d, v%d" % (sc + T, sc + T, sc + 8 + T))
        else:
            E("v_max_f32 v%d, v%d, v%d" % (sc + 4, sc + 12, sc + 13))
        for j in range(4):
            E("v_sub_f32 v%d, 0, v%d" % (vNegM + 4 * T + j, sc + T))
        if T in tl:
            for j in range(4):
                E("v_sub_f32 v%d, v%d, v%d" % (S_(0, T) + j, S_(0, T) + j, sc + T))
    stamp(STAMP == 9)
    stamp(STAMP == 9)
    if STAMP == 1:
        E("s_memtime s[88:89]\ns_memrealtime s[84:85]\ns_waitcnt lgkmcnt(0)")
    tbank[0] = 0
    for it in softmax_items(0, split_tiles(0, r)[0], -1, BIG):
        it.emit()
    E("s_mov_b32 s%d, 0" % sLoop)
    drain_writes()
    k = 8
    for t in qk_pref(1, r, k):
        E("\n".join(t))
    tbank[0] = 0
    if STAMP == 9:
        stamp()
        for n in range(4):
            for t in (qk_pref(1, r, k) if n == 0 else []):
                E("\n".join(t))
            k = step(n, r, k, Vp(n + 2, True), Kp(n + 5, True), 16, qk_pref(n + 2, r, k + 16))
            raw("s_memrealtime s[%d:%d]" % (sStamp + 2 * nstamp[0], sStamp + 2 * nstamp[0] + 1))
            nstamp[0] += 1
        E("s_waitcnt lgkmcnt(0)")
        for t in qk_pref(1, r, k):
            E("\n".join(t))
        E("s_mov_b32 s%d, 1" % sLoop)
    RAMP = opt("ramp", "")
    if RAMP:
        save_caps = list(CAPS)
        for ch in RAMP:
            CAPS[:] = [int(ch)]
            for n in range(4):
                k = step(n, r, k, Vp(n + 2, True), Kp(n + 5, True), 16, qk_pref(n + 2, r, k + 16))
            drain_writes()
        CAPS[:] = save_caps
        E("s_waitcnt lgkmcnt(0)\ns_mov_b32 s%d, %d" % (sLoop, len(RAMP)))
        for t in qk_pref(1, r, k):
            E("\n".join(t))
    entry = [set(d) for (_, d) in P.dsq]
    E("L_loop%d:" % r)
    for n in range(4):
        k = step(n, r, k, Vp(n + 2, True), Kp(n + 5, True), 16, qk_pref(n + 2, r, k + 16))
    now = [set(d) for (_, d) in P.dsq if d]
    assert now == entry, (now, entry)
    drain_writes()
    if STAMP == 7:
        raw("s_memrealtime s[80:81]\ns_memtime s[82:83]\ns_waitcnt lgkmcnt(0)\ns_lshl_b64 exec, 1, s%d\n"
            "v_accvgpr_write_b32 a199, s80\nv_accvgpr_write_b32 a198, s82\ns_mov_b64 exec, -1" % sLoop)
    E("s_add_u32 s%d, s%d, 1\ns_cmp_lt_u32 s%d, 6\ns_cbranch_scc1 L_loop%d" % (sLoop, sLoop, sLoop, r))
    if STAMP == 1:
        raw("s_memtime s[90:91]\ns_memrealtime s[86:87]")
        E("s_waitcnt lgkmcnt(0)")
    for n in range(24, 31):
        pre = Vp(n + 2, True) if n + 2 < 32 else []
        post = Kp(n + 5, True) if n + 5 < 32 else []
        if n >= 27:
            post = dma_wo({27: 2, 28: 3, 29: 0, 30: 1}[n])
        if n == int(opt("wot2", "30")):
            post = post + [("s_lshr_b32 s99, s3, 4\ns_and_b32 s99, s99, 7\ns_lshl_b32 s99, s99, 2", None),
                           ("s_add_u32 s99, s99, s%d\ns_mul_i32 s99, s99, %d\nv_subrev_u32 v%d, %d, v%d" % (sW, 56 * 128, vDKV, MB, vMB), None),
                           ("v_lshlrev_b32 v%d, 5, v%d" % (vDKV, vDKV), None),
                           ("s_mov_b32 exec_hi, 0x00ffffff\nbuffer_load_dword a200, v%d, %s, s99 offen %s\ns_mov_b32 exec_hi, -1"
                            % (vDKV, srd(SRD_WO), opt("tnt", "")), "t")]
            if int(opt("ftouch", "0")):
                post = post + [("s_lshr_b32 s99, s3, 4\ns_lshl_b32 s99, s99, 11\ns_add_u32 s99, s99, %d" % FLG, None),
                               ("v_mov_b32 v%d, s99\nv_mov_b32 v%d, 0" % (vDKV, vK), None),
                               ("s_mov_b64 exec, 1\nglobal_load_dword a201, v%d, s[60:61] sc1\ns_mov_b64 exec, -1" % vDKV, "t"),
                               ("s_mov_b64 exec, 1\nbuffer_load_dword a202, v%d, %s, 0 offen sc1\ns_mov_b64 exec, -1" % (vK, srd(SRD_WS)), "t"),
                               ("s_mov_b64 exec, 1\nglobal_load_dword a203, v%d, s[56:57]\ns_mov_b64 exec, -1" % vK, "t")]
        vm = 16 if n < 26 else [("K", min(n + 2, 31)), ("V", n if n < 30 else 31)]
        pref = qk_pref(n + 2, r, k + 16) if n < 30 else pv_pref(31, r, k + 16)
        if n == 27:
            t0 = vTmp
            E("v_mbcnt_lo_u32_b32 v%d, -1, 0\nv_mbcnt_hi_u32_b32 v%d, -1, v%d" % (t0, t0, t0))
            E("v_lshrrev_b32 v%d, 4, v%d\nv_lshlrev_b32 v%d, 1, v%d\nv_xor_b32 v%d, v%d, v%d\nv_and_b32 v%d, 7, v%d\nv_lshlrev_b32 v%d, 4, v%d"
              % (vSc, t0, vSc, vSc, vSc, vSc, t0, vSc, vSc, vSc, vSc))
            E("v_lshrrev_b32 v%d, 3, v%d\nv_mul_u32_u24 v%d, 896, v%d\nv_add_u32 v%d, v%d, v%d\ns_mul_i32 s99, s%d, %d\nv_add_u32 v%d, s99, v%d"
              % (t0, t0, t0, t0, vSc, vSc, t0, sW, 32 * 896, vSc, vSc))
        k = step(n, r, k, pre, post, vm, pref, all_next=(n == 30))
    drain_writes()
    E("s_barrier")
    for t in partner_reads(31, r):
        E(t)
    fr, mf = Frags(k), []
    pv_part(31, r, fr, mf)
    run_phase(mf, [fr.items(LEAD, LEAD), [Item(t, 2, BIG) for t in tail_setup()]], "pv31")
    if r == 0:
        E("s_branch L_oproj")
E("L_oproj:")
stamp()
E("s_memrealtime s[96:97]")
vmwait([("O", 1)])
E("s_waitcnt lgkmcnt(0)")
E("s_barrier")


def hold_of(sg, a_, kk):
    return aHOLD + 32 * sg + 4 * (4 * a_ + kk)


def stage_part(sg, a_, fr, mf, kfirst, prev_buf):
    buf = OBUF[sg & 3]
    dwin = ((buf & ~0xffff) - (prev_buf & ~0xffff)) & 0xffffffff
    off = buf & 0xffff
    for kk in range(4):
        for nt in range(2):
            rg = TB[8 * a_ + 2 * kk + nt]
            hold = hold_of(sg, a_, kk) if (sg < 2 and nt == 1) else None
            pre_ = ["v_add_u32 v%d, 0x%x, v%d" % (rg, dwin, rg)] if dwin else []
            bb = fr.new(mf, (lambda p_, f_: (lambda b: p_ + f_(b)))(pre_, rdtr(rg, rg, off, off + 2048)), hold)
            kfirst.setdefault((sg, a_, kk), len(mf))
            z = (a_ == 0 and kk == 0)
            for T in range(4):
                d = acc_(sg, T) + 4 * nt
                mf.append(dict(text=mfma(vr(d), ar(bb), vr(OFo(T, kk)) if a_ == 0 else ar(OFp(T, kk)), "0" if z else vr(d))))
            if nt == 1 and sg >= 2:
                j = 4 * a_ + kk
                mf.append(dict(text=mfma(vr(acc9(sg)), ar(bb), ar(aOF9 + 4 * j), "0" if z else vr(acc9(sg)))))
                if sg == 2:
                    for s9 in range(2):
                        mf.append(dict(text=mfma(vr(acc9(s9)), ar(hold_of(s9, a_, kk)), ar(aOF9 + 4 * j), "0" if j == 0 else vr(acc9(s9)))))


tdone = {}
TMAJ = int(opt("tmaj", "0"))
L6 = [160 + 4 * j for j in range(8)]


def build_stage(sg, k0):
    fr, mf, kfirst = Frags(k0), [], {}
    if sg == 0:
        for (s_, a_) in ((0, 0), (1, 0), (0, 1), (1, 1)):
            stage_part(s_, a_, fr, mf, kfirst, OBUF[0])
    elif sg == 6 and TMAJ:
        off = OBUF[2] & 0xffff
        bufs = {}
        for a_ in range(2):
            for kk in range(4):
                for nt in range(2):
                    rg = TB[8 * a_ + 2 * kk + nt]
                    j = 8 * a_ + 2 * kk + nt
                    hold = None if j < 8 else L6[j - 8]
                    bufs[(a_, kk, nt)] = fr.new(mf, rdtr(rg, rg, off, off + 2048), hold)
                    d = acc_(sg, 0) + 4 * nt
                    z = (a_ == 0 and kk == 0)
                    mf.append(dict(text=mfma(vr(d), ar(bufs[(a_, kk, nt)]), vr(OFo(0, kk)) if a_ == 0 else ar(OFp(0, kk)), "0" if z else vr(d))))
                    if nt == 1:
                        mf.append(dict(text=mfma(vr(acc9(sg)), ar(bufs[(a_, kk, nt)]), ar(aOF9 + 4 * (4 * a_ + kk)), "0" if z else vr(acc9(sg)))))
        tdone[0] = len(mf) - 1
        for T in range(1, 4):
            for a_ in range(2):
                for kk in range(4):
                    for nt in range(2):
                        d = acc_(sg, T) + 4 * nt
                        z = (a_ == 0 and kk == 0)
                        mf.append(dict(text=mfma(vr(d), vr(0) if False else ar(bufs[(a_, kk, nt)]), vr(OFo(T, kk)) if a_ == 0 else ar(OFp(T, kk)), "0" if z else vr(d))))
            tdone[T] = len(mf) - 1
    else:
        for a_ in range(2):
            stage_part(sg, a_, fr, mf, kfirst, OBUF[(sg - 1) & 3])
    return fr, mf, kfirst


def conv_items(kk, e, d):
    return [Item("v_cvt_pk_bf16_f32 v%d, v%d, v%d" % (OFo(T, kk) + j, O_(T, 2 * kk) + 2 * j, O_(T, 2 * kk) + 2 * j + 1), e, d)
            for T in range(4) for j in range(4)]


def out_items(sg, e0, step_, nine, tiles=(0, 1, 2, 3)):
    its = []
    for T in tiles:
        e = e0 + T * step_
        a0 = acc_(sg, T)
        for j in range(8):
            its.append(Item("v_mul_f32 v%d, v%d, v%d" % (a0 + j, vRI + T, a0 + j), e, BIG))
        for j in range(4):
            its.append(Item("v_cvt_pk_bf16_f32 v%d, v%d, v%d" % (a0 + j, a0 + 2 * j, a0 + 2 * j + 1), e, BIG))
        its.append(Item("s_mov_b32 s%d, %d\nbuffer_store_dwordx4 %s, v%d, %s, s%d offen offset:%d %s"
                        % (sT1, sg * 16384 + (T >> 1) * 4096, vr(a0), vST, srd(SRD_WS), sT1, (T & 1) * 2048, STP), e, BIG, ("st", sg)))
    e = e0 + 4 * step_
    for s9 in nine:
        a0, d = acc9(s9), v9st + 2 * (s9 & 1)
        for j in range(4):
            its.append(Item("v_mul_f32 v%d, v%d, v%d" % (a0 + j, vRI + 4, a0 + j), e, BIG))
        its.append(Item("v_cvt_pk_bf16_f32 v%d, v%d, v%d\nv_cvt_pk_bf16_f32 v%d, v%d, v%d" % (d, a0, a0 + 1, d + 1, a0 + 2, a0 + 3), e, BIG))
        if s9 == 6:
            its.append(Item("v_mov_b32 v%d, 0\nv_mov_b32 v%d, 0" % (v9st + 2, v9st + 3), e, BIG))
        if (s9 & 1) or s9 == 6:
            its.append(Item("s_mov_b32 s%d, %d\nbuffer_store_dwordx4 %s, v%d, %s, s%d offen %s"
                            % (sT1, 114688 + 4096 * (s9 >> 1), vr(v9st), vST9, srd(SRD_WS), sT1, STP), e, BIG, ("st", sg)))
    return its


npub = [0]


def publish(parts):
    k_ = npub[0]
    npub[0] += 1
    E("s_cmp_lg_u32 s%d, 0\ns_cbranch_scc1 L_nopub%d" % (sW, k_))
    E("s_mov_b64 exec, 0x%x\nv_mov_b32 v2, s96\nv_mov_b32 v3, s97\ns_mov_b64 exec, 0xffff" % ((2 << max(parts)) - 1))
    raw("global_store_dwordx2 v1, v[2:3], s[14:15] sc1")
    E("s_mov_b64 exec, -1")
    E("L_nopub%d:" % k_)


fr0 = build_stage(0, 0)[0]
for f in range(LEAD):
    E("\n".join(fr0.fr[f][1]))
for it in conv_items(0, -1, BIG):
    it.emit()
k = 0
carried = []
issue_plan = {2: [6, 7, 8, 9], 3: [10, 11], 4: [12, 13]} if opt("plan", "1") == "0" else {2: [6, 7, 8], 3: [9, 10], 4: [11, 12], 5: [13]}
for sg in (0, 2, 3, 4, 5, 6):
    fr, mf, kfirst = build_stage(sg, k)
    N = len(mf)
    stamp(STAMP == 5)
    bpos = N - EARLY
    rq = fr.items(LEAD, LEAD)
    if sg == 6 and TMAJ:
        rq = [Item("\n".join(fr.fr[f][1]), -1, max(-1, fr.first[f] - 8)) for f in range(5, 16)]
    nxt = 2 if sg == 0 else sg + 1
    pieces = []
    for q in issue_plan.get(sg, []):
        pieces += dma_wo(q)
    dq = spread(pieces, 0, 3)
    if opt("plan", "1") != "0" and pieces:
        nq_ = len(issue_plan[sg])
        sa, sb = int(opt("dsa", "4")), int(opt("dsb", "7"))
        dq = spread(pieces[:4 * (nq_ - 1)] if sg < 5 else pieces, 0, sa) + (spread(pieces[4 * (nq_ - 1):], sa * 4 * (nq_ - 1) + 8, sb) if sg < 5 else [])
    if sg < 6:
        nf = build_stage(nxt, fr.k)[0]
        for it in rq:
            it.d = min(it.d, bpos - 3)
            it.e = min(it.e, it.d)
        for j in range(5 if (sg == 5 and TMAJ) else LEAD):
            rq.append(Item("\n".join(nf.fr[j][1]), bpos + max(0, 4 * (j - 3)), bpos + 1 + 2 * j))

    def stage_barrier(sg=sg, fr=fr, nxt=nxt):
        P.wait_ds_regs(rset("a", fr.fr[-1][0]))
        drain_writes()
        pub = {"0": {3: [0, 1], 4: [2], 5: [3]}, "1": {3: [0], 4: [1, 2], 5: [3]}, "2": {5: [3]}}[opt("publate", "0")].get(sg, [])
        vmwait([("O", 2 * nxt + 1)] + [("st", p_) for p_ in pub])
        E("s_barrier")
        if pub:
            publish(pub)
    if sg < 6:
        mf[bpos]["pre"] = [stage_barrier]
    cq, xq, wq_ = [], [], []
    if sg == 0:
        M = kfirst[(0, 1, 0)] - 8
        M2 = M + 18
        wq_.append(Item("v_add_u32 v31, s%d, v0\nv_add_u32 v31, %d, v31" % (sW4K, O9S), -1, M - 1))
        wq_ += [Item("ds_write_b128 v31, %s offset:%d" % (ar(aO9 + 4 * b_), 1024 * b_), -1, M - 1) for b_ in range(4)]
        for kk in range(4):
            if kk:
                cq += conv_items(kk, -1, kfirst[(0, 0, kk)] - 2)
            wq_ += [Item("ds_write_b128 v%d, %s offset:%d" % (wA + (kk >> 1), vr(OFo(T, kk)), T * 8192 + (kk & 1) * 1024),
                         kfirst[(0, 0, kk)] - 1 if kk else -1, M - 1) for T in range(4)]

        def mid_barrier():
            drain_writes()
            E("s_barrier")

        def mid2_barrier():
            P.wait_ds_regs(rset("a", OFp(3, 3)))
            E("s_barrier")
        mf[M]["pre"] = [mid_barrier]
        mf[M2]["pre"] = [mid2_barrier]
        j = 0
        for kk in range(4):
            for T in range(4):
                wq_.append(Item("ds_read_b128 %s, v%d offset:%d" % (ar(OFp(T, kk)), rA + (kk >> 1), T * 8192 + (kk & 1) * 1024),
                                M, M + j // 2 + (2 if kk else 0)))
                j += 1
        dq = spread(dma_wo(4) + dma_wo(5), M2, 3)
        lq = ["s_xor_b32 s99, s%d, 1\ns_mul_i32 s99, s99, 320\ns_add_u32 s99, s99, %d\nv_add_u32 v30, s99, v3\nv_add_u32 v3, %d, v3" % (sW, LX, LX + 256)]
        lq += ["ds_read_b32 v%d, v30 offset:%d" % (244 + T, 64 * T) for T in range(4)]
        lq += ["ds_read_b32 v%d, v3 offset:%d" % (248 + w_, 320 * w_) for w_ in range(4)]
        lq += ["v_add_f32 v%d, v%d, v%d" % (vL + T, vL + T, 244 + T) for T in range(4)]
        lq += ["v_add_f32 v248, v248, v249\nv_add_f32 v250, v250, v251", "v_add_f32 v%d, v248, v250" % (vL + 4),
               "v_add_f32 v244, v%d, v%d\nv_add_f32 v245, v%d, v%d" % (vL, vL + 1, vL + 2, vL + 3),
               "v_add_f32 v244, v244, v245\nv_add_f32 v244, v244, v%d" % (vL + 4),
               "s_mov_b32 s99, %s\nv_cmp_nge_f32 vcc, s99, v244" % fbits(LTHR),
               "s_lshl_b32 s98, s%d, 2\ns_add_u32 s98, s98, %d\nv_mov_b32 v245, s98" % (sW, LX + 2048),
               "s_cmp_lg_u64 vcc, 0\ns_cselect_b32 s99, 1, 0\nv_mov_b32 v244, s99",
               "ds_write_b32 v245, v244"]
        xq = [Item(t, kfirst[(1, 0, 0)], M - 1) for t in tail_setup2() + lq]
        xq += [Item("v_rcp_f32 v%d, v%d" % (vRI + T, vL + T), kfirst[(1, 0, 0)], BIG) for T in range(5)]
        t9 = ["s_xor_b32 s99, s%d, 0x2000\ns_add_u32 s99, s99, %d\nv_add_u32 v31, s99, v0" % (sW4K, O9S)]
        t9 += ["ds_read_b128 %s, v31 offset:%d" % (vr(176 + 4 * b_), 1024 * b_) for b_ in range(4)]
        t9 += ["v_mov_b32 v30, %d\nds_read_b128 v[244:247], v30" % (LX + 2048)]
        t9 += ["v_accvgpr_read_b32 v%d, a%d" % (160 + j, aO9 + 16 + j) for j in range(16)]
        t9 += ["v_or3_b32 v244, v244, v245, v246\nv_or_b32 v244, v244, v247", "s_nop 0\nv_readfirstlane_b32 s99, v244",
               "s_nop 1\ns_andn2_b32 s99, s99, s%d\ns_cbranch_scc1 L_restart" % sPara]
        t9 += ["v_add_f32 v%d, v%d, v%d" % (160 + j, 160 + j, 176 + j) for j in range(16)]
        t9 += ["v_cvt_pk_bf16_f32 v%d, v%d, v%d" % (160 + j, 160 + 2 * j, 161 + 2 * j) for j in range(8)]
        t9 += ["s_lshl_b32 s99, s%d, 12\ns_xor_b32 s98, s%d, 1\ns_lshl_b32 s98, s98, 11" % (sC, sR),
               "s_add_u32 s99, s99, s98\ns_add_u32 s99, s99, %d\nv_add_u32 v31, s99, v0" % O9P]
        t9 += ["ds_write_b128 v31, %s offset:%d" % (vr(160 + 4 * j), 1024 * j) for j in range(2)]
        xq += [Item(t, M + 8, bpos - 1) for t in t9]
        for a_ in range(2):
            for kh in range(2):
                xq.append(Item("s_xor_b32 s99, s%d, %d\ns_lshl_b32 s99, s99, 12\ns_xor_b32 s98, s%d, %d" % (sC, a_, sR, kh), bpos, BIG))
                xq.append(Item("s_lshl_b32 s98, s98, 11\ns_add_u32 s99, s99, s98\ns_add_u32 s99, s99, %d" % O9P, bpos, BIG))
                xq.append(Item("v_add_u32 v31, s99, v0\nds_read_b128 %s, v31" % ar(aOF9 + 16 * a_ + 8 * kh), bpos, BIG))
                xq.append(Item("ds_read_b128 %s, v31 offset:1024" % ar(aOF9 + 16 * a_ + 8 * kh + 4), bpos, BIG))
        cq += out_items(0, kfirst[(1, 1, 0)] + 5, 5, [])
    elif sg == 2:
        cq = out_items(1, int(opt("se0", "5")), int(opt("sst", "11")) + 3, [])
        xq = [Item("s_load_dwordx2 s[12:13], s[0:1], 88\ns_load_dwordx2 s[14:15], s[0:1], 96\ns_waitcnt lgkmcnt(0)", 30, 30),
              Item("s_lshr_b32 s99, s3, 4\ns_lshl_b32 s99, s99, 11\ns_add_u32 s99, s99, %d" % FLG, 31, 40),
              Item("s_add_u32 s14, s14, s99\ns_addc_u32 s15, s15, 0", 31, 40),
              Item("s_and_b32 s99, s3, 15\ns_lshl_b32 s99, s99, 7\nv_lshrrev_b32 v1, 1, v0", 31, 44),
              Item("v_add_u32 v1, s99, v1\nv_mov_b32 v2, 0", 31, 44), Item("v_mov_b32 v3, 0", 31, 44)]
    else:
        cq = out_items(sg - 1, int(opt("se0", "5")), int(opt("sst", "11")), [0, 1, 2] if sg == 3 else [sg - 1])
    if sg == 6 and TMAJ:
        cq = out_items(5, 10, 3, [5]) + out_items(6, tdone[0] + 5, 0, [6], [0])
        for T in (1, 2):
            cq += out_items(6, tdone[T] + 5, 0, [], [T])
    if sg == 6:
        xq = [Item("s_and_b32 s36, s3, 15\ns_lshr_b32 s99, s36, 2\ns_max_u32 s99, s99, %d\ns_lshl_b32 s99, s99, 3" % int(opt("gate1", "3")), 40, 50),
              Item("v_lshrrev_b32 v30, 6, v0\nv_lshlrev_b32 v30, 7, v30", 40, 50), Item("v_add_u32 v31, s99, v30", 40, 50),
              Item("global_load_dwordx2 v[32:33], v31, s[14:15] sc1", 60, 62, "poll")]
    for it in carried:
        it.e = -1
    if sg == 0:
        nine_rd = xq[-16:]
        xq = xq[:-16] + nine_rd[:8]
        pend9 = nine_rd[8:]
    if sg == 2:
        for it in pend9:
            it.e, it.d = -1, kfirst[(2, 1, 0)] - 4
        wq_ = pend9
    carried = run_phase(mf, [rq, dq, carried + cq, wq_, xq], "st%d" % sg, carry=(2,) if (sg == 0 and int(opt("carry", "0"))) else ())
    k = fr.k
for it in (out_items(6, 0, 0, [], [3]) if TMAJ else out_items(6, 0, 0, [6])):
    it.emit()
if int(opt("pub4", "0")):
    vmwait([("st", 4)])
    E("s_barrier")
    publish([4])
stamp()

E("s_load_dwordx2 s[4:5], s[0:1], 96\ns_load_dwordx2 s[8:9], s[0:1], 80")
E("v_lshrrev_b32 v5, 4, v0\nv_and_b32 v4, 15, v5\nv_lshrrev_b32 v5, 4, v5")
E("v_lshlrev_b32 v16, 17, v5\nv_lshl_add_u32 v16, v4, 4, v16")
E("v_mul_u32_u24 v17, 1792, v4\nv_lshrrev_b32 v6, 1, v5\nv_lshl_add_u32 v17, v6, 3, v17\nv_and_b32 v19, 1, v5")
E("v_lshl_add_u32 v14, v19, 7, v17\nv_lshl_add_u32 v17, v19, 5, v17\nv_lshlrev_b32 v19, 30, v19")
E("v_and_b32 v6, 1, v4\nv_lshlrev_b32 v6, 4, v6\nv_mov_b32 v7, 0x3f80\nv_lshlrev_b32 v7, v6, v7\nv_lshrrev_b32 v6, 1, v4")
for r_ in range(4):
    E("v_cmp_eq_u32 vcc, %d, v6\nv_cndmask_b32 v%d, 0, v7, vcc" % (r_, 40 + r_))
    E("v_cmp_eq_u32 vcc, %d, v6\nv_cndmask_b32 v%d, 0, v7, vcc" % (4 + r_, 44 + r_))
E("s_lshr_b32 s35, s3, 4\nv_mov_b32 v18, s%d" % (sClk + 1))
E("s_waitcnt lgkmcnt(0)")
E("s_lshl_b32 s99, s35, 21\ns_add_u32 s4, s4, s99\ns_addc_u32 s5, s5, 0\ns_mov_b32 s6, %d\ns_mov_b32 s7, 0x20000" % (16 * SLAB))
E("s_mov_b32 s10, %d\ns_mov_b32 s11, 0x20000" % (8 * 144 * 896 * 2))
E("s_and_b32 s16, s35, 7\ns_mul_i32 s16, s16, %d\ns_lshr_b32 s17, s35, 3\ns_mul_i32 s17, s17, 896\ns_add_u32 s16, s16, s17" % (144 * 1792))
E("s_lshl_b32 s17, s35, 4\nv_mov_b32 v8, s17")
E("s_lshl_b32 s19, s36, 2\ns_add_u32 s19, s19, s%d" % sW)
E("s_mov_b32 s21, 0\ns_mov_b32 s22, 0\ns_mov_b64 s[46:47], 0")
LIM = int(opt("lim", "2000"))
UD = [64, 176]


def uloads(u):
    E("s_lshl_b32 s20, s19, 10\ns_add_u32 s20, s20, %d" % (65536 * u))
    for p_ in range(2 if opt("hack", "0") == "2" else 4):
        for pc in range(4):
            E("buffer_load_dwordx4 %s, v16, s[4:7], s20 offen offset:%d %s" % (vr(UD[u] + 16 * p_ + 4 * pc), 256 * pc, LDP))
        if p_ < 3:
            E("s_add_u32 s20, s20, %d" % (4 * SLAB))


def flags_ok():
    E("v_subrev_co_u32 v32, vcc, s%d, v32\nv_subb_co_u32 v33, vcc, v33, v18, vcc\nv_cmp_eq_u32 vcc, 0, v33" % sClk)
    E("s_cmp_eq_u64 vcc, -1")


SLP = int(opt("slp", "0"))


def spin(name):
    E("s_cmp_lg_u32 s%d, 0\ns_cbranch_scc1 L_%s_j" % (sW, name))
    E("L_%s:" % name)
    E("global_load_dwordx2 v[32:33], v31, s[14:15] sc1\ns_waitcnt vmcnt(0)")
    E("L_%s_c:" % name)
    flags_ok()
    E("s_cselect_b32 s99, 1, 0\ns_cbranch_scc1 L_%s_d" % name)
    if SLP:
        E("s_sleep %d" % SLP)
    E("s_add_u32 s21, s21, 1\ns_cmp_lt_u32 s21, %d\ns_cbranch_scc1 L_%s" % (LIM, name))
    E("L_%s_d:" % name)
    E("v_mov_b32 v35, s99\nds_write_b32 v36, v35 offset:%d\ns_waitcnt lgkmcnt(0)" % (4 * (name == "spin2")))
    E("L_%s_j:" % name)
    E("s_barrier\nds_read_b32 v35, v36 offset:%d\ns_waitcnt lgkmcnt(0)\nv_readfirstlane_b32 s99, v35" % (4 * (name == "spin2")))
    E("s_cmp_eq_u32 s99, 1")


E("v_mov_b32 v36, %d" % (LX + 3072))
if opt("hack", "0") == "1":
    publish([5, 6])
E("s_waitcnt vmcnt(0)")
E("L_drained:")
stamp()
E("s_barrier")
publish([5, 6])
E("s_cmp_eq_u32 s%d, 0\ns_cbranch_scc1 L_spin1_c" % sW)
spin("spin1")
E("s_cselect_b32 s23, 1, 0\ns_cbranch_scc0 L_have1")
if int(opt("plate", "0")):
    E("s_cmp_eq_u32 s%d, 0\ns_cbranch_scc1 L_have1" % sW)
uloads(0)
E("L_have1:")
stamp()
E("s_cmp_lg_u32 s%d, 0\ns_cbranch_scc1 L_noadd\ns_mov_b64 exec, 1\nv_mov_b32 v9, 1" % sW)
E("global_atomic_add v34, v8, v9, s[12:13] sc0")
E("s_mov_b64 exec, -1\nL_noadd:")
E("s_lshr_b32 s99, s36, 2\ns_add_u32 s99, s99, 4\ns_lshl_b32 s98, s36, 1\ns_sub_u32 s98, s98, 23\ns_min_u32 s98, s98, 6\ns_max_u32 s98, s98, 2\ns_cmp_ge_u32 s36, 12\ns_cselect_b32 s99, s98, s99")
E("s_lshl_b32 s99, s99, 3\nv_add_u32 v31, s99, v30")
spin("spin2")
E("s_cselect_b32 s99, s23, 0\ns_cmp_eq_u32 s99, 1\ns_cbranch_scc0 L_slow")
if int(opt("plate", "0")):
    E("s_cmp_eq_u32 s%d, 0\ns_cbranch_scc1 L_both" % sW)
E("s_branch L_second")
E("L_slow:")
E("s_mov_b32 s21, 0")
E("L_spin3:")
E("global_load_dword v32, v8, s[12:13] sc1\ns_waitcnt vmcnt(0)\nv_readfirstlane_b32 s99, v32")
E("s_cmp_eq_u32 s99, 16\ns_cbranch_scc1 L_both")
E("s_add_u32 s21, s21, 1\ns_cmp_lt_u32 s21, %d\ns_cbranch_scc1 L_spin3" % LIM)
E("s_lshl_b64 s[98:99], 1, s19\ns_mov_b64 exec, 1\nv_mov_b32 v32, s98\nv_mov_b32 v33, s99")
E("global_atomic_or_x2 v8, v[32:33], s[12:13] offset:8\ns_waitcnt vmcnt(0)\ns_mov_b64 exec, -1")
E("global_load_dword v32, v8, s[12:13] sc1\ns_waitcnt vmcnt(0)\nv_readfirstlane_b32 s99, v32")
E("s_cmp_eq_u32 s99, 16\ns_cbranch_scc0 L_next")
E("L_both:")
P.vmq = []
uloads(0)
E("L_second:")
stamp()
uloads(1)
for u in range(2):
    E("s_add_u32 s21, s19, %d" % (64 * u))
    if u == 1:
        E("s_cmp_ge_u32 s21, 112\ns_cbranch_scc1 L_t9")
    E("s_lshr_b32 s20, s21, 4\ns_lshl_b32 s20, s20, 7\ns_add_u32 s20, s20, s16")
    E("s_bfe_u32 s99, s21, 0x30001\ns_mul_i32 s99, s99, %d\ns_add_u32 s20, s20, s99" % (16 * 1792))
    E("s_and_b32 s99, s21, 1\ns_lshl_b32 s99, s99, 6\ns_add_u32 s%d, s20, s99" % (50 + u))
    E("s_bfe_u32 s99, s21, 0x10003\ns_lshl_b32 s99, s99, 5")
    E("v_xor_b32 v%d, s99, v17" % (12 + u))
E("s_branch L_sum")
E("L_t9:")
E("s_bfe_u32 s20, s21, 0x20002\ns_and_b32 s99, s21, 1\ns_lshl_b32 s99, s99, 1\ns_bfe_u32 s98, s21, 0x10001\ns_xor_b32 s98, s98, 1\ns_add_u32 s99, s99, s98\ns_lshl_b32 s99, s99, 5")
E("s_lshl_b32 s51, s20, 8\ns_add_u32 s51, s51, s99\ns_add_u32 s51, s51, s16\ns_add_u32 s51, s51, %d" % (128 * 1792))
E("v_mov_b32 v13, v14\ns_cmp_eq_u32 s20, 3\ns_cbranch_scc0 L_sum\nv_add_u32 v13, v19, v14")
E("L_sum:")
for u in range(2):
    for p_ in range(4):
        for pc in range(4):
            d = 48 + 8 * u + 4 * (pc >> 1)
            E(mfma(vr(d), vr(40 if (pc & 1) == 0 else 44), vr(UD[u] + 16 * p_ + 4 * pc), "0" if (p_ == 0 and (pc & 1) == 0) else vr(d)))
for u in range(2):
    for k_ in range(2):
        d = 48 + 8 * u + 4 * k_
        E("v_cvt_pk_bf16_f32 v%d, v%d, v%d\nv_cvt_pk_bf16_f32 v%d, v%d, v%d" % (d, d, d + 1, d + 1, d + 2, d + 3))
        E("buffer_store_dwordx2 v[%d:%d], v%d, s[8:11], s%d offen offset:%d %s" % (d, d + 1, 12 + u, 50 + u, 16 * k_, opt("ost", "")))
E("L_next:")
E("s_cmp_lg_u32 s%d, 0\ns_cbranch_scc1 L_done" % sW)
E("s_cmp_lg_u32 s22, 0\ns_cbranch_scc1 L_more")
E("s_mov_b32 s22, 1\nv_readfirstlane_b32 s99, v34\ns_cmp_eq_u32 s99, 15\ns_cbranch_scc0 L_done")
E("global_load_dwordx2 v[32:33], v8, s[12:13] offset:8 sc1\ns_waitcnt vmcnt(0)\nv_readfirstlane_b32 s46, v32\nv_readfirstlane_b32 s47, v33")
E("L_more:")
E("s_cmp_eq_u64 s[46:47], 0\ns_cbranch_scc1 L_done")
E("s_ff1_i32_b64 s19, s[46:47]\ns_bitset0_b64 s[46:47], s19\ns_branch L_both")
E("L_done:")
if STAMP:
    E("s_waitcnt vmcnt(0)")
    stamp()
    E("s_waitcnt lgkmcnt(0)")
    if STAMP == 1:
        E("s_memtime s[94:95]\ns_waitcnt lgkmcnt(0)")
    E("v_mov_b32 v1, 0")
    E("s_cmp_lg_u32 s%d, 0\ns_cbranch_scc1 L_end" % sW)
    if STAMP == 7:
        E("v_lshrrev_b32 v2, 2, v0\nv_accvgpr_read_b32 v3, a199\nv_accvgpr_read_b32 v4, a198")
        E("s_mov_b64 exec, 0xffff\nglobal_store_dword v2, v3, s[%d:%d] offset:128\nglobal_store_dword v2, v4, s[%d:%d] offset:192" % (sWSB, sWSB + 1, sWSB, sWSB + 1))
    E("s_mov_b64 exec, 1")
    for k_ in range(16):
        E("v_mov_b32 v2, s%d\nv_mov_b32 v3, s%d" % (sStamp + 2 * k_, sStamp + 2 * k_ + 1))
        E("global_store_dwordx2 v1, v[2:3], s[%d:%d] offset:%d" % (sWSB, sWSB + 1, 8 * k_))
        E("s_nop 1")
E("L_end:\ns_endpgm")
main_ins = P.ins

R = Prog()
F = R.emit
for s_ in stubs:
    F(s_)
F("L_restart:\ns_waitcnt vmcnt(0) lgkmcnt(0)\ns_barrier\ns_mov_b32 s%d, 1\ns_branch L_start" % sPara)
for par in range(2):
    sc = P_base[par]
    F("L_fix%d:" % par)
    F("s_nop 15\ns_waitcnt lgkmcnt(0)")
    for T in range(5):
        s0 = S_(par, T)
        F("v_max3_f32 v%d, v%d, v%d, v%d\nv_max_f32 v%d, v%d, v%d" % (sc + T, s0, s0 + 1, s0 + 2, sc + T, sc + T, s0 + 3))
    F("v_mov_b32 v%d, 0xff800000\ns_cmp_eq_u32 s%d, 1\ns_cbranch_scc1 L_fix%d_a\nv_mov_b32 v%d, v%d\nL_fix%d_a:" % (sc + 5, sHas9, par, sc + 4, sc + 5, par))
    for T in range(5):
        for sw in ("v_permlane32_swap_b32", "v_permlane16_swap_b32"):
            F("v_mov_b32 v%d, v%d\ns_nop 1\n%s v%d, v%d\ns_nop 1\nv_max_f32 v%d, v%d, v%d" % (sc + 5, sc + T, sw, sc + T, sc + 5, sc + T, sc + T, sc + 5))
    F("s_mul_i32 s99, s%d, 1280\nv_add_u32 v%d, s99, v%d" % (sW, sc + 5, vMB))
    for T in range(5):
        F("ds_write_b32 v%d, v%d offset:%d" % (sc + 5, sc + T, 256 * T))
    F("s_waitcnt lgkmcnt(0)\ns_barrier")
    F("s_xor_b32 s99, s%d, 1\ns_mul_i32 s99, s99, 1280\nv_add_u32 v%d, s99, v%d" % (sW, sc + 5, vMB))
    for T in range(4):
        F("ds_read_b32 v%d, v%d offset:%d" % (sc + 6 + T, sc + 5, 256 * T))
    for w_ in range(4):
        F("ds_read_b32 v%d, v%d offset:%d" % (sc + 10 + w_, vMB, 1280 * w_ + 1024))
    F("s_waitcnt lgkmcnt(0)")
    for T in range(4):
        F("v_max3_f32 v%d, v%d, v%d, s%d" % (sc + T, sc + T, sc + 6 + T, sFloor))
    F("v_max3_f32 v%d, v%d, v%d, v%d\nv_max3_f32 v%d, v%d, v%d, s%d" % (sc + 4, sc + 10, sc + 11, sc + 12, sc + 4, sc + 4, sc + 13, sFloor))
    for T in range(5):
        for j in range(4):
            F("v_sub_f32 v%d, v%d, v%d" % (vNegM + 4 * T + j, vNegM + 4 * T + j, sc + T))
        if T == 4:
            F("s_cmp_eq_u32 s%d, 0\ns_cbranch_scc1 L_fix%d_b" % (sHas9, par))
        for j in range(4):
            F("v_sub_f32 v%d, v%d, v%d" % (S_(par, T) + j, S_(par, T) + j, sc + T))
    F("L_fix%d_b:" % par)
    F("s_cmp_eq_u32 s%d, 1\ns_cbranch_scc1 L_fix%d_c" % (sFirst, par))
    for T in range(5):
        F("v_sub_f32 v%d, 0, v%d\nv_exp_f32 v%d, v%d\ns_nop 0\nv_mul_f32 v%d, v%d, v%d\nv_accvgpr_write_b32 a%d, v%d"
          % (sc + T, sc + T, sc + T, sc + T, vL + T, vL + T, sc + T, aF + T, sc + T))
    F("L_fix%d_c:\ns_nop 3\ns_setpc_b64 s[%d:%d]" % (par, sRet, sRet + 1))
F("L_fixo:")
F("s_nop 15")
for T in range(4):
    F("v_accvgpr_read_b32 v%d, a%d" % (vTmp, aF + T))
    for j in range(32):
        F("v_mul_f32 v%d, v%d, v%d" % (vO + 32 * T + j, vTmp, vO + 32 * T + j))
F("v_accvgpr_read_b32 v%d, a%d" % (vTmp, aF + 4))
for j in range(32):
    F("v_accvgpr_read_b32 v%d, a%d\nv_mul_f32 v%d, v%d, v%d\nv_accvgpr_write_b32 a%d, v%d" % (vTmp + 1, aO9 + j, vTmp + 1, vTmp, vTmp + 1, aO9 + j, vTmp + 1))
F("s_nop 3\ns_setpc_b64 s[%d:%d]" % (sRet, sRet + 1))

KILL = OPT.get("kill", "").split(",") if OPT.get("kill") else []
if KILL:
    keep, inside = [], False
    for i in main_ins:
        if i.text.startswith("L_loop"): inside = True
        if "s_cbranch_scc1 L_loop" in i.text: inside = False
        drop = False
        if inside and "sLoop" not in i.text and ("s%d," % sLoop) not in i.text:
            if "dma" in KILL and (i.kind == "dma" or (i.kind == "wait" and "vmcnt" in i.text)): drop = True
            if "bar" in KILL and i.kind == "barrier": drop = True
            if "exp" in KILL and i.kind == "trans": drop = True
            if "valu" in KILL and i.kind == "valu": drop = True
            if "dsw" in KILL and i.kind == "dsw": drop = True
            if "ds" in KILL and i.kind in ("dsr", "dsw"): drop = True
            if "wait" in KILL and i.kind == "wait" and "lgkm" in i.text: drop = True
        if not drop: keep.append(i)
    main_ins = keep
TK = OPT.get("tkill", "").split(",") if OPT.get("tkill") else []
if TK:
    keep, inside = [], False
    for i in main_ins:
        if i.text.startswith("L_oproj"): inside = True
        if i.text.startswith("L_drained"): inside = False
        drop = False
        if inside:
            if "st" in TK and i.kind == "vst" and "dwordx4" in i.op: drop = True
            if "wo" in TK and i.kind == "dma": drop = True
            if "dsw" in TK and i.kind == "dsw" and "b128" in i.op: drop = True
            if "mul" in TK and (i.op.startswith("v_mul_f32") or i.op.startswith("v_cvt_pk")): drop = True
            if "bar" in TK and i.kind == "barrier" and False: drop = True
        if not drop: keep.append(i)
    main_ins = keep
rep = []
main_ins = pad_hazards(main_ins, rep)
rare_ins = pad_hazards(R.ins, None)
from collections import Counter
sys.stderr.write("hazard pads (main): %s\n" % dict(Counter(r_[0] for r_ in rep)))
if OPT.get("v") == "2":
    for r_ in rep:
        sys.stderr.write("  %s\n" % (r_,))
txt = lambda ins: "\n".join(("" if i.kind == "label" else "    ") + i.text for i in ins)
hdr = open("concat_heads__gqa_block_cached__mha_block_cached__near_ridge.s.ref").read().split("; Override launch")[0]
print(hdr.rstrip())
print("; @launch grid=(256,1,1) block=(256,1,1) lds=%d" % LDS_TOTAL)
print(""";
; One workgroup (4 waves, 512 registers each) per (branch, batch, q-head); generated by a hand-written script.
;  1. Q projection: x / wq streamed through LDS (LDS-DMA), Q^T kept as MFMA B fragments (scaled by log2(e)/16 in fp32).
;  2. Attention in 32-key steps, S^T = K Q^T and O^T = V^T P^T.  Wave (r,c): row tiles 4r..4r+3 (+ the ninth tile in turns),
;     Softmax reference = true row maximum of the first key step (MFMA C input).  The row sums are checked at the end;
;     if the reference was too low (sum > 2^30 or not finite) the workgroup starts again with the running true maximum.
;  4. The 16 heads of a (branch, batch) hand their partials over through time-tagged flag lines in d_ws; every wave sums
;     two 1 KB units over the heads and writes d_out.  d_debug holds the counters of the fall-back used when a
;     workgroup cannot wait for the others (the last arriver then does the sums that were given away).""")
print('.amdgcn_target "amdgcn-amd-amdhsa--gfx950"')
print(".text")
print(".globl %s\n.p2align 8\n.type %s,@function" % (KN, KN))
body = txt(main_ins) + "\n" + txt(rare_ins) + "\nL_codeend:"
if OPT.get("split"):
    pa, pb = OPT["split"].split(",")
    first, rest = body.split("\n", 1)

    def variant(t, pol, cap):
        t = re.sub(r"(buffer_load_dwordx4 v0, s\[\d+:\d+\], s\d+ offen offset:\d+) nt lds", r"\1 %s lds" % pol.replace("_", " "), t)
        if cap:
            t = re.sub(r"s_waitcnt vmcnt\(%d\)\n(\s+buffer_load_dwordx4 v0,)" % (CAPV - 1), r"s_waitcnt vmcnt(%d)\n\1" % (int(cap) - 1), t)
        return t
    bcopy = re.sub(r"\bL_(\w+)", r"L_\1_B", variant(rest, pb, OPT.get("capb")))
    body = first + "\n    s_bitcmp1_b32 s2, 7\n    s_cbranch_scc0 L_entry_A\n    s_getpc_b64 s[4:5]\nL_jb:\n    s_add_u32 s4, s4, L_entry_B-L_jb\n    s_addc_u32 s5, s5, 0\n    s_setpc_b64 s[4:5]\nL_entry_A:\n" + \
        variant(rest, pa, OPT.get("capa")) + "\n.p2align 6\nL_entry_B:\n" + bcopy
print(body)
print('.section .rodata,"a"')
print(""".p2align 6
.amdhsa_kernel %s
  .amdhsa_next_free_vgpr 512
  .amdhsa_next_free_sgpr 102
  .amdhsa_accum_offset 256
  .amdhsa_group_segment_fixed_size 0
  .amdhsa_kernarg_size 104
  .amdhsa_user_sgpr_count 2
  .amdhsa_user_sgpr_kernarg_segment_ptr 1
  .amdhsa_system_sgpr_workgroup_id_x 1
.end_amdhsa_kernel""" % KN)
```
